```python
import torch

def _softmax(x, axis=-1):
    return torch.softmax(x, dim=axis)
def _gelu(x):
    return torch.nn.functional.gelu(x, approximate="tanh")
def _silu(x):
    return torch.nn.functional.silu(x)
def _sigmoid(x):
    return torch.sigmoid(x)
def _layernorm(x, axis=-1, eps=1e-5):
    m = x.mean(dim=axis, keepdim=True)
    v = x.var(dim=axis, keepdim=True, unbiased=False)
    return (x - m) / torch.sqrt(v + eps)
def _scatter_add(tgt, idx, src, axis=0):
    return tgt.clone().index_add_(axis, idx, src)
def _segment_sum(src, seg, n):
    out = torch.zeros((n,) + src.shape[1:], dtype=src.dtype)
    return out.index_add_(0, seg, src)
def _pad(x, pw):
    flat = tuple(v for pair in reversed(pw) for v in pair)
    return torch.nn.functional.pad(x, flat)

kernel_name = 'sequential_preLN__ssm_conv_h3__glu_gated_reglu__prompt'

def setup_inputs():

    _w = (lambda a: (lambda t: t.to(torch.bfloat16) if t.is_floating_point() else t)(torch.as_tensor(a)))
    def _A_setup():
        B, S, D = 1, 2048, 512
        ks = 4
        return {
            "q": _w((lambda *s: torch.randn(*s, dtype=torch.bfloat16) * 0.05)(B, S, D)),
            "k": _w((lambda *s: torch.randn(*s, dtype=torch.bfloat16) * 0.2)(B, S, D)),
            "v": _w((lambda *s: torch.randn(*s, dtype=torch.bfloat16) * 0.2)(B, S, D)),
            "shift_k": _w((lambda *s: torch.randn(*s, dtype=torch.bfloat16) * 0.2)(D, ks) * 0.5),
            "ssm_k": _w((lambda *s: torch.randn(*s, dtype=torch.bfloat16) * 0.4)(D, S) * (1.0 / S ** 0.5)),
            "ssm_D": _w((lambda *s: torch.randn(*s, dtype=torch.bfloat16) * 0.2)(D)),
        }
    _A_in = _A_setup()

    def _B_setup():
        B, S, D, F = 1, 2048, 512, 1376
        return {
            "x": _w((lambda *s: torch.randn(*s, dtype=torch.bfloat16) * 0.05)(B, S, D)),
            "W_gate": _w((lambda *s: torch.randn(*s, dtype=torch.bfloat16) * 0.2)(D, F) * (2.0 / D) ** 0.5),
            "W_up": _w((lambda *s: torch.randn(*s, dtype=torch.bfloat16) * 0.2)(D, F) * (2.0 / D) ** 0.5),
            "W_down": _w((lambda *s: torch.randn(*s, dtype=torch.bfloat16) * 0.2)(F, D) * (1.0 / F) ** 0.5),
        }
    _B_in = _B_setup()

    return {
        "A_q": _A_in["q"],
        "A_k": _A_in["k"],
        "A_v": _A_in["v"],
        "A_shift_k": _A_in["shift_k"],
        "A_ssm_k": _A_in["ssm_k"],
        "A_ssm_D": _A_in["ssm_D"],
        "B_x": _B_in["x"],
        "B_W_gate": _B_in["W_gate"],
        "B_W_up": _B_in["W_up"],
        "B_W_down": _B_in["W_down"],
    }

def reference(A_q, A_k, A_v, A_shift_k, A_ssm_k, A_ssm_D, B_x, B_W_gate, B_W_up, B_W_down):
    def _A_ref(q, k, v, shift_k, ssm_k, ssm_D):
        B, S, D = q.shape
        ks = shift_k.shape[-1]
        k_pad = _pad(k, ((0, 0), (ks - 1, 0), (0, 0)))
        k_shift = torch.zeros_like(k)
        for t in range(ks):
            k_shift = k_shift + k_pad[:, t:t + S, :] * shift_k[:, ks - 1 - t][None, None, :]
        kv = k_shift * v
        L = 2 * S
        kv_pad = _pad(kv, ((0, 0), (0, S), (0, 0)))
        kf_pad = _pad(ssm_k, ((0, 0), (0, S)))
        kv_f = (lambda x, axes=(-2,-1): torch.fft.rfft2(x.float(), dim=axes))(kv_pad[:, None, :, :], axes=(1, 2))
        kf_f = (lambda x, axes=(-2,-1): torch.fft.rfft2(x.float(), dim=axes))(kf_pad[:, None, :], axes=(1, 2))
        kf_f = (lambda x, *d: x.permute(*d))(kf_f, 1, 2, 0)
        y_f = kv_f * kf_f[None, :, :, :]
        y = (lambda x, s, axes=(-2,-1): torch.fft.irfft2(x, s=s, dim=axes).to(torch.bfloat16))(y_f, (1, L), axes=(1, 2))[:, 0, :S, :]
        y = y + kv * ssm_D[None, None, :]
        return q * y

    def _B_ref(x, W_gate, W_up, W_down):
        gate = torch.einsum("bsd,df->bsf", x, W_gate)
        up = torch.einsum("bsd,df->bsf", x, W_up)
        gate = gate * (lambda x, dt: x.to(dt))(gate > 0, gate.dtype)
        h = gate * up
        return torch.einsum("bsf,fd->bsd", h, W_down)

    x = A_q
    h = x + _A_ref(_layernorm(x, axis=-1), A_k, A_v, A_shift_k, A_ssm_k, A_ssm_D)
    h2 = h + _B_ref(_layernorm(h, axis=-1), B_W_gate, B_W_up, B_W_down)
    return h2
```

```python
import sys
OUT = sys.argv[1] if len(sys.argv) > 1 else "v1.s"

RS      = 4224
KVT_OFF = 0
QT_OFF  = 0x220000
ST1_OFF = 0x440000
CS_OFF  = 0x444000
R2_OFF  = 0x448000
HT_OFF  = 0x460000
HH_OFF  = 0x680000
HH_KS   = 90
WS_END  = HH_OFF + 64 * HH_KS * 1024

class K:
    def __init__(self, name):
        self.name = name; self.L = []
    def e(self, s):
        self.L.append("    " + s)
    def lab(self, s):
        self.L.append(s + ":")
    def srd(self, d, base, off, nbytes):
        if off:
            self.e(f"s_add_u32 s{d}, s{base}, {off:#x}")
            self.e(f"s_addc_u32 s{d+1}, s{base+1}, 0")
        else:
            self.e(f"s_mov_b32 s{d}, s{base}")
            self.e(f"s_mov_b32 s{d+1}, s{base+1}")
        self.e(f"s_mov_b32 s{d+2}, {nbytes:#x}")
        self.e(f"s_mov_b32 s{d+3}, 0x20000")
    def text(self):
        return (f".globl {self.name}\n.p2align 8\n.type {self.name},@function\n{self.name}:\n" + "\n".join(self.L) + "\n    s_endpgm\n")
    def desc(self, vgpr, sgpr, accum=None):
        if accum is None: accum = (vgpr + 3) // 4 * 4
        return f""".p2align 6
.amdhsa_kernel {self.name}
  .amdhsa_next_free_vgpr {vgpr}
  .amdhsa_next_free_sgpr {sgpr}
  .amdhsa_accum_offset {accum}
  .amdhsa_group_segment_fixed_size 0
  .amdhsa_kernarg_size 104
  .amdhsa_user_sgpr_count 2
  .amdhsa_user_sgpr_kernarg_segment_ptr 1
  .amdhsa_system_sgpr_workgroup_id_x 1
  .amdhsa_float_denorm_mode_32 3
.end_amdhsa_kernel
"""

def vr(a, n): return f"v[{a}:{a+n-1}]"

def gen_prep():
    k = K("prep_kernel"); e = k.e
    e("s_cmp_ge_u32 s2, 342"); e("s_cbranch_scc1 L_prep_end")
    e("s_load_dwordx8 s[4:11], s[0:1], 0")
    e("s_load_dwordx4 s[12:15], s[0:1], 56")
    e("s_load_dwordx2 s[16:17], s[0:1], 96")
    e("s_cmp_ge_u32 s2, 256"); e("s_cbranch_scc1 L_prep_cs")
    e("v_and_b32 v1, 15, v0")
    e("v_lshrrev_b32 v2, 4, v0")
    e("s_and_b32 s3, s2, 7")
    e("s_lshr_b32 s18, s2, 3")
    e("s_lshl_b32 s19, s18, 16")
    e("s_lshl_b32 s20, s3, 7")
    e("s_add_u32 s19, s19, s20")
    e("v_lshlrev_b32 v3, 12, v2")
    e("v_lshl_add_u32 v3, v1, 3, v3")
    e("v_add_u32 v3, s19, v3")
    e("v_subrev_u32 v4, 3072, v3")
    e("s_lshl_b32 s20, s3, 9")
    e("v_lshlrev_b32 v5, 5, v1")
    e("v_add_u32 v5, s20, v5")
    e("v_lshrrev_b32 v6, 6, v0"); e("v_lshlrev_b32 v6, 11, v6")
    e("v_and_b32 v7, 63, v0"); e("v_lshl_add_u32 v6, v7, 4, v6")
    e("s_lshl_b32 s20, s2, 13"); e("v_add_u32 v6, s20, v6")
    e("s_waitcnt lgkmcnt(0)")
    k.srd(24, 4, 0, 0x200000)
    k.srd(28, 6, 0, 0x200000)
    k.srd(32, 8, 0, 0x200000)
    k.srd(36, 10, 0, 4096)
    k.srd(40, 16, 0, WS_END)
    for r in range(3): e(f"buffer_load_dwordx2 {vr(16+2*r,2)}, v4, s[28:31], 0 offen offset:{1024*r}")
    for r in range(4): e(f"buffer_load_dwordx2 {vr(22+2*r,2)}, v3, s[28:31], 0 offen offset:{1024*r}")
    e(f"buffer_load_dwordx4 {vr(48,4)}, v5, s[36:39], 0 offen")
    e(f"buffer_load_dwordx4 {vr(52,4)}, v5, s[36:39], 0 offen offset:16")
    for r in range(4): e(f"buffer_load_dwordx2 {vr(30+2*r,2)}, v3, s[32:35], 0 offen offset:{1024*r}")
    for r in range(4): e(f"buffer_load_dwordx2 {vr(38+2*r,2)}, v3, s[24:27], 0 offen offset:{1024*r}")
    e(f"buffer_load_dwordx4 {vr(56,4)}, v6, s[24:27], 0 offen")
    e(f"buffer_load_dwordx4 {vr(60,4)}, v6, s[24:27], 0 offen offset:1024")
    e(f"s_mul_i32 s20, s3, {64*RS}"); e("s_lshl_b32 s21, s18, 7"); e("s_add_u32 s20, s20, s21")
    e(f"v_mul_u32_u24 v8, {4*RS}, v1"); e("v_lshl_add_u32 v8, v2, 3, v8"); e("v_add_u32 v8, s20, v8")
    for c in range(4):
        e(f"s_mov_b32 s{44+c}, {KVT_OFF + c*RS}")
        e(f"s_mov_b32 s{48+c}, {QT_OFF + c*RS}")
    e("s_mov_b32 s52, 0xffff0000"); e("s_mov_b32 s53, 0x05040100"); e("s_mov_b32 s54, 0x07060302")
    e("s_waitcnt vmcnt(10)")
    def unpack(dst, src, c):
        s = src + (c >> 1)
        if c & 1: e(f"v_and_b32 v{dst}, s52, v{s}")
        else: e(f"v_lshlrev_b32 v{dst}, 16, v{s}")
    for r in range(7):
        for c in range(4): unpack(64+4*r+c, 16+2*r, c)
    for c in range(4):
        for j in range(4): unpack(92+4*c+j, 48+2*c, j)
    for r in range(4):
        for c in range(4): e(f"v_mul_f32 v{108+4*r+c}, v{64+4*(r+0)+c}, v{92+4*c+3}")
    for j in (2, 1, 0):
        for r in range(4):
            for c in range(4): e(f"v_fmac_f32 v{108+4*r+c}, v{64+4*(r+3-j)+c}, v{92+4*c+j}")
    e("s_waitcnt vmcnt(6)")
    for r in range(4):
        for c in range(4): unpack(64+4*r+c, 30+2*r, c)
    for r in range(4):
        for c in range(4): e(f"v_mul_f32 v{108+4*r+c}, v{108+4*r+c}, v{64+4*r+c}")
    for c in range(4):
        e(f"v_cvt_pk_bf16_f32 v{80+2*c}, v{108+c}, v{112+c}")
        e(f"v_cvt_pk_bf16_f32 v{81+2*c}, v{116+c}, v{120+c}")
    for c in range(4): e(f"buffer_store_dwordx2 {vr(80+2*c,2)}, v8, s[40:43], s{44+c} offen")
    e("s_waitcnt vmcnt(6)")
    for c in range(4):
        sel = "s54" if c & 1 else "s53"
        e(f"v_perm_b32 v{92+2*c}, v{40+(c>>1)}, v{38+(c>>1)}, {sel}")
        e(f"v_perm_b32 v{93+2*c}, v{44+(c>>1)}, v{42+(c>>1)}, {sel}")
    for c in range(4): e(f"buffer_store_dwordx2 {vr(92+2*c,2)}, v8, s[40:43], s{48+c} offen")
    e("s_waitcnt vmcnt(8)")
    for rr in range(2):
        for c in range(8):
            s = 56 + 4*rr + (c >> 1)
            if c & 1: e(f"v_and_b32 v{64+8*rr+c}, s52, v{s}")
            else: e(f"v_lshlrev_b32 v{64+8*rr+c}, 16, v{s}")
    def tree(dst, base):
        e(f"v_add_f32 v{dst}, v{base}, v{base+1}")
        for c in range(2, 8): e(f"v_add_f32 v{dst}, v{dst}, v{base+c}")
    def reduce2(a, b):
        for m in ("row_shr:1", "row_shr:2", "row_shr:4", "row_shr:8"):
            e("s_nop 0")
            e(f"v_add_f32_dpp v{a}, v{a}, v{a} {m} row_mask:0xf bank_mask:0xf bound_ctrl:0")
            e(f"v_add_f32_dpp v{b}, v{b}, v{b} {m} row_mask:0xf bank_mask:0xf bound_ctrl:0")
        for m, rm in (("row_bcast:15", "0xa"), ("row_bcast:31", "0xc")):
            e("s_nop 0")
            e(f"v_add_f32_dpp v{a}, v{a}, v{a} {m} row_mask:{rm} bank_mask:0xf")
            e(f"v_add_f32_dpp v{b}, v{b}, v{b} {m} row_mask:{rm} bank_mask:0xf")
    tree(100, 64); tree(101, 72)
    e("s_nop 0")
    reduce2(100, 101)
    e("s_mov_b32 s55, 0x3b000000")
    e("v_mul_f32 v100, s55, v100"); e("v_mul_f32 v101, s55, v101")
    e("s_nop 0")
    e("v_readlane_b32 s56, v100, 63"); e("v_readlane_b32 s57, v101, 63")
    e("s_nop 1")
    for c in range(8):
        e(f"v_subrev_f32 v{64+c}, s56, v{64+c}"); e(f"v_subrev_f32 v{72+c}, s57, v{72+c}")
    e("v_mul_f32 v102, v64, v64"); e("v_mul_f32 v103, v72, v72")
    for c in range(1, 8):
        e(f"v_fmac_f32 v102, v{64+c}, v{64+c}"); e(f"v_fmac_f32 v103, v{72+c}, v{72+c}")
    e("s_nop 0")
    reduce2(102, 103)
    e("v_mov_b32 v104, 0x3727c5ac")
    e("v_fma_f32 v102, v102, s55, v104"); e("v_fma_f32 v103, v103, s55, v104")
    e("v_rsq_f32 v102, v102"); e("v_rsq_f32 v103, v103")
    e("s_nop 0")
    e("v_mul_f32 v104, v100, v102"); e("v_mul_f32 v105, v101, v103")
    e("v_sub_f32 v104, 0, v104"); e("v_sub_f32 v105, 0, v105")
    e("v_lshrrev_b32 v106, 6, v0"); e("v_lshlrev_b32 v106, 3, v106")
    e("s_lshl_b32 s20, s2, 5"); e(f"s_add_u32 s20, s20, {ST1_OFF:#x}"); e("v_add_u32 v106, s20, v106")
    e("v_cmp_eq_u32 vcc, 63, v7")
    e("s_and_saveexec_b64 s[58:59], vcc")
    e("buffer_store_dwordx2 v[102:103], v106, s[40:43], 0 offen")
    e("s_mov_b32 s20, 8192")
    e("buffer_store_dwordx2 v[104:105], v106, s[40:43], s20 offen")
    e("s_endpgm")
    k.lab("L_prep_cs")
    e("s_sub_u32 s3, s2, 256")
    e("s_cmp_ge_u32 s3, 43")
    e("s_cselect_b32 s18, 43, 0"); e("s_cselect_b32 s19, 6144, 0")
    e("s_sub_u32 s3, s3, s18")
    e("v_and_b32 v1, 3, v0"); e("v_lshrrev_b32 v2, 2, v0")
    e("v_mul_u32_u24 v3, 2752, v2"); e("v_lshl_add_u32 v3, v1, 4, v3")
    e("s_lshl_b32 s20, s3, 6"); e("v_add_u32 v3, s20, v3")
    e("s_waitcnt lgkmcnt(0)")
    e("s_cmp_eq_u32 s18, 0")
    e("s_cselect_b32 s24, s12, s14"); e("s_cselect_b32 s25, s13, s15")
    e(f"s_mov_b32 s26, {512*2752}"); e("s_mov_b32 s27, 0x20000")
    k.srd(40, 16, 0, WS_END)
    for p in range(8):
        e(f"s_mov_b32 s21, {p*64*2752}")
        e(f"buffer_load_dwordx4 {vr(16+4*p,4)}, v3, s[24:27], s21 offen")
    e("s_mov_b32 s52, 0xffff0000")
    for c in range(8): e(f"v_mov_b32 v{8+c}, 0")
    for p in range(8):
        e(f"s_waitcnt vmcnt({7-p})")
        for c in range(8):
            s = 16 + 4*p + (c >> 1)
            if c & 1: e(f"v_and_b32 v{48+c}, s52, v{s}")
            else: e(f"v_lshlrev_b32 v{48+c}, 16, v{s}")
        for c in range(8): e(f"v_add_f32 v{8+c}, v{8+c}, v{48+c}")
    for m in ("row_shr:4", "row_shr:8"):
        e("s_nop 1")
        for c in range(8): e(f"v_add_f32_dpp v{8+c}, v{8+c}, v{8+c} {m} row_mask:0xf bank_mask:0xf bound_ctrl:0")
    e("v_lshrrev_b32 v4, 4, v0"); e("v_lshlrev_b32 v4, 7, v4"); e("v_lshl_add_u32 v4, v1, 5, v4")
    e("v_and_b32 v5, 15, v0")
    e("v_cmp_le_u32 vcc, 12, v5")
    e("s_and_saveexec_b64 s[58:59], vcc")
    e("ds_write_b128 v4, v[8:11]"); e("ds_write_b128 v4, v[12:15] offset:16")
    e("s_mov_b64 exec, s[58:59]")
    e("s_waitcnt lgkmcnt(0)"); e("s_barrier")
    e("v_and_b32 v4, 31, v0"); e("v_lshlrev_b32 v4, 2, v4")
    for g in range(16): e(f"ds_read_b32 v{16+g}, v4 offset:{128*g}")
    e("s_waitcnt lgkmcnt(0)")
    for g in range(1, 16): e(f"v_add_f32 v16, v16, v{16+g}")
    e("s_lshl_b32 s20, s3, 7"); e("s_add_u32 s20, s20, s19"); e(f"s_add_u32 s20, s20, {CS_OFF:#x}")
    e("v_cmp_gt_u32 vcc, 32, v0")
    e("s_and_saveexec_b64 s[58:59], vcc")
    e("s_cbranch_execz L_prep_end")
    e("buffer_store_dword v16, v4, s[40:43], s20 offen")
    k.lab("L_prep_end")
    return k, k.desc(128, 64)

CP   = 4160
HREG = 4 * CP
XREG = 4608
CH_L = HREG + XREG
RED_OFF = 2 * CH_L
CONV_LDS = RED_OFF + 16384

def gen_conv():
    k = K("conv_kernel"); e = k.e
    e("s_cmp_ge_u32 s2, 256"); e("s_cbranch_scc1 L_conv_end")
    e("s_load_dwordx4 s[4:7], s[0:1], 32")
    e("s_load_dwordx2 s[16:17], s[0:1], 96")
    e("s_and_b32 s3, s2, 7"); e("s_lshl_b32 s3, s3, 6"); e("s_lshr_b32 s18, s2, 3"); e("s_lshl_b32 s18, s18, 1"); e("s_add_u32 s3, s3, s18")
    e("v_lshrrev_b32 v1, 6, v0"); e("v_and_b32 v2, 63, v0")
    e("v_readfirstlane_b32 s19, v1")
    e("v_lshlrev_b32 v3, 4, v0"); e("v_sub_u32 v3, 4080, v3")
    e("v_subrev_u32 v4, 8, v3")
    e("v_max_i32 v4, 0, v4")
    e("s_lshr_b32 s20, s19, 1")
    e("s_and_b32 s21, s19, 1")
    e("s_add_u32 s22, s3, s20")
    e("s_waitcnt lgkmcnt(0)")
    k.srd(24, 4, 0, 0x200000)
    k.srd(28, 6, 0, 1024)
    k.srd(40, 16, 0, WS_END)
    e("s_lshl_b32 s23, s3, 12")
    e("s_add_u32 s32, s23, 4096")
    e("buffer_load_dwordx4 v[20:23], v3, s[24:27], s23 offen")
    e("buffer_load_dwordx2 v[18:19], v4, s[24:27], s23 offen")
    e("buffer_load_dwordx4 v[28:31], v3, s[24:27], s32 offen")
    e("buffer_load_dwordx2 v[26:27], v4, s[24:27], s32 offen")
    e("v_lshlrev_b32 v5, 4, v2")
    e(f"s_mul_i32 s33, s22, {RS}"); e("s_lshl_b32 s34, s21, 11"); e("s_add_u32 s35, s33, s34")
    if KVT_OFF: e(f"s_add_u32 s35, s35, {KVT_OFF}")
    e(f"s_mul_i32 s36, s20, {CH_L}")
    e(f"s_add_u32 s37, s36, {HREG+512}"); e("s_add_u32 m0, s37, s34")
    e("s_nop 0")
    e("buffer_load_dwordx4 v5, s[40:43], s35 offen lds")
    e("buffer_load_dwordx4 v5, s[40:43], s35 offen offset:1024 lds")
    e("v_and_b32 v6, 15, v2"); e("v_lshrrev_b32 v7, 4, v2")
    e("v_lshlrev_b32 v8, 4, v6"); e("v_lshl_add_u32 v8, v7, 2, v8")
    e("v_lshlrev_b32 v9, 1, v8")
    e("v_lshlrev_b32 v10, 2, v8")
    e(f"s_add_u32 s38, s33, s34"); e(f"s_add_u32 s38, s38, {QT_OFF:#x}")
    for u in range(4): e(f"buffer_load_dwordx2 {vr(200+2*u,2)}, v9, s[40:43], s38 offen offset:{512*u}")
    e("s_lshl_b32 s39, s21, 12"); e(f"s_add_u32 s39, s39, {ST1_OFF:#x}"); e("s_add_u32 s44, s39, 8192")
    for u in range(4): e(f"buffer_load_dwordx4 {vr(208+4*u,4)}, v10, s[40:43], s39 offen offset:{1024*u}")
    for u in range(4): e(f"buffer_load_dwordx4 {vr(224+4*u,4)}, v10, s[40:43], s44 offen offset:{1024*u}")
    e("s_lshl_b32 s45, s22, 1"); e("v_mov_b32 v11, s45"); e("v_mov_b32 v240, 0")
    e("buffer_load_short_d16_hi v240, v11, s[28:31], 0 offen")
    for r in range(4): e(f"v_mov_b32 v{12+r}, 0")
    e("v_lshrrev_b32 v16, 5, v0"); e(f"v_mul_u32_u24 v16, {CH_L}, v16"); e("v_and_b32 v17, 31, v0"); e("v_lshl_add_u32 v16, v17, 4, v16")
    e(f"v_add_u32 v16, {HREG}, v16")
    e("v_cmp_gt_u32 vcc, 64, v0"); e("s_and_saveexec_b64 s[46:47], vcc")
    e("ds_write_b128 v16, v[12:15]")
    e("s_mov_b64 exec, s[46:47]")
    e("v_bfe_u32 v16, v0, 4, 1"); e(f"v_mul_u32_u24 v16, {CH_L}, v16"); e("v_bfe_u32 v17, v0, 2, 2"); e(f"v_mul_u32_u24 v17, {CP}, v17")
    e("v_add_u32 v16, v16, v17"); e("v_and_b32 v17, 3, v0"); e("v_lshl_add_u32 v16, v17, 4, v16")
    e("v_cmp_gt_u32 vcc, 32, v0"); e("s_and_saveexec_b64 s[46:47], vcc")
    e("ds_write_b128 v16, v[12:15] offset:4096")
    e("s_mov_b64 exec, s[46:47]")
    e("s_mov_b32 s48, 0xffff")
    e("v_lshlrev_b32 v16, 4, v0")
    e("v_cmp_ne_u32 vcc, 255, v0")
    e("s_nop 1")
    e("s_waitcnt vmcnt(15)")
    for ch in range(2):
        b = 18 + 8*ch
        e(f"v_cndmask_b32 v{b}, 0, v{b}, vcc"); e(f"v_cndmask_b32 v{b+1}, 0, v{b+1}, vcc")
        w = lambda i: f"v{b+2+i}"
        o = 40 + 16*ch
        for n, i in enumerate((2, 1, 0, -1)): e(f"v_bfi_b32 v{o+n}, s48, {w(i)}, {w(i-1)}")
        for n, i in enumerate((2, 1, 0, -1)): e(f"v_alignbit_b32 v{o+4+n}, {w(i)}, {w(i)}, 16")
        for n, i in enumerate((3, 2, 1, 0)): e(f"v_bfi_b32 v{o+8+n}, s48, {w(i)}, {w(i-1)}")
        for n, i in enumerate((3, 2, 1, 0)): e(f"v_alignbit_b32 v{o+12+n}, {w(i)}, {w(i)}, 16")
        for kap in range(4): e(f"ds_write_b128 v16, {vr(o+4*kap,4)} offset:{ch*CH_L + kap*CP}")
    e("v_and_b32 v32, 3, v6"); e(f"v_mul_u32_u24 v32, {CP}, v32")
    e("v_lshrrev_b32 v33, 2, v6"); e("v_lshlrev_b32 v33, 3, v33"); e("v_lshl_add_u32 v33, v7, 4, v33")
    e("v_sub_u32 v32, v32, v33")
    e("s_lshl_b32 s49, s21, 8")
    e(f"s_sub_u32 s50, s36, s49"); e(f"s_add_u32 s50, s50, {2*2052 - 512*7 - 64*3}")
    e("v_add_u32 v32, s50, v32")
    e("v_lshlrev_b32 v33, 5, v6"); e("v_lshlrev_b32 v34, 4, v7"); e("v_sub_u32 v33, v33, v34")
    e(f"s_sub_u32 s51, s36, s49"); e(f"s_add_u32 s51, s51, {HREG + 512 + 16 - 64*3}")
    e("v_add_u32 v33, s51, v33")
    ACC = 36
    e("s_waitcnt vmcnt(13) lgkmcnt(0)")
    e("s_barrier")
    for r in range(32): e(f"v_mov_b32 v{ACC+r}, 0")
    FA = [72, 136]; FB = [104, 168]
    def reads(rr, buf):
        lst = []
        for i in range(8):
            off = 512*(7-i) + 64*(3-rr)
            lst.append(f"ds_read_b128 {vr(FB[buf]+4*i,4)}, v33 offset:{512*i + 64*(3-rr)}")
            lst.append(f"ds_read_b64 {vr(FA[buf]+4*i,2)}, v32 offset:{off}")
            lst.append(f"ds_read_b64 {vr(FA[buf]+4*i+2,2)}, v32 offset:{off+8}")
        return lst
    for s in reads(0, 0): e(s)
    for rr in range(4):
        buf = rr & 1
        nxt = reads(rr+1, buf ^ 1) if rr < 3 else []
        e("s_waitcnt lgkmcnt(0)")
        pairs = [(i, j) for i in range(8) for j in range(8 - i)]
        for n, (i, j) in enumerate(pairs):
            t = i + j
            e(f"v_mfma_f32_16x16x32_bf16 {vr(ACC+4*t,4)}, {vr(FA[buf]+4*i,4)}, {vr(FB[buf]+4*j,4)}, {vr(ACC+4*t,4)}")
            if n < len(nxt): e(nxt[n])
    e("s_lshl_b32 s52, s19, 12"); e(f"s_add_u32 s52, s52, {RED_OFF}")
    e("s_xor_b32 s53, s19, 1"); e("s_lshl_b32 s53, s53, 12"); e(f"s_add_u32 s53, s53, {RED_OFF}")
    e("v_add_u32 v34, s52, v5"); e("v_add_u32 v35, s53, v5")
    e("s_nop 7")
    e("s_cmp_eq_u32 s21, 0"); e("s_cbranch_scc1 L_conv_h0")
    for u in range(4): e(f"ds_write_b128 v34, {vr(ACC+4*u,4)} offset:{1024*u}")
    e("s_waitcnt lgkmcnt(0)")
    for r in range(16): e(f"v_mov_b32 v{ACC+r}, v{ACC+16+r}")
    e("s_branch L_conv_j")
    k.lab("L_conv_h0")
    for u in range(4): e(f"ds_write_b128 v34, {vr(ACC+16+4*u,4)} offset:{1024*u}")
    k.lab("L_conv_j")
    e("s_add_u32 s54, s37, s34"); e("v_add_u32 v12, s54, v9")
    for u in range(4): e(f"ds_read_b64 {vr(104+2*u,2)}, v12 offset:{512*u}")
    e("s_waitcnt lgkmcnt(0)"); e("s_barrier")
    for u in range(4): e(f"ds_read_b128 {vr(72+4*u,4)}, v35 offset:{1024*u}")
    e("v_and_b32 v13, 7, v6"); e("v_lshlrev_b32 v13, 1, v13"); e("v_lshrrev_b32 v14, 1, v7"); e("v_add_u32 v13, v13, v14")
    e("s_and_b32 s55, s22, 3"); e("s_lshl_b32 s55, s55, 2"); e("v_xor_b32 v13, s55, v13")
    e("v_lshlrev_b32 v13, 4, v13"); e("v_and_b32 v14, 1, v7"); e("v_lshl_add_u32 v13, v14, 3, v13")
    e("v_lshrrev_b32 v14, 3, v6"); e("v_lshl_add_u32 v13, v14, 17, v13")
    e("s_lshl_b32 s56, s22, 8"); e("s_lshl_b32 s57, s21, 20"); e("s_add_u32 s56, s56, s57"); e(f"s_add_u32 s56, s56, {HT_OFF:#x}")
    e("s_mov_b32 s58, 0xffff0000")
    e("s_waitcnt vmcnt(0) lgkmcnt(0)")
    for u in range(4):
        for r in range(4):
            y = ACC + 4*u + r
            e(f"v_add_f32 v{y}, v{y}, v{72+4*u+r}")
            src = 104 + 2*u + (r >> 1); qs = 200 + 2*u + (r >> 1)
            if r & 1:
                e(f"v_and_b32 v120, s58, v{src}"); e(f"v_and_b32 v121, s58, v{qs}")
            else:
                e(f"v_lshlrev_b32 v120, 16, v{src}"); e(f"v_lshlrev_b32 v121, 16, v{qs}")
            e(f"v_fmac_f32 v{y}, v120, v240")
            e(f"v_fma_f32 v122, v121, v{208+4*u+r}, v{224+4*u+r}")
            e(f"v_fma_f32 v{y}, v122, v{y}, v121")
        e(f"v_cvt_pk_bf16_f32 v{124+2*u}, v{ACC+4*u}, v{ACC+4*u+1}")
        e(f"v_cvt_pk_bf16_f32 v{125+2*u}, v{ACC+4*u+2}, v{ACC+4*u+3}")
        e(f"s_add_u32 s59, s56, {u*2*131072}")
        e(f"buffer_store_dwordx2 {vr(124+2*u,2)}, v13, s[40:43], s59 offen")
    k.lab("L_conv_end")
    return k, k.desc(248, 64)

G1_G = 16384; G1_U = 16384 + 12288 + 32; G1_STG = 41024
G1_MEAN = 3 * G1_STG
G1_LDS = G1_MEAN + 512

def gen_gemm1():
    k = K("gemm1_kernel"); e = k.e
    e("s_cmp_ge_u32 s2, 256"); e("s_cbranch_scc1 L_g1_end")
    e("s_load_dwordx4 s[4:7], s[0:1], 56")
    e("s_load_dwordx2 s[16:17], s[0:1], 96")
    e("s_and_b32 s8, s2, 7"); e("s_lshr_b32 s9, s2, 3")
    e("s_and_b32 s10, s8, 1"); e("s_lshl_b32 s10, s10, 3"); e("s_and_b32 s11, s9, 7"); e("s_add_u32 s10, s10, s11")
    e("s_lshr_b32 s11, s8, 1"); e("s_lshl_b32 s11, s11, 2"); e("s_lshr_b32 s12, s9, 3"); e("s_add_u32 s11, s11, s12")
    e("s_cmp_ge_u32 s11, 15"); e("s_cbranch_scc1 L_g1_end")
    e("v_lshrrev_b32 v1, 6, v0"); e("v_and_b32 v2, 63, v0")
    e("v_readfirstlane_b32 s19, v1")
    e("v_and_b32 v3, 15, v2")
    e("v_lshrrev_b32 v4, 4, v2")
    e("v_lshrrev_b32 v5, 2, v3")
    e("v_and_b32 v6, 3, v3")
    e("v_lshrrev_b32 v7, 5, v2")
    e("v_and_b32 v8, 1, v4")
    e("v_lshl_add_u32 v9, v7, 3, v5")
    e("v_lshlrev_b32 v10, 8, v9"); e("v_lshl_add_u32 v10, v8, 5, v10"); e("v_lshl_add_u32 v10, v6, 3, v10")
    e("s_waitcnt lgkmcnt(0)")
    k.srd(24, 4, 0, 512*2752)
    k.srd(28, 6, 0, 512*2752)
    k.srd(40, 16, 0, WS_END)
    e("s_cmp_ge_u32 s19, 4"); e("s_cbranch_scc1 L_g1_loader")
    e("s_and_b32 s20, s19, 1")
    e("s_lshr_b32 s21, s19, 1")
    e("s_mul_i32 s22, s11, 384"); e("s_mul_i32 s23, s20, 192"); e("s_add_u32 s22, s22, s23"); e(f"s_add_u32 s22, s22, {CS_OFF:#x}")
    e("s_add_u32 s23, s22, 6144")
    e("v_lshlrev_b32 v11, 4, v7")
    for mb in range(3):
        for i in range(2):
            e(f"buffer_load_dwordx4 {vr(160+8*mb+4*i,4)}, v11, s[40:43], s22 offen offset:{64*mb+32*i}")
            e(f"buffer_load_dwordx4 {vr(184+8*mb+4*i,4)}, v11, s[40:43], s23 offen offset:{64*mb+32*i}")
    e("v_mul_u32_u24 v12, 192, v9"); e(f"v_mul_u32_u24 v13, {G1_U-G1_G}, v8"); e("v_add_u32 v12, v12, v13"); e("v_lshl_add_u32 v12, v6, 3, v12")
    e("s_mul_i32 s32, s20, 96"); e(f"s_add_u32 s32, s32, {G1_G}"); e("v_add_u32 v12, s32, v12")
    e("s_lshl_b32 s33, s21, 1")
    e("v_xor_b32 v13, s33, v5"); e("v_lshl_add_u32 v13, v13, 6, v10")
    e("s_add_u32 s33, s33, 1")
    e("v_xor_b32 v14, s33, v5"); e("v_lshl_add_u32 v14, v14, 6, v10")
    e("v_mov_b32 v15, v12"); e("v_mov_b32 v16, v13"); e("v_mov_b32 v17, v14")
    ACC = 64
    for r in range(96): e(f"v_mov_b32 v{ACC+r}, 0")
    FR = [20, 40]
    def reads(ks, buf):
        l = []
        b = FR[buf]
        for hh in range(2): l.append(f"ds_read_b64_tr_b16 {vr(b+2*hh,2)}, v15 offset:{(16*ks+4*hh)*192}")
        for hh in range(2): l.append(f"ds_read_b64_tr_b16 {vr(b+12+2*hh,2)}, v16 offset:{4096*ks+1024*hh}")
        for hh in range(2): l.append(f"ds_read_b64_tr_b16 {vr(b+16+2*hh,2)}, v17 offset:{4096*ks+1024*hh}")
        for mb in (1, 2):
            for hh in range(2): l.append(f"ds_read_b64_tr_b16 {vr(b+4*mb+2*hh,2)}, v15 offset:{(16*ks+4*hh)*192+32*mb}")
        return l
    e("s_mov_b32 s34, 0")
    e("s_mov_b32 s35, 0")
    e("s_barrier")
    for s in reads(0, 0): e(s)
    k.lab("L_g1_loop")
    for ks in range(4):
        buf = ks & 1
        e("s_waitcnt lgkmcnt(0)")
        if ks == 3:
            e(f"s_add_u32 s35, s35, {G1_STG}"); e(f"s_cmp_eq_u32 s35, {3*G1_STG}"); e("s_cselect_b32 s35, 0, s35")
            e("v_add_u32 v15, s35, v12"); e("v_add_u32 v16, s35, v13"); e("v_add_u32 v17, s35, v14")
            e("s_barrier")
        nxt = reads((ks+1) & 3, buf ^ 1)
        sched = [3, 3, 2, 2, 0, 0]
        p = 0
        for n, (mb, nb) in enumerate([(0,0),(0,1),(1,0),(1,1),(2,0),(2,1)]):
            a = ACC + 16*(2*mb+nb)
            e(f"v_mfma_f32_32x32x16_bf16 {vr(a,16)}, {vr(FR[buf]+4*mb,4)}, {vr(FR[buf]+12+4*nb,4)}, {vr(a,16)}")
            for _ in range(sched[n]): e(nxt[p]); p += 1
    e("s_add_u32 s34, s34, 1"); e("s_cmp_lt_u32 s34, 8"); e("s_cbranch_scc1 L_g1_loop")
    e("v_and_b32 v18, 31, v2"); e("v_lshlrev_b32 v18, 2, v18"); e("s_lshl_b32 s36, s21, 8"); e(f"s_add_u32 s36, s36, {G1_MEAN}"); e("v_add_u32 v18, s36, v18")
    e("s_waitcnt lgkmcnt(0)")
    e("ds_read_b32 v20, v18"); e("ds_read_b32 v22, v18 offset:128")
    e("s_lshl_b32 s37, s10, 2"); e("s_lshl_b32 s38, s21, 1"); e("s_add_u32 s37, s37, s38"); e(f"s_mul_i32 s37, s37, {HH_KS}")
    e("s_mul_i32 s38, s11, 6"); e("s_add_u32 s37, s37, s38"); e("s_mul_i32 s38, s20, 3"); e("s_add_u32 s37, s37, s38")
    e("s_lshl_b32 s37, s37, 10"); e(f"s_add_u32 s37, s37, {HH_OFF:#x}"); e(f"s_add_u32 s38, s37, {HH_KS*1024}")
    e("v_lshlrev_b32 v19, 4, v2")
    e("s_nop 7")
    e("s_waitcnt vmcnt(0) lgkmcnt(0)")
    for mb in range(3):
        for nb in range(2):
            a = ACC + 16*(2*mb+nb); m = 20 + 2*nb
            for p in range(4):
                e(f"v_pk_fma_f32 {vr(a+2*p,2)}, {vr(m,2)}, {vr(160+8*mb+2*p,2)}, {vr(a+2*p,2)} op_sel_hi:[0,1,1]")
                e(f"v_pk_fma_f32 {vr(a+8+2*p,2)}, {vr(m,2)}, {vr(184+8*mb+2*p,2)}, {vr(a+8+2*p,2)} op_sel_hi:[0,1,1]")
            for r in range(8): e(f"v_max_f32 v{a+r}, 0, v{a+r}")
            for p in range(4): e(f"v_pk_mul_f32 {vr(a+2*p,2)}, {vr(a+2*p,2)}, {vr(a+8+2*p,2)}")
            for p in range(4): e(f"v_cvt_pk_bf16_f32 v{a+8+p}, v{a+2*p}, v{a+2*p+1}")
            e(f"buffer_store_dwordx4 {vr(a+8,4)}, v19, s[40:43], s{37+nb} offen offset:{1024*mb}")
    e("s_endpgm")
    k.lab("L_g1_loader")
    e("s_sub_u32 s20, s19, 4")
    e("v_lshlrev_b32 v11, 4, v2")
    for j in range(3):
        e(f"v_add_u32 v20, {j*64}, v2")
        e("v_mul_u32_u24 v21, 0x5556, v20"); e("v_lshrrev_b32 v21, 18, v21")
        e("v_mul_u32_u24 v22, 12, v21"); e("v_sub_u32 v22, v20, v22")
        e("v_mul_u32_u24 v21, 2752, v21"); e(f"v_lshl_add_u32 v{12+j}, v22, 4, v21")
        if j: e(f"v_subrev_u32 v{12+j}, {1024*j}, v{12+j}")
    e("s_lshl_b32 s21, s10, 17"); e("s_lshl_b32 s22, s20, 12"); e("s_add_u32 s21, s21, s22"); e(f"s_add_u32 s21, s21, {HT_OFF:#x}")
    e(f"s_mul_i32 s23, s20, {16*2752}"); e("s_mul_i32 s32, s11, 192"); e("s_add_u32 s23, s23, s32")
    e(f"s_mul_i32 s33, s20, {16*192}")
    def issue(c):
        st = (c % 3) * G1_STG
        e(f"s_add_u32 m0, s22, {st}")
        e(f"s_add_u32 s34, s21, {c*16384}")
        for i in range(4): e(f"buffer_load_dwordx4 v11, s[40:43], s34 offen offset:{1024*i} lds")
        e(f"s_add_u32 m0, s33, {st+G1_G}")
        e(f"s_add_u32 s35, s23, {c*64*2752}")
        for j in range(3): e(f"buffer_load_dwordx4 v{12+j}, s[24:27], s35 offen offset:{1024*j} lds")
        e(f"s_add_u32 m0, s33, {st+G1_U}")
        e("s_nop 0")
        for j in range(3): e(f"buffer_load_dwordx4 v{12+j}, s[28:31], s35 offen offset:{1024*j} lds")
    for c in range(3): issue(c)
    e("v_xor_b32 v15, s20, v5"); e("v_lshl_add_u32 v15, v15, 6, v10")
    e(f"v_add_u32 v16, {G1_STG}, v15"); e(f"v_add_u32 v17, {2*G1_STG}, v15")
    e("v_mov_b32 v20, 0"); e("v_mov_b32 v21, 0"); e("s_mov_b32 s36, 0x3f803f80")
    e("s_waitcnt vmcnt(20)"); e("s_barrier")
    for c in range(8):
        if 1 <= c <= 5: issue(c+2)
        for ks in range(4):
            for hh in range(2): e(f"ds_read_b64_tr_b16 {vr(24+4*ks+2*hh,2)}, v{15+c%3} offset:{4096*ks+1024*hh}")
        e("s_waitcnt lgkmcnt(0)")
        for r in range(16):
            e(f"v_dot2_f32_bf16 v20, v{24+r}, s36, v20")
            e(f"v_dot2_f32_bf16 v21, v{24+r}, v{24+r}, v21")
        if c < 7:
            e(f"s_waitcnt vmcnt({10 if c <= 5 else 0})")
            e("s_barrier")
    e("s_nop 3")
    e("v_mov_b32 v22, v20"); e("v_mov_b32 v23, v21")
    e("s_nop 1")
    e("v_permlane32_swap_b32 v22, v20"); e("v_permlane32_swap_b32 v23, v21")
    e("s_nop 1")
    e("v_add_f32 v20, v20, v22"); e("v_add_f32 v21, v21, v23")
    e("s_mov_b32 s37, 0x3b000000")
    e("v_mul_f32 v20, s37, v20")
    e("v_mul_f32 v21, s37, v21")
    e("v_fma_f32 v21, -v20, v20, v21")
    e("v_max_f32 v21, 0, v21")
    e("v_add_f32 v21, 0x3727c5ac, v21")
    e("v_rcp_f32 v21, v21")
    e("v_sub_f32 v20, 0, v20")
    e("v_and_b32 v18, 31, v2"); e("v_lshlrev_b32 v18, 2, v18"); e("s_lshl_b32 s38, s20, 7")
    e("v_add_u32 v18, s38, v18")
    e(f"v_add_u32 v19, {G1_MEAN}, v18")
    e("ds_write_b32 v19, v20")
    e("s_waitcnt lgkmcnt(0)"); e("s_barrier")
    e("s_cmp_lg_u32 s11, 0"); e("s_cbranch_scc1 L_g1_end")
    e("s_lshl_b32 s39, s10, 9"); e(f"s_add_u32 s39, s39, {R2_OFF:#x}")
    e("buffer_store_dword v21, v18, s[40:43], s39 offen")
    k.lab("L_g1_end")
    return k, k.desc(208, 64)

G2_W = 16384; G2_STG = 32768; G2_LDS = 4 * G2_STG

def gen_gemm2():
    k = K("gemm2_kernel"); e = k.e
    e("s_cmp_ge_u32 s2, 256"); e("s_cbranch_scc1 L_g2_end")
    e("s_load_dwordx4 s[4:7], s[0:1], 72")
    e("s_load_dwordx2 s[16:17], s[0:1], 96")
    e("s_and_b32 s8, s2, 7"); e("s_lshr_b32 s9, s2, 3")
    e("s_lshl_b32 s10, s8, 2"); e("s_and_b32 s11, s9, 3"); e("s_add_u32 s10, s10, s11")
    e("s_lshr_b32 s11, s9, 2")
    e("v_lshrrev_b32 v1, 6, v0"); e("v_and_b32 v2, 63, v0")
    e("v_readfirstlane_b32 s19, v1")
    e("v_lshlrev_b32 v11, 4, v2")
    e("s_waitcnt lgkmcnt(0)")
    k.srd(24, 4, 0, 1376*1024)
    k.srd(28, 6, 0, 0x200000)
    k.srd(40, 16, 0, WS_END)
    e("s_cmp_ge_u32 s19, 4"); e("s_cbranch_scc1 L_g2_loader")
    e("s_and_b32 s20, s19, 1")
    e("s_lshr_b32 s21, s19, 1")
    e("v_and_b32 v3, 15, v2"); e("v_lshrrev_b32 v4, 4, v2"); e("v_lshrrev_b32 v5, 2, v3"); e("v_and_b32 v6, 3, v3")
    e("v_lshrrev_b32 v7, 5, v2"); e("v_and_b32 v8, 1, v4"); e("v_and_b32 v9, 31, v2")
    e("s_lshl_b32 s22, s10, 6"); e("s_lshl_b32 s23, s21, 5"); e("s_add_u32 s22, s22, s23")
    e("s_and_b32 s23, s22, 127"); e("v_add_u32 v12, s23, v9")
    e("v_lshrrev_b32 v13, 3, v12"); e("v_and_b32 v14, 7, v12"); e("v_lshlrev_b32 v14, 1, v14")
    e("v_lshl_add_u32 v14, v7, 10, v14")
    e("s_lshr_b32 s32, s22, 7"); e("s_lshl_b32 s32, s32, 17"); e("s_lshl_b32 s33, s11, 14"); e("s_add_u32 s32, s32, s33")
    e("s_lshl_b32 s33, s20, 13"); e("s_add_u32 s32, s32, s33"); e(f"s_add_u32 s32, s32, {HT_OFF:#x}")
    e("s_add_u32 s33, s32, 4096")
    RES = 96
    for r in range(16): e(f"v_mov_b32 v{RES+r}, 0")
    for j in range(4):
        e(f"v_xor_b32 v15, {j<<2}, v13"); e(f"v_lshl_add_u32 v{16+j}, v15, 4, v14")
    for i in range(4):
        for j in range(4):
            e(f"buffer_load_short_d16_hi v{RES+4*i+j}, v{16+j}, s[40:43], s{32+(i>>1)} offen offset:{2048*(i&1)+256*j}")
    e("v_lshlrev_b32 v15, 2, v9"); e("s_lshl_b32 s34, s22, 2"); e(f"s_add_u32 s34, s34, {R2_OFF:#x}")
    e("buffer_load_dword v112, v15, s[40:43], s34 offen")
    e("v_lshl_add_u32 v20, v7, 2, v5"); e("v_lshlrev_b32 v20, 7, v20")
    e("v_lshrrev_b32 v21, 3, v3"); e("v_xor_b32 v21, s20, v21"); e("v_lshl_add_u32 v20, v21, 6, v20")
    e("v_lshl_add_u32 v20, v8, 5, v20"); e("v_lshl_add_u32 v20, v6, 3, v20"); e(f"v_add_u32 v20, {G2_W}, v20")
    e("s_lshl_b32 s35, s21, 13"); e("v_add_u32 v21, s35, v11")
    e("v_mov_b32 v22, v20"); e("v_mov_b32 v23, v21")
    ACC = 116
    for r in range(16): e(f"v_mov_b32 v{ACC+r}, 0")
    FR = [32, 64]
    def reads(g, buf, n=4):
        l = []
        for q in range(n):
            ks = 4*g + q; b = FR[buf] + 8*q
            l.append(f"ds_read_b64_tr_b16 {vr(b,2)}, v22 offset:{ks*2048}")
            l.append(f"ds_read_b64_tr_b16 {vr(b+2,2)}, v22 offset:{ks*2048+1024}")
            l.append(f"ds_read_b128 {vr(b+4,4)}, v23 offset:{ks*1024}")
        return l
    def mfmas(buf, nxt, n=4):
        p = 0
        for q in range(n):
            b = FR[buf] + 8*q
            e(f"v_mfma_f32_32x32x16_bf16 {vr(ACC,16)}, {vr(b,4)}, {vr(b+4,4)}, {vr(ACC,16)}")
            for _ in range(4 if q < 2 else 2):
                if p < len(nxt): e(nxt[p]); p += 1
    e("s_mov_b32 s36, 0"); e("s_mov_b32 s37, 0")
    e("s_barrier")
    for s in reads(0, 0): e(s)
    k.lab("L_g2_loop")
    e("s_waitcnt lgkmcnt(0)")
    mfmas(0, reads(1, 1))
    e("s_waitcnt lgkmcnt(0)")
    e(f"s_add_u32 s37, s37, {G2_STG}"); e(f"s_and_b32 s37, s37, {4*G2_STG-1}")
    e("v_add_u32 v22, s37, v20"); e("v_add_u32 v23, s37, v21")
    e("s_barrier")
    mfmas(1, reads(0, 0))
    e("s_add_u32 s36, s36, 1"); e("s_cmp_lt_u32 s36, 10"); e("s_cbranch_scc1 L_g2_loop")
    e("s_waitcnt lgkmcnt(0)")
    mfmas(0, reads(1, 1, 2))
    e("s_waitcnt lgkmcnt(0)")
    mfmas(1, [], 2)
    e("v_add_u32 v24, s22, v9"); e("v_lshlrev_b32 v24, 10, v24"); e("v_lshl_add_u32 v24, v7, 4, v24")
    e("s_lshl_b32 s38, s11, 7"); e("s_lshl_b32 s39, s20, 6"); e("s_add_u32 s38, s38, s39")
    e("s_nop 7")
    e("s_waitcnt vmcnt(0)")
    for r in range(16): e(f"v_fma_f32 v{ACC+r}, v{ACC+r}, v112, v{RES+r}")
    for p in range(8): e(f"v_cvt_pk_bf16_f32 v{32+p}, v{ACC+2*p}, v{ACC+2*p+1}")
    e("s_nop 1")
    e("v_permlane32_swap_b32 v32, v34"); e("v_permlane32_swap_b32 v33, v35")
    e("v_permlane32_swap_b32 v36, v38"); e("v_permlane32_swap_b32 v37, v39")
    e("buffer_store_dwordx4 v[32:35], v24, s[28:31], s38 offen")
    e("buffer_store_dwordx4 v[36:39], v24, s[28:31], s38 offen offset:32")
    e("s_endpgm")
    k.lab("L_g2_loader")
    e("s_sub_u32 s20, s19, 4")
    e("s_lshl_b32 s21, s10, 1"); e("s_lshr_b32 s22, s20, 1"); e("s_add_u32 s21, s21, s22"); e(f"s_mul_i32 s21, s21, {HH_KS*1024}")
    e("s_and_b32 s22, s20, 1"); e("s_lshl_b32 s22, s22, 12"); e("s_add_u32 s21, s21, s22"); e(f"s_add_u32 s21, s21, {HH_OFF:#x}")
    e("s_lshl_b32 s23, s20, 12")
    e("v_lshrrev_b32 v3, 3, v2"); e("v_and_b32 v4, 7, v2"); e("v_bfe_u32 v5, v2, 4, 1"); e("v_lshlrev_b32 v5, 2, v5"); e("v_xor_b32 v4, v4, v5")
    e("v_lshlrev_b32 v3, 10, v3"); e("v_lshl_add_u32 v3, v4, 4, v3")
    e("s_lshl_b32 s32, s20, 15"); e("s_lshl_b32 s33, s11, 7"); e("s_add_u32 s32, s32, s33")
    def issue(c):
        st = (c % 4) * G2_STG
        e(f"s_add_u32 m0, s23, {st}")
        e(f"s_add_u32 s34, s21, {c*8192}")
        for i in range(4): e(f"buffer_load_dwordx4 v11, s[40:43], s34 offen offset:{1024*i} lds")
        e(f"s_add_u32 m0, s23, {st+G2_W}")
        for i in range(4):
            e(f"s_add_u32 s35, s32, {c*131072 + i*7168}")
            e(f"buffer_load_dwordx4 v3, s[24:27], s35 offen offset:{1024*i} lds")
    for c in range(4): issue(c)
    e("s_waitcnt vmcnt(24)"); e("s_barrier")
    for c in range(10):
        if 1 <= c <= 7: issue(c+3)
        last_issued = min(10, max(3, c+3))
        e(f"s_waitcnt vmcnt({8*(last_issued-(c+1))})")
        e("s_barrier")
    k.lab("L_g2_end")
    return k, k.desc(136, 64)

ks = [gen_prep(), gen_conv(), gen_gemm1(), gen_gemm2()]
hdr = open("sequential_preLN__ssm_conv_h3__glu_gated_reglu__prompt.s.ref").read().split("; Override")[0]
launches = [("prep_kernel", 342, 256, 2048), ("conv_kernel", 256, 256, CONV_LDS), ("gemm1_kernel", 256, 512, G1_LDS), ("gemm2_kernel", 256, 512, G2_LDS)]
sel = sys.argv[2] if len(sys.argv) > 2 else "0123"
s = hdr
for i in sel:
    n, g, b, l = launches[int(i)]
    s += f"; @launch kernel={n} grid=({g},1,1) block=({b},1,1) lds={l}\n"
s += '.amdgcn_target "amdgcn-amd-amdhsa--gfx950"\n.text\n'
for k, d in ks: s += k.text()
s += '.section .rodata,"a"\n'
for k, d in ks: s += d
open(OUT, "w").write(s)
```

```python
import sys, os
OUT = sys.argv[1] if len(sys.argv) > 1 else "v2.s"
STAMP = int(os.environ.get("STAMP", "0"))
NAME = "sequential_preLN__ssm_conv_h3__glu_gated_reglu__prompt_kernel"

RS      = 4224
KVT_OFF = 0
QT_OFF  = 0x220000
STG_OFF = 0x440000
CSP_OFF = 0x448000
EPO_OFF = 0x478000
FL1_OFF = 0x480000
FL2_OFF = 0x488000
FL3_OFF = 0x490000
HT_OFF  = 0x4A0000
HH_OFF  = 0x6A0000
HH_KS   = 96
WS_END  = HH_OFF + 64 * HH_KS * 1024
STAMP_OFF = 0x1000000
if STAMP: WS_END = 0x2000000

WSLOT = 24640; W_U = 12320
RB = 4 * WSLOT
T_KV = RB; T_Q = RB + 8192
CP = 4160; HREG = 4 * CP; XREG = 4608; CH_L = HREG + XREG
ST_L = RB + 2 * CH_L
assert ST_L + 16384 <= 163840
A_L = RB
MEAN_L = RB + 49152
CS_L = MEAN_L + 1024
HH_L = 7 * 16384
LDS_BYTES = 163840

L = []
def e(s): L.append("    " + s)
def lab(s): L.append(s + ":")
def vr(a, n): return f"v[{a}:{a+n-1}]"
nst = [0]
def mark(i):
    if STAMP: e(f"s_memrealtime s[{80+2*i}:{81+2*i}]")
def srd(d, base, nbytes):
    e(f"s_mov_b32 s{d}, s{base}"); e(f"s_mov_b32 s{d+1}, s{base+1}"); e(f"s_mov_b32 s{d+2}, {nbytes:#x}"); e(f"s_mov_b32 s{d+3}, 0x20000")
def endpgm():
    if STAMP:
        e("s_mov_b64 exec, -1")
        e("s_waitcnt vmcnt(0) lgkmcnt(0)")
        e("s_memrealtime s[98:99]")
        e("s_lshl_b32 s76, s2, 9"); e("s_lshl_b32 s77, s3, 6"); e("s_add_u32 s76, s76, s77"); e(f"s_add_u32 s76, s76, {STAMP_OFF}")
        e("v_mov_b32 v251, 0")
        e("s_waitcnt lgkmcnt(0)")
        for i in range(10):
            e(f"v_mov_b32 v252, s{80+2*i}")
            e(f"buffer_store_dword v252, v251, s[40:43], s76 offen offset:{4*i}")
    e("s_endpgm")

class Trk:
    def __init__(self, name, mx): self.q = []; self.name = name; self.mx = mx
    def add(self, tag, n=1): self.q += [tag] * n
    def wait(self, *tags):
        idx = -1
        for i, t in enumerate(self.q):
            if t in tags: idx = i
        if idx < 0: return
        n = len(self.q) - 1 - idx
        n = min(n, self.mx)
        e(f"s_waitcnt {self.name}({n})")
        self.q = self.q[len(self.q) - n:] if n else []
    def clear(self): self.q = []

SQ, SK, SWS, SV, SSH, SSK, SD, SWG, SWU, SWD, SOUT = [f"s[{x}:{x+3}]" for x in (32, 36, 40, 44, 48, 52, 56, 60, 64, 68, 72)]
pollid = [0]
def poll(addr, tmp):
    n = pollid[0]; pollid[0] += 1
    e("s_mov_b32 s30, 0x100000")
    lab(f"L_poll{n}")
    e(f"buffer_load_dword {tmp}, {addr}, {SWS}, 0 offen sc1")
    e("s_waitcnt vmcnt(0)")
    e(f"v_cmp_ne_u32 vcc, s9, {tmp}")
    e("s_sub_u32 s30, s30, 1")
    e(f"s_cbranch_scc1 L_pollx{n}")
    e("s_and_b64 exec, exec, vcc")
    e(f"s_cbranch_execnz L_poll{n}")
    lab(f"L_pollx{n}")
    e("s_mov_b64 exec, -1")
def post_flag(off, n):
    e("s_cmp_lg_u32 s3, 4"); e(f"s_cbranch_scc1 L_nopost{n}")
    e("s_mov_b64 exec, 1")
    e(f"s_mov_b32 s31, {off:#x}")
    e(f"buffer_store_dword v5, v4, {SWS}, s31 offen sc1")
    e("s_mov_b64 exec, -1")
    lab(f"L_nopost{n}")

mark(0)
e("s_cmp_ge_u32 s2, 256"); e("s_cbranch_scc1 L_end")
e("s_load_dwordx16 s[4:19], s[0:1], 0")
e("s_load_dwordx8 s[20:27], s[0:1], 64")
e("s_load_dwordx2 s[28:29], s[0:1], 96")
e("v_lshrrev_b32 v1, 6, v0"); e("v_and_b32 v2, 63, v0")
e("v_readfirstlane_b32 s3, v1")
e("v_and_b32 v3, 255, v0")
e("v_and_b32 v10, 15, v3"); e("v_lshrrev_b32 v11, 4, v3")
e("s_and_b32 s30, s2, 7"); e("s_lshr_b32 s31, s2, 3")
e("s_lshl_b32 s76, s31, 16"); e("s_lshl_b32 s77, s30, 7"); e("s_add_u32 s76, s76, s77")
e("v_lshlrev_b32 v12, 12, v11"); e("v_lshl_add_u32 v12, v10, 3, v12"); e("v_add_u32 v12, s76, v12")
e("v_lshrrev_b32 v13, 1, v11"); e("v_and_b32 v14, 7, v10"); e("v_xor_b32 v13, v13, v14"); e("v_lshlrev_b32 v13, 4, v13")
e("v_lshl_add_u32 v13, v10, 9, v13"); e("v_and_b32 v14, 1, v11"); e("v_lshl_add_u32 v13, v14, 3, v13")
e("s_waitcnt lgkmcnt(0)")
srd(32, 4, 0x200000); srd(36, 6, 0x200000); srd(40, 28, WS_END); srd(44, 8, 0x200000); srd(48, 10, 4096)
srd(52, 12, 0x200000); srd(56, 14, 1024); srd(60, 18, 512*2752); srd(64, 20, 512*2752); srd(68, 22, 1376*1024); srd(72, 24, 0x200000)
e("s_mov_b32 s4, s30"); e("s_mov_b32 s5, s31")
e("s_lshl_b32 s6, s4, 1"); e("s_lshr_b32 s10, s5, 4"); e("s_add_u32 s6, s6, s10")
e("s_and_b32 s7, s5, 15")
e("s_lshl_b32 s8, s10, 2"); e("s_add_u32 s8, s8, s7"); e("s_add_u32 s8, s8, s4"); e("s_and_b32 s8, s8, 7")
e("s_and_b32 s11, s3, 3")
e("s_lshl_b32 s12, s4, 6"); e("s_lshl_b32 s13, s5, 1"); e("s_add_u32 s12, s12, s13")
e("s_mov_b32 s14, 0xffff0000")
e("s_cmp_ge_u32 s3, 4"); e("s_cbranch_scc1 L_H")

def unpack(dst, src, c):
    s = src + (c >> 1)
    if c & 1: e(f"v_and_b32 v{dst}, s14, v{s}")
    else: e(f"v_lshlrev_b32 v{dst}, 16, v{s}")

def tile_store(tile_l, goff):
    e("v_lshrrev_b32 v20, 3, v2"); e("s_lshl_b32 s15, s11, 4"); e("v_add_u32 v20, s15, v20")
    e("v_and_b32 v21, 7, v2")
    e("v_lshrrev_b32 v22, 2, v20"); e("v_and_b32 v22, 7, v22"); e("v_xor_b32 v23, v21, v22"); e("v_xor_b32 v24, 2, v23")
    e("v_lshlrev_b32 v22, 7, v20"); e("v_lshl_add_u32 v23, v23, 4, v22"); e("v_lshl_add_u32 v24, v24, 4, v22")
    e(f"v_add_u32 v23, {tile_l}, v23"); e(f"v_add_u32 v24, {tile_l+1024}, v24")
    e(f"v_mul_u32_u24 v25, {RS}, v20"); e("v_lshl_add_u32 v25, v21, 4, v25")
    e(f"s_mul_i32 s15, s4, {64*RS}"); e("s_lshl_b32 s16, s5, 7"); e("s_add_u32 s15, s15, s16"); e(f"s_add_u32 s15, s15, {goff:#x}")
    e(f"s_add_u32 s16, s15, {8*RS}")
    e("s_waitcnt lgkmcnt(0)"); e("s_barrier")
    e("ds_read_b128 v[28:31], v23"); e("ds_read_b128 v[32:35], v24")
    e("s_waitcnt lgkmcnt(1)")
    e(f"buffer_store_dwordx4 v[28:31], v25, {SWS}, s15 offen sc1")
    e("s_waitcnt lgkmcnt(0)")
    e(f"buffer_store_dwordx4 v[32:35], v25, {SWS}, s16 offen sc1")

e("v_subrev_u32 v14, 3072, v12")
e("s_lshl_b32 s15, s4, 9"); e("v_lshlrev_b32 v15, 5, v10"); e("v_add_u32 v15, s15, v15")
for r in range(3): e(f"buffer_load_dwordx2 {vr(16+2*r,2)}, v14, {SK}, 0 offen offset:{1024*r}")
for r in range(4): e(f"buffer_load_dwordx2 {vr(22+2*r,2)}, v12, {SK}, 0 offen offset:{1024*r}")
e(f"buffer_load_dwordx4 {vr(48,4)}, v15, {SSH}, 0 offen")
e(f"buffer_load_dwordx4 {vr(52,4)}, v15, {SSH}, 0 offen offset:16")
for r in range(4): e(f"buffer_load_dwordx2 {vr(30+2*r,2)}, v12, {SV}, 0 offen offset:{1024*r}")
e("v_lshlrev_b32 v6, 4, v3"); e("v_sub_u32 v7, 4080, v6"); e("v_subrev_u32 v8, 8, v7"); e("v_max_i32 v8, 0, v8")
e("s_lshl_b32 s15, s12, 12"); e("s_add_u32 s16, s15, 4096")
e(f"buffer_load_dwordx4 v[228:231], v7, {SSK}, s15 offen")
e(f"buffer_load_dwordx2 v[226:227], v8, {SSK}, s15 offen")
e(f"buffer_load_dwordx4 v[236:239], v7, {SSK}, s16 offen")
e(f"buffer_load_dwordx2 v[234:235], v8, {SSK}, s16 offen")
e("s_lshr_b32 s20, s11, 1"); e("s_and_b32 s21, s11, 1"); e("s_add_u32 s22, s12, s20")
e("s_lshl_b32 s15, s22, 1"); e("v_mov_b32 v9, s15"); e("v_mov_b32 v240, 0")
e(f"buffer_load_short_d16_hi v240, v9, {SD}, 0 offen")
e(f"v_add_u32 v13, {T_KV}, v13")
e("s_waitcnt vmcnt(9)")
mark(1)
for r in range(7):
    for c in range(4): unpack(64+4*r+c, 16+2*r, c)
for c in range(4):
    for j in range(4): unpack(92+4*c+j, 48+2*c, j)
for r in range(4):
    for c in range(4): e(f"v_mul_f32 v{108+4*r+c}, v{64+4*r+c}, v{92+4*c+3}")
for j in (2, 1, 0):
    for r in range(4):
        for c in range(4): e(f"v_fmac_f32 v{108+4*r+c}, v{64+4*(r+3-j)+c}, v{92+4*c+j}")
e("s_waitcnt vmcnt(5)")
for r in range(4):
    for c in range(4): unpack(64+4*r+c, 30+2*r, c)
for r in range(4):
    for c in range(4): e(f"v_mul_f32 v{108+4*r+c}, v{108+4*r+c}, v{64+4*r+c}")
for c in range(4):
    e(f"v_cvt_pk_bf16_f32 v{80+2*c}, v{108+c}, v{112+c}")
    e(f"v_cvt_pk_bf16_f32 v{81+2*c}, v{116+c}, v{120+c}")
    e(f"ds_write_b64 v13, {vr(80+2*c,2)} offset:{128*c}")
tile_store(T_KV, KVT_OFF)
e("s_mov_b32 s15, 0xffff")
e("v_cmp_ne_u32 vcc, 255, v3")
e(f"v_add_u32 v16, {RB}, v6")
e("s_waitcnt vmcnt(2)")
for ch in range(2):
    b = 226 + 8*ch
    e(f"v_cndmask_b32 v{b}, 0, v{b}, vcc"); e(f"v_cndmask_b32 v{b+1}, 0, v{b+1}, vcc")
    w = lambda i: f"v{b+2+i}"
    o = 40 + 16*ch
    for n, i in enumerate((2, 1, 0, -1)): e(f"v_bfi_b32 v{o+n}, s15, {w(i)}, {w(i-1)}")
    for n, i in enumerate((2, 1, 0, -1)): e(f"v_alignbit_b32 v{o+4+n}, {w(i)}, {w(i)}, 16")
    for n, i in enumerate((3, 2, 1, 0)): e(f"v_bfi_b32 v{o+8+n}, s15, {w(i)}, {w(i-1)}")
    for n, i in enumerate((3, 2, 1, 0)): e(f"v_alignbit_b32 v{o+12+n}, {w(i)}, {w(i)}, 16")
for r in range(4): e(f"v_mov_b32 v{72+r}, 0")
e("v_lshrrev_b32 v17, 5, v3"); e(f"v_mul_u32_u24 v17, {CH_L}, v17"); e("v_and_b32 v18, 31, v3"); e("v_lshl_add_u32 v17, v18, 4, v17")
e(f"v_add_u32 v17, {RB+HREG}, v17")
e("v_bfe_u32 v18, v3, 4, 1"); e(f"v_mul_u32_u24 v18, {CH_L}, v18"); e("v_bfe_u32 v19, v3, 2, 2"); e(f"v_mul_u32_u24 v19, {CP}, v19")
e("v_add_u32 v18, v18, v19"); e("v_and_b32 v19, 3, v3"); e("v_lshl_add_u32 v18, v19, 4, v18"); e(f"v_add_u32 v18, {RB+4096}, v18")
e("s_waitcnt vmcnt(0)"); e("s_barrier")
mark(2)
for ch in range(2):
    for kap in range(4): e(f"ds_write_b128 v16, {vr(40+16*ch+4*kap,4)} offset:{ch*CH_L + kap*CP}")
e("s_cmp_lg_u32 s11, 0"); e("s_cbranch_scc1 L_nopad")
e("ds_write_b128 v17, v[72:75]")
e("s_mov_b32 exec_hi, 0")
e("ds_write_b128 v18, v[72:75]")
e("s_mov_b64 exec, -1")
lab("L_nopad")
e("v_and_b32 v6, 15, v2"); e("v_lshrrev_b32 v7, 4, v2")
e("v_lshlrev_b32 v8, 4, v6"); e("v_lshl_add_u32 v8, v7, 2, v8")
e(f"s_mul_i32 s23, s20, {CH_L}"); e(f"s_add_u32 s23, s23, {RB}")
e("v_and_b32 v32, 3, v6"); e(f"v_mul_u32_u24 v32, {CP}, v32")
e("v_lshrrev_b32 v33, 2, v6"); e("v_lshlrev_b32 v33, 3, v33"); e("v_lshl_add_u32 v33, v7, 4, v33")
e("v_sub_u32 v32, v32, v33")
e("s_lshl_b32 s15, s21, 8"); e("s_sub_u32 s16, s23, s15")
e(f"s_add_u32 s17, s16, {2*2052 - 512*7 - 64*3}"); e("v_add_u32 v32, s17, v32")
e("v_lshlrev_b32 v33, 5, v6"); e("v_lshlrev_b32 v34, 4, v7"); e("v_sub_u32 v33, v33, v34")
e(f"s_add_u32 s17, s16, {HREG + 512 + 16 - 64*3}"); e("v_add_u32 v33, s17, v33")
e("v_lshlrev_b32 v9, 1, v8")
e(f"s_mul_i32 s24, s22, {RS}"); e("s_lshl_b32 s25, s21, 11"); e("s_add_u32 s24, s24, s25"); e(f"s_add_u32 s24, s24, {QT_OFF:#x}")
e("s_waitcnt lgkmcnt(0)"); e("s_barrier")
mark(3)
ACC = 36; FA = [72, 136]; FB = [104, 168]
lg = Trk("lgkmcnt", 15)
def creads(rr, buf):
    lst = []
    for i in range(8):
        off = 512*(7-i) + 64*(3-rr)
        lst.append((f"ds_read_b128 {vr(FB[buf]+4*i,4)}, v33 offset:{512*i + 64*(3-rr)}", ("B", rr, i)))
        lst.append((f"ds_read_b64 {vr(FA[buf]+4*i,2)}, v32 offset:{off}", ("A", rr, i)))
        lst.append((f"ds_read_b64 {vr(FA[buf]+4*i+2,2)}, v32 offset:{off+8}", ("A", rr, i)))
    return lst
first = creads(0, 0)
for s, t in first[:12]: e(s); lg.add(t)
for u in range(4): e(f"buffer_load_dwordx2 {vr(200+2*u,2)}, v9, {SWS}, s24 offen offset:{512*u} sc1")
pend = first[12:]
pairs = sorted([(i, j) for i in range(8) for j in range(8 - i)], key=lambda p: (max(p), p[0] + p[1]))
started = set()
for rr in range(4):
    buf = rr & 1
    if rr < 3: pend = pend + creads(rr+1, buf ^ 1)
    npend = len(pend)
    for n, (i, j) in enumerate(pairs):
        t = i + j
        while any(x[1] in (("A", rr, i), ("B", rr, j)) for x in pend):
            s, tg = pend.pop(0); e(s); lg.add(tg)
        lg.wait(("A", rr, i), ("B", rr, j))
        c = vr(ACC+4*t, 4) if t in started else "0"
        started.add(t)
        e(f"v_mfma_f32_16x16x32_bf16 {vr(ACC+4*t,4)}, {vr(FA[buf]+4*i,4)}, {vr(FB[buf]+4*j,4)}, {c}")
        want = npend - (npend * (n + 1)) // 34
        while len(pend) > max(want, 0):
            s, tg = pend.pop(0); e(s); lg.add(tg)
mark(4)
e("v_lshlrev_b32 v5, 4, v2")
e("s_lshl_b32 s15, s21, 12"); e("s_add_u32 s15, s15, s23"); e("s_xor_b32 s16, s21, 1"); e("s_lshl_b32 s16, s16, 12"); e("s_add_u32 s16, s16, s23")
e("v_add_u32 v34, s15, v5"); e("v_add_u32 v35, s16, v5")
e(f"s_add_u32 s17, s23, {HREG+512}"); e("s_add_u32 s17, s17, s25"); e("v_add_u32 v12, s17, v9")
e("s_lshl_b32 s17, s21, 13"); e(f"s_add_u32 s17, s17, {ST_L}"); e("v_lshlrev_b32 v13, 3, v8"); e("v_add_u32 v13, s17, v13")
e("s_barrier")
e("s_cmp_eq_u32 s21, 0"); e("s_cbranch_scc1 L_conv_h0")
for u in range(4): e(f"ds_write_b128 v34, {vr(ACC+4*u,4)} offset:{1024*u}")
e("s_waitcnt lgkmcnt(0)")
for r in range(16): e(f"v_mov_b32 v{ACC+r}, v{ACC+16+r}")
e("s_branch L_conv_j")
lab("L_conv_h0")
for u in range(4): e(f"ds_write_b128 v34, {vr(ACC+16+4*u,4)} offset:{1024*u}")
e("s_waitcnt lgkmcnt(0)")
lab("L_conv_j")
for u in range(4): e(f"ds_read_b64 {vr(104+2*u,2)}, v12 offset:{512*u}")
for u in range(4):
    e(f"ds_read_b128 {vr(136+8*u,4)}, v13 offset:{2048*u}"); e(f"ds_read_b128 {vr(140+8*u,4)}, v13 offset:{2048*u+16}")
e("s_barrier")
for u in range(4): e(f"ds_read_b128 {vr(72+4*u,4)}, v35 offset:{1024*u}")
e("v_and_b32 v14, 7, v6"); e("v_lshlrev_b32 v14, 1, v14"); e("v_lshrrev_b32 v15, 1, v7"); e("v_add_u32 v14, v14, v15")
e("s_and_b32 s15, s22, 3"); e("s_lshl_b32 s15, s15, 2"); e("v_xor_b32 v14, s15, v14")
e("v_lshlrev_b32 v14, 4, v14")
e("v_lshrrev_b32 v15, 3, v6"); e("v_lshl_add_u32 v14, v15, 17, v14")
e("v_and_b32 v15, 1, v7"); e("v_lshl_add_u32 v14, v15, 18, v14")
e("s_lshl_b32 s16, s22, 8"); e("s_lshl_b32 s17, s21, 20"); e("s_add_u32 s16, s16, s17"); e(f"s_add_u32 s16, s16, {HT_OFF:#x}")
e(f"s_add_u32 s17, s16, {4*131072}")
e("s_waitcnt vmcnt(0) lgkmcnt(0)")
for u in range(4):
    for r in range(4):
        y = ACC + 4*u + r
        e(f"v_add_f32 v{y}, v{y}, v{72+4*u+r}")
        unpack(120, 104 + 2*u, r); unpack(121, 200 + 2*u, r)
        e(f"v_fmac_f32 v{y}, v120, v240")
        e(f"v_fma_f32 v122, v121, v{136+8*u+2*r}, v{137+8*u+2*r}")
        e(f"v_fma_f32 v{y}, v122, v{y}, v121")
    e(f"v_cvt_pk_bf16_f32 v{124+2*u}, v{ACC+4*u}, v{ACC+4*u+1}")
    e(f"v_cvt_pk_bf16_f32 v{125+2*u}, v{ACC+4*u+2}, v{ACC+4*u+3}")
    if u & 1:
        b = 124 + 2*(u-1)
        e("s_nop 1")
        e(f"v_permlane16_swap_b32 v{b}, v{b+2}"); e(f"v_permlane16_swap_b32 v{b+1}, v{b+3}")
        e(f"buffer_store_dwordx4 {vr(b,4)}, v14, {SWS}, s{16+(u>>1)} offen sc1")
e("v_and_b32 v3, 15, v2"); e("v_lshrrev_b32 v4, 4, v2"); e("v_lshrrev_b32 v5, 2, v3"); e("v_and_b32 v6, 3, v3")
e("v_lshrrev_b32 v7, 5, v2"); e("v_and_b32 v8, 1, v4"); e("v_lshl_add_u32 v9, v7, 3, v5")
e("v_lshlrev_b32 v10, 8, v9"); e("v_lshl_add_u32 v10, v8, 5, v10"); e("v_lshl_add_u32 v10, v6, 3, v10"); e(f"v_add_u32 v10, {A_L}, v10")
e("v_mul_u32_u24 v12, 192, v9"); e(f"v_mul_u32_u24 v13, {W_U}, v8"); e("v_add_u32 v12, v12, v13"); e("v_lshl_add_u32 v12, v6, 3, v12")
e("s_mul_i32 s15, s21, 96"); e("v_add_u32 v12, s15, v12")
e("s_lshl_b32 s15, s20, 1"); e("v_xor_b32 v13, s15, v5"); e("v_lshl_add_u32 v13, v13, 6, v10")
e("s_add_u32 s15, s15, 1"); e("v_xor_b32 v18, s15, v5"); e("v_lshl_add_u32 v18, v18, 6, v10")
e("v_mov_b32 v15, v12"); e("v_mov_b32 v16, v13"); e("v_mov_b32 v17, v18")
e("s_waitcnt vmcnt(0)"); e("s_barrier")
mark(5)
ACC = 64
for r in range(96): e(f"v_mov_b32 v{ACC+r}, 0")
FR = [20, 40]
def g1reads(ks, buf):
    l = []; b = FR[buf]
    for hh in range(2): l.append(f"ds_read_b64_tr_b16 {vr(b+2*hh,2)}, v15 offset:{(16*ks+4*hh)*192}")
    for hh in range(2): l.append(f"ds_read_b64_tr_b16 {vr(b+12+2*hh,2)}, v16 offset:{4096*ks+1024*hh}")
    for hh in range(2): l.append(f"ds_read_b64_tr_b16 {vr(b+16+2*hh,2)}, v17 offset:{4096*ks+1024*hh}")
    for mb in (1, 2):
        for hh in range(2): l.append(f"ds_read_b64_tr_b16 {vr(b+4*mb+2*hh,2)}, v15 offset:{(16*ks+4*hh)*192+32*mb}")
    return l
e("s_mov_b32 s24, 0"); e("s_mov_b32 s25, 0"); e("s_mov_b32 s26, 0")
e("s_barrier")
mark(6)
for s in g1reads(0, 0): e(s)
lab("L_g1_loop")
for ks in range(4):
    buf = ks & 1
    e("s_waitcnt lgkmcnt(0)")
    if ks == 3:
        e(f"s_add_u32 s25, s25, {WSLOT}"); e(f"s_cmp_eq_u32 s25, {4*WSLOT}"); e("s_cselect_b32 s25, 0, s25")
        e(f"s_add_u32 s26, s26, 16384"); e(f"s_cmp_eq_u32 s26, {3*16384}"); e("s_cselect_b32 s26, 0, s26")
        e("v_add_u32 v15, s25, v12"); e("v_add_u32 v16, s26, v13"); e("v_add_u32 v17, s26, v18")
        e("s_barrier")
    nxt = g1reads((ks+1) & 3, buf ^ 1)
    sched = [3, 3, 2, 2, 0, 0]; p = 0
    for n, (mb, nb) in enumerate([(0,0),(0,1),(1,0),(1,1),(2,0),(2,1)]):
        a = ACC + 16*(2*mb+nb)
        e(f"v_mfma_f32_32x32x16_bf16 {vr(a,16)}, {vr(FR[buf]+4*mb,4)}, {vr(FR[buf]+12+4*nb,4)}, {vr(a,16)}")
        for _ in range(sched[n]): e(nxt[p]); p += 1
e("s_add_u32 s24, s24, 1"); e("s_cmp_lt_u32 s24, 8"); e("s_cbranch_scc1 L_g1_loop")
mark(7)
e("v_and_b32 v9, 31, v2"); e("v_lshlrev_b32 v19, 2, v9"); e("s_lshl_b32 s15, s20, 8"); e(f"s_add_u32 s15, s15, {MEAN_L}"); e("v_add_u32 v19, s15, v19")
e("s_mul_i32 s15, s21, 384"); e(f"s_add_u32 s15, s15, {CS_L}"); e("v_lshlrev_b32 v60, 4, v7"); e("v_add_u32 v60, s15, v60")
e("s_lshr_b32 s27, s5, 3"); e("s_and_b32 s27, s27, 1"); e("s_lshl_b32 s27, s27, 6"); e("s_lshl_b32 s15, s20, 5"); e("s_add_u32 s27, s27, s15")
e("s_and_b32 s28, s5, 7")
e("v_add_u32 v61, s27, v9")
e("v_lshlrev_b32 v62, 2, v61"); e(f"v_add_u32 v62, {MEAN_L+512}, v62")
e("s_waitcnt lgkmcnt(0)")
e("ds_read_b32 v20, v19"); e("ds_read_b32 v22, v19 offset:128"); e("ds_read_b32 v240, v62")
for mb in range(3):
    for i in range(2):
        e(f"ds_read_b128 {vr(160+8*mb+4*i,4)}, v60 offset:{128*mb+32*i}")
        e(f"ds_read_b128 {vr(184+8*mb+4*i,4)}, v60 offset:{128*mb+64+32*i}")
RES = 224
for r in range(16): e(f"v_mov_b32 v{RES+r}, 0")
e("v_lshrrev_b32 v24, 3, v61"); e("v_and_b32 v25, 7, v61"); e("v_lshlrev_b32 v25, 1, v25"); e("v_lshl_add_u32 v25, v7, 10, v25")
e("s_lshl_b32 s15, s6, 17"); e("s_lshl_b32 s16, s28, 14"); e("s_add_u32 s15, s15, s16"); e("s_lshl_b32 s16, s21, 13"); e("s_add_u32 s15, s15, s16")
e(f"s_add_u32 s15, s15, {HT_OFF:#x}"); e("s_add_u32 s16, s15, 4096")
for j in range(4):
    e(f"v_xor_b32 v26, {j<<2}, v24"); e(f"v_lshl_add_u32 v{28+j}, v26, 4, v25")
for i in range(4):
    for j in range(4):
        e(f"buffer_load_short_d16_hi v{RES+4*i+j}, v{28+j}, {SWS}, s{15+(i>>1)} offen offset:{2048*(i&1)+256*j} sc1")
e("s_lshl_b32 s17, s6, 2"); e("s_lshl_b32 s18, s20, 1"); e("s_add_u32 s17, s17, s18"); e(f"s_mul_i32 s17, s17, {HH_KS}")
e("s_mul_i32 s18, s7, 6"); e("s_mul_i32 s19, s21, 3"); e("s_add_u32 s19, s19, s18")
e("s_add_u32 s17, s17, s19")
e("s_lshl_b32 s17, s17, 10"); e(f"s_add_u32 s17, s17, {HH_OFF:#x}"); e(f"s_add_u32 s18, s17, {HH_KS*1024}")
e("v_lshlrev_b32 v11, 4, v2")
e("s_waitcnt lgkmcnt(0)")
for mb in range(3):
    e(f"s_add_u32 s29, s19, {mb}"); e("s_cmp_lt_u32 s29, 86"); e("s_cselect_b32 s29, -1, 0")
    for nb in range(2):
        a = ACC + 16*(2*mb+nb); m = 20 + 2*nb
        for p in range(4):
            e(f"v_pk_fma_f32 {vr(a+2*p,2)}, {vr(m,2)}, {vr(160+8*mb+2*p,2)}, {vr(a+2*p,2)} op_sel_hi:[0,1,1]")
            e(f"v_pk_fma_f32 {vr(a+8+2*p,2)}, {vr(m,2)}, {vr(184+8*mb+2*p,2)}, {vr(a+8+2*p,2)} op_sel_hi:[0,1,1]")
        for r in range(8): e(f"v_max_f32 v{a+r}, 0, v{a+r}")
        for p in range(4): e(f"v_pk_mul_f32 {vr(a+2*p,2)}, {vr(a+2*p,2)}, {vr(a+8+2*p,2)}")
        for p in range(4): e(f"v_cvt_pk_bf16_f32 v{a+8+p}, v{a+2*p}, v{a+2*p+1}")
        for p in range(4): e(f"v_and_b32 v{a+8+p}, s29, v{a+8+p}")
        e(f"buffer_store_dwordx4 {vr(a+8,4)}, v11, {SWS}, s{17+nb} offen offset:{1024*mb} sc1")
e("v_lshl_add_u32 v20, v7, 2, v5"); e("v_lshlrev_b32 v20, 7, v20")
e("v_lshrrev_b32 v21, 3, v3"); e("v_xor_b32 v21, s21, v21"); e("v_lshl_add_u32 v20, v21, 6, v20")
e("v_lshl_add_u32 v20, v8, 5, v20"); e("v_lshl_add_u32 v20, v6, 3, v20")
e("s_lshl_b32 s15, s20, 13"); e(f"s_add_u32 s15, s15, {HH_L}"); e("v_add_u32 v21, s15, v11")
e("v_mov_b32 v22, v20"); e("v_mov_b32 v23, v21")
e("s_lshl_b32 s15, s6, 7"); e("v_add_u32 v24, s15, v61"); e("v_lshlrev_b32 v24, 10, v24"); e("v_lshl_add_u32 v24, v7, 4, v24")
e("s_lshl_b32 s27, s28, 7"); e("s_lshl_b32 s15, s21, 6"); e("s_add_u32 s27, s27, s15")
e("s_mov_b32 s24, 0"); e("s_mov_b32 s25, 0"); e("s_mov_b32 s26, 0")
e("s_waitcnt vmcnt(0)"); e("s_barrier")
mark(8)
ACC = 208
for r in range(16): e(f"v_mov_b32 v{ACC+r}, 0")
FR = [32, 64]
def g2reads(g, buf):
    l = []
    for q in range(4):
        ks = 4*g + q; b = FR[buf] + 8*q
        l.append(f"ds_read_b64_tr_b16 {vr(b,2)}, v22 offset:{ks*2048}")
        l.append(f"ds_read_b64_tr_b16 {vr(b+2,2)}, v22 offset:{ks*2048+1024}")
        l.append(f"ds_read_b128 {vr(b+4,4)}, v23 offset:{ks*1024}")
    return l
def g2mfmas(buf, nxt):
    p = 0
    for q in range(4):
        b = FR[buf] + 8*q
        e(f"v_mfma_f32_32x32x16_bf16 {vr(ACC,16)}, {vr(b,4)}, {vr(b+4,4)}, {vr(ACC,16)}")
        for _ in range(4 if q < 2 else 2):
            if p < len(nxt): e(nxt[p]); p += 1
e("s_barrier")
for s in g2reads(0, 0): e(s)
lab("L_g2_loop")
e("s_waitcnt lgkmcnt(0)")
g2mfmas(0, g2reads(1, 1))
e("s_waitcnt lgkmcnt(0)")
e("s_add_u32 s25, s25, 16384"); e(f"s_cmp_eq_u32 s25, {7*16384}"); e("s_cselect_b32 s25, 0, s25")
e("s_add_u32 s26, s26, 16384"); e(f"s_cmp_eq_u32 s26, {3*16384}"); e("s_cselect_b32 s26, 0, s26")
e("v_add_u32 v22, s25, v20"); e("v_add_u32 v23, s26, v21")
e("s_barrier")
g2mfmas(1, g2reads(0, 0))
e("s_add_u32 s24, s24, 1"); e("s_cmp_lt_u32 s24, 11"); e("s_cbranch_scc1 L_g2_loop")
e("s_nop 7"); e("s_nop 3")
e("s_waitcnt lgkmcnt(0)")
for r in range(16): e(f"v_fma_f32 v{ACC+r}, v{ACC+r}, v240, v{RES+r}")
for p in range(8): e(f"v_cvt_pk_bf16_f32 v{32+p}, v{ACC+2*p}, v{ACC+2*p+1}")
e("s_nop 1")
e("v_permlane32_swap_b32 v32, v34"); e("v_permlane32_swap_b32 v33, v35")
e("v_permlane32_swap_b32 v36, v38"); e("v_permlane32_swap_b32 v37, v39")
e(f"buffer_store_dwordx4 v[32:35], v24, {SOUT}, s27 offen")
e(f"buffer_store_dwordx4 v[36:39], v24, {SOUT}, s27 offen offset:32")
endpgm()

lab("L_H")
vm = Trk("vmcnt", 63)
e(f"v_mov_b32 v6, {EPO_OFF:#x}")
e(f"buffer_load_dword v5, v6, {SWS}, 0 offen sc1"); vm.add("epo")
for r in range(4): e(f"buffer_load_dwordx2 {vr(38+2*r,2)}, v12, {SQ}, 0 offen offset:{1024*r}")
vm.add("q", 4)
e("s_lshl_b32 s15, s2, 13"); e("s_lshl_b32 s16, s11, 11"); e("s_add_u32 s15, s15, s16")
e("v_lshlrev_b32 v11, 4, v2")
e(f"buffer_load_dwordx4 {vr(56,4)}, v11, {SQ}, s15 offen"); e(f"buffer_load_dwordx4 {vr(60,4)}, v11, {SQ}, s15 offen offset:1024")
vm.add("qr", 2)
for j in range(3):
    e(f"v_add_u32 v20, {j*64}, v2")
    e("v_mul_u32_u24 v21, 0x5556, v20"); e("v_lshrrev_b32 v21, 18, v21")
    e("v_mul_u32_u24 v22, 12, v21"); e("v_sub_u32 v22, v20, v22")
    e("v_mul_u32_u24 v21, 2752, v21"); e(f"v_lshl_add_u32 v{14+j}, v22, 4, v21")
    if j: e(f"v_subrev_u32 v{14+j}, {1024*j}, v{14+j}")
e(f"s_mul_i32 s20, s11, {16*2752}"); e("s_mul_i32 s15, s7, 192"); e("s_add_u32 s20, s20, s15")
e(f"s_mul_i32 s21, s11, {16*192}")
def issueW(i):
    e(f"s_add_u32 s15, s8, {i}"); e("s_and_b32 s15, s15, 7"); e(f"s_mul_i32 s15, s15, {64*2752}"); e("s_add_u32 s15, s15, s20")
    e(f"s_add_u32 m0, s21, {(i % 4)*WSLOT}")
    e("s_nop 0")
    for j in range(3): e(f"buffer_load_dwordx4 v{14+j}, {SWG}, s15 offen offset:{1024*j} lds")
    e(f"s_add_u32 m0, s21, {(i % 4)*WSLOT + W_U}")
    e("s_nop 0")
    for j in range(3): e(f"buffer_load_dwordx4 v{14+j}, {SWU}, s15 offen offset:{1024*j} lds")
    vm.add(("W", i), 6)
issueW(0)
e("v_lshlrev_b32 v17, 7, v2")
e("s_cmp_lg_u32 s3, 5"); e("s_cbranch_scc1 L_notouch")
e("s_mul_i32 s15, s2, 5504")
e(f"buffer_load_dword v18, v17, {SWD}, s15 offen")
lab("L_notouch")
e("s_lshl_b32 s15, s4, 5"); e("s_add_u32 s15, s15, s5"); e("s_lshl_b32 s15, s15, 7"); e("v_mov_b32 v4, s15")
e(f"v_add_u32 v13, {T_Q}, v13")
e("s_mov_b32 s16, 0x05040100"); e("s_mov_b32 s17, 0x07060302")
vm.add("touch")
vm.q.pop()
vm.wait("q")
mark(1)
e("v_add_u32 v5, 1, v5")
for c in range(4):
    sel = "s17" if c & 1 else "s16"
    e(f"v_perm_b32 v{92+2*c}, v{40+(c>>1)}, v{38+(c>>1)}, {sel}")
    e(f"v_perm_b32 v{93+2*c}, v{44+(c>>1)}, v{42+(c>>1)}, {sel}")
    e(f"ds_write_b64 v13, {vr(92+2*c,2)} offset:{128*c}")
e("v_readfirstlane_b32 s9, v5")
vm.wait("qr")
for rr in range(2):
    for c in range(8): unpack(64+8*rr+c, 56+4*rr+2*(c>>2), c & 3)
def tree(dst, base):
    e(f"v_add_f32 v{dst}, v{base}, v{base+1}")
    for c in range(2, 8): e(f"v_add_f32 v{dst}, v{dst}, v{base+c}")
def reduce2(a, b):
    for m in ("row_shr:1", "row_shr:2", "row_shr:4", "row_shr:8"):
        e("s_nop 0")
        e(f"v_add_f32_dpp v{a}, v{a}, v{a} {m} row_mask:0xf bank_mask:0xf bound_ctrl:0")
        e(f"v_add_f32_dpp v{b}, v{b}, v{b} {m} row_mask:0xf bank_mask:0xf bound_ctrl:0")
    for m, rm in (("row_bcast:15", "0xa"), ("row_bcast:31", "0xc")):
        e("s_nop 0")
        e(f"v_add_f32_dpp v{a}, v{a}, v{a} {m} row_mask:{rm} bank_mask:0xf")
        e(f"v_add_f32_dpp v{b}, v{b}, v{b} {m} row_mask:{rm} bank_mask:0xf")
tile_store(T_Q, QT_OFF)
vm.add("qst", 2)
tree(100, 64); tree(101, 72)
e("s_nop 0")
reduce2(100, 101)
e("s_mov_b32 s18, 0x3b000000")
e("v_mul_f32 v100, s18, v100"); e("v_mul_f32 v101, s18, v101")
e("s_nop 0")
e("v_readlane_b32 s16, v100, 63"); e("v_readlane_b32 s17, v101, 63")
e("s_nop 1")
for c in range(8):
    e(f"v_subrev_f32 v{64+c}, s16, v{64+c}"); e(f"v_subrev_f32 v{72+c}, s17, v{72+c}")
e("v_mul_f32 v102, v64, v64"); e("v_mul_f32 v103, v72, v72")
for c in range(1, 8):
    e(f"v_fmac_f32 v102, v{64+c}, v{64+c}"); e(f"v_fmac_f32 v103, v{72+c}, v{72+c}")
e("s_nop 0")
reduce2(102, 103)
e("v_mov_b32 v104, 0x3727c5ac")
e("v_fma_f32 v102, v102, s18, v104"); e("v_fma_f32 v103, v103, s18, v104")
e("v_rsq_f32 v108, v102"); e("v_rsq_f32 v112, v103")
e("v_mov_b32 v110, v5"); e("v_mov_b32 v114, v5"); e("v_mov_b32 v111, v5"); e("v_mov_b32 v115, v5")
e("v_mul_f32 v109, v100, v108"); e("v_mul_f32 v113, v101, v112")
e("v_sub_f32 v109, 0, v109"); e("v_sub_f32 v113, 0, v113")
e("s_lshl_b32 s15, s2, 7"); e("s_lshl_b32 s16, s11, 5"); e("s_add_u32 s15, s15, s16"); e(f"s_add_u32 s15, s15, {STG_OFF:#x}")
e("v_mov_b32 v106, 0")
e("s_and_b32 s22, s11, 1"); e("s_lshr_b32 s23, s11, 1")
e("s_lshl_b32 s16, s4, 5"); e("s_lshl_b32 s17, s22, 4"); e("s_add_u32 s16, s16, s17")
e("v_and_b32 v7, 15, v2"); e("v_add_u32 v7, s16, v7"); e("v_lshlrev_b32 v7, 7, v7"); e(f"v_add_u32 v7, {FL1_OFF:#x}, v7")
e("s_add_u32 s16, s12, s23"); e(f"s_mul_i32 s16, s16, {RS}"); e("s_lshl_b32 s17, s22, 11"); e("s_add_u32 s24, s16, s17")
e(f"s_mul_i32 s16, s23, {CH_L}"); e("s_add_u32 s16, s16, s17"); e(f"s_add_u32 s25, s16, {RB+HREG+512}")
e("s_mov_b32 exec_lo, 0"); e("s_mov_b32 exec_hi, 0x80000000")
e(f"buffer_store_dwordx4 v[108:111], v106, {SWS}, s15 offen sc1")
e(f"buffer_store_dwordx4 v[112:115], v106, {SWS}, s15 offen offset:16 sc1")
e("s_mov_b64 exec, -1")
e("s_waitcnt vmcnt(2)"); vm.clear()
e("s_barrier")
mark(2)
post_flag(FL1_OFF, 1)
e("s_mov_b64 exec, 0xffff")
poll("v7", "v8")
e("s_mov_b32 m0, s25")
e("s_nop 0")
e(f"buffer_load_dwordx4 v11, {SWS}, s24 offen sc1 lds")
e(f"buffer_load_dwordx4 v11, {SWS}, s24 offen offset:1024 sc1 lds")
mark(3)
e("v_and_b32 v20, 15, v2"); e("v_lshrrev_b32 v21, 4, v2"); e("v_lshrrev_b32 v22, 2, v20"); e("v_and_b32 v23, 3, v20")
e("v_lshrrev_b32 v24, 5, v2"); e("v_and_b32 v25, 1, v21"); e("v_lshl_add_u32 v26, v24, 3, v22")
e("v_lshlrev_b32 v27, 8, v26"); e("v_lshl_add_u32 v27, v25, 5, v27"); e("v_lshl_add_u32 v27, v23, 3, v27")
e("v_xor_b32 v17, s11, v22"); e("v_lshl_add_u32 v17, v17, 6, v27"); e(f"v_add_u32 v17, {A_L}, v17")
e("v_mul_u32_u24 v28, 192, v26"); e(f"v_mul_u32_u24 v29, {W_U}, v25"); e("v_add_u32 v28, v28, v29"); e("v_lshl_add_u32 v28, v23, 3, v28")
e("s_min_u32 s26, s11, 2"); e("s_lshl_b32 s16, s26, 6"); e(f"s_mul_i32 s17, s10, {32*192}"); e("s_add_u32 s16, s16, s17"); e("v_add_u32 v28, s16, v28")
e("v_lshlrev_b32 v9, 4, v3")
e("s_waitcnt vmcnt(0)")
e("s_barrier")
e("s_mov_b32 s30, 0x100000")
lab("L_stg")
for j in range(8):
    e(f"s_mov_b32 s16, {STG_OFF + 4096*j:#x}")
    e(f"buffer_load_dwordx4 {vr(64+4*j,4)}, v9, {SWS}, s16 offen sc1")
for blk in range(2):
    for ks in range(2):
        for hh in range(2): e(f"ds_read_b64_tr_b16 {vr(32+8*blk+4*ks+2*hh,2)}, v28 offset:{(16*ks+4*hh)*192+32*blk}")
e("v_mov_b32 v30, 0"); e("v_mov_b32 v31, 0"); e("s_mov_b32 s27, 0x3f803f80")
e("s_waitcnt lgkmcnt(0)")
for r in range(8):
    e(f"v_dot2_f32_bf16 v30, v{32+r}, s27, v30"); e(f"v_dot2_f32_bf16 v31, v{40+r}, s27, v31")
e("s_nop 3")
e("v_permlane32_swap_b32 v30, v31")
e("s_nop 1")
e("v_add_f32 v30, v30, v31")
e("s_waitcnt vmcnt(0)")
e("v_xor_b32 v50, s9, v66")
for j in range(1, 8):
    e(f"v_xor_b32 v51, s9, v{66+4*j}"); e("v_or_b32 v50, v50, v51")
e("v_cmp_ne_u32 vcc, 0, v50")
e("s_sub_u32 s30, s30, 1"); e("s_cbranch_scc1 L_stgx")
e("s_cbranch_vccnz L_stg")
lab("L_stgx")
e("s_lshl_b32 s16, s7, 4"); e("s_add_u32 s16, s16, s6"); e("s_mul_i32 s16, s16, 768"); e("s_lshl_b32 s17, s26, 8"); e("s_add_u32 s16, s16, s17"); e(f"s_add_u32 s16, s16, {CSP_OFF:#x}")
e("v_lshlrev_b32 v29, 2, v2")
e(f"buffer_store_dword v30, v29, {SWS}, s16 offen sc1"); vm.add("csp")
e("v_lshlrev_b32 v10, 3, v3"); e(f"v_add_u32 v10, {ST_L}, v10")
for j in range(8): e(f"ds_write_b64 v10, {vr(64+4*j,2)} offset:{2048*j}")
issueW(1); issueW(2)
e("s_waitcnt lgkmcnt(0)")
mark(4)
e("s_barrier")
e("s_barrier")
issueW(3)
e("v_lshrrev_b32 v7, 3, v2"); e("v_lshlrev_b32 v7, 5, v7"); e("v_and_b32 v8, 7, v2"); e("v_add_u32 v7, v7, v8")
e("s_lshl_b32 s16, s11, 3"); e("v_add_u32 v7, s16, v7"); e("v_lshlrev_b32 v7, 7, v7"); e(f"v_add_u32 v7, {FL2_OFF:#x}, v7")
e("s_lshl_b32 s22, s6, 17"); e("s_lshl_b32 s23, s11, 12"); e("s_add_u32 s22, s22, s23"); e(f"s_add_u32 s22, s22, {HT_OFF:#x}")
e("v_add_u32 v18, 16384, v17"); e("v_add_u32 v19, 32768, v17")
e("v_mov_b32 v20, 0"); e("v_mov_b32 v21, 0")
e("v_lshrrev_b32 v12, 3, v2"); e("v_and_b32 v13, 7, v2"); e("v_bfe_u32 v22, v2, 4, 1"); e("v_lshlrev_b32 v22, 2, v22"); e("v_xor_b32 v13, v13, v22")
e("v_lshlrev_b32 v12, 10, v12"); e("v_lshl_add_u32 v12, v13, 4, v12")
e("s_and_b32 s28, s5, 7")
e("s_lshl_b32 s24, s11, 15"); e("s_lshl_b32 s16, s28, 7"); e("s_add_u32 s24, s24, s16")
e("s_lshr_b32 s16, s5, 3"); e("s_mul_i32 s16, s16, 3"); e("s_add_u32 s29, s16, s28"); e("s_cmp_ge_u32 s29, 11"); e("s_cselect_b32 s16, 11, 0"); e("s_sub_u32 s29, s29, s16")
e("s_lshl_b32 s25, s4, 2"); e("s_lshr_b32 s16, s5, 3"); e("s_add_u32 s25, s25, s16"); e("s_lshl_b32 s25, s25, 1"); e("s_lshr_b32 s16, s11, 1"); e("s_add_u32 s25, s25, s16")
e(f"s_mul_i32 s25, s25, {HH_KS*1024}"); e("s_and_b32 s16, s11, 1"); e("s_lshl_b32 s16, s16, 12"); e("s_add_u32 s25, s25, s16"); e(f"s_add_u32 s25, s25, {HH_OFF:#x}")
vm.wait("csp")
e("s_barrier")
mark(5)
post_flag(FL2_OFF, 2)
poll("v7", "v8"); vm.clear()
def issueA(i):
    e(f"s_add_u32 s15, s8, {i}"); e("s_and_b32 s15, s15, 7"); e("s_lshl_b32 s15, s15, 14"); e("s_add_u32 s15, s15, s22")
    e(f"s_add_u32 m0, s23, {A_L + (i % 3)*16384}")
    e("s_nop 0")
    for j in range(4): e(f"buffer_load_dwordx4 v11, {SWS}, s15 offen offset:{1024*j} sc1 lds")
    vm.add(("A", i), 4)
def rot11(i):
    e(f"s_add_u32 s15, s29, {i}"); e("s_cmp_ge_u32 s15, 11"); e("s_cselect_b32 s16, 11, 0"); e("s_sub_u32 s15, s15, s16")
def issueWd(i):
    rot11(i)
    e("s_lshl_b32 s15, s15, 17"); e("s_add_u32 s15, s15, s24")
    e(f"s_add_u32 m0, s23, {(i % 7)*16384}")
    for j in range(4):
        e(f"s_add_u32 s16, s15, {j*7168}")
        e(f"buffer_load_dwordx4 v12, {SWD}, s16 offen offset:{1024*j} lds")
    vm.add(("Wd", i), 4)
def issueHH(i):
    rot11(i)
    e("s_lshl_b32 s15, s15, 13"); e("s_add_u32 s15, s15, s25")
    e(f"s_add_u32 m0, s23, {HH_L + (i % 3)*16384}")
    e("s_nop 0")
    for j in range(4): e(f"buffer_load_dwordx4 v11, {SWS}, s15 offen offset:{1024*j} sc1 lds")
    vm.add(("HH", i), 4)
for i in range(3): issueA(i)
mark(6)
vm.wait(("A", 0))
e("s_barrier")
for i in range(8):
    if 1 <= i <= 5: issueA(i+2)
    if 1 <= i <= 4: issueW(i+3)
    if i == 5:
        e("v_lshlrev_b32 v22, 2, v3"); e("s_mul_i32 s17, s7, 12288"); e(f"s_add_u32 s17, s17, {CSP_OFF:#x}")
        for m in range(16):
            if m % 4 == 0 and m: e(f"s_add_u32 s17, s17, 3072")
            e(f"buffer_load_dword v{64+m}, v22, {SWS}, s17 offen offset:{768*(m%4)} sc1")
        vm.add("cs", 16)
        issueWd(0)
    if i == 6: issueWd(1); issueWd(2)
    if i == 7: issueWd(3)
    for ks in range(4):
        for hh in range(2): e(f"ds_read_b64_tr_b16 {vr(32+4*ks+2*hh,2)}, v{17+i%3} offset:{4096*ks+1024*hh}")
    e("s_waitcnt lgkmcnt(0)")
    for r in range(16):
        e(f"v_dot2_f32_bf16 v20, v{32+r}, s27, v20")
        e(f"v_dot2_f32_bf16 v21, v{32+r}, v{32+r}, v21")
    if i == 6:
        vm.wait("cs")
        for m in range(1, 16): e(f"v_add_f32 v64, v64, v{64+m}")
        e(f"v_add_u32 v22, {CS_L}, v22")
        e("ds_write_b32 v22, v64")
    if i < 7:
        vm.wait(("A", i+1), ("W", i+1))
        e("s_barrier")
e("s_nop 3")
e("v_mov_b32 v22, v20"); e("v_mov_b32 v23, v21")
e("s_nop 1")
e("v_permlane32_swap_b32 v22, v20"); e("v_permlane32_swap_b32 v23, v21")
e("s_nop 1")
e("v_add_f32 v20, v20, v22"); e("v_add_f32 v21, v21, v23")
e("v_mul_f32 v20, s18, v20"); e("v_mul_f32 v21, s18, v21")
e("v_fma_f32 v21, -v20, v20, v21"); e("v_max_f32 v21, 0, v21"); e("v_add_f32 v21, 0x3727c5ac, v21")
e("v_rcp_f32 v21, v21")
e("v_sub_f32 v20, 0, v20")
e("v_and_b32 v22, 31, v2"); e("v_lshlrev_b32 v22, 2, v22"); e("s_lshl_b32 s16, s11, 7"); e(f"s_add_u32 s16, s16, {MEAN_L}"); e("v_add_u32 v22, s16, v22")
e("ds_write_b32 v22, v20"); e("ds_write_b32 v22, v21 offset:512")
e("s_waitcnt lgkmcnt(0)"); e("s_barrier")
mark(7)
issueWd(4); issueWd(5)
e("s_lshl_b32 s16, s4, 5"); e("s_lshl_b32 s17, s10, 4"); e("s_add_u32 s16, s16, s17")
e("v_add_u32 v7, s16, v2"); e("v_lshlrev_b32 v7, 7, v7"); e(f"v_add_u32 v7, {FL3_OFF:#x}, v7")
e("s_barrier")
mark(8)
post_flag(FL3_OFF, 3)
e("s_mov_b64 exec, 0x7fff")
poll("v7", "v8"); vm.clear()
for i in range(3): issueHH(i)
issueWd(6)
vm.wait(("HH", 0))
e("s_barrier")
for i in range(11):
    if 1 <= i <= 8: issueHH(i+2)
    if 1 <= i <= 4: issueWd(i+6)
    if i < 10: vm.wait(("HH", i+1), ("Wd", i+1))
    e("s_barrier")
e("s_cmp_lg_u32 s2, 0"); e("s_cbranch_scc1 L_hend")
e("s_cmp_lg_u32 s3, 4"); e("s_cbranch_scc1 L_hend")
e("s_mov_b64 exec, 1")
e(f"buffer_store_dword v5, v6, {SWS}, 0 offen sc1")
lab("L_hend")
endpgm()
lab("L_end")

hdr = open("sequential_preLN__ssm_conv_h3__glu_gated_reglu__prompt.s.ref").read().split("; Override")[0]
s = hdr + f"; @launch grid=(256,1,1) block=(512,1,1) lds={LDS_BYTES}\n"
s += '.amdgcn_target "amdgcn-amd-amdhsa--gfx950"\n.text\n'
s += f".globl {NAME}\n.p2align 8\n.type {NAME},@function\n{NAME}:\n" + "\n".join(L) + "\n    s_endpgm\n"
s += f""".section .rodata,"a"
.p2align 6
.amdhsa_kernel {NAME}
  .amdhsa_next_free_vgpr 256
  .amdhsa_next_free_sgpr 102
  .amdhsa_accum_offset 256
  .amdhsa_group_segment_fixed_size 0
  .amdhsa_kernarg_size 104
  .amdhsa_user_sgpr_count 2
  .amdhsa_user_sgpr_kernarg_segment_ptr 1
  .amdhsa_system_sgpr_workgroup_id_x 1
  .amdhsa_float_denorm_mode_32 3
.end_amdhsa_kernel
"""
open(OUT, "w").write(s)
```

```python
import sys, os
OUT = sys.argv[1] if len(sys.argv) > 1 else "v7.s"
STAMP = int(os.environ.get("STAMP", "0"))
X = os.environ.get("X", "").split(",") + ["ap2", "ap3", "qnt", "qrnt"]
SLP = int(os.environ.get("SLP", "1"))
NREP = int(os.environ.get("NREP", "32"))
NT = "" if "nont" in X else " nt"
NAME = "sequential_preLN__ssm_conv_h3__glu_gated_reglu__prompt_kernel"

RS      = 4224
KVT_OFF = 0
QT_OFF  = 0x210000
STG_OFF = 0x420000
EPO_OFF = 0x428000
FL1_OFF = 0x430000
FL3_OFF = 0x440000
ST2_OFF = 0x448000
CSF_OFF = 0x450000
R2_OFF  = 0x460000
CSP_OFF = 0x468000
FL2_OFF = 0x4D0000
HT_OFF  = 0x510000
HH_OFF  = 0x710000
HH_KS   = 96
WS_END  = HH_OFF + 64 * HH_KS * 1024
STAMP_OFF = 0x1000000
if STAMP: WS_END = 0x2000000

WSLOT = 24640; W_U = 12320
RB = 4 * WSLOT
T_KV = RB
EX_L = 3 * WSLOT
Q_L = EX_L + 16384
T_Q = RB + 8192
CP = 4160; HREG = 4 * CP; XREG = 4608; CH_L = HREG + XREG
ST_L = RB + 2 * CH_L
FLG_L = 163840 - 64
assert ST_L + 16384 <= FLG_L
A_L = RB
MEAN_L = RB + 49152
CORR_L = RB + 49152
LDS_BYTES = 163840

L = []
def e(s): L.append("    " + s)
def lab(s): L.append(s + ":")
def vr(a, n): return f"v[{a}:{a+n-1}]"
def mark(i, grp=None):
    if "p1" in X and i in (7, 8, 9, 10) and grp != "p1": return
    if "it" in X and i in (1, 2, 3) and grp != "it": return
    if "p2" in X and i in (7, 8, 9, 10) and grp != "p2": return
    if ("it2" in X or "it3" in X) and 1 <= i <= 10 and grp not in ("it2", "it3"): return
    if grp and grp not in X: return
    if STAMP: e(f"{'s_memtime' if 'cyc' in X else 's_memrealtime'} s[{78+2*i}:{79+2*i}]")
def srd(d, base, nbytes):
    e(f"s_mov_b32 s{d}, s{base}"); e(f"s_mov_b32 s{d+1}, s{base+1}"); e(f"s_mov_b32 s{d+2}, {nbytes:#x}"); e(f"s_mov_b32 s{d+3}, 0x20000")
NST = 12
def endpgm():
    if STAMP:
        e("s_mov_b64 exec, -1")
        e("s_waitcnt vmcnt(0) lgkmcnt(0)")
        mark(NST-1)
        e("s_lshl_b32 s76, s2, 9"); e("s_lshl_b32 s77, s3, 6"); e("s_add_u32 s76, s76, s77"); e(f"s_add_u32 s76, s76, {STAMP_OFF}")
        e("v_mov_b32 v251, 0")
        e("s_waitcnt lgkmcnt(0)")
        for i in range(NST):
            e(f"v_mov_b32 v252, s{78+2*i}")
            e(f"buffer_store_dword v252, v251, s[40:43], s76 offen offset:{4*i}")
    e("s_endpgm")

class Trk:
    def __init__(self, name, mx): self.q = []; self.name = name; self.mx = mx
    def add(self, tag, n=1): self.q += [tag] * n
    def wait(self, *tags):
        idx = -1
        for i, t in enumerate(self.q):
            if t in tags: idx = i
        if idx < 0: return
        n = len(self.q) - 1 - idx
        n = min(n, self.mx)
        e(f"s_waitcnt {self.name}({n})")
        self.q = self.q[len(self.q) - n:] if n else []
    def clear(self): self.q = []

SQ, SK, SWS, SV, SSH, SSK, SD, SWG, SWU, SWD, SOUT = [f"s[{x}:{x+3}]" for x in (32, 36, 40, 44, 48, 52, 56, 60, 64, 68, 72)]
uid = [0]
def nid():
    uid[0] += 1; return uid[0]
def poll(addr, tmp, want="s9", atom=False):
    n = nid()
    e("s_mov_b32 s30, 0x100000")
    lab(f"L_poll{n}")
    if atom:
        e(f"v_mov_b32 {tmp}, 0")
        e(f"buffer_atomic_add {tmp}, {addr}, {SWS}, 0 offen sc0 sc1")
    else:
        e(f"buffer_load_dword {tmp}, {addr}, {SWS}, 0 offen sc1")
    e("s_waitcnt vmcnt(0)")
    e(f"v_cmp_ne_u32 vcc, {want}, {tmp}")
    e("s_sub_u32 s30, s30, 1")
    e(f"s_cbranch_scc1 L_pollx{n}")
    e("s_and_b64 exec, exec, vcc")
    if SLP:
        e(f"s_cbranch_execz L_pollx{n}")
        e(f"s_sleep {SLP}")
        e(f"s_branch L_poll{n}")
    else:
        e(f"s_cbranch_execnz L_poll{n}")
    lab(f"L_pollx{n}")
    e("s_mov_b64 exec, -1")
def post_flag(off, wave, lanes=1):
    n = nid()
    e(f"s_cmp_lg_u32 s3, {wave}"); e(f"s_cbranch_scc1 L_nopost{n}")
    e(f"s_mov_b64 exec, {(1 << lanes) - 1}")
    e(f"s_mov_b32 s31, {off:#x}")
    e(f"buffer_store_dword v254, v253, {SWS}, s31 offen sc1")
    e("s_mov_b64 exec, -1")
    lab(f"L_nopost{n}")
def unpack(dst, src, c):
    s = src + (c >> 1)
    if c & 1: e(f"v_and_b32 v{dst}, s14, v{s}")
    else: e(f"v_lshlrev_b32 v{dst}, 16, v{s}")

mark(0)
e("s_cmp_ge_u32 s2, 256"); e("s_cbranch_scc1 L_end")
e("s_load_dwordx16 s[4:19], s[0:1], 0")
e("s_load_dwordx8 s[20:27], s[0:1], 64")
e("s_load_dwordx2 s[28:29], s[0:1], 96")
e("v_lshrrev_b32 v1, 6, v0"); e("v_and_b32 v2, 63, v0")
e("v_readfirstlane_b32 s3, v1")
if "nocode" not in X:
    e("s_getpc_b64 s[76:77]")
    lab("L_pc")
    e("s_and_b32 s30, s2, 0xf8"); e("s_add_u32 s30, s30, s3"); e("s_lshl_b32 s30, s30, 7"); e("s_min_u32 s30, s30, L_end - L_pc")
    e("v_mov_b32 v250, s30")
    e("s_mov_b64 exec, 1")
    e("global_load_dword v250, v250, s[76:77]")
    e("s_mov_b64 exec, -1")
e("v_and_b32 v3, 255, v0")
e("v_and_b32 v10, 15, v3"); e("v_lshrrev_b32 v11, 4, v3")
e("s_bfe_u32 s30, s2, 0x30003"); e("s_lshr_b32 s31, s2, 6"); e("s_lshl_b32 s31, s31, 3"); e("s_and_b32 s76, s2, 7"); e("s_add_u32 s31, s31, s76")
e("s_lshl_b32 s76, s31, 16"); e("s_lshl_b32 s77, s30, 7"); e("s_add_u32 s76, s76, s77")
e("v_lshlrev_b32 v12, 12, v11"); e("v_lshl_add_u32 v12, v10, 3, v12"); e("v_add_u32 v12, s76, v12")
e("v_subrev_u32 v14, 3072, v12")
e("s_lshl_b32 s77, s30, 9"); e("v_lshlrev_b32 v15, 5, v10"); e("v_add_u32 v15, s77, v15")
e("s_lshl_b32 s77, s30, 5"); e("s_add_u32 s77, s77, s31"); e("s_lshl_b32 s77, s77, 7"); e("v_mov_b32 v253, s77")
e(f"v_mov_b32 v255, {EPO_OFF:#x}")
e("s_cmp_ge_u32 s3, 4")
e("s_waitcnt lgkmcnt(0)")
srd(36, 6, 0x200000); srd(48, 10, 4096); srd(44, 8, 0x200000); srd(32, 4, 0x200000)
e("s_cbranch_scc1 L_skipkv")
for r in range(3): e(f"buffer_load_dwordx2 {vr(16+2*r,2)}, v14, {SK}, 0 offen offset:{1024*r}{NT}")
for r in range(4): e(f"buffer_load_dwordx2 {vr(22+2*r,2)}, v12, {SK}, 0 offen offset:{1024*r}{NT}")
e(f"buffer_load_dwordx4 {vr(48,4)}, v15, {SSH}, 0 offen")
e(f"buffer_load_dwordx4 {vr(52,4)}, v15, {SSH}, 0 offen offset:16")
for r in range(4): e(f"buffer_load_dwordx2 {vr(30+2*r,2)}, v12, {SV}, 0 offen offset:{1024*r}{NT}")
e("s_branch L_kvdone")
lab("L_skipkv")
for r in range(4): e(f"buffer_load_dwordx2 {vr(38+2*r,2)}, v12, {SQ}, 0 offen offset:{1024*r}{' nt' if 'qnt' in X else ''}")
lab("L_kvdone")
srd(40, 28, WS_END)
e(f"buffer_load_dword v254, v255, {SWS}, 0 offen sc1")
srd(52, 12, 0x200000); srd(56, 14, 1024); srd(60, 18, 512*2752); srd(64, 20, 512*2752); srd(68, 22, 1376*1024); srd(72, 24, 0x200000)
e("s_and_b32 s4, s2, 7"); e("s_lshr_b32 s5, s2, 3")
e("s_and_b32 s10, s4, 1"); e("s_lshr_b32 s17, s4, 1")
e("s_mul_i32 s7, s17, 3"); e("s_lshr_b32 s16, s5, 3"); e("s_add_u32 s7, s7, s16"); e("s_and_b32 s8, s5, 7")
e("s_lshr_b32 s15, s17, 1"); e("s_add_u32 s15, s15, 12"); e("s_and_b32 s16, s17, 1"); e("s_lshl_b32 s16, s16, 2"); e("s_and_b32 s6, s5, 3"); e("s_add_u32 s16, s16, s6")
e("s_cmp_ge_u32 s5, 24"); e("s_cselect_b32 s7, s15, s7"); e("s_cselect_b32 s8, s16, s8")
e("s_lshr_b32 s15, s5, 1"); e("s_lshl_b32 s16, s17, 1"); e("s_and_b32 s6, s5, 1"); e("s_add_u32 s16, s16, s6")
e("s_cmp_ge_u32 s5, 28"); e("s_cselect_b32 s7, s15, s7"); e("s_cselect_b32 s8, s16, s8")
e("s_lshl_b32 s6, s10, 3"); e("s_add_u32 s6, s6, s8")
e("s_and_b32 s11, s3, 3")
e("s_lshl_b32 s12, s4, 6"); e("s_lshl_b32 s13, s5, 1"); e("s_add_u32 s12, s12, s13")
e("s_lshl_b32 s13, s4, 1"); e("s_lshr_b32 s16, s5, 4"); e("s_add_u32 s13, s13, s16")
e("s_lshr_b32 s17, s3, 2"); e("s_lshl_b32 s17, s17, 13"); e(f"s_add_u32 s17, s17, {T_KV}")
e("v_lshrrev_b32 v13, 1, v11"); e("v_and_b32 v14, 7, v10"); e("v_xor_b32 v13, v13, v14"); e("v_lshlrev_b32 v13, 4, v13")
e("v_lshl_add_u32 v13, v10, 9, v13"); e("v_and_b32 v14, 1, v11"); e("v_lshl_add_u32 v13, v14, 3, v13"); e("v_add_u32 v13, s17, v13")
e("v_lshrrev_b32 v128, 3, v2"); e("s_lshl_b32 s15, s11, 4"); e("v_add_u32 v128, s15, v128")
e("v_and_b32 v129, 7, v2")
e("v_lshrrev_b32 v130, 2, v128"); e("v_and_b32 v130, 7, v130"); e("v_xor_b32 v124, v129, v130"); e("v_xor_b32 v125, 2, v124")
e("v_lshlrev_b32 v130, 7, v128"); e("v_lshl_add_u32 v124, v124, 4, v130"); e("v_lshl_add_u32 v125, v125, 4, v130")
e("v_add_u32 v124, s17, v124"); e("v_add_u32 v125, s17, v125")
e(f"v_mul_u32_u24 v126, {RS}, v128"); e("v_lshl_add_u32 v126, v129, 4, v126")
e(f"s_mul_i32 s18, s30, {64*RS}"); e("s_lshl_b32 s16, s31, 7"); e("s_add_u32 s18, s18, s16")
e("s_lshr_b32 s16, s3, 2"); e(f"s_mul_i32 s16, s16, {QT_OFF-KVT_OFF:#x}"); e("s_add_u32 s18, s18, s16")
e(f"s_add_u32 s19, s18, {8*RS}")
e("s_mov_b32 s14, 0xffff0000")
e("s_lshr_b32 s20, s11, 1"); e("s_and_b32 s21, s11, 1")
e("s_and_b32 s28, s5, 7")
e("s_lshr_b32 s16, s5, 3"); e("s_mul_i32 s29, s16, 3")
if "rot4" in X:
    e("s_add_u32 s29, s29, s28"); e("s_cmp_ge_u32 s29, 11"); e("s_cselect_b32 s16, 11, 0"); e("s_sub_u32 s29, s29, s16")
e("s_cmp_ge_u32 s3, 4"); e("s_cbranch_scc1 L_H")
def rot11(i):
    e(f"s_add_u32 s15, s29, {i}"); e("s_cmp_ge_u32 s15, 11"); e("s_cselect_b32 s16, 11, 0"); e("s_sub_u32 s15, s15, s16")

e("v_lshlrev_b32 v6, 4, v3"); e("v_sub_u32 v7, 4080, v6"); e("v_subrev_u32 v8, 8, v7"); e("v_max_i32 v8, 0, v8")
e("s_add_u32 s22, s12, s20")
e("s_lshl_b32 s15, s22, 1"); e("v_mov_b32 v9, s15"); e("v_mov_b32 v240, 0")
e("s_lshl_b32 s15, s12, 12"); e("s_add_u32 s16, s15, 4096")
e("s_waitcnt vmcnt(5)")
mark(1)
def ssm_loads():
    e("s_lshl_b32 s15, s12, 12"); e("s_add_u32 s16, s15, 4096")
    e(f"buffer_load_dwordx4 v[228:231], v7, {SSK}, s15 offen{NT}")
    e(f"buffer_load_dwordx2 v[226:227], v8, {SSK}, s15 offen{NT}")
    e(f"buffer_load_dwordx4 v[236:239], v7, {SSK}, s16 offen{NT}")
    e(f"buffer_load_dwordx2 v[234:235], v8, {SSK}, s16 offen{NT}")
    e(f"buffer_load_short_d16_hi v240, v9, {SD}, 0 offen")
LATE = "ssmearly" not in X
if not LATE: ssm_loads()
for r in range(7):
    for c in range(4): unpack(64+4*r+c, 16+2*r, c)
for c in range(4):
    for j in range(4): unpack(92+4*c+j, 48+2*c, j)
for r in range(4):
    for c in range(4): e(f"v_mul_f32 v{108+4*r+c}, v{64+4*r+c}, v{92+4*c+3}")
for j in (2, 1, 0):
    for r in range(4):
        for c in range(4): e(f"v_fmac_f32 v{108+4*r+c}, v{64+4*(r+3-j)+c}, v{92+4*c+j}")
e(f"s_waitcnt vmcnt({1 if LATE else 6})")
for r in range(4):
    for c in range(4): unpack(64+4*r+c, 30+2*r, c)
for r in range(4):
    for c in range(4): e(f"v_mul_f32 v{108+4*r+c}, v{108+4*r+c}, v{64+4*r+c}")
for c in range(4):
    e(f"v_cvt_pk_bf16_f32 v{80+2*c}, v{108+c}, v{112+c}")
    e(f"v_cvt_pk_bf16_f32 v{81+2*c}, v{116+c}, v{120+c}")
    e(f"ds_write_b64 v13, {vr(80+2*c,2)} offset:{128*c}")
mark(7, "p1")
e("s_waitcnt lgkmcnt(0)"); e("s_barrier")
mark(8, "p1")
e("ds_read_b128 v[28:31], v124"); e("ds_read_b128 v[32:35], v125 offset:1024")
e("s_waitcnt lgkmcnt(1)")
e(f"buffer_store_dwordx4 v[28:31], v126, {SWS}, s18 offen sc1")
e("s_waitcnt lgkmcnt(0)")
e(f"buffer_store_dwordx4 v[32:35], v126, {SWS}, s19 offen sc1")
def toeplitz_regs(waitn):
    e("s_mov_b32 s15, 0xffff")
    e("v_cmp_ne_u32 vcc, 255, v3")
    e(f"v_add_u32 v16, {RB}, v6")
    e(f"s_waitcnt vmcnt({waitn})")
    mark(9, "p1")
    e("v_add_u32 v254, 1, v254")
    for ch in range(2):
        b = 226 + 8*ch
        e(f"v_cndmask_b32 v{b}, 0, v{b}, vcc"); e(f"v_cndmask_b32 v{b+1}, 0, v{b+1}, vcc")
        w = lambda i: f"v{b+2+i}"
        o = 40 + 16*ch
        for n, i in enumerate((2, 1, 0, -1)): e(f"v_bfi_b32 v{o+n}, s15, {w(i)}, {w(i-1)}")
        for n, i in enumerate((2, 1, 0, -1)): e(f"v_alignbit_b32 v{o+4+n}, {w(i)}, {w(i)}, 16")
        for n, i in enumerate((3, 2, 1, 0)): e(f"v_bfi_b32 v{o+8+n}, s15, {w(i)}, {w(i-1)}")
        for n, i in enumerate((3, 2, 1, 0)): e(f"v_alignbit_b32 v{o+12+n}, {w(i)}, {w(i)}, 16")
    e("v_readfirstlane_b32 s9, v254")
if not LATE: toeplitz_regs(2)
for r in range(4): e(f"v_mov_b32 v{72+r}, 0")
e("v_lshrrev_b32 v17, 5, v3"); e(f"v_mul_u32_u24 v17, {CH_L}, v17"); e("v_and_b32 v18, 31, v3"); e("v_lshl_add_u32 v17, v18, 4, v17")
e(f"v_add_u32 v17, {RB+HREG}, v17")
e("v_bfe_u32 v18, v3, 4, 1"); e(f"v_mul_u32_u24 v18, {CH_L}, v18"); e("v_bfe_u32 v19, v3, 2, 2"); e(f"v_mul_u32_u24 v19, {CP}, v19")
e("v_add_u32 v18, v18, v19"); e("v_and_b32 v19, 3, v3"); e("v_lshl_add_u32 v18, v19, 4, v18"); e(f"v_add_u32 v18, {RB+4096}, v18")
e("s_lshl_b32 s16, s4, 5"); e("s_lshl_b32 s17, s21, 4"); e("s_add_u32 s16, s16, s17")
e("v_and_b32 v20, 15, v2"); e("v_add_u32 v20, s16, v20"); e("v_lshlrev_b32 v20, 7, v20"); e(f"v_add_u32 v20, {FL1_OFF:#x}, v20")
e(f"s_mul_i32 s24, s22, {RS}"); e("s_lshl_b32 s25, s21, 11"); e("s_add_u32 s24, s24, s25")
e(f"s_mul_i32 s23, s20, {CH_L}"); e(f"s_add_u32 s23, s23, {RB}")
e(f"s_add_u32 s26, s23, {HREG+512}"); e("s_add_u32 s26, s26, s25")
e("v_lshlrev_b32 v5, 4, v2")
if LATE: ssm_loads()
e(f"s_waitcnt vmcnt({5 if LATE else 0})")
mark(10, "p1")
e("s_barrier")
mark(2)
if LATE: toeplitz_regs(0)
for ch in range(2):
    for kap in range(4): e(f"ds_write_b128 v16, {vr(40+16*ch+4*kap,4)} offset:{ch*CH_L + kap*CP}")
e("s_cmp_lg_u32 s11, 0"); e("s_cbranch_scc1 L_nopad")
e("ds_write_b128 v17, v[72:75]")
e("s_mov_b32 exec_hi, 0")
e("ds_write_b128 v18, v[72:75]")
lab("L_nopad")
e("s_mov_b64 exec, -1")
e("s_barrier")
e("s_mov_b32 m0, s26")
e("s_nop 0")
e(f"buffer_load_dwordx4 v5, {SWS}, s24 offen sc1 lds")
e(f"buffer_load_dwordx4 v5, {SWS}, s24 offen offset:1024 sc1 lds")
e("s_lshl_b32 s15, s11, 11"); e(f"s_add_u32 m0, s15, {Q_L}"); e(f"s_add_u32 s24, s24, {QT_OFF-KVT_OFF:#x}")
e(f"buffer_load_dwordx4 v5, {SWS}, s24 offen sc1 lds")
e(f"buffer_load_dwordx4 v5, {SWS}, s24 offen offset:1024 sc1 lds")
mark(3)
e("v_and_b32 v6, 15, v2"); e("v_lshrrev_b32 v7, 4, v2")
e("v_lshlrev_b32 v8, 4, v6"); e("v_lshl_add_u32 v8, v7, 2, v8")
e("v_and_b32 v32, 3, v6"); e(f"v_mul_u32_u24 v32, {CP}, v32")
e("v_lshrrev_b32 v33, 2, v6"); e("v_lshlrev_b32 v33, 3, v33"); e("v_lshl_add_u32 v33, v7, 4, v33")
e("v_sub_u32 v32, v32, v33")
e("s_lshl_b32 s15, s21, 8"); e("s_sub_u32 s16, s23, s15")
e(f"s_add_u32 s17, s16, {2*2052 - 512*7 - 64*3}"); e("v_add_u32 v32, s17, v32")
e("v_lshlrev_b32 v33, 5, v6"); e("v_lshlrev_b32 v34, 4, v7"); e("v_sub_u32 v33, v33, v34")
e(f"s_add_u32 s17, s16, {HREG + 512 + 16 - 64*3}"); e("v_add_u32 v33, s17, v33")
e("v_lshlrev_b32 v9, 1, v8")
e("s_lshl_b32 s15, s11, 12"); e(f"s_add_u32 s15, s15, {EX_L}"); e("s_xor_b32 s16, s11, 1"); e("s_lshl_b32 s16, s16, 12"); e(f"s_add_u32 s16, s16, {EX_L}")
e("v_add_u32 v34, s15, v5"); e("v_add_u32 v35, s16, v5")
e("v_add_u32 v12, s26, v9")
e("s_lshl_b32 s17, s11, 11"); e(f"s_add_u32 s17, s17, {Q_L}"); e("v_add_u32 v10, s17, v9")
e("s_lshl_b32 s17, s21, 13"); e(f"s_add_u32 s17, s17, {ST_L}"); e("v_add_u32 v13, s17, v5")
e("v_and_b32 v14, 7, v6"); e("v_lshlrev_b32 v14, 1, v14"); e("v_lshrrev_b32 v15, 1, v7"); e("v_add_u32 v14, v14, v15")
e("s_and_b32 s15, s22, 3"); e("s_lshl_b32 s15, s15, 2"); e("v_xor_b32 v14, s15, v14")
e("v_lshlrev_b32 v14, 4, v14")
e("v_lshrrev_b32 v15, 3, v6"); e("v_lshl_add_u32 v14, v15, 17, v14")
e("v_and_b32 v15, 1, v7"); e("v_lshl_add_u32 v14, v15, 18, v14")
e("s_lshl_b32 s18, s22, 8"); e("s_lshl_b32 s17, s21, 20"); e("s_add_u32 s18, s18, s17"); e(f"s_add_u32 s18, s18, {HT_OFF:#x}")
e(f"s_add_u32 s19, s18, {4*131072}")
e("s_lshl_b32 s15, s11, 2"); e(f"s_add_u32 s15, s15, {FLG_L}"); e("v_mov_b32 v16, s15"); e("s_xor_b32 s15, s15, 4"); e("v_mov_b32 v17, s15")
e(f"v_mov_b32 v18, {FLG_L+16}"); e("v_mov_b32 v19, 1")
e("v_subrev_u32 v20, 8, v2"); e("v_and_b32 v21, 7, v2")
e("v_lshrrev_b32 v22, 16, v240"); e("v_and_b32 v23, 1, v21"); e("v_lshlrev_b32 v23, 4, v23"); e("v_lshlrev_b32 v22, v23, v22")
e("v_cmp_gt_u32 vcc, 16, v20"); e("v_lshrrev_b32 v21, 1, v21"); e("s_nop 0"); e("v_cndmask_b32 v22, 0, v22, vcc")
for dw in range(4):
    e(f"v_cmp_eq_u32 vcc, {dw}, v21"); e("s_nop 1"); e(f"v_cndmask_b32 v{232+dw}, 0, v22, vcc")
e("s_waitcnt vmcnt(2) lgkmcnt(0)"); e("s_barrier")
mark(4)
ACC = 36; FA = [72, 136]; FB = [104, 168]
lg = Trk("lgkmcnt", 15)
def creads(rr, buf):
    lst = []
    for i in range(8):
        off = 512*(7-i) + 64*(3-rr)
        lst.append((f"ds_read_b128 {vr(FB[buf]+4*i,4)}, v33 offset:{512*i + 64*(3-rr)}", ("B", rr, i)))
        lst.append((f"ds_read_b64 {vr(FA[buf]+4*i,2)}, v32 offset:{off}", ("A", rr, i)))
        lst.append((f"ds_read_b64 {vr(FA[buf]+4*i+2,2)}, v32 offset:{off+8}", ("A", rr, i)))
    return lst
first = creads(0, 0)
for s, t in first[:12]: e(s); lg.add(t)
pend = first[12:]
pairs = sorted([(i, j) for i in range(8) for j in range(8 - i)], key=lambda p: (max(p), p[0] + p[1]))
started = set()
def mf(rr, i, j):
    global pend
    buf = rr & 1; t = i + j
    while any(x[1] in (("A", rr, i), ("B", rr, j)) for x in pend):
        s_, tg = pend.pop(0); e(s_); lg.add(tg)
    lg.wait(("A", rr, i), ("B", rr, j))
    c = vr(ACC+4*t, 4) if t in started else "0"
    started.add(t)
    e(f"v_mfma_f32_16x16x32_bf16 {vr(ACC+4*t,4)}, {vr(FA[buf]+4*i,4)}, {vr(FB[buf]+4*j,4)}, {c}")
for rr in range(3):
    pend = pend + creads(rr+1, (rr & 1) ^ 1)
    npend = len(pend)
    for n, (i, j) in enumerate(pairs):
        mf(rr, i, j)
        want = npend - (npend * (n + 1)) // 32
        while len(pend) > max(want, 0):
            s_, tg = pend.pop(0); e(s_); lg.add(tg)
        if rr == 2 and n == 33:
            e("ds_read_b128 v[20:23], v18"); lg.add("aux")
    if rr == 0:
        e("s_cmp_lg_u32 s21, 0"); e("s_cbranch_scc1 L_nodiag")
        for t in range(8): e(f"v_mfma_f32_16x16x32_bf16 {vr(ACC+4*t,4)}, v[232:235], {vr(FB[0]+4*t,4)}, {vr(ACC+4*t,4)}")
        lab("L_nodiag")
assert not pend
lab("L_aux")
e("s_waitcnt vmcnt(0) lgkmcnt(0)"); lg.clear()
e("v_and_b32 v20, v20, v21"); e("v_and_b32 v22, v22, v23"); e("v_and_b32 v20, v20, v22")
e("v_cmp_ne_u32 vcc, 1, v20")
e("s_cbranch_vccz L_auxok")
e("ds_read_b128 v[20:23], v18")
e("s_branch L_aux")
lab("L_auxok")
mark(7, "p2")
for u in range(4):
    e(f"ds_read_b64 {vr(80+2*u,2)}, v10 offset:{512*u}")
    e(f"ds_read_b128 {vr(88+8*u,4)}, v13 offset:{2048*u}"); e(f"ds_read_b128 {vr(92+8*u,4)}, v13 offset:{2048*u+1024}")
e("s_cmp_eq_u32 s21, 0"); e("s_cbranch_scc1 L_conv_h0")
QN = 200; T0 = 216
for hf in (1, 0):
    if hf == 0: lab("L_conv_h0")
    keep = 4*hf; send = 4*(1-hf)
    order = [p for p in pairs if send <= p[0]+p[1] < send+4] + [p for p in pairs if keep <= p[0]+p[1] < keep+4]
    nsend = len([p for p in pairs if send <= p[0]+p[1] < send+4])
    valu = []
    for u in range(4):
        valu.append(f"s_waitcnt lgkmcnt({9-3*u})" if u < 3 else "WAITALL")
        for r in range(4):
            qs = 80 + 2*u + (r >> 1); tq = T0+4*u+r
            valu.append(f"v_and_b32 v{tq}, s14, v{qs}" if r & 1 else f"v_lshlrev_b32 v{tq}, 16, v{qs}")
        for r in range(4):
            valu.append(f"v_fma_f32 v{QN+4*u+r}, v{T0+4*u+r}, v{88+8*u+2*r}, v{89+8*u+2*r}")
    sent = False; wrote = 0
    def emitv(x):
        if x == "WAITALL" or (x.startswith("s_waitcnt") and wrote): e(f"s_waitcnt lgkmcnt({wrote})" if x == "WAITALL" or True else x)
        else: e(x)
    for n, (i, j) in enumerate(order):
        t = i + j
        e(f"v_mfma_f32_16x16x32_bf16 {vr(ACC+4*t,4)}, {vr(FA[1]+4*i,4)}, {vr(FB[1]+4*j,4)}, {vr(ACC+4*t,4)}")
        if n >= 3:
            k = 0
            while valu and k < 1:
                x = valu.pop(0); emitv(x)
                if not x.startswith("s_waitcnt") and x != "WAITALL": k += 1
        if n == nsend + 4:
            for u in range(4): e(f"ds_write_b128 v34, {vr(ACC+4*send+4*u,4)} offset:{1024*u}")
            e("ds_write_b32 v16, v19"); wrote = 5
    while valu: emitv(valu.pop(0))
    if hf == 1: mark(5)
    else: mark(5)
    n_ = nid()
    lab(f"L_pw{n_}")
    e("ds_read_b32 v20, v17")
    e("s_waitcnt lgkmcnt(0)")
    e("v_cmp_ne_u32 vcc, 1, v20")
    e(f"s_cbranch_vccnz L_pw{n_}")
    mark(8, "p2")
    for u in range(4): e(f"ds_read_b128 {vr(72+4*u,4)}, v35 offset:{1024*u}")
    for u in range(4):
        y = ACC + 4*keep + 4*u
        e(f"s_waitcnt lgkmcnt({3-u})")
        for p in range(2): e(f"v_pk_add_f32 {vr(y+2*p,2)}, {vr(y+2*p,2)}, {vr(72+4*u+2*p,2)}")
        for p in range(2): e(f"v_pk_fma_f32 {vr(y+2*p,2)}, {vr(QN+4*u+2*p,2)}, {vr(y+2*p,2)}, {vr(T0+4*u+2*p,2)}")
        e(f"v_cvt_pk_bf16_f32 v{124+2*u}, v{y}, v{y+1}")
        e(f"v_cvt_pk_bf16_f32 v{125+2*u}, v{y+2}, v{y+3}")
        if u & 1:
            b = 124 + 2*(u-1)
            e("s_nop 1")
            e(f"v_permlane16_swap_b32 v{b}, v{b+2}"); e(f"v_permlane16_swap_b32 v{b+1}, v{b+3}")
            e(f"buffer_store_dwordx4 {vr(b,4)}, v14, {SWS}, s{18+(u>>1)} offen sc1")
    if hf == 1: e("s_branch L_conv_j")
lab("L_conv_j")
mark(9, "p2")
e("v_and_b32 v3, 15, v2"); e("v_lshrrev_b32 v4, 4, v2"); e("v_lshrrev_b32 v5, 2, v3"); e("v_and_b32 v6, 3, v3")
e("v_lshrrev_b32 v7, 5, v2"); e("v_and_b32 v8, 1, v4"); e("v_lshl_add_u32 v9, v7, 3, v5")
e("v_lshlrev_b32 v10, 8, v9"); e("v_lshl_add_u32 v10, v8, 5, v10"); e("v_lshl_add_u32 v10, v6, 3, v10"); e(f"v_add_u32 v10, {A_L}, v10")
e("v_mul_u32_u24 v12, 192, v9"); e(f"v_mul_u32_u24 v13, {W_U}, v8"); e("v_add_u32 v12, v12, v13"); e("v_lshl_add_u32 v12, v6, 3, v12")
e("s_min_u32 s26, s11, 2"); e("s_lshl_b32 s16, s26, 6"); e(f"s_mul_i32 s17, s10, {32*192}"); e("s_add_u32 s16, s16, s17"); e("v_add_u32 v28, s16, v12")
e("s_mul_i32 s15, s21, 96"); e("v_add_u32 v12, s15, v12")
e("s_lshl_b32 s15, s20, 1"); e("v_xor_b32 v13, s15, v5"); e("v_lshl_add_u32 v13, v13, 6, v10")
e("s_add_u32 s15, s15, 1"); e("v_xor_b32 v18, s15, v5"); e("v_lshl_add_u32 v18, v18, 6, v10")
e("v_mov_b32 v15, v12"); e("v_mov_b32 v16, v13"); e("v_mov_b32 v17, v18")
e("s_waitcnt vmcnt(0)")
mark(10, "p2")
e("s_barrier")
mark(6)
ACC = 64
FR = [20, 40]
def g1reads(ks, buf):
    l = []; b = FR[buf]
    for hh in range(2): l.append(f"ds_read_b64_tr_b16 {vr(b+2*hh,2)}, v15 offset:{(16*ks+4*hh)*192}")
    for hh in range(2): l.append(f"ds_read_b64_tr_b16 {vr(b+12+2*hh,2)}, v16 offset:{4096*ks+1024*hh}")
    for hh in range(2): l.append(f"ds_read_b64_tr_b16 {vr(b+16+2*hh,2)}, v17 offset:{4096*ks+1024*hh}")
    for mb in (1, 2):
        for hh in range(2): l.append(f"ds_read_b64_tr_b16 {vr(b+4*mb+2*hh,2)}, v15 offset:{(16*ks+4*hh)*192+32*mb}")
    return l
e("v_and_b32 v9, 31, v2")
for r in range(20): e(f"v_mov_b32 v{200+r}, 0")
e("s_lshr_b32 s27, s5, 3"); e("s_and_b32 s27, s27, 1"); e("s_lshl_b32 s27, s27, 6"); e("s_lshl_b32 s15, s20, 5"); e("s_add_u32 s27, s27, s15")
e("v_add_u32 v61, s27, v9")
e("v_lshlrev_b32 v62, 2, v61")
e("v_lshrrev_b32 v24, 3, v61"); e("v_and_b32 v25, 7, v61"); e("v_lshlrev_b32 v25, 1, v25"); e("v_lshl_add_u32 v25, v7, 10, v25")
for j in range(4):
    e(f"v_xor_b32 v26, {j<<2}, v24"); e(f"v_lshl_add_u32 v{241+j}, v26, 4, v25")
e("s_lshl_b32 s15, s13, 7"); e("v_add_u32 v245, s15, v61"); e("v_lshlrev_b32 v245, 10, v245"); e("v_lshl_add_u32 v245, v7, 4, v245")
e("v_lshl_add_u32 v24, v7, 2, v5"); e("v_lshlrev_b32 v24, 7, v24"); e("v_lshl_add_u32 v24, v8, 5, v24"); e("v_lshl_add_u32 v24, v6, 3, v24")
e("s_lshl_b32 s15, s21, 13"); e("v_add_u32 v24, s15, v24")
e("v_lshrrev_b32 v25, 3, v3"); e("v_xor_b32 v25, s21, v25"); e("v_lshl_add_u32 v246, v25, 6, v24"); e("v_xor_b32 v25, 1, v25"); e("v_lshl_add_u32 v247, v25, 6, v24")
e("s_lshl_b32 s16, s13, 4")
e("v_add_u32 v248, s16, v2"); e("v_lshlrev_b32 v248, 7, v248"); e(f"v_add_u32 v248, {FL3_OFF:#x}, v248")
e("v_lshlrev_b32 v11, 4, v2")
e("s_lshl_b32 s17, s6, 2"); e("s_lshl_b32 s18, s20, 1"); e("s_add_u32 s17, s17, s18"); e(f"s_mul_i32 s17, s17, {HH_KS}")
e("s_mul_i32 s18, s7, 6"); e("s_mul_i32 s19, s21, 3"); e("s_add_u32 s19, s19, s18")
e("s_add_u32 s17, s17, s19")
e("s_lshl_b32 s17, s17, 10"); e(f"s_add_u32 s17, s17, {HH_OFF:#x}"); e(f"s_add_u32 s18, s17, {HH_KS*1024}")
e("s_cmp_eq_u32 s7, 15"); e("s_cbranch_scc0 L_c_p3")
def sp_loads():
    e("s_mul_i32 s16, s6, 24576"); e(f"s_add_u32 s16, s16, {CSP_OFF:#x}")
    for m in range(16):
        if m and m % 2 == 0: e("s_add_u32 s16, s16, 3072")
        e(f"buffer_load_dwordx2 {vr(64+2*m,2)}, v28, {SWS}, s16 offen offset:{1536*(m%2)} sc1")
e("s_lshl_b32 s15, s11, 6"); e("v_add_u32 v20, s15, v2"); e("v_lshlrev_b32 v28, 3, v20")
e("s_lshl_b32 s15, s6, 4"); e("s_add_u32 s15, s15, s7"); e("s_lshl_b32 s15, s15, 7"); e("v_mov_b32 v253, s15")
e("s_barrier")
e("s_barrier")
sp_loads()
e("s_barrier")
e("s_cmp_eq_u32 s6, 15"); e("s_cbranch_scc1 L_c_sp2"); e("s_cmp_eq_u32 s11, 3"); e("s_cbranch_scc1 L_c_sp2")
e("s_mov_b32 s30, 0x100000")
mark(1, "it2")
lab("L_c_sp1")
e("s_waitcnt vmcnt(0)")
e("v_xor_b32 v50, s9, v65")
for m in range(1, 16):
    e(f"v_xor_b32 v51, s9, v{65+2*m}"); e("v_or_b32 v50, v50, v51")
e("v_cmp_ne_u32 vcc, 0, v50")
e("s_cbranch_vccz L_c_sp1x")
e("s_sub_u32 s30, s30, 1"); e("s_cbranch_scc1 L_c_sp1x")
sp_loads()
e("s_branch L_c_sp1")
lab("L_c_sp1x")
for m in range(1, 16): e(f"v_add_f32 v64, v64, v{64+2*m}")
e("v_mov_b32 v54, 0")
e("v_cvt_pk_bf16_f32 v53, v64, v54")
e("v_lshlrev_b32 v51, 16, v53"); e("v_sub_f32 v51, v64, v51")
e("v_cvt_pk_bf16_f32 v52, v64, v51")
e("v_mov_b32 v55, v254")
e("v_lshlrev_b32 v28, 4, v20"); e("s_mul_i32 s16, s6, 3072"); e(f"s_add_u32 s16, s16, {CSF_OFF:#x}")
e(f"buffer_store_dwordx4 v[52:55], v28, {SWS}, s16 offen sc1")
mark(2, "it2")
lab("L_c_sp2")
e("s_barrier")
e("s_branch L_c_p4")
lab("L_c_p3")
for blk in range(2):
    for ks in range(2):
        for hh in range(2): e(f"ds_read_b64_tr_b16 {vr(32+8*blk+4*ks+2*hh,2)}, v28 offset:{(16*ks+4*hh)*192+32*blk}")
e("v_mov_b32 v30, 0"); e("v_mov_b32 v31, 0"); e("s_mov_b32 s27, 0x3f803f80")
e("s_lshl_b32 s15, s6, 4"); e("s_add_u32 s15, s15, s7"); e("s_lshl_b32 s15, s15, 7"); e("v_mov_b32 v253, s15"); e("s_lshl_b32 s16, s7, 4"); e("s_add_u32 s16, s16, s6"); e("s_mul_i32 s16, s16, 1536"); e("s_lshl_b32 s15, s26, 9"); e("s_add_u32 s16, s16, s15"); e(f"s_add_u32 s16, s16, {CSP_OFF:#x}")
e("v_lshlrev_b32 v29, 3, v2")
e("s_waitcnt lgkmcnt(0)")
for r in range(8):
    e(f"v_dot2_f32_bf16 v30, v{32+r}, s27, v30"); e(f"v_dot2_f32_bf16 v31, v{40+r}, s27, v31")
e("s_nop 3")
e("v_permlane32_swap_b32 v30, v31")
e("s_nop 1")
e("v_add_f32 v30, v30, v31")
e("v_mov_b32 v250, v30"); e("v_mov_b32 v251, v254"); e("v_mov_b32 v249, v29")
e("s_cmp_eq_u32 s11, 3"); e("s_cselect_b32 s16, 0x7f000000, s16")
e(f"buffer_store_dwordx2 v[250:251], v249, {SWS}, s16 offen sc1")
for r in range(96): e(f"v_mov_b32 v{ACC+r}, 0")
e("s_mul_i32 s22, s7, 3072"); e("s_mul_i32 s15, s21, 1536"); e("s_add_u32 s22, s22, s15"); e(f"s_add_u32 s22, s22, {CSF_OFF:#x}")
e("s_lshl_b32 s23, s6, 11"); e("s_lshl_b32 s15, s20, 10"); e("s_add_u32 s23, s23, s15"); e(f"s_add_u32 s23, s23, {ST2_OFF:#x}")
e("s_mul_i32 s15, s21, 1536"); e(f"s_add_u32 s15, s15, {CORR_L}"); e("v_add_u32 v19, s15, v11")
e("s_lshl_b32 s15, s20, 10"); e(f"s_add_u32 s15, s15, {CORR_L+3072}"); e("v_add_u32 v14, s15, v11")
e("s_mov_b32 s24, 0"); e("s_mov_b32 s25, 0"); e("s_mov_b32 s26, 0")
e("s_barrier")
e("s_barrier")
mark(7)
e("s_lshl_b32 s15, s7, 1"); e("s_add_u32 s15, s15, s21"); e("s_cmp_lg_u32 s15, 29"); e("s_cbranch_scc1 L_c_full")
for nb in range(2): e(f"buffer_store_dwordx4 v[64:67], v11, {SWS}, s{17+nb} offen sc1")
for _ in range(8): e("s_barrier")
e("s_branch L_c_p4")
lab("L_c_full")
for s in g1reads(0, 0): e(s)
def corr_loads():
    e("s_mov_b32 exec_hi, 0")
    for mb in range(3): e(f"buffer_load_dwordx4 {vr(200+4*mb,4)}, v11, {SWS}, s22 offen offset:{512*mb} sc1")
    for nb in range(2): e(f"buffer_load_dwordx4 {vr(212+4*nb,4)}, v11, {SWS}, s23 offen offset:{512*nb} sc1")
    e("s_mov_b64 exec, -1")
lab("L_g1_loop")
for ks in range(4):
    buf = ks & 1
    e("s_waitcnt lgkmcnt(0)")
    if ks == 3:
        e("s_barrier")
    nxt = g1reads((ks+1) & 3, buf ^ 1)
    sched = [3, 3, 2, 2, 0, 0]; p = 0
    for n, (mb, nb) in enumerate([(0,0),(0,1),(1,0),(1,1),(2,0),(2,1)]):
        a = ACC + 16*(2*mb+nb)
        if "mf16" in X:
            o = 8*(ks & 1)
            e(f"v_mfma_f32_16x16x32_bf16 {vr(a+o,4)}, {vr(FR[buf]+4*mb,4)}, {vr(FR[buf]+12+4*nb,4)}, {vr(a+o,4)}")
            for _ in range((sched[n]+1)//2): e(nxt[p]); p += 1
            e(f"v_mfma_f32_16x16x32_bf16 {vr(a+o+4,4)}, {vr(FR[buf]+12+4*nb,4)}, {vr(FR[buf]+4*mb,4)}, {vr(a+o+4,4)}")
            for _ in range(sched[n]//2): e(nxt[p]); p += 1
        else:
            e(f"v_mfma_f32_32x32x16_bf16 {vr(a,16)}, {vr(FR[buf]+4*mb,4)}, {vr(FR[buf]+12+4*nb,4)}, {vr(a,16)}")
            for _ in range(sched[n]): e(nxt[p]); p += 1
        if ks == 2 and n == 4:
            e(f"s_add_u32 s25, s25, {WSLOT}"); e(f"s_cmp_eq_u32 s25, {4*WSLOT}"); e("s_cselect_b32 s25, 0, s25")
            e(f"s_add_u32 s26, s26, 16384"); e(f"s_cmp_eq_u32 s26, {3*16384}"); e("s_cselect_b32 s26, 0, s26")
        if ks == 2 and n == 5:
            e("v_add_u32 v15, s25, v12"); e("v_add_u32 v16, s26, v13"); e("v_add_u32 v17, s26, v18")
e("s_add_u32 s24, s24, 1"); e("s_cmp_lt_u32 s24, 7"); e("s_cbranch_scc1 L_g1_loop")
FK = [20, 40, 160, 180]
lg.clear(); lg.add(("k0",), 10)
rd = []
def rdA(ks, mb): return [(f"ds_read_b64_tr_b16 {vr(FK[ks]+4*mb+2*hh,2)}, v15 offset:{(16*ks+4*hh)*192+32*mb}", ("A", ks, mb)) for hh in range(2)]
def rdB(ks, nb): return [(f"ds_read_b64_tr_b16 {vr(FK[ks]+12+4*nb+2*hh,2)}, v{16+nb} offset:{4096*ks+1024*hh}", ("B", ks, nb)) for hh in range(2)]
for ks in (1, 2, 3): rd += rdA(ks, 0) + rdB(ks, 0) + rdB(ks, 1)
for mb in (1, 2):
    for ks in (1, 2, 3): rd += rdA(ks, mb)
def epi(mb):
    l = []
    for nb in range(2):
        a = ACC + 16*(2*mb+nb)
        for r in range(8): l.append(f"v_max_f32 v{a+r}, 0, v{a+r}")
        for r in range(8): l.append(f"v_mul_f32 v{a+r}, v{a+r}, v{a+8+r}")
        for p in range(4): l.append(f"v_cvt_pk_bf16_f32 v{a+8+p}, v{a+2*p}, v{a+2*p+1}")
        l.append(f"buffer_store_dwordx4 {vr(a+8,4)}, v11, {SWS}, s{17+nb} offen offset:{1024*mb} sc1")
    return l
lg.wait(("k0",))
seq = [(0, mb, nb) for mb in range(3) for nb in range(2)] + [(ks, 0, nb) for ks in (1, 2, 3) for nb in range(2)] + ["bar"]
seq += [(1, 1, 0), (1, 1, 1), "chk", ("c", 0, 0), ("c", 0, 1)] + [(ks, 1, nb) for ks in (2, 3) for nb in range(2)] + [("c", 1, 0), ("c", 1, 1)]
seq += [("c", 2, 0), ("c", 2, 1)] + [(ks, 2, nb) for ks in (1, 2) for nb in range(2)] + [(3, 2, 0), (3, 2, 1)]
last = {}
for n, x in enumerate(seq):
    if isinstance(x, tuple): last[(x[1], x[2])] = n
epq = []
def epi1(mb, nb):
    a = ACC + 16*(2*mb+nb); l = []
    for r in range(8): l.append(f"v_max_f32 v{a+r}, 0, v{a+r}")
    for r in range(8): l.append(f"v_mul_f32 v{a+r}, v{a+r}, v{a+8+r}")
    for p in range(4): l.append(f"v_cvt_pk_bf16_f32 v{a+8+p}, v{a+2*p}, v{a+2*p+1}")
    l.append(f"buffer_store_dwordx4 {vr(a+8,4)}, v11, {SWS}, s{17+nb} offen offset:{1024*mb} sc1")
    return l
for n, x in enumerate(seq):
    if x == "bar":
        e("s_waitcnt lgkmcnt(0)"); lg.clear(); assert not rd
        e("s_barrier")
        e("s_mov_b32 exec_hi, 0")
        for mb in range(3): e(f"ds_read_b128 {vr(200+4*mb,4)}, v19 offset:{512*mb}")
        for nb in range(2): e(f"ds_read_b128 {vr(212+4*nb,4)}, v14 offset:{512*nb}")
        e("s_mov_b64 exec, -1")
        e("s_mov_b32 s30, 0x100000")
        continue
    if x == "chk":
        e("s_waitcnt lgkmcnt(0)")
        mark(1, "it2")
        lab("L_corr")
        e("v_xor_b32 v60, s9, v203")
        for r in (207, 211, 215, 219):
            e(f"v_xor_b32 v63, s9, v{r}"); e("v_or_b32 v60, v60, v63")
        e("v_cmp_ne_u32 vcc, 0, v60")
        e("s_cmp_eq_u32 vcc_lo, 0"); e("s_cbranch_scc1 L_corrx")
        e("s_sub_u32 s30, s30, 1"); e("s_cbranch_scc1 L_corrx")
        corr_loads()
        e("s_waitcnt vmcnt(0)")
        e("s_branch L_corr")
        lab("L_corrx")
        mark(2, "it2")
        for r in (203, 207, 211, 215, 219): e(f"v_mov_b32 v{r}, 0")
        e("s_nop 1")
        continue
    ks, mb, nb = x
    a = ACC + 16*(2*mb+nb)
    if ks == "c":
        e(f"v_mfma_f32_32x32x16_bf16 {vr(a,16)}, {vr(200+4*mb,4)}, {vr(212+4*nb,4)}, {vr(a,16)}")
    else:
        need = [("A", ks, mb), ("B", ks, nb)]
        while any(y[1] in need for y in rd):
            s_, tg = rd.pop(0); e(s_); lg.add(tg)
        lg.wait(*need)
        e(f"v_mfma_f32_32x32x16_bf16 {vr(a,16)}, {vr(FK[ks]+4*mb,4)}, {vr(FK[ks]+12+4*nb,4)}, {vr(a,16)}")
    if last[(mb, nb)] == n: epq += [(len(L) + 12, t) for t in epi1(mb, nb)]
    for _ in range(3):
        if rd: s_, tg = rd.pop(0); e(s_); lg.add(tg)
    k = 0
    while epq and k < 6:
        short = epq[0][0] - len(L)
        if short > 0:
            p_ = min(short, 6 - k)
            e(f"s_nop {p_-1}"); L.extend(["    ; pad"] * (p_ - 1)); k += p_
            continue
        e(epq.pop(0)[1]); k += 1
mark(8); mark(3, "it2")
while epq:
    short = epq[0][0] - len(L)
    if short > 0:
        e(f"s_nop {short-1}"); L.extend(["    ; pad"] * (short - 1))
    e(epq.pop(0)[1])
mark(4, "it2")
lab("L_c_p4")
RES = 224
for r in range(16): e(f"v_mov_b32 v{RES+r}, 0")
e("s_lshl_b32 s22, s13, 17"); e("s_lshl_b32 s16, s28, 14"); e("s_add_u32 s22, s22, s16"); e("s_lshl_b32 s16, s21, 13"); e("s_add_u32 s22, s22, s16")
e(f"s_add_u32 s22, s22, {HT_OFF:#x}"); e("s_add_u32 s23, s22, 4096")
e("s_lshl_b32 s25, s4, 2"); e("s_lshr_b32 s16, s5, 3"); e("s_add_u32 s25, s25, s16"); e("s_lshl_b32 s25, s25, 1"); e("s_add_u32 s25, s25, s20")
e(f"s_mul_i32 s25, s25, {HH_KS*1024}"); e("s_lshl_b32 s16, s21, 12"); e("s_add_u32 s25, s25, s16"); e(f"s_add_u32 s25, s25, {HH_OFF:#x}")
e("s_lshl_b32 s27, s28, 7"); e("s_lshl_b32 s15, s21, 6"); e("s_add_u32 s27, s27, s15")
e("s_waitcnt vmcnt(0)"); mark(5, "it2"); e("s_barrier")
mark(9); mark(6, "it2")
post_flag(FL3_OFF, 0)
for ii in range(4):
    for j in range(4):
        e(f"buffer_load_short_d16_hi v{RES+4*ii+j}, v{241+j}, {SWS}, s{22+(ii>>1)} offen offset:{2048*(ii&1)+256*j} sc1")
e("s_cmp_lg_u32 s3, 0"); e("s_cbranch_scc1 L_c_np3")
e("s_mov_b64 exec, 0xffff")
poll("v248", "v249", "s9", "ap3" in X)
lab("L_c_np3")
mark(7, "it2")
e("s_barrier")
mark(8, "it2")
vm = Trk("vmcnt", 63)
NHR = 6; HB = 64
def issueHH(i):
    rot11(i)
    e("s_lshl_b32 s15, s15, 13"); e("s_add_u32 s15, s15, s25")
    for q in range(4):
        e(f"buffer_load_dwordx4 {vr(HB+16*(i % NHR)+4*q,4)}, v11, {SWS}, s15 offen offset:{1024*q} sc1"); vm.add(("HH", i, q))
NH0 = int(os.environ.get("NH0", "3"))
for i in range(NH0): issueHH(i)
mark(10)
ACC = 160
FR = [20, 36]
e("v_add_u32 v52, 0x10000, v246"); e("v_add_u32 v53, 0x10000, v247"); e("v_add_u32 v54, 0x20000, v246"); e("v_add_u32 v55, 0x20000, v247")
def g2reads(G):
    i = G >> 1; slot = i % 10; l = []
    base = [("v246", "v247"), ("v52", "v53"), ("v54", "v55")][slot >> 2]
    for q in range(2):
        ks = 2*(G & 1) + q
        for db in range(2):
            b = FR[G & 1] + 8*q + 4*db
            off = (slot & 3)*16384 + ks*2048
            l.append((f"ds_read_b64_tr_b16 {vr(b,2)}, {base[db]} offset:{off}", ("W", G, q, db)))
            l.append((f"ds_read_b64_tr_b16 {vr(b+2,2)}, {base[db]} offset:{off+1024}", ("W", G, q, db)))
    return l
lg.clear(); nxh = [NH0]
for s, t in g2reads(0): e(s); lg.add(t)
for G in range(22):
    i = G >> 1
    if G == 2: mark(9, "it2")
    if G == 12: mark(10, "it2")
    if G == 6: e("s_barrier")
    if G == 19: e("s_barrier")
    nxt = g2reads(G+1) if G < 21 else []
    p = 0
    for q in range(2):
        ks = 2*(G & 1) + q
        vm.wait(("HH", i, ks))
        for db in range(2):
            lg.wait(("W", G, q, db))
            b = FR[G & 1] + 8*q + 4*db
            c = vr(ACC+16*db, 16) if (G or q) else "0"
            e(f"v_mfma_f32_32x32x16_bf16 {vr(ACC+16*db,16)}, {vr(b,4)}, {vr(HB+16*(i % NHR)+4*ks,4)}, {c}")
            for _ in range(2):
                if p < len(nxt): e(nxt[p][0]); lg.add(nxt[p][1]); p += 1
    hi_ = min(10, i + 5, NH0 + G)
    while nxh[0] <= hi_: issueHH(nxh[0]); nxh[0] += 1
    if G == 12:
        e("s_lshl_b32 s15, s13, 9"); e(f"s_add_u32 s15, s15, {R2_OFF:#x}")
        e(f"buffer_load_dword v240, v62, {SWS}, s15 offen sc1"); vm.add("res")
e("s_lshl_b32 s15, s11, 12"); e("s_add_u32 s15, s15, 16384"); e("s_xor_b32 s16, s15, 4096")
e("v_add_u32 v56, s15, v11"); e("v_add_u32 v57, s16, v11")
e("s_nop 7")
e("s_nop 1")
for u in range(4): e(f"ds_write_b128 v56, {vr(ACC+16+4*u,4)} offset:{1024*u}")
e("s_waitcnt lgkmcnt(0)")
e("s_barrier")
e("s_waitcnt vmcnt(0)")
for u in range(4): e(f"ds_read_b128 {vr(64+4*u,4)}, v57 offset:{1024*u}")
for u in range(4):
    e(f"s_waitcnt lgkmcnt({3-u})")
    for r in range(4): e(f"v_add_f32 v{ACC+4*u+r}, v{ACC+4*u+r}, v{64+4*u+r}")
    for r in range(4): e(f"v_fma_f32 v{ACC+4*u+r}, v{ACC+4*u+r}, v240, v{RES+4*u+r}")
    for p in range(2): e(f"v_cvt_pk_bf16_f32 v{32+2*u+p}, v{ACC+4*u+2*p}, v{ACC+4*u+2*p+1}")
    if u & 1:
        b = 32 + 2*(u-1)
        e("s_nop 1")
        e(f"v_permlane32_swap_b32 v{b}, v{b+2}"); e(f"v_permlane32_swap_b32 v{b+1}, v{b+3}")
        e(f"buffer_store_dwordx4 {vr(b,4)}, v245, {SOUT}, s27 offen offset:{16*(u-1)}")
endpgm()

lab("L_H")
vm = Trk("vmcnt", 63)
e(f"v_lshlrev_b32 v4, 2, v2"); e(f"v_add_u32 v4, {FLG_L}, v4"); e("v_mov_b32 v5, 0")
e("s_mov_b64 exec, 0xffff")
e("ds_write_b32 v4, v5")
e("s_mov_b64 exec, -1")
e("v_lshlrev_b32 v11, 4, v2")
e("s_lshl_b32 s24, s2, 13"); e("s_lshl_b32 s16, s11, 11"); e("s_add_u32 s24, s24, s16")
QR = " nt" if "qrnt" in X else ""
e(f"buffer_load_dwordx4 {vr(56,4)}, v11, {SQ}, s24 offen{QR}"); e(f"buffer_load_dwordx4 {vr(60,4)}, v11, {SQ}, s24 offen offset:1024{QR}")
e("v_lshlrev_b32 v17, 7, v2")
pass
for j in range(3):
    e(f"v_add_u32 v20, {j*64}, v2")
    e("v_mul_u32_u24 v21, 0x5556, v20"); e("v_lshrrev_b32 v21, 18, v21")
    e("v_mul_u32_u24 v22, 12, v21"); e("v_sub_u32 v22, v20, v22")
    e("v_mul_u32_u24 v21, 2752, v21"); e(f"v_lshl_add_u32 v{14+j}, v22, 4, v21")
    if j: e(f"v_subrev_u32 v{14+j}, {1024*j}, v{14+j}")
e(f"s_mul_i32 s22, s11, {16*2752}"); e("s_mul_i32 s15, s7, 192"); e("s_add_u32 s22, s22, s15")
e(f"s_mul_i32 s23, s11, {16*192}")
e("s_mov_b32 s16, 0x05040100"); e("s_mov_b32 s17, 0x07060302")
e("s_waitcnt vmcnt(3)")
mark(1)
for c in range(4):
    sel = "s17" if c & 1 else "s16"
    e(f"v_perm_b32 v{92+2*c}, v{40+(c>>1)}, v{38+(c>>1)}, {sel}")
    e(f"v_perm_b32 v{93+2*c}, v{44+(c>>1)}, v{42+(c>>1)}, {sel}")
    e(f"ds_write_b64 v13, {vr(92+2*c,2)} offset:{128*c}")
e("s_and_b32 s15, s2, 0xc7"); e("s_or_b32 s15, s15, s11"); e("s_cmp_lg_u32 s15, 0"); e("s_cbranch_scc1 L_noinit")
e("s_waitcnt vmcnt(2)")
e("v_add_u32 v116, 1, v254"); e("v_lshlrev_b32 v116, 6, v116"); e("v_lshlrev_b32 v117, 10, v2")
e("s_lshl_b32 s15, s2, 4"); e(f"s_add_u32 s15, s15, {FL2_OFF:#x}")
e(f"s_mov_b32 exec_lo, {(1 << NREP) - 1:#x}"); e("s_mov_b32 exec_hi, 0")
e(f"buffer_store_dword v116, v117, {SWS}, s15 offen sc1")
e("s_mov_b64 exec, -1")
lab("L_noinit")
mark(7, "p1")
e("s_waitcnt lgkmcnt(0)"); e("s_barrier")
mark(8, "p1")
e("ds_read_b128 v[28:31], v124"); e("ds_read_b128 v[32:35], v125 offset:1024")
e("s_waitcnt lgkmcnt(1)")
e(f"buffer_store_dwordx4 v[28:31], v126, {SWS}, s18 offen sc1")
e("s_waitcnt lgkmcnt(0)")
e(f"buffer_store_dwordx4 v[32:35], v126, {SWS}, s19 offen sc1")
mark(9, "p1")
e("s_waitcnt vmcnt(2)")
e("v_add_u32 v254, 1, v254")
e("s_nop 0")
e("v_readfirstlane_b32 s9, v254")
for rr in range(2):
    for c in range(8): unpack(64+8*rr+c, 56+4*rr+2*(c>>2), c & 3)
def tree(dst, base):
    e(f"v_add_f32 v{dst}, v{base}, v{base+1}")
    for c in range(2, 8): e(f"v_add_f32 v{dst}, v{dst}, v{base+c}")
def reduce2(a, b):
    for m in ("row_shr:1", "row_shr:2", "row_shr:4", "row_shr:8"):
        e("s_nop 0")
        e(f"v_add_f32_dpp v{a}, v{a}, v{a} {m} row_mask:0xf bank_mask:0xf bound_ctrl:0")
        e(f"v_add_f32_dpp v{b}, v{b}, v{b} {m} row_mask:0xf bank_mask:0xf bound_ctrl:0")
    for m, rm in (("row_bcast:15", "0xa"), ("row_bcast:31", "0xc")):
        e("s_nop 0")
        e(f"v_add_f32_dpp v{a}, v{a}, v{a} {m} row_mask:{rm} bank_mask:0xf")
        e(f"v_add_f32_dpp v{b}, v{b}, v{b} {m} row_mask:{rm} bank_mask:0xf")
tree(100, 64); tree(101, 72)
e("s_nop 0")
reduce2(100, 101)
e("s_mov_b32 s18, 0x3b000000")
e("v_mul_f32 v100, s18, v100"); e("v_mul_f32 v101, s18, v101")
e("s_nop 0")
e("v_readlane_b32 s16, v100, 63"); e("v_readlane_b32 s17, v101, 63")
e("s_nop 1")
for c in range(8):
    e(f"v_subrev_f32 v{64+c}, s16, v{64+c}"); e(f"v_subrev_f32 v{72+c}, s17, v{72+c}")
e("v_mul_f32 v102, v64, v64"); e("v_mul_f32 v103, v72, v72")
for c in range(1, 8):
    e(f"v_fmac_f32 v102, v{64+c}, v{64+c}"); e(f"v_fmac_f32 v103, v{72+c}, v{72+c}")
e("s_nop 0")
reduce2(102, 103)
e("v_mov_b32 v104, 0x3727c5ac")
e("v_fma_f32 v102, v102, s18, v104"); e("v_fma_f32 v103, v103, s18, v104")
e("v_rsq_f32 v108, v102"); e("v_rsq_f32 v112, v103")
e("v_mov_b32 v110, v254"); e("v_mov_b32 v114, v254"); e("v_mov_b32 v111, v254"); e("v_mov_b32 v115, v254")
e("v_mul_f32 v109, v100, v108"); e("v_mul_f32 v113, v101, v112")
e("v_sub_f32 v109, 0, v109"); e("v_sub_f32 v113, 0, v113")
e("s_lshr_b32 s15, s2, 5"); e("s_lshl_b32 s15, s15, 12"); e("s_lshl_b32 s16, s21, 11"); e("s_add_u32 s15, s15, s16")
e("s_bfe_u32 s16, s2, 0x40001"); e("s_lshl_b32 s16, s16, 5"); e("s_add_u32 s15, s15, s16")
e("s_and_b32 s16, s2, 1"); e("s_lshl_b32 s16, s16, 1"); e("s_add_u32 s16, s16, s20"); e("s_lshl_b32 s16, s16, 9"); e("s_add_u32 s15, s15, s16")
e(f"s_add_u32 s15, s15, {STG_OFF:#x}")
e("s_mov_b32 exec_lo, 0"); e("s_mov_b32 exec_hi, 0x80000000")
e(f"buffer_store_dwordx4 v[108:111], v5, {SWS}, s15 offen sc1")
e(f"buffer_store_dwordx4 v[112:115], v5, {SWS}, s15 offen offset:16 sc1")
e("s_mov_b64 exec, -1")
mark(3)
e("s_waitcnt vmcnt(2)")
mark(10, "p1")
e("s_barrier")
mark(2)
post_flag(FL1_OFF, 4)
e("s_cmp_lg_u32 s3, 4"); e("s_cbranch_scc1 L_h_np1")
e("s_lshl_b32 s16, s4, 12"); e(f"s_add_u32 s16, s16, {FL1_OFF:#x}"); e("v_add_u32 v7, s16, v17")
e("s_mov_b32 exec_hi, 0")
poll("v7", "v8", "s9", "ap1" in X)
lab("L_h_np1")
e("s_barrier")
e("v_lshlrev_b32 v9, 4, v3")
e("v_lshlrev_b32 v10, 3, v3"); e(f"v_add_u32 v10, {ST_L}, v10")
for j in range(8):
    e(f"s_add_u32 s16, s5, {j}"); e("s_and_b32 s16, s16, 7"); e("s_lshl_b32 s16, s16, 11"); e(f"v_add_u32 v{100+j}, s16, v10")
def issueW(i, emit=True):
    l = []
    l.append([f"s_add_u32 s15, s8, {i}", "s_and_b32 s15, s15, 7", f"s_mul_i32 s15, s15, {64*2752}", "s_add_u32 s15, s15, s22",
              f"s_add_u32 m0, s23, {(i % 4)*WSLOT}", "s_nop 0", f"buffer_load_dwordx4 v14, {SWG}, s15 offen lds"])
    for j in (1, 2): l.append([f"buffer_load_dwordx4 v{14+j}, {SWG}, s15 offen offset:{1024*j} lds"])
    l.append([f"s_add_u32 s15, s8, {i}", "s_and_b32 s15, s15, 7", f"s_mul_i32 s15, s15, {64*2752}", "s_add_u32 s15, s15, s22",
              f"s_add_u32 m0, s23, {(i % 4)*WSLOT + W_U}", "s_nop 0", f"buffer_load_dwordx4 v14, {SWU}, s15 offen lds"])
    for j in (1, 2): l.append([f"buffer_load_dwordx4 v{14+j}, {SWU}, s15 offen offset:{1024*j} lds"])
    return [(x, ("W", i)) for x in l]
def emit_all(items):
    for x, t in items:
        for s in x: e(s)
        vm.add(t)
def stg_loads():
    for j in range(8):
        e(f"s_add_u32 s16, s5, {j}"); e("s_and_b32 s16, s16, 7"); e("s_lshl_b32 s16, s16, 12"); e(f"s_add_u32 s16, s16, {STG_OFF:#x}")
        e(f"buffer_load_dwordx4 {vr(64+4*j,4)}, v9, {SWS}, s16 offen sc1")
stg_loads()
e("s_barrier")
mark(4)
NWPRE = int(os.environ.get("NWPRE", "2"))
e("s_cmp_eq_u32 s7, 15"); e("s_cbranch_scc1 L_h_now0")
emit_all(issueW(0))
e("s_waitcnt vmcnt(6)")
e("s_branch L_stg0")
lab("L_h_now0")
e("s_waitcnt vmcnt(0)")
lab("L_stg0")
e("s_mov_b32 s30, 0x100000")
lab("L_stg")
e("v_xor_b32 v50, s9, v66")
for j in range(1, 8):
    e(f"v_xor_b32 v51, s9, v{66+4*j}"); e("v_or_b32 v50, v50, v51")
e("v_cmp_ne_u32 vcc, 0, v50")
e("s_cbranch_vccz L_stgx")
e("s_sub_u32 s30, s30, 1"); e("s_cbranch_scc1 L_stgx")
stg_loads()
e("s_waitcnt vmcnt(0)")
e("s_branch L_stg")
lab("L_stgx")
for j in range(8): e(f"ds_write_b64 v{100+j}, {vr(64+4*j,2)}")
e("s_lshl_b32 s15, s11, 2"); e(f"s_add_u32 s15, s15, {FLG_L+16}"); e("v_mov_b32 v50, s15"); e("v_mov_b32 v51, 1")
e("ds_write_b32 v50, v51")
mark(5)
if "nowdt" not in X:
    e("s_mul_i32 s15, s2, 5504"); e("s_mul_i32 s16, s11, 1408"); e("s_add_u32 s15, s15, s16")
    e("s_mov_b64 exec, 0x7ff")
    e(f"buffer_load_dword v250, v17, {SWD}, s15 offen"); vm.add("t")
    e("s_mov_b64 exec, -1")
e("s_cmp_eq_u32 s7, 15"); e("s_cbranch_scc1 L_h_now")
for i in range(1, NWPRE): emit_all(issueW(i))
lab("L_h_now")
mark(7, "p2")
e("v_and_b32 v20, 15, v2"); e("v_lshrrev_b32 v21, 4, v2"); e("v_lshrrev_b32 v22, 2, v20"); e("v_and_b32 v23, 3, v20")
e("v_lshrrev_b32 v24, 5, v2"); e("v_and_b32 v25, 1, v21"); e("v_lshl_add_u32 v26, v24, 3, v22")
e("v_lshlrev_b32 v27, 8, v26"); e("v_lshl_add_u32 v27, v25, 5, v27"); e("v_lshl_add_u32 v27, v23, 3, v27")
e("v_xor_b32 v17, s11, v22"); e("v_lshl_add_u32 v17, v17, 6, v27"); e(f"v_add_u32 v17, {A_L}, v17")
e("v_add_u32 v18, 16384, v17"); e("v_add_u32 v19, 32768, v17")
e("v_lshrrev_b32 v7, 3, v2"); e("v_lshlrev_b32 v7, 5, v7"); e("v_and_b32 v8, 7, v2"); e("v_add_u32 v7, v7, v8")
e("s_lshl_b32 s16, s11, 3"); e("v_add_u32 v7, s16, v7"); e("v_lshlrev_b32 v7, 7, v7"); e("s_lshl_b32 s16, s4, 15"); e(f"s_add_u32 s16, s16, {FL2_OFF:#x}"); e("v_add_u32 v7, s16, v7")
e("s_lshl_b32 s26, s6, 17"); e("s_lshl_b32 s19, s11, 12"); e("s_add_u32 s26, s26, s19"); e(f"s_add_u32 s26, s26, {HT_OFF:#x}")
for r in range(4): e(f"v_mov_b32 v{20+r}, 0")
e("s_mov_b32 s27, 0x3f803f80")
e("v_lshrrev_b32 v12, 3, v2"); e("v_and_b32 v13, 7, v2"); e("v_bfe_u32 v28, v2, 4, 1"); e("v_lshlrev_b32 v28, 2, v28"); e("v_xor_b32 v13, v13, v28")
e("v_lshlrev_b32 v12, 10, v12"); e("v_lshl_add_u32 v12, v13, 4, v12")
e("s_lshl_b32 s24, s11, 15"); e("s_lshl_b32 s16, s28, 7"); e("s_add_u32 s24, s24, s16")
e("v_mov_b32 v118, 1"); e("v_lshlrev_b32 v119, 10, v2"); e("s_lshl_b32 s16, s4, 7"); e(f"s_add_u32 s16, s16, {FL2_OFF:#x}"); e("v_add_u32 v119, s16, v119")
e("v_lshlrev_b32 v120, 7, v2"); e(f"s_and_b32 s16, s2, {NREP-1}"); e("s_lshl_b32 s16, s16, 10"); e(f"s_add_u32 s16, s16, {FL2_OFF:#x}"); e("v_add_u32 v120, s16, v120")
e("s_lshl_b32 s25, s9, 6"); e("s_add_u32 s25, s25, 32")
vm.wait(("W", 0))
mark(8, "p2")
e("s_barrier")
mark(6)
if "f256" in X:
    post_flag(FL2_OFF, 4, 8)
    poll("v7", "v8"); vm.clear()
else:
    e("s_cmp_lg_u32 s3, 4"); e("s_cbranch_scc1 L_noadd")
    e(f"s_mov_b32 exec_lo, {(1 << NREP) - 1:#x}"); e("s_mov_b32 exec_hi, 0")
    e(f"buffer_atomic_add v118, v119, {SWS}, 0 offen sc1")
    e("s_mov_b64 exec, -1")
    lab("L_noadd")
    e("s_cmp_eq_u32 s7, 15"); e("s_cbranch_scc1 L_now2")
    for k in range(NWPRE, 4): emit_all(issueW(k))
    lab("L_now2")
    e("s_cmp_lg_u32 s3, 4"); e("s_cbranch_scc1 L_nopoll2")
    e("s_mov_b64 exec, 0xff")
    poll("v120", "v8", "s25", "ap2" in X)
    lab("L_nopoll2")
e("s_barrier")
e("s_cmp_eq_u32 s7, 15"); e("s_cbranch_scc1 L_h_idle")
def issueA(i, dst=None):
    if dst is None: dst = A_L + (i % 3)*16384
    l = [[f"s_add_u32 s15, s8, {i}", "s_and_b32 s15, s15, 7", "s_lshl_b32 s15, s15, 14", "s_add_u32 s15, s15, s26",
          f"s_add_u32 m0, s19, {dst}", "s_nop 0", f"buffer_load_dwordx4 v11, {SWS}, s15 offen sc1 lds"]]
    for j in (1, 2, 3): l.append([f"buffer_load_dwordx4 v11, {SWS}, s15 offen offset:{1024*j} sc1 lds"])
    return [(x, ("A", i)) for x in l]
def issueWd(i):
    l = [[f"s_add_u32 s15, s29, {i}", "s_cmp_ge_u32 s15, 11", "s_cselect_b32 s16, 11, 0", "s_sub_u32 s15, s15, s16",
          "s_lshl_b32 s15, s15, 17", "s_add_u32 s15, s15, s24", f"s_add_u32 m0, s19, {(i % 10)*16384}", "s_nop 0",
          f"buffer_load_dwordx4 v12, {SWD}, s15 offen lds"]]
    for j in (1, 2, 3): l.append([f"s_add_u32 s16, s15, {j*7168}", f"buffer_load_dwordx4 v12, {SWD}, s16 offen offset:{1024*j} lds"])
    return [(x, ("Wd", i)) for x in l]
for i in range(3): emit_all(issueA(i))
mark(7)
vm.wait(("A", 0))
e("s_barrier")
mark(1, "it2"); mark(1, "it3")
corr_items = [(["s_mul_i32 s15, s7, 3072", "s_lshl_b32 s16, s11, 10", "s_add_u32 s15, s15, s16", f"s_add_u32 s15, s15, {CSF_OFF:#x}",
                "s_lshl_b32 s17, s6, 11", f"s_add_u32 s17, s17, {ST2_OFF:#x}", "s_cmp_eq_u32 s11, 3", "s_cselect_b32 s15, s17, s15",
                f"s_add_u32 m0, s16, {CORR_L}", "s_nop 0", f"buffer_load_dwordx4 v11, {SWS}, s15 offen sc1 lds"], "corr"),
              ([f"s_mov_b32 m0, {CORR_L+3072}", "s_nop 0", f"buffer_load_dwordx4 v11, {SWS}, s17 offen offset:1024 sc1 lds"], "corr")]
Wh = lambda k, h: issueW(k)[3*h:3*h+3]
SCHED = {1: Wh(4,0)+Wh(4,1), 2: Wh(5,0), 3: Wh(5,1)+Wh(6,0), 4: Wh(6,1)+Wh(7,0), 5: Wh(7,1)+issueWd(0), 6: issueWd(1)+corr_items+issueWd(2), 7: issueWd(3)}
if "nosmooth" in X:
    SCHED = {1: issueW(4), 2: issueW(5), 3: issueW(6), 4: issueW(7), 5: issueWd(0)+corr_items, 6: issueWd(1)+issueWd(2), 7: issueWd(3)}
for i in range(8):
    items = []
    if 1 <= i <= 5: items += issueA(i+2)
    items += SCHED.get(i, [])
    emit_all(items)
    if i < 7:
        vm.wait(("A", i+1), ("W", i+1))
        mark(2+i, "it3")
        e("s_barrier")
        mark(2+i, "it2")
vm.wait("corr"); mark(9, "it3"); e("s_barrier")
mark(9, "it2")
mark(8)
NPRE = int(os.environ.get("NPRE", "7"))
for i in range(4, NPRE): emit_all(issueWd(i))
e("s_branch L_h_b7")
lab("L_h_idle")
mark(1, "it2")
for i in range(8): emit_all(issueA(i, i*16384))
mark(2, "it2")
e(f"v_subrev_u32 v17, {A_L}, v17")
for r in range(4): e(f"v_mov_b32 v{28+r}, s27")
FS = 100
for half in range(2):
    e(f"s_waitcnt vmcnt({16 - 16*half})"); e("s_barrier")
    mark(3+half, "it2")
    lg.clear()
    rds = [(f"ds_read_b64_tr_b16 {vr(FS+64*half+4*q+2*hh,2)}, v17 offset:{4096*q+1024*hh}", q) for q in range(16) for hh in range(2)]
    for s_, t in rds[:12]: e(s_); lg.add(t)
    rds = rds[12:]
    for q in range(16):
        lg.wait(q)
        e(f"v_mfma_f32_32x32x16_bf16 v[64:79], v[28:31], {vr(FS+64*half+4*q,4)}, {'v[64:79]' if (half or q) else '0'}")
        for s_, t in rds[:2]: e(s_); lg.add(t)
        rds = rds[2:]
    e("v_add_u32 v17, 0x10000, v17")
for q in range(4): e(f"v_mfma_f32_32x32x16_bf16 v[80:95], {vr(FS+4*q,4)}, {vr(FS+4*q,4)}, {'v[80:95]' if q else '0'}")
e("s_nop 7")
e("v_mul_f32 v27, s18, v64")
e("v_sub_f32 v24, 0, v27")
e("v_cvt_pk_bf16_f32 v20, v24, v24")
e("v_and_b32 v25, s14, v20"); e("v_sub_f32 v25, v24, v25"); e("v_mov_b32 v22, 0")
e("v_cvt_pk_bf16_f32 v21, v25, v22")
e("v_mov_b32 v23, v254")
e("s_lshl_b32 s15, s6, 11"); e("s_lshl_b32 s16, s11, 9"); e("s_add_u32 s15, s15, s16"); e(f"s_add_u32 s15, s15, {ST2_OFF:#x}")
e("s_mov_b32 exec_hi, 0")
e(f"buffer_store_dwordx4 v[20:23], v11, {SWS}, s15 offen sc1")
e("s_mov_b64 exec, -1")
mark(7, "it2")
e("s_barrier")
for q in range(4, 32): e(f"v_mfma_f32_32x32x16_bf16 v[80:95], {vr(FS+4*q,4)}, {vr(FS+4*q,4)}, v[80:95]")
e("v_bfe_u32 v22, v2, 3, 2"); e("v_lshlrev_b32 v22, 2, v22"); e("v_and_b32 v23, 3, v2"); e("v_add_u32 v22, v22, v23")
e("v_bfe_u32 v23, v2, 2, 1"); e("v_lshrrev_b32 v24, 5, v2"); e("v_xor_b32 v23, v23, v24"); e("v_lshl_add_u32 v22, v23, 4, v22")
e("v_mov_b32 v21, 0")
e("s_nop 7")
for r in range(16):
    e(f"v_cmp_eq_u32 s[{100 if False else 76}:{77}], {r}, v22" if r & 1 else f"v_cmp_eq_u32 vcc, {r}, v22")
    e("s_nop 1")
    e(f"v_cndmask_b32 v21, v21, v{80+r}, s[76:77]" if r & 1 else f"v_cndmask_b32 v21, v21, v{80+r}, vcc")
e("v_mov_b32 v23, v21")
e("s_nop 1")
e("v_permlane32_swap_b32 v23, v21")
e("s_nop 1")
e("v_add_f32 v21, v21, v23")
e("v_mul_f32 v21, s18, v21")
e("v_fma_f32 v21, -v27, v27, v21"); e("v_max_f32 v21, 0, v21"); e("v_add_f32 v21, 0x3727c5ac, v21")
e("v_rcp_f32 v22, v21")
e("v_lshlrev_b32 v23, 2, v2")
e("s_lshl_b32 s15, s6, 9"); e("s_lshl_b32 s16, s11, 7"); e("s_add_u32 s15, s15, s16"); e(f"s_add_u32 s15, s15, {R2_OFF:#x}")
e("s_mov_b32 exec_hi, 0")
e(f"buffer_store_dword v22, v23, {SWS}, s15 offen sc1")
e("s_mov_b64 exec, -1")
e("s_waitcnt vmcnt(0)")
mark(8); mark(8, "it2")
for i in range(0, NPRE): emit_all(issueWd(i))
lab("L_h_b7")
e("s_barrier")
mark(9)
for i in range(NPRE, 10): emit_all(issueWd(i))
e("s_waitcnt vmcnt(0)")
mark(10)
e("s_barrier")
e("s_barrier")
emit_all(issueWd(10))
e("s_waitcnt vmcnt(0)")
e("s_barrier")
e("s_cmp_lg_u32 s2, 0"); e("s_cbranch_scc1 L_hend")
e("s_cmp_lg_u32 s3, 4"); e("s_cbranch_scc1 L_hend")
e("s_mov_b64 exec, 1")
e(f"buffer_store_dword v254, v255, {SWS}, 0 offen sc1")
lab("L_hend")
endpgm()
lab("L_end")

hdr = open("sequential_preLN__ssm_conv_h3__glu_gated_reglu__prompt.s.ref").read().split("; Override")[0]
s = hdr + f"; @launch grid=(256,1,1) block=(512,1,1) lds={LDS_BYTES}\n"
s += '.amdgcn_target "amdgcn-amd-amdhsa--gfx950"\n.text\n'
s += f".globl {NAME}\n.p2align 8\n.type {NAME},@function\n{NAME}:\n" + "\n".join(L) + "\n    s_endpgm\n"
s += f""".section .rodata,"a"
.p2align 6
.amdhsa_kernel {NAME}
  .amdhsa_next_free_vgpr 256
  .amdhsa_next_free_sgpr 102
  .amdhsa_accum_offset 256
  .amdhsa_group_segment_fixed_size 0
  .amdhsa_kernarg_size 104
  .amdhsa_user_sgpr_count 2
  .amdhsa_user_sgpr_kernarg_segment_ptr 1
  .amdhsa_system_sgpr_workgroup_id_x 1
  .amdhsa_float_denorm_mode_32 3
.end_amdhsa_kernel
"""
open(OUT, "w").write(s)
```

```python
import sys, os
OUT = sys.argv[1] if len(sys.argv) > 1 else "v7.s"
STAMP = int(os.environ.get("STAMP", "0"))
X = os.environ.get("X", "").split(",") + ["ap2", "ap3", "qnt", "qrnt"]
SLP = int(os.environ.get("SLP", "1"))
NREP = int(os.environ.get("NREP", "32"))
NT = "" if "nont" in X else " nt"
NAME = "sequential_preLN__ssm_conv_h3__glu_gated_reglu__prompt_kernel"

RS      = 4224
KVT_OFF = 0
QT_OFF  = 0x210000
STG_OFF = 0x420000
EPO_OFF = 0x428000
FL1_OFF = 0x430000
FL3_OFF = 0x440000
ST2_OFF = 0x448000
CSF_OFF = 0x450000
R2_OFF  = 0x460000
CSP_OFF = 0x468000
FL2_OFF = 0x4D0000
HT_OFF  = 0x510000
HH_OFF  = 0x710000
HH_KS   = 96
WS_END  = HH_OFF + 64 * HH_KS * 1024
STAMP_OFF = 0x1000000
if STAMP and "dbg" not in X: WS_END = 0x2000000

WSLOT = 24640; W_U = 12320
RB = 4 * WSLOT
T_KV = RB
EX_L = 3 * WSLOT
Q_L = EX_L + 16384
T_Q = RB + 8192
CP = 4160; HREG = 4 * CP; XREG = 4608; CH_L = HREG + XREG
ST_L = RB + 2 * CH_L
FLG_L = 163840 - 64
assert ST_L + 16384 <= FLG_L
A_L = RB
MEAN_L = RB + 49152
CORR_L = RB + 49152
LDS_BYTES = 163840

L = []
def e(s): L.append("    " + s)
def lab(s): L.append(s + ":")
def vr(a, n): return f"v[{a}:{a+n-1}]"
def mark(i, grp=None):
    if "p1" in X and i in (7, 8, 9, 10) and grp != "p1": return
    if "it" in X and i in (1, 2, 3) and grp != "it": return
    if "p2" in X and i in (7, 8, 9, 10) and grp != "p2": return
    if ("it2" in X or "it3" in X) and 1 <= i <= 10 and grp not in ("it2", "it3"): return
    if grp and grp not in X: return
    if STAMP: e(f"{'s_memtime' if 'cyc' in X else 's_memrealtime'} s[{78+2*i}:{79+2*i}]")
def srd(d, base, nbytes):
    e(f"s_mov_b32 s{d}, s{base}"); e(f"s_mov_b32 s{d+1}, s{base+1}"); e(f"s_mov_b32 s{d+2}, {nbytes:#x}"); e(f"s_mov_b32 s{d+3}, 0x20000")
NST = 12
def endpgm():
    if STAMP:
        e("s_mov_b64 exec, -1")
        e("s_waitcnt vmcnt(0) lgkmcnt(0)")
        mark(NST-1)
        if "dbg" in X:
            n = nid()
            e("s_cmp_lg_u32 s3, 0"); e(f"s_cbranch_scc1 L_nd{n}"); e("s_cmp_ge_u32 s5, 28"); e(f"s_cbranch_scc1 L_nd{n}")
            e("s_load_dwordx2 s[4:5], s[0:1], 88"); e("s_waitcnt lgkmcnt(0)")
            e("s_mov_b32 s6, 256"); e("s_mov_b32 s7, 0x20000")
            e("s_mov_b64 exec, 1"); e("v_mov_b32 v251, 0")
            e("s_not_b32 s76, s78"); e("v_mov_b32 v252, s76")
            e("buffer_atomic_umax v252, v251, s[4:7], 0 offen offset:48")
            for i in range(NST):
                e(f"v_mov_b32 v{200+i}, s{78+2*i}")
                e(f"buffer_atomic_umax v{200+i}, v251, s[4:7], 0 offen offset:{4*i}")
            lab(f"L_nd{n}")
            e("s_endpgm")
            return
        e("s_lshl_b32 s76, s2, 9"); e("s_lshl_b32 s77, s3, 6"); e("s_add_u32 s76, s76, s77"); e(f"s_add_u32 s76, s76, {STAMP_OFF}")
        e("v_mov_b32 v251, 0")
        e("s_waitcnt lgkmcnt(0)")
        for i in range(NST):
            e(f"v_mov_b32 v252, s{78+2*i}")
            e(f"buffer_store_dword v252, v251, s[40:43], s76 offen offset:{4*i}")
    e("s_endpgm")

class Trk:
    def __init__(self, name, mx): self.q = []; self.name = name; self.mx = mx
    def add(self, tag, n=1): self.q += [tag] * n
    def wait(self, *tags):
        idx = -1
        for i, t in enumerate(self.q):
            if t in tags: idx = i
        if idx < 0: return
        n = len(self.q) - 1 - idx
        n = min(n, self.mx)
        e(f"s_waitcnt {self.name}({n})")
        self.q = self.q[len(self.q) - n:] if n else []
    def clear(self): self.q = []

SQ, SK, SWS, SV, SSH, SSK, SD, SWG, SWU, SWD, SOUT = [f"s[{x}:{x+3}]" for x in (32, 36, 40, 44, 48, 52, 56, 60, 64, 68, 72)]
uid = [0]
def nid():
    uid[0] += 1; return uid[0]
def poll(addr, tmp, want="s9", atom=False):
    n = nid()
    e("s_mov_b32 s30, 0x100000")
    lab(f"L_poll{n}")
    if atom:
        e(f"v_mov_b32 {tmp}, 0")
        e(f"buffer_atomic_add {tmp}, {addr}, {SWS}, 0 offen sc0 sc1")
    else:
        e(f"buffer_load_dword {tmp}, {addr}, {SWS}, 0 offen sc1")
    e("s_waitcnt vmcnt(0)")
    e(f"v_cmp_ne_u32 vcc, {want}, {tmp}")
    e("s_sub_u32 s30, s30, 1")
    e(f"s_cbranch_scc1 L_pollx{n}")
    e("s_and_b64 exec, exec, vcc")
    if SLP:
        e(f"s_cbranch_execz L_pollx{n}")
        e(f"s_sleep {SLP}")
        e(f"s_branch L_poll{n}")
    else:
        e(f"s_cbranch_execnz L_poll{n}")
    lab(f"L_pollx{n}")
    e("s_mov_b64 exec, -1")
def post_flag(off, wave, lanes=1):
    n = nid()
    e(f"s_cmp_lg_u32 s3, {wave}"); e(f"s_cbranch_scc1 L_nopost{n}")
    e(f"s_mov_b64 exec, {(1 << lanes) - 1}")
    e(f"s_mov_b32 s31, {off:#x}")
    e(f"buffer_store_dword v254, v253, {SWS}, s31 offen sc1")
    e("s_mov_b64 exec, -1")
    lab(f"L_nopost{n}")
def unpack(dst, src, c):
    s = src + (c >> 1)
    if c & 1: e(f"v_and_b32 v{dst}, s14, v{s}")
    else: e(f"v_lshlrev_b32 v{dst}, 16, v{s}")

mark(0)
e("s_cmp_ge_u32 s2, 256"); e("s_cbranch_scc1 L_end")
e("s_load_dwordx16 s[4:19], s[0:1], 0")
e("s_load_dwordx8 s[20:27], s[0:1], 64")
e("s_load_dwordx2 s[28:29], s[0:1], 96")
e("v_lshrrev_b32 v1, 6, v0"); e("v_and_b32 v2, 63, v0")
e("v_readfirstlane_b32 s3, v1")
if "nocode" not in X:
    e("s_getpc_b64 s[76:77]")
    lab("L_pc")
    e("s_and_b32 s30, s2, 0xf8"); e("s_add_u32 s30, s30, s3"); e("s_lshl_b32 s30, s30, 7"); e("s_min_u32 s30, s30, L_end - L_pc")
    e("v_mov_b32 v250, s30")
    e("s_mov_b64 exec, 1")
    e("global_load_dword v250, v250, s[76:77]")
    e("s_mov_b64 exec, -1")
e("v_and_b32 v3, 255, v0")
e("v_and_b32 v10, 15, v3"); e("v_lshrrev_b32 v11, 4, v3")
e("s_bfe_u32 s30, s2, 0x30003"); e("s_lshr_b32 s31, s2, 6"); e("s_lshl_b32 s31, s31, 3"); e("s_and_b32 s76, s2, 7"); e("s_add_u32 s31, s31, s76")
e("s_lshl_b32 s76, s31, 16"); e("s_lshl_b32 s77, s30, 7"); e("s_add_u32 s76, s76, s77")
e("v_lshlrev_b32 v12, 12, v11"); e("v_lshl_add_u32 v12, v10, 3, v12"); e("v_add_u32 v12, s76, v12")
e("v_subrev_u32 v14, 3072, v12")
e("s_lshl_b32 s77, s30, 9"); e("v_lshlrev_b32 v15, 5, v10"); e("v_add_u32 v15, s77, v15")
e("s_lshl_b32 s77, s30, 5"); e("s_add_u32 s77, s77, s31"); e("s_lshl_b32 s77, s77, 7"); e("v_mov_b32 v253, s77")
e(f"v_mov_b32 v255, {EPO_OFF:#x}")
e("s_cmp_ge_u32 s3, 4")
e("s_waitcnt lgkmcnt(0)")
srd(36, 6, 0x200000); srd(48, 10, 4096); srd(44, 8, 0x200000); srd(32, 4, 0x200000)
e("s_cbranch_scc1 L_skipkv")
for r in range(3): e(f"buffer_load_dwordx2 {vr(16+2*r,2)}, v14, {SK}, 0 offen offset:{1024*r}{NT}")
for r in range(4): e(f"buffer_load_dwordx2 {vr(22+2*r,2)}, v12, {SK}, 0 offen offset:{1024*r}{NT}")
e(f"buffer_load_dwordx4 {vr(48,4)}, v15, {SSH}, 0 offen")
e(f"buffer_load_dwordx4 {vr(52,4)}, v15, {SSH}, 0 offen offset:16")
for r in range(4): e(f"buffer_load_dwordx2 {vr(30+2*r,2)}, v12, {SV}, 0 offen offset:{1024*r}{NT}")
e("s_branch L_kvdone")
lab("L_skipkv")
for r in range(4): e(f"buffer_load_dwordx2 {vr(38+2*r,2)}, v12, {SQ}, 0 offen offset:{1024*r}{' nt' if 'qnt' in X else ''}")
lab("L_kvdone")
srd(40, 28, WS_END)
e(f"buffer_load_dword v254, v255, {SWS}, 0 offen sc1")
srd(52, 12, 0x200000); srd(56, 14, 1024); srd(60, 18, 512*2752); srd(64, 20, 512*2752); srd(68, 22, 1376*1024); srd(72, 24, 0x200000)
e("s_and_b32 s4, s2, 7"); e("s_lshr_b32 s5, s2, 3")
e("s_and_b32 s10, s4, 1"); e("s_lshr_b32 s17, s4, 1")
e("s_mul_i32 s7, s17, 3"); e("s_lshr_b32 s16, s5, 3"); e("s_add_u32 s7, s7, s16"); e("s_and_b32 s8, s5, 7")
e("s_lshr_b32 s15, s17, 1"); e("s_add_u32 s15, s15, 12"); e("s_and_b32 s16, s17, 1"); e("s_lshl_b32 s16, s16, 2"); e("s_and_b32 s6, s5, 3"); e("s_add_u32 s16, s16, s6")
e("s_cmp_ge_u32 s5, 24"); e("s_cselect_b32 s7, s15, s7"); e("s_cselect_b32 s8, s16, s8")
e("s_lshr_b32 s15, s5, 1"); e("s_lshl_b32 s16, s17, 1"); e("s_and_b32 s6, s5, 1"); e("s_add_u32 s16, s16, s6")
e("s_cmp_ge_u32 s5, 28"); e("s_cselect_b32 s7, s15, s7"); e("s_cselect_b32 s8, s16, s8")
e("s_lshl_b32 s6, s10, 3"); e("s_add_u32 s6, s6, s8")
e("s_and_b32 s11, s3, 3")
e("s_lshl_b32 s12, s4, 6"); e("s_lshl_b32 s13, s5, 1"); e("s_add_u32 s12, s12, s13")
e("s_lshl_b32 s13, s4, 1"); e("s_lshr_b32 s16, s5, 4"); e("s_add_u32 s13, s13, s16")
e("s_lshr_b32 s17, s3, 2"); e("s_lshl_b32 s17, s17, 13"); e(f"s_add_u32 s17, s17, {T_KV}")
e("v_lshrrev_b32 v13, 1, v11"); e("v_and_b32 v14, 7, v10"); e("v_xor_b32 v13, v13, v14"); e("v_lshlrev_b32 v13, 4, v13")
e("v_lshl_add_u32 v13, v10, 9, v13"); e("v_and_b32 v14, 1, v11"); e("v_lshl_add_u32 v13, v14, 3, v13"); e("v_add_u32 v13, s17, v13")
e("v_lshrrev_b32 v128, 3, v2"); e("s_lshl_b32 s15, s11, 4"); e("v_add_u32 v128, s15, v128")
e("v_and_b32 v129, 7, v2")
e("v_lshrrev_b32 v130, 2, v128"); e("v_and_b32 v130, 7, v130"); e("v_xor_b32 v124, v129, v130"); e("v_xor_b32 v125, 2, v124")
e("v_lshlrev_b32 v130, 7, v128"); e("v_lshl_add_u32 v124, v124, 4, v130"); e("v_lshl_add_u32 v125, v125, 4, v130")
e("v_add_u32 v124, s17, v124"); e("v_add_u32 v125, s17, v125")
e(f"v_mul_u32_u24 v126, {RS}, v128"); e("v_lshl_add_u32 v126, v129, 4, v126")
e(f"s_mul_i32 s18, s30, {64*RS}"); e("s_lshl_b32 s16, s31, 7"); e("s_add_u32 s18, s18, s16")
e("s_lshr_b32 s16, s3, 2"); e(f"s_mul_i32 s16, s16, {QT_OFF-KVT_OFF:#x}"); e("s_add_u32 s18, s18, s16")
e(f"s_add_u32 s19, s18, {8*RS}")
e("s_mov_b32 s14, 0xffff0000")
e("s_lshr_b32 s20, s11, 1"); e("s_and_b32 s21, s11, 1")
e("s_and_b32 s28, s5, 7")
e("s_lshr_b32 s16, s5, 3"); e("s_mul_i32 s29, s16, 3")
if "rot4" in X:
    e("s_add_u32 s29, s29, s28"); e("s_cmp_ge_u32 s29, 11"); e("s_cselect_b32 s16, 11, 0"); e("s_sub_u32 s29, s29, s16")
e("s_cmp_ge_u32 s3, 4"); e("s_cbranch_scc1 L_H")
def rot11(i):
    e(f"s_add_u32 s15, s29, {i}"); e("s_cmp_ge_u32 s15, 11"); e("s_cselect_b32 s16, 11, 0"); e("s_sub_u32 s15, s15, s16")

e("v_lshlrev_b32 v6, 4, v3"); e("v_sub_u32 v7, 4080, v6"); e("v_subrev_u32 v8, 8, v7"); e("v_max_i32 v8, 0, v8")
e("s_add_u32 s22, s12, s20")
e("s_lshl_b32 s15, s22, 1"); e("v_mov_b32 v9, s15"); e("v_mov_b32 v240, 0")
e("s_lshl_b32 s15, s12, 12"); e("s_add_u32 s16, s15, 4096")
e("s_waitcnt vmcnt(5)")
mark(1)
def ssm_loads():
    e("s_lshl_b32 s15, s12, 12"); e("s_add_u32 s16, s15, 4096")
    e(f"buffer_load_dwordx4 v[228:231], v7, {SSK}, s15 offen{NT}")
    e(f"buffer_load_dwordx2 v[226:227], v8, {SSK}, s15 offen{NT}")
    e(f"buffer_load_dwordx4 v[236:239], v7, {SSK}, s16 offen{NT}")
    e(f"buffer_load_dwordx2 v[234:235], v8, {SSK}, s16 offen{NT}")
    e(f"buffer_load_short_d16_hi v240, v9, {SD}, 0 offen")
LATE = "ssmearly" not in X
if not LATE: ssm_loads()
for r in range(7):
    for c in range(4): unpack(64+4*r+c, 16+2*r, c)
for c in range(4):
    for j in range(4): unpack(92+4*c+j, 48+2*c, j)
for r in range(4):
    for c in range(4): e(f"v_mul_f32 v{108+4*r+c}, v{64+4*r+c}, v{92+4*c+3}")
for j in (2, 1, 0):
    for r in range(4):
        for c in range(4): e(f"v_fmac_f32 v{108+4*r+c}, v{64+4*(r+3-j)+c}, v{92+4*c+j}")
e(f"s_waitcnt vmcnt({1 if LATE else 6})")
for r in range(4):
    for c in range(4): unpack(64+4*r+c, 30+2*r, c)
for r in range(4):
    for c in range(4): e(f"v_mul_f32 v{108+4*r+c}, v{108+4*r+c}, v{64+4*r+c}")
for c in range(4):
    e(f"v_cvt_pk_bf16_f32 v{80+2*c}, v{108+c}, v{112+c}")
    e(f"v_cvt_pk_bf16_f32 v{81+2*c}, v{116+c}, v{120+c}")
    e(f"ds_write_b64 v13, {vr(80+2*c,2)} offset:{128*c}")
mark(7, "p1")
e("s_waitcnt lgkmcnt(0)"); e("s_barrier")
mark(8, "p1")
e("ds_read_b128 v[28:31], v124"); e("ds_read_b128 v[32:35], v125 offset:1024")
e("s_waitcnt lgkmcnt(1)")
e(f"buffer_store_dwordx4 v[28:31], v126, {SWS}, s18 offen sc1")
e("s_waitcnt lgkmcnt(0)")
e(f"buffer_store_dwordx4 v[32:35], v126, {SWS}, s19 offen sc1")
def toeplitz_regs(waitn):
    e("s_mov_b32 s15, 0xffff")
    e("v_cmp_ne_u32 vcc, 255, v3")
    e(f"v_add_u32 v16, {RB}, v6")
    e(f"s_waitcnt vmcnt({waitn})")
    mark(9, "p1")
    e("v_add_u32 v254, 1, v254")
    for ch in range(2):
        b = 226 + 8*ch
        e(f"v_cndmask_b32 v{b}, 0, v{b}, vcc"); e(f"v_cndmask_b32 v{b+1}, 0, v{b+1}, vcc")
        w = lambda i: f"v{b+2+i}"
        o = 40 + 16*ch
        for n, i in enumerate((2, 1, 0, -1)): e(f"v_bfi_b32 v{o+n}, s15, {w(i)}, {w(i-1)}")
        for n, i in enumerate((2, 1, 0, -1)): e(f"v_alignbit_b32 v{o+4+n}, {w(i)}, {w(i)}, 16")
        for n, i in enumerate((3, 2, 1, 0)): e(f"v_bfi_b32 v{o+8+n}, s15, {w(i)}, {w(i-1)}")
        for n, i in enumerate((3, 2, 1, 0)): e(f"v_alignbit_b32 v{o+12+n}, {w(i)}, {w(i)}, 16")
    e("v_readfirstlane_b32 s9, v254")
if not LATE: toeplitz_regs(2)
for r in range(4): e(f"v_mov_b32 v{72+r}, 0")
e("v_lshrrev_b32 v17, 5, v3"); e(f"v_mul_u32_u24 v17, {CH_L}, v17"); e("v_and_b32 v18, 31, v3"); e("v_lshl_add_u32 v17, v18, 4, v17")
e(f"v_add_u32 v17, {RB+HREG}, v17")
e("v_bfe_u32 v18, v3, 4, 1"); e(f"v_mul_u32_u24 v18, {CH_L}, v18"); e("v_bfe_u32 v19, v3, 2, 2"); e(f"v_mul_u32_u24 v19, {CP}, v19")
e("v_add_u32 v18, v18, v19"); e("v_and_b32 v19, 3, v3"); e("v_lshl_add_u32 v18, v19, 4, v18"); e(f"v_add_u32 v18, {RB+4096}, v18")
e("s_lshl_b32 s16, s4, 5"); e("s_lshl_b32 s17, s21, 4"); e("s_add_u32 s16, s16, s17")
e("v_and_b32 v20, 15, v2"); e("v_add_u32 v20, s16, v20"); e("v_lshlrev_b32 v20, 7, v20"); e(f"v_add_u32 v20, {FL1_OFF:#x}, v20")
e(f"s_mul_i32 s24, s22, {RS}"); e("s_lshl_b32 s25, s21, 11"); e("s_add_u32 s24, s24, s25")
e(f"s_mul_i32 s23, s20, {CH_L}"); e(f"s_add_u32 s23, s23, {RB}")
e(f"s_add_u32 s26, s23, {HREG+512}"); e("s_add_u32 s26, s26, s25")
e("v_lshlrev_b32 v5, 4, v2")
if LATE: ssm_loads()
e(f"s_waitcnt vmcnt({5 if LATE else 0})")
mark(10, "p1")
e("s_barrier")
mark(2)
if LATE: toeplitz_regs(0)
for ch in range(2):
    for kap in range(4): e(f"ds_write_b128 v16, {vr(40+16*ch+4*kap,4)} offset:{ch*CH_L + kap*CP}")
e("s_cmp_lg_u32 s11, 0"); e("s_cbranch_scc1 L_nopad")
e("ds_write_b128 v17, v[72:75]")
e("s_mov_b32 exec_hi, 0")
e("ds_write_b128 v18, v[72:75]")
lab("L_nopad")
e("s_mov_b64 exec, -1")
e("s_barrier")
e("s_mov_b32 m0, s26")
e("s_nop 0")
e(f"buffer_load_dwordx4 v5, {SWS}, s24 offen sc1 lds")
e(f"buffer_load_dwordx4 v5, {SWS}, s24 offen offset:1024 sc1 lds")
e("s_lshl_b32 s15, s11, 11"); e(f"s_add_u32 m0, s15, {Q_L}"); e(f"s_add_u32 s24, s24, {QT_OFF-KVT_OFF:#x}")
e(f"buffer_load_dwordx4 v5, {SWS}, s24 offen sc1 lds")
e(f"buffer_load_dwordx4 v5, {SWS}, s24 offen offset:1024 sc1 lds")
mark(3)
e("v_and_b32 v6, 15, v2"); e("v_lshrrev_b32 v7, 4, v2")
e("v_lshlrev_b32 v8, 4, v6"); e("v_lshl_add_u32 v8, v7, 2, v8")
e("v_and_b32 v32, 3, v6"); e(f"v_mul_u32_u24 v32, {CP}, v32")
e("v_lshrrev_b32 v33, 2, v6"); e("v_lshlrev_b32 v33, 3, v33"); e("v_lshl_add_u32 v33, v7, 4, v33")
e("v_sub_u32 v32, v32, v33")
e("s_lshl_b32 s15, s21, 8"); e("s_sub_u32 s16, s23, s15")
e(f"s_add_u32 s17, s16, {2*2052 - 512*7 - 64*3}"); e("v_add_u32 v32, s17, v32")
e("v_lshlrev_b32 v33, 5, v6"); e("v_lshlrev_b32 v34, 4, v7"); e("v_sub_u32 v33, v33, v34")
e(f"s_add_u32 s17, s16, {HREG + 512 + 16 - 64*3}"); e("v_add_u32 v33, s17, v33")
e("v_lshlrev_b32 v9, 1, v8")
e("s_lshl_b32 s15, s11, 12"); e(f"s_add_u32 s15, s15, {EX_L}"); e("s_xor_b32 s16, s11, 1"); e("s_lshl_b32 s16, s16, 12"); e(f"s_add_u32 s16, s16, {EX_L}")
e("v_add_u32 v34, s15, v5"); e("v_add_u32 v35, s16, v5")
e("v_add_u32 v12, s26, v9")
e("s_lshl_b32 s17, s11, 11"); e(f"s_add_u32 s17, s17, {Q_L}"); e("v_add_u32 v10, s17, v9")
e("s_lshl_b32 s17, s21, 13"); e(f"s_add_u32 s17, s17, {ST_L}"); e("v_add_u32 v13, s17, v5")
e("v_and_b32 v14, 7, v6"); e("v_lshlrev_b32 v14, 1, v14"); e("v_lshrrev_b32 v15, 1, v7"); e("v_add_u32 v14, v14, v15")
e("s_and_b32 s15, s22, 3"); e("s_lshl_b32 s15, s15, 2"); e("v_xor_b32 v14, s15, v14")
e("v_lshlrev_b32 v14, 4, v14")
e("v_lshrrev_b32 v15, 3, v6"); e("v_lshl_add_u32 v14, v15, 17, v14")
e("v_and_b32 v15, 1, v7"); e("v_lshl_add_u32 v14, v15, 18, v14")
e("s_lshl_b32 s18, s22, 8"); e("s_lshl_b32 s17, s21, 20"); e("s_add_u32 s18, s18, s17"); e(f"s_add_u32 s18, s18, {HT_OFF:#x}")
e(f"s_add_u32 s19, s18, {4*131072}")
e("s_lshl_b32 s15, s11, 2"); e(f"s_add_u32 s15, s15, {FLG_L}"); e("v_mov_b32 v16, s15"); e("s_xor_b32 s15, s15, 4"); e("v_mov_b32 v17, s15")
e(f"v_mov_b32 v18, {FLG_L+16}"); e("v_mov_b32 v19, 1")
e("v_subrev_u32 v20, 8, v2"); e("v_and_b32 v21, 7, v2")
e("v_lshrrev_b32 v22, 16, v240"); e("v_and_b32 v23, 1, v21"); e("v_lshlrev_b32 v23, 4, v23"); e("v_lshlrev_b32 v22, v23, v22")
e("v_cmp_gt_u32 vcc, 16, v20"); e("v_lshrrev_b32 v21, 1, v21"); e("s_nop 0"); e("v_cndmask_b32 v22, 0, v22, vcc")
for dw in range(4):
    e(f"v_cmp_eq_u32 vcc, {dw}, v21"); e("s_nop 1"); e(f"v_cndmask_b32 v{232+dw}, 0, v22, vcc")
e("s_waitcnt vmcnt(2) lgkmcnt(0)"); e("s_barrier")
mark(4)
ACC = 36; FA = [72, 136]; FB = [104, 168]
lg = Trk("lgkmcnt", 15)
def creads(rr, buf):
    lst = []
    for i in range(8):
        off = 512*(7-i) + 64*(3-rr)
        lst.append((f"ds_read_b128 {vr(FB[buf]+4*i,4)}, v33 offset:{512*i + 64*(3-rr)}", ("B", rr, i)))
        lst.append((f"ds_read_b64 {vr(FA[buf]+4*i,2)}, v32 offset:{off}", ("A", rr, i)))
        lst.append((f"ds_read_b64 {vr(FA[buf]+4*i+2,2)}, v32 offset:{off+8}", ("A", rr, i)))
    return lst
first = creads(0, 0)
for s, t in first[:12]: e(s); lg.add(t)
pend = first[12:]
pairs = sorted([(i, j) for i in range(8) for j in range(8 - i)], key=lambda p: (max(p), p[0] + p[1]))
started = set()
def mf(rr, i, j):
    global pend
    buf = rr & 1; t = i + j
    while any(x[1] in (("A", rr, i), ("B", rr, j)) for x in pend):
        s_, tg = pend.pop(0); e(s_); lg.add(tg)
    lg.wait(("A", rr, i), ("B", rr, j))
    c = vr(ACC+4*t, 4) if t in started else "0"
    started.add(t)
    e(f"v_mfma_f32_16x16x32_bf16 {vr(ACC+4*t,4)}, {vr(FA[buf]+4*i,4)}, {vr(FB[buf]+4*j,4)}, {c}")
for rr in range(3):
    pend = pend + creads(rr+1, (rr & 1) ^ 1)
    npend = len(pend)
    for n, (i, j) in enumerate(pairs):
        mf(rr, i, j)
        want = npend - (npend * (n + 1)) // 32
        while len(pend) > max(want, 0):
            s_, tg = pend.pop(0); e(s_); lg.add(tg)
        if rr == 2 and n == 33:
            e("ds_read_b128 v[20:23], v18"); lg.add("aux")
    if rr == 0:
        e("s_cmp_lg_u32 s21, 0"); e("s_cbranch_scc1 L_nodiag")
        for t in range(8): e(f"v_mfma_f32_16x16x32_bf16 {vr(ACC+4*t,4)}, v[232:235], {vr(FB[0]+4*t,4)}, {vr(ACC+4*t,4)}")
        lab("L_nodiag")
assert not pend
lab("L_aux")
e("s_waitcnt vmcnt(0) lgkmcnt(0)"); lg.clear()
e("v_and_b32 v20, v20, v21"); e("v_and_b32 v22, v22, v23"); e("v_and_b32 v20, v20, v22")
e("v_cmp_ne_u32 vcc, 1, v20")
e("s_cbranch_vccz L_auxok")
e("ds_read_b128 v[20:23], v18")
e("s_branch L_aux")
lab("L_auxok")
mark(7, "p2")
for u in range(4):
    e(f"ds_read_b64 {vr(80+2*u,2)}, v10 offset:{512*u}")
    e(f"ds_read_b128 {vr(88+8*u,4)}, v13 offset:{2048*u}"); e(f"ds_read_b128 {vr(92+8*u,4)}, v13 offset:{2048*u+1024}")
e("s_cmp_eq_u32 s21, 0"); e("s_cbranch_scc1 L_conv_h0")
QN = 200; T0 = 216
for hf in (1, 0):
    if hf == 0: lab("L_conv_h0")
    keep = 4*hf; send = 4*(1-hf)
    order = [p for p in pairs if send <= p[0]+p[1] < send+4] + [p for p in pairs if keep <= p[0]+p[1] < keep+4]
    nsend = len([p for p in pairs if send <= p[0]+p[1] < send+4])
    valu = []
    for u in range(4):
        valu.append(f"s_waitcnt lgkmcnt({9-3*u})" if u < 3 else "WAITALL")
        for r in range(4):
            qs = 80 + 2*u + (r >> 1); tq = T0+4*u+r
            valu.append(f"v_and_b32 v{tq}, s14, v{qs}" if r & 1 else f"v_lshlrev_b32 v{tq}, 16, v{qs}")
        for r in range(4):
            valu.append(f"v_fma_f32 v{QN+4*u+r}, v{T0+4*u+r}, v{88+8*u+2*r}, v{89+8*u+2*r}")
    sent = False; wrote = 0
    def emitv(x):
        if x == "WAITALL" or (x.startswith("s_waitcnt") and wrote): e(f"s_waitcnt lgkmcnt({wrote})" if x == "WAITALL" or True else x)
        else: e(x)
    for n, (i, j) in enumerate(order):
        t = i + j
        e(f"v_mfma_f32_16x16x32_bf16 {vr(ACC+4*t,4)}, {vr(FA[1]+4*i,4)}, {vr(FB[1]+4*j,4)}, {vr(ACC+4*t,4)}")
        if n >= 3:
            k = 0
            while valu and k < 1:
                x = valu.pop(0); emitv(x)
                if not x.startswith("s_waitcnt") and x != "WAITALL": k += 1
        if n == nsend + 4:
            for u in range(4): e(f"ds_write_b128 v34, {vr(ACC+4*send+4*u,4)} offset:{1024*u}")
            e("ds_write_b32 v16, v19"); wrote = 5
    while valu: emitv(valu.pop(0))
    if hf == 1: mark(5)
    else: mark(5)
    n_ = nid()
    lab(f"L_pw{n_}")
    e("ds_read_b32 v20, v17")
    e("s_waitcnt lgkmcnt(0)")
    e("v_cmp_ne_u32 vcc, 1, v20")
    e(f"s_cbranch_vccnz L_pw{n_}")
    mark(8, "p2")
    for u in range(4): e(f"ds_read_b128 {vr(72+4*u,4)}, v35 offset:{1024*u}")
    for u in range(4):
        y = ACC + 4*keep + 4*u
        e(f"s_waitcnt lgkmcnt({3-u})")
        for p in range(2): e(f"v_pk_add_f32 {vr(y+2*p,2)}, {vr(y+2*p,2)}, {vr(72+4*u+2*p,2)}")
        for p in range(2): e(f"v_pk_fma_f32 {vr(y+2*p,2)}, {vr(QN+4*u+2*p,2)}, {vr(y+2*p,2)}, {vr(T0+4*u+2*p,2)}")
        e(f"v_cvt_pk_bf16_f32 v{124+2*u}, v{y}, v{y+1}")
        e(f"v_cvt_pk_bf16_f32 v{125+2*u}, v{y+2}, v{y+3}")
        if u & 1:
            b = 124 + 2*(u-1)
            e("s_nop 1")
            e(f"v_permlane16_swap_b32 v{b}, v{b+2}"); e(f"v_permlane16_swap_b32 v{b+1}, v{b+3}")
            e(f"buffer_store_dwordx4 {vr(b,4)}, v14, {SWS}, s{18+(u>>1)} offen sc1")
    if hf == 1: e("s_branch L_conv_j")
lab("L_conv_j")
mark(9, "p2")
e("v_and_b32 v3, 15, v2"); e("v_lshrrev_b32 v4, 4, v2"); e("v_lshrrev_b32 v5, 2, v3"); e("v_and_b32 v6, 3, v3")
e("v_lshrrev_b32 v7, 5, v2"); e("v_and_b32 v8, 1, v4"); e("v_lshl_add_u32 v9, v7, 3, v5")
e("v_lshlrev_b32 v10, 8, v9"); e("v_lshl_add_u32 v10, v8, 5, v10"); e("v_lshl_add_u32 v10, v6, 3, v10"); e(f"v_add_u32 v10, {A_L}, v10")
e("v_mul_u32_u24 v12, 192, v9"); e(f"v_mul_u32_u24 v13, {W_U}, v8"); e("v_add_u32 v12, v12, v13"); e("v_lshl_add_u32 v12, v6, 3, v12")
e("s_min_u32 s26, s11, 2"); e("s_lshl_b32 s16, s26, 6"); e(f"s_mul_i32 s17, s10, {32*192}"); e("s_add_u32 s16, s16, s17"); e("v_add_u32 v28, s16, v12")
e("s_mul_i32 s15, s21, 96"); e("v_add_u32 v12, s15, v12")
e("s_lshl_b32 s15, s20, 1"); e("v_xor_b32 v13, s15, v5"); e("v_lshl_add_u32 v13, v13, 6, v10")
e("s_add_u32 s15, s15, 1"); e("v_xor_b32 v18, s15, v5"); e("v_lshl_add_u32 v18, v18, 6, v10")
e("v_mov_b32 v15, v12"); e("v_mov_b32 v16, v13"); e("v_mov_b32 v17, v18")
e("s_waitcnt vmcnt(0)")
mark(10, "p2")
e("s_barrier")
mark(6)
ACC = 64
FR = [20, 40]
def g1reads(ks, buf):
    l = []; b = FR[buf]
    for hh in range(2): l.append(f"ds_read_b64_tr_b16 {vr(b+2*hh,2)}, v15 offset:{(16*ks+4*hh)*192}")
    for hh in range(2): l.append(f"ds_read_b64_tr_b16 {vr(b+12+2*hh,2)}, v16 offset:{4096*ks+1024*hh}")
    for hh in range(2): l.append(f"ds_read_b64_tr_b16 {vr(b+16+2*hh,2)}, v17 offset:{4096*ks+1024*hh}")
    for mb in (1, 2):
        for hh in range(2): l.append(f"ds_read_b64_tr_b16 {vr(b+4*mb+2*hh,2)}, v15 offset:{(16*ks+4*hh)*192+32*mb}")
    return l
e("v_and_b32 v9, 31, v2")
for r in range(20): e(f"v_mov_b32 v{200+r}, 0")
e("s_lshr_b32 s27, s5, 3"); e("s_and_b32 s27, s27, 1"); e("s_lshl_b32 s27, s27, 6"); e("s_lshl_b32 s15, s20, 5"); e("s_add_u32 s27, s27, s15")
e("v_add_u32 v61, s27, v9")
e("v_lshlrev_b32 v62, 2, v61")
e("v_lshrrev_b32 v24, 3, v61"); e("v_and_b32 v25, 7, v61"); e("v_lshlrev_b32 v25, 1, v25"); e("v_lshl_add_u32 v25, v7, 10, v25")
for j in range(4):
    e(f"v_xor_b32 v26, {j<<2}, v24"); e(f"v_lshl_add_u32 v{241+j}, v26, 4, v25")
e("s_lshl_b32 s15, s13, 7"); e("v_add_u32 v245, s15, v61"); e("v_lshlrev_b32 v245, 10, v245"); e("v_lshl_add_u32 v245, v7, 4, v245")
e("v_lshl_add_u32 v24, v7, 2, v5"); e("v_lshlrev_b32 v24, 7, v24"); e("v_lshl_add_u32 v24, v8, 5, v24"); e("v_lshl_add_u32 v24, v6, 3, v24")
e("s_lshl_b32 s15, s21, 13"); e("v_add_u32 v24, s15, v24")
e("v_lshrrev_b32 v25, 3, v3"); e("v_xor_b32 v25, s21, v25"); e("v_lshl_add_u32 v246, v25, 6, v24"); e("v_xor_b32 v25, 1, v25"); e("v_lshl_add_u32 v247, v25, 6, v24")
e("s_lshl_b32 s16, s13, 4")
e("v_add_u32 v248, s16, v2"); e("v_lshlrev_b32 v248, 7, v248"); e(f"v_add_u32 v248, {FL3_OFF:#x}, v248")
e("v_lshlrev_b32 v11, 4, v2")
e("s_lshl_b32 s17, s6, 2"); e("s_lshl_b32 s18, s20, 1"); e("s_add_u32 s17, s17, s18"); e(f"s_mul_i32 s17, s17, {HH_KS}")
e("s_mul_i32 s18, s7, 6"); e("s_mul_i32 s19, s21, 3"); e("s_add_u32 s19, s19, s18")
e("s_add_u32 s17, s17, s19")
e("s_lshl_b32 s17, s17, 10"); e(f"s_add_u32 s17, s17, {HH_OFF:#x}"); e(f"s_add_u32 s18, s17, {HH_KS*1024}")
e("s_cmp_eq_u32 s7, 15"); e("s_cbranch_scc0 L_c_p3")
def sp_loads():
    e("s_mul_i32 s16, s6, 24576"); e(f"s_add_u32 s16, s16, {CSP_OFF:#x}")
    for m in range(16):
        if m and m % 2 == 0: e("s_add_u32 s16, s16, 3072")
        e(f"buffer_load_dwordx2 {vr(64+2*m,2)}, v28, {SWS}, s16 offen offset:{1536*(m%2)} sc1")
e("s_lshl_b32 s15, s11, 6"); e("v_add_u32 v20, s15, v2"); e("v_lshlrev_b32 v28, 3, v20")
e("s_lshl_b32 s15, s6, 4"); e("s_add_u32 s15, s15, s7"); e("s_lshl_b32 s15, s15, 7"); e("v_mov_b32 v253, s15")
e("s_barrier")
e("s_barrier")
sp_loads()
e("s_barrier")
e("s_cmp_eq_u32 s6, 15"); e("s_cbranch_scc1 L_c_sp2"); e("s_cmp_eq_u32 s11, 3"); e("s_cbranch_scc1 L_c_sp2")
e("s_mov_b32 s30, 0x100000")
mark(1, "it2")
lab("L_c_sp1")
e("s_waitcnt vmcnt(0)")
e("v_xor_b32 v50, s9, v65")
for m in range(1, 16):
    e(f"v_xor_b32 v51, s9, v{65+2*m}"); e("v_or_b32 v50, v50, v51")
e("v_cmp_ne_u32 vcc, 0, v50")
e("s_cbranch_vccz L_c_sp1x")
e("s_sub_u32 s30, s30, 1"); e("s_cbranch_scc1 L_c_sp1x")
sp_loads()
e("s_branch L_c_sp1")
lab("L_c_sp1x")
for m in range(1, 16): e(f"v_add_f32 v64, v64, v{64+2*m}")
e("v_mov_b32 v54, 0")
e("v_cvt_pk_bf16_f32 v53, v64, v54")
e("v_lshlrev_b32 v51, 16, v53"); e("v_sub_f32 v51, v64, v51")
e("v_cvt_pk_bf16_f32 v52, v64, v51")
e("v_mov_b32 v55, v254")
e("v_lshlrev_b32 v28, 4, v20"); e("s_mul_i32 s16, s6, 3072"); e(f"s_add_u32 s16, s16, {CSF_OFF:#x}")
e(f"buffer_store_dwordx4 v[52:55], v28, {SWS}, s16 offen sc1")
mark(2, "it2")
lab("L_c_sp2")
e("s_barrier")
e("s_branch L_c_p4")
lab("L_c_p3")
for blk in range(2):
    for ks in range(2):
        for hh in range(2): e(f"ds_read_b64_tr_b16 {vr(32+8*blk+4*ks+2*hh,2)}, v28 offset:{(16*ks+4*hh)*192+32*blk}")
e("v_mov_b32 v30, 0"); e("v_mov_b32 v31, 0"); e("s_mov_b32 s27, 0x3f803f80")
e("s_lshl_b32 s15, s6, 4"); e("s_add_u32 s15, s15, s7"); e("s_lshl_b32 s15, s15, 7"); e("v_mov_b32 v253, s15"); e("s_lshl_b32 s16, s7, 4"); e("s_add_u32 s16, s16, s6"); e("s_mul_i32 s16, s16, 1536"); e("s_lshl_b32 s15, s26, 9"); e("s_add_u32 s16, s16, s15"); e(f"s_add_u32 s16, s16, {CSP_OFF:#x}")
e("v_lshlrev_b32 v29, 3, v2")
e("s_waitcnt lgkmcnt(0)")
for r in range(8):
    e(f"v_dot2_f32_bf16 v30, v{32+r}, s27, v30"); e(f"v_dot2_f32_bf16 v31, v{40+r}, s27, v31")
e("s_nop 3")
e("v_permlane32_swap_b32 v30, v31")
e("s_nop 1")
e("v_add_f32 v30, v30, v31")
e("v_mov_b32 v250, v30"); e("v_mov_b32 v251, v254"); e("v_mov_b32 v249, v29")
e("s_cmp_eq_u32 s11, 3"); e("s_cselect_b32 s16, 0x7f000000, s16")
e(f"buffer_store_dwordx2 v[250:251], v249, {SWS}, s16 offen sc1")
for r in range(96): e(f"v_mov_b32 v{ACC+r}, 0")
e("s_mul_i32 s22, s7, 3072"); e("s_mul_i32 s15, s21, 1536"); e("s_add_u32 s22, s22, s15"); e(f"s_add_u32 s22, s22, {CSF_OFF:#x}")
e("s_lshl_b32 s23, s6, 11"); e("s_lshl_b32 s15, s20, 10"); e("s_add_u32 s23, s23, s15"); e(f"s_add_u32 s23, s23, {ST2_OFF:#x}")
e("s_mul_i32 s15, s21, 1536"); e(f"s_add_u32 s15, s15, {CORR_L}"); e("v_add_u32 v19, s15, v11")
e("s_lshl_b32 s15, s20, 10"); e(f"s_add_u32 s15, s15, {CORR_L+3072}"); e("v_add_u32 v14, s15, v11")
e("s_mov_b32 s24, 0"); e("s_mov_b32 s25, 0"); e("s_mov_b32 s26, 0")
e("s_barrier")
e("s_barrier")
mark(7)
e("s_lshl_b32 s15, s7, 1"); e("s_add_u32 s15, s15, s21"); e("s_cmp_lg_u32 s15, 29"); e("s_cbranch_scc1 L_c_full")
for nb in range(2): e(f"buffer_store_dwordx4 v[64:67], v11, {SWS}, s{17+nb} offen sc1")
for _ in range(8): e("s_barrier")
e("s_branch L_c_p4")
lab("L_c_full")
for s in g1reads(0, 0): e(s)
def corr_loads():
    e("s_mov_b32 exec_hi, 0")
    for mb in range(3): e(f"buffer_load_dwordx4 {vr(200+4*mb,4)}, v11, {SWS}, s22 offen offset:{512*mb} sc1")
    for nb in range(2): e(f"buffer_load_dwordx4 {vr(212+4*nb,4)}, v11, {SWS}, s23 offen offset:{512*nb} sc1")
    e("s_mov_b64 exec, -1")
lab("L_g1_loop")
for ks in range(4):
    buf = ks & 1
    e("s_waitcnt lgkmcnt(0)")
    if ks == 3:
        e("s_barrier")
    nxt = g1reads((ks+1) & 3, buf ^ 1)
    sched = [3, 3, 2, 2, 0, 0]; p = 0
    for n, (mb, nb) in enumerate([(0,0),(0,1),(1,0),(1,1),(2,0),(2,1)]):
        a = ACC + 16*(2*mb+nb)
        if "mf16" in X:
            o = 8*(ks & 1)
            e(f"v_mfma_f32_16x16x32_bf16 {vr(a+o,4)}, {vr(FR[buf]+4*mb,4)}, {vr(FR[buf]+12+4*nb,4)}, {vr(a+o,4)}")
            for _ in range((sched[n]+1)//2): e(nxt[p]); p += 1
            e(f"v_mfma_f32_16x16x32_bf16 {vr(a+o+4,4)}, {vr(FR[buf]+12+4*nb,4)}, {vr(FR[buf]+4*mb,4)}, {vr(a+o+4,4)}")
            for _ in range(sched[n]//2): e(nxt[p]); p += 1
        else:
            e(f"v_mfma_f32_32x32x16_bf16 {vr(a,16)}, {vr(FR[buf]+4*mb,4)}, {vr(FR[buf]+12+4*nb,4)}, {vr(a,16)}")
            for _ in range(sched[n]): e(nxt[p]); p += 1
        if ks == 2 and n == 4:
            e(f"s_add_u32 s25, s25, {WSLOT}"); e(f"s_cmp_eq_u32 s25, {4*WSLOT}"); e("s_cselect_b32 s25, 0, s25")
            e(f"s_add_u32 s26, s26, 16384"); e(f"s_cmp_eq_u32 s26, {3*16384}"); e("s_cselect_b32 s26, 0, s26")
        if ks == 2 and n == 5:
            e("v_add_u32 v15, s25, v12"); e("v_add_u32 v16, s26, v13"); e("v_add_u32 v17, s26, v18")
e("s_add_u32 s24, s24, 1"); e("s_cmp_lt_u32 s24, 7"); e("s_cbranch_scc1 L_g1_loop")
FK = [20, 40, 160, 180]
lg.clear(); lg.add(("k0",), 10)
rd = []
def rdA(ks, mb): return [(f"ds_read_b64_tr_b16 {vr(FK[ks]+4*mb+2*hh,2)}, v15 offset:{(16*ks+4*hh)*192+32*mb}", ("A", ks, mb)) for hh in range(2)]
def rdB(ks, nb): return [(f"ds_read_b64_tr_b16 {vr(FK[ks]+12+4*nb+2*hh,2)}, v{16+nb} offset:{4096*ks+1024*hh}", ("B", ks, nb)) for hh in range(2)]
for ks in (1, 2, 3): rd += rdA(ks, 0) + rdB(ks, 0) + rdB(ks, 1)
for mb in (1, 2):
    for ks in (1, 2, 3): rd += rdA(ks, mb)
def epi(mb):
    l = []
    for nb in range(2):
        a = ACC + 16*(2*mb+nb)
        for r in range(8): l.append(f"v_max_f32 v{a+r}, 0, v{a+r}")
        for r in range(8): l.append(f"v_mul_f32 v{a+r}, v{a+r}, v{a+8+r}")
        for p in range(4): l.append(f"v_cvt_pk_bf16_f32 v{a+8+p}, v{a+2*p}, v{a+2*p+1}")
        l.append(f"buffer_store_dwordx4 {vr(a+8,4)}, v11, {SWS}, s{17+nb} offen offset:{1024*mb} sc1")
    return l
lg.wait(("k0",))
seq = [(0, mb, nb) for mb in range(3) for nb in range(2)] + [(ks, 0, nb) for ks in (1, 2, 3) for nb in range(2)] + ["bar"]
seq += [(1, 1, 0), (1, 1, 1), "chk", ("c", 0, 0), ("c", 0, 1)] + [(ks, 1, nb) for ks in (2, 3) for nb in range(2)] + [("c", 1, 0), ("c", 1, 1)]
seq += [("c", 2, 0), ("c", 2, 1)] + [(ks, 2, nb) for ks in (1, 2) for nb in range(2)] + [(3, 2, 0), (3, 2, 1)]
last = {}
for n, x in enumerate(seq):
    if isinstance(x, tuple): last[(x[1], x[2])] = n
epq = []
def epi1(mb, nb):
    a = ACC + 16*(2*mb+nb); l = []
    for r in range(8): l.append(f"v_max_f32 v{a+r}, 0, v{a+r}")
    for r in range(8): l.append(f"v_mul_f32 v{a+r}, v{a+r}, v{a+8+r}")
    for p in range(4): l.append(f"v_cvt_pk_bf16_f32 v{a+8+p}, v{a+2*p}, v{a+2*p+1}")
    l.append(f"buffer_store_dwordx4 {vr(a+8,4)}, v11, {SWS}, s{17+nb} offen offset:{1024*mb} sc1")
    return l
for n, x in enumerate(seq):
    if x == "bar":
        e("s_waitcnt lgkmcnt(0)"); lg.clear(); assert not rd
        e("s_barrier")
        e("s_mov_b32 exec_hi, 0")
        for mb in range(3): e(f"ds_read_b128 {vr(200+4*mb,4)}, v19 offset:{512*mb}")
        for nb in range(2): e(f"ds_read_b128 {vr(212+4*nb,4)}, v14 offset:{512*nb}")
        e("s_mov_b64 exec, -1")
        e("s_mov_b32 s30, 0x100000")
        continue
    if x == "chk":
        e("s_waitcnt lgkmcnt(0)")
        mark(1, "it2")
        lab("L_corr")
        e("v_xor_b32 v60, s9, v203")
        for r in (207, 211, 215, 219):
            e(f"v_xor_b32 v63, s9, v{r}"); e("v_or_b32 v60, v60, v63")
        e("v_cmp_ne_u32 vcc, 0, v60")
        e("s_cmp_eq_u32 vcc_lo, 0"); e("s_cbranch_scc1 L_corrx")
        e("s_sub_u32 s30, s30, 1"); e("s_cbranch_scc1 L_corrx")
        corr_loads()
        e("s_waitcnt vmcnt(0)")
        e("s_branch L_corr")
        lab("L_corrx")
        mark(2, "it2")
        for r in (203, 207, 211, 215, 219): e(f"v_mov_b32 v{r}, 0")
        e("s_nop 1")
        continue
    ks, mb, nb = x
    a = ACC + 16*(2*mb+nb)
    if ks == "c":
        e(f"v_mfma_f32_32x32x16_bf16 {vr(a,16)}, {vr(200+4*mb,4)}, {vr(212+4*nb,4)}, {vr(a,16)}")
    else:
        need = [("A", ks, mb), ("B", ks, nb)]
        while any(y[1] in need for y in rd):
            s_, tg = rd.pop(0); e(s_); lg.add(tg)
        lg.wait(*need)
        e(f"v_mfma_f32_32x32x16_bf16 {vr(a,16)}, {vr(FK[ks]+4*mb,4)}, {vr(FK[ks]+12+4*nb,4)}, {vr(a,16)}")
    if last[(mb, nb)] == n: epq += [(len(L) + 12, t) for t in epi1(mb, nb)]
    for _ in range(3):
        if rd: s_, tg = rd.pop(0); e(s_); lg.add(tg)
    k = 0
    while epq and k < 6:
        short = epq[0][0] - len(L)
        if short > 0:
            p_ = min(short, 6 - k)
            e(f"s_nop {p_-1}"); L.extend(["    ; pad"] * (p_ - 1)); k += p_
            continue
        e(epq.pop(0)[1]); k += 1
mark(8); mark(3, "it2")
while epq:
    short = epq[0][0] - len(L)
    if short > 0:
        e(f"s_nop {short-1}"); L.extend(["    ; pad"] * (short - 1))
    e(epq.pop(0)[1])
mark(4, "it2")
lab("L_c_p4")
RES = 224
for r in range(16): e(f"v_mov_b32 v{RES+r}, 0")
e("s_lshl_b32 s22, s13, 17"); e("s_lshl_b32 s16, s28, 14"); e("s_add_u32 s22, s22, s16"); e("s_lshl_b32 s16, s21, 13"); e("s_add_u32 s22, s22, s16")
e(f"s_add_u32 s22, s22, {HT_OFF:#x}"); e("s_add_u32 s23, s22, 4096")
e("s_lshl_b32 s25, s4, 2"); e("s_lshr_b32 s16, s5, 3"); e("s_add_u32 s25, s25, s16"); e("s_lshl_b32 s25, s25, 1"); e("s_add_u32 s25, s25, s20")
e(f"s_mul_i32 s25, s25, {HH_KS*1024}"); e("s_lshl_b32 s16, s21, 12"); e("s_add_u32 s25, s25, s16"); e(f"s_add_u32 s25, s25, {HH_OFF:#x}")
e("s_lshl_b32 s27, s28, 7"); e("s_lshl_b32 s15, s21, 6"); e("s_add_u32 s27, s27, s15")
e("s_waitcnt vmcnt(0)"); mark(5, "it2"); e("s_barrier")
mark(9); mark(6, "it2")
post_flag(FL3_OFF, 0)
for ii in range(4):
    for j in range(4):
        e(f"buffer_load_short_d16_hi v{RES+4*ii+j}, v{241+j}, {SWS}, s{22+(ii>>1)} offen offset:{2048*(ii&1)+256*j} sc1")
e("s_cmp_lg_u32 s3, 0"); e("s_cbranch_scc1 L_c_np3")
e("s_mov_b64 exec, 0xffff")
poll("v248", "v249", "s9", "ap3" in X)
lab("L_c_np3")
mark(7, "it2")
e("s_barrier")
mark(8, "it2")
vm = Trk("vmcnt", 63)
NHR = 6; HB = 64
def issueHH(i):
    rot11(i)
    e("s_lshl_b32 s15, s15, 13"); e("s_add_u32 s15, s15, s25")
    for q in range(4):
        e(f"buffer_load_dwordx4 {vr(HB+16*(i % NHR)+4*q,4)}, v11, {SWS}, s15 offen offset:{1024*q} sc1"); vm.add(("HH", i, q))
NH0 = int(os.environ.get("NH0", "3"))
for i in range(NH0): issueHH(i)
mark(10)
ACC = 160
FR = [20, 36]
e("v_add_u32 v52, 0x10000, v246"); e("v_add_u32 v53, 0x10000, v247"); e("v_add_u32 v54, 0x20000, v246"); e("v_add_u32 v55, 0x20000, v247")
def g2reads(G):
    i = G >> 1; slot = i % 10; l = []
    base = [("v246", "v247"), ("v52", "v53"), ("v54", "v55")][slot >> 2]
    for q in range(2):
        ks = 2*(G & 1) + q
        for db in range(2):
            b = FR[G & 1] + 8*q + 4*db
            off = (slot & 3)*16384 + ks*2048
            l.append((f"ds_read_b64_tr_b16 {vr(b,2)}, {base[db]} offset:{off}", ("W", G, q, db)))
            l.append((f"ds_read_b64_tr_b16 {vr(b+2,2)}, {base[db]} offset:{off+1024}", ("W", G, q, db)))
    return l
lg.clear(); nxh = [NH0]
for s, t in g2reads(0): e(s); lg.add(t)
for G in range(22):
    i = G >> 1
    if G == 2: mark(9, "it2")
    if G == 12: mark(10, "it2")
    if G == 6: e("s_barrier")
    if G == 19: e("s_barrier")
    nxt = g2reads(G+1) if G < 21 else []
    p = 0
    for q in range(2):
        ks = 2*(G & 1) + q
        vm.wait(("HH", i, ks))
        for db in range(2):
            lg.wait(("W", G, q, db))
            b = FR[G & 1] + 8*q + 4*db
            c = vr(ACC+16*db, 16) if (G or q) else "0"
            e(f"v_mfma_f32_32x32x16_bf16 {vr(ACC+16*db,16)}, {vr(b,4)}, {vr(HB+16*(i % NHR)+4*ks,4)}, {c}")
            for _ in range(2):
                if p < len(nxt): e(nxt[p][0]); lg.add(nxt[p][1]); p += 1
    hi_ = min(10, i + 5, NH0 + G)
    while nxh[0] <= hi_: issueHH(nxh[0]); nxh[0] += 1
    if G == 12:
        e("s_lshl_b32 s15, s13, 9"); e(f"s_add_u32 s15, s15, {R2_OFF:#x}")
        e(f"buffer_load_dword v240, v62, {SWS}, s15 offen sc1"); vm.add("res")
e("s_lshl_b32 s15, s11, 12"); e("s_add_u32 s15, s15, 16384"); e("s_xor_b32 s16, s15, 4096")
e("v_add_u32 v56, s15, v11"); e("v_add_u32 v57, s16, v11")
e("s_nop 7")
e("s_nop 1")
for u in range(4): e(f"ds_write_b128 v56, {vr(ACC+16+4*u,4)} offset:{1024*u}")
e("s_waitcnt lgkmcnt(0)")
e("s_barrier")
e("s_waitcnt vmcnt(0)")
for u in range(4): e(f"ds_read_b128 {vr(64+4*u,4)}, v57 offset:{1024*u}")
for u in range(4):
    e(f"s_waitcnt lgkmcnt({3-u})")
    for r in range(4): e(f"v_add_f32 v{ACC+4*u+r}, v{ACC+4*u+r}, v{64+4*u+r}")
    for r in range(4): e(f"v_fma_f32 v{ACC+4*u+r}, v{ACC+4*u+r}, v240, v{RES+4*u+r}")
    for p in range(2): e(f"v_cvt_pk_bf16_f32 v{32+2*u+p}, v{ACC+4*u+2*p}, v{ACC+4*u+2*p+1}")
    if u & 1:
        b = 32 + 2*(u-1)
        e("s_nop 1")
        e(f"v_permlane32_swap_b32 v{b}, v{b+2}"); e(f"v_permlane32_swap_b32 v{b+1}, v{b+3}")
        e(f"buffer_store_dwordx4 {vr(b,4)}, v245, {SOUT}, s27 offen offset:{16*(u-1)}")
endpgm()

lab("L_H")
vm = Trk("vmcnt", 63)
e(f"v_lshlrev_b32 v4, 2, v2"); e(f"v_add_u32 v4, {FLG_L}, v4"); e("v_mov_b32 v5, 0")
e("s_mov_b64 exec, 0xffff")
e("ds_write_b32 v4, v5")
e("s_mov_b64 exec, -1")
e("v_lshlrev_b32 v11, 4, v2")
e("s_lshl_b32 s24, s2, 13"); e("s_lshl_b32 s16, s11, 11"); e("s_add_u32 s24, s24, s16")
QR = " nt" if "qrnt" in X else ""
e(f"buffer_load_dwordx4 {vr(56,4)}, v11, {SQ}, s24 offen{QR}"); e(f"buffer_load_dwordx4 {vr(60,4)}, v11, {SQ}, s24 offen offset:1024{QR}")
e("v_lshlrev_b32 v17, 7, v2")
pass
for j in range(3):
    e(f"v_add_u32 v20, {j*64}, v2")
    e("v_mul_u32_u24 v21, 0x5556, v20"); e("v_lshrrev_b32 v21, 18, v21")
    e("v_mul_u32_u24 v22, 12, v21"); e("v_sub_u32 v22, v20, v22")
    e("v_mul_u32_u24 v21, 2752, v21"); e(f"v_lshl_add_u32 v{14+j}, v22, 4, v21")
    if j: e(f"v_subrev_u32 v{14+j}, {1024*j}, v{14+j}")
e(f"s_mul_i32 s22, s11, {16*2752}"); e("s_mul_i32 s15, s7, 192"); e("s_add_u32 s22, s22, s15")
e(f"s_mul_i32 s23, s11, {16*192}")
e("s_mov_b32 s16, 0x05040100"); e("s_mov_b32 s17, 0x07060302")
e("s_waitcnt vmcnt(3)")
mark(1)
for c in range(4):
    sel = "s17" if c & 1 else "s16"
    e(f"v_perm_b32 v{92+2*c}, v{40+(c>>1)}, v{38+(c>>1)}, {sel}")
    e(f"v_perm_b32 v{93+2*c}, v{44+(c>>1)}, v{42+(c>>1)}, {sel}")
    e(f"ds_write_b64 v13, {vr(92+2*c,2)} offset:{128*c}")
e("s_and_b32 s15, s2, 0xc7"); e("s_or_b32 s15, s15, s11"); e("s_cmp_lg_u32 s15, 0"); e("s_cbranch_scc1 L_noinit")
e("s_waitcnt vmcnt(2)")
e("v_add_u32 v116, 1, v254"); e("v_lshlrev_b32 v116, 6, v116"); e("v_lshlrev_b32 v117, 10, v2")
e("s_lshl_b32 s15, s2, 4"); e(f"s_add_u32 s15, s15, {FL2_OFF:#x}")
e(f"s_mov_b32 exec_lo, {(1 << NREP) - 1:#x}"); e("s_mov_b32 exec_hi, 0")
e(f"buffer_store_dword v116, v117, {SWS}, s15 offen sc1")
e("s_mov_b64 exec, -1")
lab("L_noinit")
mark(7, "p1")
e("s_waitcnt lgkmcnt(0)"); e("s_barrier")
mark(8, "p1")
e("ds_read_b128 v[28:31], v124"); e("ds_read_b128 v[32:35], v125 offset:1024")
e("s_waitcnt lgkmcnt(1)")
e(f"buffer_store_dwordx4 v[28:31], v126, {SWS}, s18 offen sc1")
e("s_waitcnt lgkmcnt(0)")
e(f"buffer_store_dwordx4 v[32:35], v126, {SWS}, s19 offen sc1")
mark(9, "p1")
e("s_waitcnt vmcnt(2)")
e("v_add_u32 v254, 1, v254")
e("s_nop 0")
e("v_readfirstlane_b32 s9, v254")
for rr in range(2):
    for c in range(8): unpack(64+8*rr+c, 56+4*rr+2*(c>>2), c & 3)
def tree(dst, base):
    e(f"v_add_f32 v{dst}, v{base}, v{base+1}")
    for c in range(2, 8): e(f"v_add_f32 v{dst}, v{dst}, v{base+c}")
def reduce2(a, b):
    for m in ("row_shr:1", "row_shr:2", "row_shr:4", "row_shr:8"):
        e("s_nop 0")
        e(f"v_add_f32_dpp v{a}, v{a}, v{a} {m} row_mask:0xf bank_mask:0xf bound_ctrl:0")
        e(f"v_add_f32_dpp v{b}, v{b}, v{b} {m} row_mask:0xf bank_mask:0xf bound_ctrl:0")
    for m, rm in (("row_bcast:15", "0xa"), ("row_bcast:31", "0xc")):
        e("s_nop 0")
        e(f"v_add_f32_dpp v{a}, v{a}, v{a} {m} row_mask:{rm} bank_mask:0xf")
        e(f"v_add_f32_dpp v{b}, v{b}, v{b} {m} row_mask:{rm} bank_mask:0xf")
tree(100, 64); tree(101, 72)
e("s_nop 0")
reduce2(100, 101)
e("s_mov_b32 s18, 0x3b000000")
e("v_mul_f32 v100, s18, v100"); e("v_mul_f32 v101, s18, v101")
e("s_nop 0")
e("v_readlane_b32 s16, v100, 63"); e("v_readlane_b32 s17, v101, 63")
e("s_nop 1")
for c in range(8):
    e(f"v_subrev_f32 v{64+c}, s16, v{64+c}"); e(f"v_subrev_f32 v{72+c}, s17, v{72+c}")
e("v_mul_f32 v102, v64, v64"); e("v_mul_f32 v103, v72, v72")
for c in range(1, 8):
    e(f"v_fmac_f32 v102, v{64+c}, v{64+c}"); e(f"v_fmac_f32 v103, v{72+c}, v{72+c}")
e("s_nop 0")
reduce2(102, 103)
e("v_mov_b32 v104, 0x3727c5ac")
e("v_fma_f32 v102, v102, s18, v104"); e("v_fma_f32 v103, v103, s18, v104")
e("v_rsq_f32 v108, v102"); e("v_rsq_f32 v112, v103")
e("v_mov_b32 v110, v254"); e("v_mov_b32 v114, v254"); e("v_mov_b32 v111, v254"); e("v_mov_b32 v115, v254")
e("v_mul_f32 v109, v100, v108"); e("v_mul_f32 v113, v101, v112")
e("v_sub_f32 v109, 0, v109"); e("v_sub_f32 v113, 0, v113")
e("s_lshr_b32 s15, s2, 5"); e("s_lshl_b32 s15, s15, 12"); e("s_lshl_b32 s16, s21, 11"); e("s_add_u32 s15, s15, s16")
e("s_bfe_u32 s16, s2, 0x40001"); e("s_lshl_b32 s16, s16, 5"); e("s_add_u32 s15, s15, s16")
e("s_and_b32 s16, s2, 1"); e("s_lshl_b32 s16, s16, 1"); e("s_add_u32 s16, s16, s20"); e("s_lshl_b32 s16, s16, 9"); e("s_add_u32 s15, s15, s16")
e(f"s_add_u32 s15, s15, {STG_OFF:#x}")
e("s_mov_b32 exec_lo, 0"); e("s_mov_b32 exec_hi, 0x80000000")
e(f"buffer_store_dwordx4 v[108:111], v5, {SWS}, s15 offen sc1")
e(f"buffer_store_dwordx4 v[112:115], v5, {SWS}, s15 offen offset:16 sc1")
e("s_mov_b64 exec, -1")
mark(3)
e("s_waitcnt vmcnt(2)")
mark(10, "p1")
e("s_barrier")
mark(2)
post_flag(FL1_OFF, 4)
e("s_cmp_lg_u32 s3, 4"); e("s_cbranch_scc1 L_h_np1")
e("s_lshl_b32 s16, s4, 12"); e(f"s_add_u32 s16, s16, {FL1_OFF:#x}"); e("v_add_u32 v7, s16, v17")
e("s_mov_b32 exec_hi, 0")
poll("v7", "v8", "s9", "ap1" in X)
lab("L_h_np1")
e("s_barrier")
e("v_lshlrev_b32 v9, 4, v3")
e("v_lshlrev_b32 v10, 3, v3"); e(f"v_add_u32 v10, {ST_L}, v10")
for j in range(8):
    e(f"s_add_u32 s16, s5, {j}"); e("s_and_b32 s16, s16, 7"); e("s_lshl_b32 s16, s16, 11"); e(f"v_add_u32 v{100+j}, s16, v10")
def issueW(i, emit=True):
    l = []
    l.append([f"s_add_u32 s15, s8, {i}", "s_and_b32 s15, s15, 7", f"s_mul_i32 s15, s15, {64*2752}", "s_add_u32 s15, s15, s22",
              f"s_add_u32 m0, s23, {(i % 4)*WSLOT}", "s_nop 0", f"buffer_load_dwordx4 v14, {SWG}, s15 offen lds"])
    for j in (1, 2): l.append([f"buffer_load_dwordx4 v{14+j}, {SWG}, s15 offen offset:{1024*j} lds"])
    l.append([f"s_add_u32 s15, s8, {i}", "s_and_b32 s15, s15, 7", f"s_mul_i32 s15, s15, {64*2752}", "s_add_u32 s15, s15, s22",
              f"s_add_u32 m0, s23, {(i % 4)*WSLOT + W_U}", "s_nop 0", f"buffer_load_dwordx4 v14, {SWU}, s15 offen lds"])
    for j in (1, 2): l.append([f"buffer_load_dwordx4 v{14+j}, {SWU}, s15 offen offset:{1024*j} lds"])
    return [(x, ("W", i)) for x in l]
def emit_all(items):
    for x, t in items:
        for s in x: e(s)
        vm.add(t)
def stg_loads():
    for j in range(8):
        e(f"s_add_u32 s16, s5, {j}"); e("s_and_b32 s16, s16, 7"); e("s_lshl_b32 s16, s16, 12"); e(f"s_add_u32 s16, s16, {STG_OFF:#x}")
        e(f"buffer_load_dwordx4 {vr(64+4*j,4)}, v9, {SWS}, s16 offen sc1")
stg_loads()
e("s_barrier")
mark(4)
NWPRE = int(os.environ.get("NWPRE", "2"))
e("s_cmp_eq_u32 s7, 15"); e("s_cbranch_scc1 L_h_now0")
emit_all(issueW(0))
e("s_waitcnt vmcnt(6)")
e("s_branch L_stg0")
lab("L_h_now0")
e("s_waitcnt vmcnt(0)")
lab("L_stg0")
e("s_mov_b32 s30, 0x100000")
lab("L_stg")
e("v_xor_b32 v50, s9, v66")
for j in range(1, 8):
    e(f"v_xor_b32 v51, s9, v{66+4*j}"); e("v_or_b32 v50, v50, v51")
e("v_cmp_ne_u32 vcc, 0, v50")
e("s_cbranch_vccz L_stgx")
e("s_sub_u32 s30, s30, 1"); e("s_cbranch_scc1 L_stgx")
stg_loads()
e("s_waitcnt vmcnt(0)")
e("s_branch L_stg")
lab("L_stgx")
for j in range(8): e(f"ds_write_b64 v{100+j}, {vr(64+4*j,2)}")
e("s_lshl_b32 s15, s11, 2"); e(f"s_add_u32 s15, s15, {FLG_L+16}"); e("v_mov_b32 v50, s15"); e("v_mov_b32 v51, 1")
e("ds_write_b32 v50, v51")
mark(5)
if "nowdt" not in X:
    e("s_mul_i32 s15, s2, 5504"); e("s_mul_i32 s16, s11, 1408"); e("s_add_u32 s15, s15, s16")
    e("s_mov_b64 exec, 0x7ff")
    e(f"buffer_load_dword v250, v17, {SWD}, s15 offen"); vm.add("t")
    e("s_mov_b64 exec, -1")
e("s_cmp_eq_u32 s7, 15"); e("s_cbranch_scc1 L_h_now")
for i in range(1, NWPRE): emit_all(issueW(i))
lab("L_h_now")
mark(7, "p2")
e("v_and_b32 v20, 15, v2"); e("v_lshrrev_b32 v21, 4, v2"); e("v_lshrrev_b32 v22, 2, v20"); e("v_and_b32 v23, 3, v20")
e("v_lshrrev_b32 v24, 5, v2"); e("v_and_b32 v25, 1, v21"); e("v_lshl_add_u32 v26, v24, 3, v22")
e("v_lshlrev_b32 v27, 8, v26"); e("v_lshl_add_u32 v27, v25, 5, v27"); e("v_lshl_add_u32 v27, v23, 3, v27")
e("v_xor_b32 v17, s11, v22"); e("v_lshl_add_u32 v17, v17, 6, v27"); e(f"v_add_u32 v17, {A_L}, v17")
e("v_add_u32 v18, 16384, v17"); e("v_add_u32 v19, 32768, v17")
e("v_lshrrev_b32 v7, 3, v2"); e("v_lshlrev_b32 v7, 5, v7"); e("v_and_b32 v8, 7, v2"); e("v_add_u32 v7, v7, v8")
e("s_lshl_b32 s16, s11, 3"); e("v_add_u32 v7, s16, v7"); e("v_lshlrev_b32 v7, 7, v7"); e("s_lshl_b32 s16, s4, 15"); e(f"s_add_u32 s16, s16, {FL2_OFF:#x}"); e("v_add_u32 v7, s16, v7")
e("s_lshl_b32 s26, s6, 17"); e("s_lshl_b32 s19, s11, 12"); e("s_add_u32 s26, s26, s19"); e(f"s_add_u32 s26, s26, {HT_OFF:#x}")
for r in range(4): e(f"v_mov_b32 v{20+r}, 0")
e("s_mov_b32 s27, 0x3f803f80")
e("v_lshrrev_b32 v12, 3, v2"); e("v_and_b32 v13, 7, v2"); e("v_bfe_u32 v28, v2, 4, 1"); e("v_lshlrev_b32 v28, 2, v28"); e("v_xor_b32 v13, v13, v28")
e("v_lshlrev_b32 v12, 10, v12"); e("v_lshl_add_u32 v12, v13, 4, v12")
e("s_lshl_b32 s24, s11, 15"); e("s_lshl_b32 s16, s28, 7"); e("s_add_u32 s24, s24, s16")
e("v_mov_b32 v118, 1"); e("v_lshlrev_b32 v119, 10, v2"); e("s_lshl_b32 s16, s4, 7"); e(f"s_add_u32 s16, s16, {FL2_OFF:#x}"); e("v_add_u32 v119, s16, v119")
e("v_lshlrev_b32 v120, 7, v2"); e(f"s_and_b32 s16, s2, {NREP-1}"); e("s_lshl_b32 s16, s16, 10"); e(f"s_add_u32 s16, s16, {FL2_OFF:#x}"); e("v_add_u32 v120, s16, v120")
e("s_lshl_b32 s25, s9, 6"); e("s_add_u32 s25, s25, 32")
vm.wait(("W", 0))
mark(8, "p2")
e("s_barrier")
mark(6)
if "f256" in X:
    post_flag(FL2_OFF, 4, 8)
    poll("v7", "v8"); vm.clear()
else:
    e("s_cmp_lg_u32 s3, 4"); e("s_cbranch_scc1 L_noadd")
    e(f"s_mov_b32 exec_lo, {(1 << NREP) - 1:#x}"); e("s_mov_b32 exec_hi, 0")
    e(f"buffer_atomic_add v118, v119, {SWS}, 0 offen sc1")
    e("s_mov_b64 exec, -1")
    lab("L_noadd")
    e("s_cmp_eq_u32 s7, 15"); e("s_cbranch_scc1 L_now2")
    for k in range(NWPRE, 4): emit_all(issueW(k))
    lab("L_now2")
    e("s_cmp_lg_u32 s3, 4"); e("s_cbranch_scc1 L_nopoll2")
    e("s_mov_b64 exec, 0xff")
    poll("v120", "v8", "s25", "ap2" in X)
    lab("L_nopoll2")
e("s_barrier")
e("s_cmp_eq_u32 s7, 15"); e("s_cbranch_scc1 L_h_idle")
def issueA(i, dst=None):
    if dst is None: dst = A_L + (i % 3)*16384
    l = [[f"s_add_u32 s15, s8, {i}", "s_and_b32 s15, s15, 7", "s_lshl_b32 s15, s15, 14", "s_add_u32 s15, s15, s26",
          f"s_add_u32 m0, s19, {dst}", "s_nop 0", f"buffer_load_dwordx4 v11, {SWS}, s15 offen sc1 lds"]]
    for j in (1, 2, 3): l.append([f"buffer_load_dwordx4 v11, {SWS}, s15 offen offset:{1024*j} sc1 lds"])
    return [(x, ("A", i)) for x in l]
def issueWd(i):
    l = [[f"s_add_u32 s15, s29, {i}", "s_cmp_ge_u32 s15, 11", "s_cselect_b32 s16, 11, 0", "s_sub_u32 s15, s15, s16",
          "s_lshl_b32 s15, s15, 17", "s_add_u32 s15, s15, s24", f"s_add_u32 m0, s19, {(i % 10)*16384}", "s_nop 0",
          f"buffer_load_dwordx4 v12, {SWD}, s15 offen lds"]]
    for j in (1, 2, 3): l.append([f"s_add_u32 s16, s15, {j*7168}", f"buffer_load_dwordx4 v12, {SWD}, s16 offen offset:{1024*j} lds"])
    return [(x, ("Wd", i)) for x in l]
for i in range(3): emit_all(issueA(i))
mark(7)
vm.wait(("A", 0))
e("s_barrier")
mark(1, "it2"); mark(1, "it3")
corr_items = [(["s_mul_i32 s15, s7, 3072", "s_lshl_b32 s16, s11, 10", "s_add_u32 s15, s15, s16", f"s_add_u32 s15, s15, {CSF_OFF:#x}",
                "s_lshl_b32 s17, s6, 11", f"s_add_u32 s17, s17, {ST2_OFF:#x}", "s_cmp_eq_u32 s11, 3", "s_cselect_b32 s15, s17, s15",
                f"s_add_u32 m0, s16, {CORR_L}", "s_nop 0", f"buffer_load_dwordx4 v11, {SWS}, s15 offen sc1 lds"], "corr"),
              ([f"s_mov_b32 m0, {CORR_L+3072}", "s_nop 0", f"buffer_load_dwordx4 v11, {SWS}, s17 offen offset:1024 sc1 lds"], "corr")]
Wh = lambda k, h: issueW(k)[3*h:3*h+3]
SCHED = {1: Wh(4,0)+Wh(4,1), 2: Wh(5,0), 3: Wh(5,1)+Wh(6,0), 4: Wh(6,1)+Wh(7,0), 5: Wh(7,1)+issueWd(0), 6: issueWd(1)+corr_items+issueWd(2), 7: issueWd(3)}
if "nosmooth" in X:
    SCHED = {1: issueW(4), 2: issueW(5), 3: issueW(6), 4: issueW(7), 5: issueWd(0)+corr_items, 6: issueWd(1)+issueWd(2), 7: issueWd(3)}
for i in range(8):
    items = []
    if 1 <= i <= 5: items += issueA(i+2)
    items += SCHED.get(i, [])
    emit_all(items)
    if i < 7:
        vm.wait(("A", i+1), ("W", i+1))
        mark(2+i, "it3")
        e("s_barrier")
        mark(2+i, "it2")
vm.wait("corr"); mark(9, "it3"); e("s_barrier")
mark(9, "it2")
mark(8)
NPRE = int(os.environ.get("NPRE", "7"))
for i in range(4, NPRE): emit_all(issueWd(i))
e("s_branch L_h_b7")
lab("L_h_idle")
mark(1, "it2")
for i in range(8): emit_all(issueA(i, i*16384))
mark(2, "it2")
e(f"v_subrev_u32 v17, {A_L}, v17")
for r in range(4): e(f"v_mov_b32 v{28+r}, s27")
FS = 100
for half in range(2):
    e(f"s_waitcnt vmcnt({16 - 16*half})"); e("s_barrier")
    mark(3+half, "it2")
    lg.clear()
    rds = [(f"ds_read_b64_tr_b16 {vr(FS+64*half+4*q+2*hh,2)}, v17 offset:{4096*q+1024*hh}", q) for q in range(16) for hh in range(2)]
    for s_, t in rds[:12]: e(s_); lg.add(t)
    rds = rds[12:]
    for q in range(16):
        lg.wait(q)
        e(f"v_mfma_f32_32x32x16_bf16 v[64:79], v[28:31], {vr(FS+64*half+4*q,4)}, {'v[64:79]' if (half or q) else '0'}")
        for s_, t in rds[:2]: e(s_); lg.add(t)
        rds = rds[2:]
    e("v_add_u32 v17, 0x10000, v17")
for q in range(4): e(f"v_mfma_f32_32x32x16_bf16 v[80:95], {vr(FS+4*q,4)}, {vr(FS+4*q,4)}, {'v[80:95]' if q else '0'}")
e("s_nop 7")
e("v_mul_f32 v27, s18, v64")
e("v_sub_f32 v24, 0, v27")
e("v_cvt_pk_bf16_f32 v20, v24, v24")
e("v_and_b32 v25, s14, v20"); e("v_sub_f32 v25, v24, v25"); e("v_mov_b32 v22, 0")
e("v_cvt_pk_bf16_f32 v21, v25, v22")
e("v_mov_b32 v23, v254")
e("s_lshl_b32 s15, s6, 11"); e("s_lshl_b32 s16, s11, 9"); e("s_add_u32 s15, s15, s16"); e(f"s_add_u32 s15, s15, {ST2_OFF:#x}")
e("s_mov_b32 exec_hi, 0")
e(f"buffer_store_dwordx4 v[20:23], v11, {SWS}, s15 offen sc1")
e("s_mov_b64 exec, -1")
mark(7, "it2")
e("s_barrier")
for q in range(4, 32): e(f"v_mfma_f32_32x32x16_bf16 v[80:95], {vr(FS+4*q,4)}, {vr(FS+4*q,4)}, v[80:95]")
e("v_bfe_u32 v22, v2, 3, 2"); e("v_lshlrev_b32 v22, 2, v22"); e("v_and_b32 v23, 3, v2"); e("v_add_u32 v22, v22, v23")
e("v_bfe_u32 v23, v2, 2, 1"); e("v_lshrrev_b32 v24, 5, v2"); e("v_xor_b32 v23, v23, v24"); e("v_lshl_add_u32 v22, v23, 4, v22")
e("v_mov_b32 v21, 0")
e("s_nop 7")
for r in range(16):
    e(f"v_cmp_eq_u32 s[{100 if False else 76}:{77}], {r}, v22" if r & 1 else f"v_cmp_eq_u32 vcc, {r}, v22")
    e("s_nop 1")
    e(f"v_cndmask_b32 v21, v21, v{80+r}, s[76:77]" if r & 1 else f"v_cndmask_b32 v21, v21, v{80+r}, vcc")
e("v_mov_b32 v23, v21")
e("s_nop 1")
e("v_permlane32_swap_b32 v23, v21")
e("s_nop 1")
e("v_add_f32 v21, v21, v23")
e("v_mul_f32 v21, s18, v21")
e("v_fma_f32 v21, -v27, v27, v21"); e("v_max_f32 v21, 0, v21"); e("v_add_f32 v21, 0x3727c5ac, v21")
e("v_rcp_f32 v22, v21")
e("v_lshlrev_b32 v23, 2, v2")
e("s_lshl_b32 s15, s6, 9"); e("s_lshl_b32 s16, s11, 7"); e("s_add_u32 s15, s15, s16"); e(f"s_add_u32 s15, s15, {R2_OFF:#x}")
e("s_mov_b32 exec_hi, 0")
e(f"buffer_store_dword v22, v23, {SWS}, s15 offen sc1")
e("s_mov_b64 exec, -1")
e("s_waitcnt vmcnt(0)")
mark(8); mark(8, "it2")
for i in range(0, NPRE): emit_all(issueWd(i))
lab("L_h_b7")
e("s_barrier")
mark(9)
for i in range(NPRE, 10): emit_all(issueWd(i))
e("s_waitcnt vmcnt(0)")
mark(10)
e("s_barrier")
e("s_barrier")
emit_all(issueWd(10))
e("s_waitcnt vmcnt(0)")
e("s_barrier")
e("s_cmp_lg_u32 s2, 0"); e("s_cbranch_scc1 L_hend")
e("s_cmp_lg_u32 s3, 4"); e("s_cbranch_scc1 L_hend")
e("s_mov_b64 exec, 1")
e(f"buffer_store_dword v254, v255, {SWS}, 0 offen sc1")
lab("L_hend")
endpgm()
lab("L_end")

hdr = open("sequential_preLN__ssm_conv_h3__glu_gated_reglu__prompt.s.ref").read().split("; Override")[0]
s = hdr + f"; @launch grid=(256,1,1) block=(512,1,1) lds={LDS_BYTES}\n"
s += '.amdgcn_target "amdgcn-amd-amdhsa--gfx950"\n.text\n'
s += f".globl {NAME}\n.p2align 8\n.type {NAME},@function\n{NAME}:\n" + "\n".join(L) + "\n    s_endpgm\n"
s += f""".section .rodata,"a"
.p2align 6
.amdhsa_kernel {NAME}
  .amdhsa_next_free_vgpr 256
  .amdhsa_next_free_sgpr 102
  .amdhsa_accum_offset 256
  .amdhsa_group_segment_fixed_size 0
  .amdhsa_kernarg_size 104
  .amdhsa_user_sgpr_count 2
  .amdhsa_user_sgpr_kernarg_segment_ptr 1
  .amdhsa_system_sgpr_workgroup_id_x 1
  .amdhsa_float_denorm_mode_32 3
.end_amdhsa_kernel
"""
open(OUT, "w").write(s)
```

```python
import sys, os
OUT = sys.argv[1] if len(sys.argv) > 1 else "v8.s"
STAMP = int(os.environ.get("STAMP", "0"))
X = os.environ.get("X", "").split(",") + ["ap2", "ap3", "qnt", "qrnt", "m2"]
SLP = int(os.environ.get("SLP", "1"))
NREP = int(os.environ.get("NREP", "32"))
NT = "" if "nont" in X else " nt"
NAME = "sequential_preLN__ssm_conv_h3__glu_gated_reglu__prompt_kernel"

RS      = 4224
KVT_OFF = 0
QT_OFF  = 0x210000
STG_OFF = 0x420000
EPO_OFF = 0x428000
FL1_OFF = 0x430000
FL3_OFF = 0x440000
ST2_OFF = 0x448000
CSF_OFF = 0x450000
R2_OFF  = 0x460000
CSP_OFF = 0x468000
FL2_OFF = 0x4D0000
HT_OFF  = 0x510000
HH_OFF  = 0x710000
HH_KS   = 96
WS_END  = HH_OFF + 64 * HH_KS * 1024
STAMP_OFF = 0x1000000
if STAMP and "dbg" not in X: WS_END = 0x2000000

WSLOT = 24640; W_U = 12320
RB = 4 * WSLOT
T_KV = RB
EX_L = 3 * WSLOT
Q_L = EX_L + 16384
T_Q = RB + 8192
CP = 4160; HREG = 4 * CP; XREG = 4608; CH_L = HREG + XREG
ST_L = RB + 2 * CH_L
FLG_L = 163840 - 64
assert ST_L + 16384 <= FLG_L
A_L = RB
MEAN_L = RB + 49152
CORR_L = RB + 49152
LDS_BYTES = 163840

L = []
def e(s): L.append("    " + s)
def lab(s): L.append(s + ":")
def vr(a, n): return f"v[{a}:{a+n-1}]"
def mark(i, grp=None):
    if "p1" in X and i in (7, 8, 9, 10) and grp != "p1": return
    if "it" in X and i in (1, 2, 3) and grp != "it": return
    if "p2" in X and i in (7, 8, 9, 10) and grp != "p2": return
    if ("it2" in X or "it3" in X) and 1 <= i <= 10 and grp not in ("it2", "it3"): return
    if "p4" in X and 1 <= i <= 10 and grp != "p4": return
    if grp and grp not in X: return
    if STAMP: e(f"{'s_memtime' if 'cyc' in X else 's_memrealtime'} s[{78+2*i}:{79+2*i}]")
def srd(d, base, nbytes):
    e(f"s_mov_b32 s{d}, s{base}"); e(f"s_mov_b32 s{d+1}, s{base+1}"); e(f"s_mov_b32 s{d+2}, {nbytes:#x}"); e(f"s_mov_b32 s{d+3}, 0x20000")
NST = 12
def endpgm():
    if STAMP:
        e("s_mov_b64 exec, -1")
        e("s_waitcnt vmcnt(0) lgkmcnt(0)")
        mark(NST-1)
        if "dbg" in X:
            n = nid()
            e("s_cmp_lg_u32 s3, 0"); e(f"s_cbranch_scc1 L_nd{n}"); e("s_cmp_ge_u32 s5, 28"); e(f"s_cbranch_scc1 L_nd{n}")
            e("s_load_dwordx2 s[4:5], s[0:1], 88"); e("s_waitcnt lgkmcnt(0)")
            e("s_mov_b32 s6, 256"); e("s_mov_b32 s7, 0x20000")
            e("s_mov_b64 exec, 1"); e("v_mov_b32 v251, 0")
            e("s_not_b32 s76, s78"); e("v_mov_b32 v252, s76")
            e("buffer_atomic_umax v252, v251, s[4:7], 0 offen offset:48")
            for i in range(NST):
                e(f"v_mov_b32 v{200+i}, s{78+2*i}")
                e(f"buffer_atomic_umax v{200+i}, v251, s[4:7], 0 offen offset:{4*i}")
            lab(f"L_nd{n}")
            e("s_endpgm")
            return
        e("s_lshl_b32 s76, s2, 9"); e("s_lshl_b32 s77, s3, 6"); e("s_add_u32 s76, s76, s77"); e(f"s_add_u32 s76, s76, {STAMP_OFF}")
        e("v_mov_b32 v251, 0")
        e("s_waitcnt lgkmcnt(0)")
        for i in range(NST):
            e(f"v_mov_b32 v252, s{78+2*i}")
            e(f"buffer_store_dword v252, v251, s[40:43], s76 offen offset:{4*i}")
    e("s_endpgm")

class Trk:
    def __init__(self, name, mx): self.q = []; self.name = name; self.mx = mx
    def add(self, tag, n=1): self.q += [tag] * n
    def wait(self, *tags):
        idx = -1
        for i, t in enumerate(self.q):
            if t in tags: idx = i
        if idx < 0: return
        n = len(self.q) - 1 - idx
        n = min(n, self.mx)
        e(f"s_waitcnt {self.name}({n})")
        self.q = self.q[len(self.q) - n:] if n else []
    def clear(self): self.q = []

SQ, SK, SWS, SV, SSH, SSK, SD, SWG, SWU, SWD, SOUT = [f"s[{x}:{x+3}]" for x in (32, 36, 40, 44, 48, 52, 56, 60, 64, 68, 72)]
uid = [0]
def nid():
    uid[0] += 1; return uid[0]
def poll(addr, tmp, want="s9", atom=False):
    n = nid()
    e("s_mov_b32 s30, 0x100000")
    lab(f"L_poll{n}")
    if atom:
        e(f"v_mov_b32 {tmp}, 0")
        e(f"buffer_atomic_add {tmp}, {addr}, {SWS}, 0 offen sc0 sc1")
    else:
        e(f"buffer_load_dword {tmp}, {addr}, {SWS}, 0 offen sc1")
    e("s_waitcnt vmcnt(0)")
    e(f"v_cmp_ne_u32 vcc, {want}, {tmp}")
    e("s_sub_u32 s30, s30, 1")
    e(f"s_cbranch_scc1 L_pollx{n}")
    e("s_and_b64 exec, exec, vcc")
    if SLP:
        e(f"s_cbranch_execz L_pollx{n}")
        e(f"s_sleep {SLP}")
        e(f"s_branch L_poll{n}")
    else:
        e(f"s_cbranch_execnz L_poll{n}")
    lab(f"L_pollx{n}")
    e("s_mov_b64 exec, -1")
def post_flag(off, wave, lanes=1):
    n = nid()
    e(f"s_cmp_lg_u32 s3, {wave}"); e(f"s_cbranch_scc1 L_nopost{n}")
    e(f"s_mov_b64 exec, {(1 << lanes) - 1}")
    e(f"s_mov_b32 s31, {off:#x}")
    e(f"buffer_store_dword v254, v253, {SWS}, s31 offen sc1")
    e("s_mov_b64 exec, -1")
    lab(f"L_nopost{n}")
def unpack(dst, src, c):
    s = src + (c >> 1)
    if c & 1: e(f"v_and_b32 v{dst}, s14, v{s}")
    else: e(f"v_lshlrev_b32 v{dst}, 16, v{s}")

mark(0)
e("s_cmp_ge_u32 s2, 256"); e("s_cbranch_scc1 L_end")
e("s_load_dwordx16 s[4:19], s[0:1], 0")
e("s_load_dwordx8 s[20:27], s[0:1], 64")
e("s_load_dwordx2 s[28:29], s[0:1], 96")
e("v_lshrrev_b32 v1, 6, v0"); e("v_and_b32 v2, 63, v0")
e("v_readfirstlane_b32 s3, v1")
if "nocode" not in X:
    e("s_getpc_b64 s[76:77]")
    lab("L_pc")
    e("s_and_b32 s30, s2, 0xf8"); e("s_add_u32 s30, s30, s3"); e("s_lshl_b32 s30, s30, 7"); e("s_min_u32 s30, s30, L_end - L_pc")
    e("v_mov_b32 v250, s30")
    e("s_mov_b64 exec, 1")
    e("global_load_dword v250, v250, s[76:77]")
    e("s_mov_b64 exec, -1")
e("v_and_b32 v3, 255, v0")
e("v_and_b32 v10, 15, v3"); e("v_lshrrev_b32 v11, 4, v3")
e("s_bfe_u32 s30, s2, 0x30003"); e("s_lshr_b32 s31, s2, 6"); e("s_lshl_b32 s31, s31, 3"); e("s_and_b32 s76, s2, 7"); e("s_add_u32 s31, s31, s76")
e("s_lshl_b32 s76, s31, 16"); e("s_lshl_b32 s77, s30, 7"); e("s_add_u32 s76, s76, s77")
e("v_lshlrev_b32 v12, 12, v11"); e("v_lshl_add_u32 v12, v10, 3, v12"); e("v_add_u32 v12, s76, v12")
e("v_subrev_u32 v14, 3072, v12")
e("s_lshl_b32 s77, s30, 9"); e("v_lshlrev_b32 v15, 5, v10"); e("v_add_u32 v15, s77, v15")
e("s_lshl_b32 s77, s30, 5"); e("s_add_u32 s77, s77, s31"); e("s_lshl_b32 s77, s77, 7"); e("v_mov_b32 v253, s77")
e(f"v_mov_b32 v255, {EPO_OFF:#x}")
e("s_cmp_ge_u32 s3, 4")
e("s_waitcnt lgkmcnt(0)")
srd(36, 6, 0x200000); srd(48, 10, 4096); srd(44, 8, 0x200000); srd(32, 4, 0x200000)
e("s_cbranch_scc1 L_skipkv")
for r in range(3): e(f"buffer_load_dwordx2 {vr(16+2*r,2)}, v14, {SK}, 0 offen offset:{1024*r}{NT}")
for r in range(4): e(f"buffer_load_dwordx2 {vr(22+2*r,2)}, v12, {SK}, 0 offen offset:{1024*r}{NT}")
e(f"buffer_load_dwordx4 {vr(48,4)}, v15, {SSH}, 0 offen")
e(f"buffer_load_dwordx4 {vr(52,4)}, v15, {SSH}, 0 offen offset:16")
for r in range(4): e(f"buffer_load_dwordx2 {vr(30+2*r,2)}, v12, {SV}, 0 offen offset:{1024*r}{NT}")
e("s_branch L_kvdone")
lab("L_skipkv")
for r in range(4): e(f"buffer_load_dwordx2 {vr(38+2*r,2)}, v12, {SQ}, 0 offen offset:{1024*r}{' nt' if 'qnt' in X else ''}")
lab("L_kvdone")
srd(40, 28, WS_END)
e(f"buffer_load_dword v254, v255, {SWS}, 0 offen sc1")
srd(52, 12, 0x200000); srd(56, 14, 1024); srd(60, 18, 512*2752); srd(64, 20, 512*2752); srd(68, 22, 1376*1024); srd(72, 24, 0x200000)
e("s_and_b32 s4, s2, 7"); e("s_lshr_b32 s5, s2, 3")
e("s_and_b32 s10, s4, 1"); e("s_lshr_b32 s17, s4, 1")
e("s_mul_i32 s7, s17, 3"); e("s_lshr_b32 s16, s5, 3"); e("s_add_u32 s7, s7, s16"); e("s_and_b32 s8, s5, 7")
e("s_lshr_b32 s15, s17, 1"); e("s_add_u32 s15, s15, 12"); e("s_and_b32 s16, s17, 1"); e("s_lshl_b32 s16, s16, 2"); e("s_and_b32 s6, s5, 3"); e("s_add_u32 s16, s16, s6")
e("s_cmp_ge_u32 s5, 24"); e("s_cselect_b32 s7, s15, s7"); e("s_cselect_b32 s8, s16, s8")
e("s_lshr_b32 s15, s5, 1"); e("s_lshl_b32 s16, s17, 1"); e("s_and_b32 s6, s5, 1"); e("s_add_u32 s16, s16, s6")
e("s_cmp_ge_u32 s5, 28"); e("s_cselect_b32 s7, s15, s7"); e("s_cselect_b32 s8, s16, s8")
e("s_lshl_b32 s6, s10, 3"); e("s_add_u32 s6, s6, s8")
e("s_and_b32 s11, s3, 3")
e("s_lshl_b32 s12, s4, 6"); e("s_lshl_b32 s13, s5, 1"); e("s_add_u32 s12, s12, s13")
if "m2" in X:
    e("s_lshr_b32 s77, s4, 1"); e("s_lshl_b32 s77, s77, 3"); e("s_lshr_b32 s16, s5, 2"); e("s_add_u32 s77, s77, s16")
else:
    e("s_lshl_b32 s77, s4, 2"); e("s_lshr_b32 s16, s5, 3"); e("s_add_u32 s77, s77, s16")
e("s_lshr_b32 s13, s77, 1")
e("s_lshr_b32 s17, s3, 2"); e("s_lshl_b32 s17, s17, 13"); e(f"s_add_u32 s17, s17, {T_KV}")
e("v_lshrrev_b32 v13, 1, v11"); e("v_and_b32 v14, 7, v10"); e("v_xor_b32 v13, v13, v14"); e("v_lshlrev_b32 v13, 4, v13")
e("v_lshl_add_u32 v13, v10, 9, v13"); e("v_and_b32 v14, 1, v11"); e("v_lshl_add_u32 v13, v14, 3, v13"); e("v_add_u32 v13, s17, v13")
e("v_lshrrev_b32 v128, 3, v2"); e("s_lshl_b32 s15, s11, 4"); e("v_add_u32 v128, s15, v128")
e("v_and_b32 v129, 7, v2")
e("v_lshrrev_b32 v130, 2, v128"); e("v_and_b32 v130, 7, v130"); e("v_xor_b32 v124, v129, v130"); e("v_xor_b32 v125, 2, v124")
e("v_lshlrev_b32 v130, 7, v128"); e("v_lshl_add_u32 v124, v124, 4, v130"); e("v_lshl_add_u32 v125, v125, 4, v130")
e("v_add_u32 v124, s17, v124"); e("v_add_u32 v125, s17, v125")
e(f"v_mul_u32_u24 v126, {RS}, v128"); e("v_lshl_add_u32 v126, v129, 4, v126")
e(f"s_mul_i32 s18, s30, {64*RS}"); e("s_lshl_b32 s16, s31, 7"); e("s_add_u32 s18, s18, s16")
e("s_lshr_b32 s16, s3, 2"); e(f"s_mul_i32 s16, s16, {QT_OFF-KVT_OFF:#x}"); e("s_add_u32 s18, s18, s16")
e(f"s_add_u32 s19, s18, {8*RS}")
e("s_mov_b32 s14, 0xffff0000")
e("s_lshr_b32 s20, s11, 1"); e("s_and_b32 s21, s11, 1")
if "m2" in X:
    e("s_and_b32 s28, s4, 1"); e("s_lshl_b32 s28, s28, 2"); e("s_and_b32 s16, s5, 3"); e("s_add_u32 s28, s28, s16")
else: e("s_and_b32 s28, s5, 7")
if "m2" in X:
    e("s_lshr_b32 s16, s5, 2"); e("s_mul_i32 s29, s16, 11"); e("s_lshr_b32 s29, s29, 3")
else:
    e("s_lshr_b32 s16, s5, 3"); e("s_mul_i32 s29, s16, 3")
if "rot4" in X:
    e("s_add_u32 s29, s29, s28"); e("s_cmp_ge_u32 s29, 11"); e("s_cselect_b32 s16, 11, 0"); e("s_sub_u32 s29, s29, s16")
e("s_cmp_ge_u32 s3, 4"); e("s_cbranch_scc1 L_H")
def rot11(i):
    e(f"s_add_u32 s15, s29, {i}"); e("s_cmp_ge_u32 s15, 11"); e("s_cselect_b32 s16, 11, 0"); e("s_sub_u32 s15, s15, s16")

e("v_lshlrev_b32 v6, 4, v3"); e("v_sub_u32 v7, 4080, v6"); e("v_subrev_u32 v8, 8, v7"); e("v_max_i32 v8, 0, v8")
e("s_add_u32 s22, s12, s20")
e("s_lshl_b32 s15, s22, 1"); e("v_mov_b32 v9, s15"); e("v_mov_b32 v240, 0")
e("s_lshl_b32 s15, s12, 12"); e("s_add_u32 s16, s15, 4096")
e("s_waitcnt vmcnt(5)")
mark(1)
def ssm_loads():
    e("s_lshl_b32 s15, s12, 12"); e("s_add_u32 s16, s15, 4096")
    e(f"buffer_load_dwordx4 v[228:231], v7, {SSK}, s15 offen{NT}")
    e(f"buffer_load_dwordx2 v[226:227], v8, {SSK}, s15 offen{NT}")
    e(f"buffer_load_dwordx4 v[236:239], v7, {SSK}, s16 offen{NT}")
    e(f"buffer_load_dwordx2 v[234:235], v8, {SSK}, s16 offen{NT}")
    e(f"buffer_load_short_d16_hi v240, v9, {SD}, 0 offen")
LATE = "ssmearly" not in X
if not LATE: ssm_loads()
for r in range(7):
    for c in range(4): unpack(64+4*r+c, 16+2*r, c)
for c in range(4):
    for j in range(4): unpack(92+4*c+j, 48+2*c, j)
for r in range(4):
    for c in range(4): e(f"v_mul_f32 v{108+4*r+c}, v{64+4*r+c}, v{92+4*c+3}")
for j in (2, 1, 0):
    for r in range(4):
        for c in range(4): e(f"v_fmac_f32 v{108+4*r+c}, v{64+4*(r+3-j)+c}, v{92+4*c+j}")
e(f"s_waitcnt vmcnt({1 if LATE else 6})")
for r in range(4):
    for c in range(4): unpack(64+4*r+c, 30+2*r, c)
for r in range(4):
    for c in range(4): e(f"v_mul_f32 v{108+4*r+c}, v{108+4*r+c}, v{64+4*r+c}")
for c in range(4):
    e(f"v_cvt_pk_bf16_f32 v{80+2*c}, v{108+c}, v{112+c}")
    e(f"v_cvt_pk_bf16_f32 v{81+2*c}, v{116+c}, v{120+c}")
    e(f"ds_write_b64 v13, {vr(80+2*c,2)} offset:{128*c}")
mark(7, "p1")
e("s_waitcnt lgkmcnt(0)"); e("s_barrier")
mark(8, "p1")
e("ds_read_b128 v[28:31], v124"); e("ds_read_b128 v[32:35], v125 offset:1024")
e("s_waitcnt lgkmcnt(1)")
e(f"buffer_store_dwordx4 v[28:31], v126, {SWS}, s18 offen sc1")
e("s_waitcnt lgkmcnt(0)")
e(f"buffer_store_dwordx4 v[32:35], v126, {SWS}, s19 offen sc1")
def toeplitz_regs(waitn):
    e("s_mov_b32 s15, 0xffff")
    e("v_cmp_ne_u32 vcc, 255, v3")
    e(f"v_add_u32 v16, {RB}, v6")
    e(f"s_waitcnt vmcnt({waitn})")
    mark(9, "p1")
    e("v_add_u32 v254, 1, v254")
    for ch in range(2):
        b = 226 + 8*ch
        e(f"v_cndmask_b32 v{b}, 0, v{b}, vcc"); e(f"v_cndmask_b32 v{b+1}, 0, v{b+1}, vcc")
        w = lambda i: f"v{b+2+i}"
        o = 40 + 16*ch
        for n, i in enumerate((2, 1, 0, -1)): e(f"v_bfi_b32 v{o+n}, s15, {w(i)}, {w(i-1)}")
        for n, i in enumerate((2, 1, 0, -1)): e(f"v_alignbit_b32 v{o+4+n}, {w(i)}, {w(i)}, 16")
        for n, i in enumerate((3, 2, 1, 0)): e(f"v_bfi_b32 v{o+8+n}, s15, {w(i)}, {w(i-1)}")
        for n, i in enumerate((3, 2, 1, 0)): e(f"v_alignbit_b32 v{o+12+n}, {w(i)}, {w(i)}, 16")
    e("v_readfirstlane_b32 s9, v254")
if not LATE: toeplitz_regs(2)
for r in range(4): e(f"v_mov_b32 v{72+r}, 0")
e("v_lshrrev_b32 v17, 5, v3"); e(f"v_mul_u32_u24 v17, {CH_L}, v17"); e("v_and_b32 v18, 31, v3"); e("v_lshl_add_u32 v17, v18, 4, v17")
e(f"v_add_u32 v17, {RB+HREG}, v17")
e("v_bfe_u32 v18, v3, 4, 1"); e(f"v_mul_u32_u24 v18, {CH_L}, v18"); e("v_bfe_u32 v19, v3, 2, 2"); e(f"v_mul_u32_u24 v19, {CP}, v19")
e("v_add_u32 v18, v18, v19"); e("v_and_b32 v19, 3, v3"); e("v_lshl_add_u32 v18, v19, 4, v18"); e(f"v_add_u32 v18, {RB+4096}, v18")
e("s_lshl_b32 s16, s4, 5"); e("s_lshl_b32 s17, s21, 4"); e("s_add_u32 s16, s16, s17")
e("v_and_b32 v20, 15, v2"); e("v_add_u32 v20, s16, v20"); e("v_lshlrev_b32 v20, 7, v20"); e(f"v_add_u32 v20, {FL1_OFF:#x}, v20")
e(f"s_mul_i32 s24, s22, {RS}"); e("s_lshl_b32 s25, s21, 11"); e("s_add_u32 s24, s24, s25")
e(f"s_mul_i32 s23, s20, {CH_L}"); e(f"s_add_u32 s23, s23, {RB}")
e(f"s_add_u32 s26, s23, {HREG+512}"); e("s_add_u32 s26, s26, s25")
e("v_lshlrev_b32 v5, 4, v2")
if LATE: ssm_loads()
e(f"s_waitcnt vmcnt({5 if LATE else 0})")
mark(10, "p1")
e("s_barrier")
mark(2)
if LATE: toeplitz_regs(0)
for ch in range(2):
    for kap in range(4): e(f"ds_write_b128 v16, {vr(40+16*ch+4*kap,4)} offset:{ch*CH_L + kap*CP}")
e("s_cmp_lg_u32 s11, 0"); e("s_cbranch_scc1 L_nopad")
e("ds_write_b128 v17, v[72:75]")
e("s_mov_b32 exec_hi, 0")
e("ds_write_b128 v18, v[72:75]")
lab("L_nopad")
e("s_mov_b64 exec, -1")
e("s_barrier")
e("s_mov_b32 m0, s26")
e("s_nop 0")
e(f"buffer_load_dwordx4 v5, {SWS}, s24 offen sc1 lds")
e(f"buffer_load_dwordx4 v5, {SWS}, s24 offen offset:1024 sc1 lds")
e("s_lshl_b32 s15, s11, 11"); e(f"s_add_u32 m0, s15, {Q_L}"); e(f"s_add_u32 s24, s24, {QT_OFF-KVT_OFF:#x}")
e(f"buffer_load_dwordx4 v5, {SWS}, s24 offen sc1 lds")
e(f"buffer_load_dwordx4 v5, {SWS}, s24 offen offset:1024 sc1 lds")
mark(3)
e("v_and_b32 v6, 15, v2"); e("v_lshrrev_b32 v7, 4, v2")
e("v_lshlrev_b32 v8, 4, v6"); e("v_lshl_add_u32 v8, v7, 2, v8")
e("v_and_b32 v32, 3, v6"); e(f"v_mul_u32_u24 v32, {CP}, v32")
e("v_lshrrev_b32 v33, 2, v6"); e("v_lshlrev_b32 v33, 3, v33"); e("v_lshl_add_u32 v33, v7, 4, v33")
e("v_sub_u32 v32, v32, v33")
e("s_lshl_b32 s15, s21, 8"); e("s_sub_u32 s16, s23, s15")
e(f"s_add_u32 s17, s16, {2*2052 - 512*7 - 64*3}"); e("v_add_u32 v32, s17, v32")
e("v_lshlrev_b32 v33, 5, v6"); e("v_lshlrev_b32 v34, 4, v7"); e("v_sub_u32 v33, v33, v34")
e(f"s_add_u32 s17, s16, {HREG + 512 + 16 - 64*3}"); e("v_add_u32 v33, s17, v33")
e("v_lshlrev_b32 v9, 1, v8")
e("s_lshl_b32 s15, s11, 12"); e(f"s_add_u32 s15, s15, {EX_L}"); e("s_xor_b32 s16, s11, 1"); e("s_lshl_b32 s16, s16, 12"); e(f"s_add_u32 s16, s16, {EX_L}")
e("v_add_u32 v34, s15, v5"); e("v_add_u32 v35, s16, v5")
e("v_add_u32 v12, s26, v9")
e("s_lshl_b32 s17, s11, 11"); e(f"s_add_u32 s17, s17, {Q_L}"); e("v_add_u32 v10, s17, v9")
e("s_lshl_b32 s17, s21, 13"); e(f"s_add_u32 s17, s17, {ST_L}"); e("v_add_u32 v13, s17, v5")
e("v_and_b32 v14, 7, v6"); e("v_lshlrev_b32 v14, 1, v14"); e("v_lshrrev_b32 v15, 1, v7"); e("v_add_u32 v14, v14, v15")
e("s_and_b32 s15, s22, 3"); e("s_lshl_b32 s15, s15, 2"); e("v_xor_b32 v14, s15, v14")
e("v_lshlrev_b32 v14, 4, v14")
e("v_lshrrev_b32 v15, 3, v6"); e("v_lshl_add_u32 v14, v15, 17, v14")
e("v_and_b32 v15, 1, v7"); e("v_lshl_add_u32 v14, v15, 18, v14")
e("s_lshl_b32 s18, s22, 8"); e("s_lshl_b32 s17, s21, 20"); e("s_add_u32 s18, s18, s17"); e(f"s_add_u32 s18, s18, {HT_OFF:#x}")
e(f"s_add_u32 s19, s18, {4*131072}")
e("s_lshl_b32 s15, s11, 2"); e(f"s_add_u32 s15, s15, {FLG_L}"); e("v_mov_b32 v16, s15"); e("s_xor_b32 s15, s15, 4"); e("v_mov_b32 v17, s15")
e(f"v_mov_b32 v18, {FLG_L+16}"); e("v_mov_b32 v19, 1")
e("v_subrev_u32 v20, 8, v2"); e("v_and_b32 v21, 7, v2")
e("v_lshrrev_b32 v22, 16, v240"); e("v_and_b32 v23, 1, v21"); e("v_lshlrev_b32 v23, 4, v23"); e("v_lshlrev_b32 v22, v23, v22")
e("v_cmp_gt_u32 vcc, 16, v20"); e("v_lshrrev_b32 v21, 1, v21"); e("s_nop 0"); e("v_cndmask_b32 v22, 0, v22, vcc")
for dw in range(4):
    e(f"v_cmp_eq_u32 vcc, {dw}, v21"); e("s_nop 1"); e(f"v_cndmask_b32 v{232+dw}, 0, v22, vcc")
e("s_waitcnt vmcnt(2) lgkmcnt(0)"); e("s_barrier")
mark(4)
ACC = 36; FA = [72, 136]; FB = [104, 168]
lg = Trk("lgkmcnt", 15)
def creads(rr, buf):
    lst = []
    for i in range(8):
        off = 512*(7-i) + 64*(3-rr)
        lst.append((f"ds_read_b128 {vr(FB[buf]+4*i,4)}, v33 offset:{512*i + 64*(3-rr)}", ("B", rr, i)))
        lst.append((f"ds_read_b64 {vr(FA[buf]+4*i,2)}, v32 offset:{off}", ("A", rr, i)))
        lst.append((f"ds_read_b64 {vr(FA[buf]+4*i+2,2)}, v32 offset:{off+8}", ("A", rr, i)))
    return lst
first = creads(0, 0)
for s, t in first[:12]: e(s); lg.add(t)
pend = first[12:]
pairs = sorted([(i, j) for i in range(8) for j in range(8 - i)], key=lambda p: (max(p), p[0] + p[1]))
started = set()
def mf(rr, i, j):
    global pend
    buf = rr & 1; t = i + j
    while any(x[1] in (("A", rr, i), ("B", rr, j)) for x in pend):
        s_, tg = pend.pop(0); e(s_); lg.add(tg)
    lg.wait(("A", rr, i), ("B", rr, j))
    c = vr(ACC+4*t, 4) if t in started else "0"
    started.add(t)
    e(f"v_mfma_f32_16x16x32_bf16 {vr(ACC+4*t,4)}, {vr(FA[buf]+4*i,4)}, {vr(FB[buf]+4*j,4)}, {c}")
for rr in range(3):
    pend = pend + creads(rr+1, (rr & 1) ^ 1)
    npend = len(pend)
    for n, (i, j) in enumerate(pairs):
        mf(rr, i, j)
        want = npend - (npend * (n + 1)) // 32
        while len(pend) > max(want, 0):
            s_, tg = pend.pop(0); e(s_); lg.add(tg)
        if rr == 2 and n == 33:
            e("ds_read_b128 v[20:23], v18"); lg.add("aux")
    if rr == 0:
        e("s_cmp_lg_u32 s21, 0"); e("s_cbranch_scc1 L_nodiag")
        for t in range(8): e(f"v_mfma_f32_16x16x32_bf16 {vr(ACC+4*t,4)}, v[232:235], {vr(FB[0]+4*t,4)}, {vr(ACC+4*t,4)}")
        lab("L_nodiag")
assert not pend
lab("L_aux")
e("s_waitcnt vmcnt(0) lgkmcnt(0)"); lg.clear()
e("v_and_b32 v20, v20, v21"); e("v_and_b32 v22, v22, v23"); e("v_and_b32 v20, v20, v22")
e("v_cmp_ne_u32 vcc, 1, v20")
e("s_cbranch_vccz L_auxok")
e("ds_read_b128 v[20:23], v18")
e("s_branch L_aux")
lab("L_auxok")
mark(7, "p2")
for u in range(4):
    e(f"ds_read_b64 {vr(80+2*u,2)}, v10 offset:{512*u}")
    e(f"ds_read_b128 {vr(88+8*u,4)}, v13 offset:{2048*u}"); e(f"ds_read_b128 {vr(92+8*u,4)}, v13 offset:{2048*u+1024}")
e("s_cmp_eq_u32 s21, 0"); e("s_cbranch_scc1 L_conv_h0")
QN = 200; T0 = 216
for hf in (1, 0):
    if hf == 0: lab("L_conv_h0")
    keep = 4*hf; send = 4*(1-hf)
    def rr_order(lo):
        qs = [[p for p in pairs if p[0]+p[1] == t] for t in range(lo+3, lo-1, -1)]
        out = []
        while any(qs):
            qs.sort(key=lambda q: -len(q))
            k = [q for q in qs if q and (not out or q[0][0]+q[0][1] != out[-1][0]+out[-1][1])] or [q for q in qs if q]
            out.append(k[0].pop(0))
        return out
    order = rr_order(send) + rr_order(keep)
    if "oldorder" in X: order = [p for p in pairs if send <= p[0]+p[1] < send+4] + [p for p in pairs if keep <= p[0]+p[1] < keep+4]
    nsend = len([p for p in pairs if send <= p[0]+p[1] < send+4])
    valu = []
    for u in range(4):
        valu.append(f"s_waitcnt lgkmcnt({9-3*u})" if u < 3 else "WAITALL")
        for r in range(4):
            qs = 80 + 2*u + (r >> 1); tq = T0+4*u+r
            valu.append(f"v_and_b32 v{tq}, s14, v{qs}" if r & 1 else f"v_lshlrev_b32 v{tq}, 16, v{qs}")
        for r in range(4):
            valu.append(f"v_fma_f32 v{QN+4*u+r}, v{T0+4*u+r}, v{88+8*u+2*r}, v{89+8*u+2*r}")
    sent = False; wrote = 0
    def emitv(x):
        if x == "WAITALL" or (x.startswith("s_waitcnt") and wrote): e(f"s_waitcnt lgkmcnt({wrote})" if x == "WAITALL" or True else x)
        else: e(x)
    for n, (i, j) in enumerate(order):
        t = i + j
        e(f"v_mfma_f32_16x16x32_bf16 {vr(ACC+4*t,4)}, {vr(FA[1]+4*i,4)}, {vr(FB[1]+4*j,4)}, {vr(ACC+4*t,4)}")
        if n >= 3:
            k = 0
            while valu and k < 1:
                x = valu.pop(0); emitv(x)
                if not x.startswith("s_waitcnt") and x != "WAITALL": k += 1
        if n == nsend + 4:
            for u in range(4): e(f"ds_write_b128 v34, {vr(ACC+4*send+4*u,4)} offset:{1024*u}")
            e("ds_write_b32 v16, v19"); wrote = 5
    while valu: emitv(valu.pop(0))
    if hf == 1: mark(5)
    else: mark(5)
    n_ = nid()
    lab(f"L_pw{n_}")
    e("ds_read_b32 v20, v17")
    e("s_waitcnt lgkmcnt(0)")
    e("v_cmp_ne_u32 vcc, 1, v20")
    e(f"s_cbranch_vccnz L_pw{n_}")
    mark(8, "p2")
    for u in range(4): e(f"ds_read_b128 {vr(72+4*u,4)}, v35 offset:{1024*u}")
    for u in range(4):
        y = ACC + 4*keep + 4*u
        e(f"s_waitcnt lgkmcnt({3-u})")
        for p in range(2): e(f"v_pk_add_f32 {vr(y+2*p,2)}, {vr(y+2*p,2)}, {vr(72+4*u+2*p,2)}")
        for p in range(2): e(f"v_pk_fma_f32 {vr(y+2*p,2)}, {vr(QN+4*u+2*p,2)}, {vr(y+2*p,2)}, {vr(T0+4*u+2*p,2)}")
        e(f"v_cvt_pk_bf16_f32 v{124+2*u}, v{y}, v{y+1}")
        e(f"v_cvt_pk_bf16_f32 v{125+2*u}, v{y+2}, v{y+3}")
        if u & 1:
            b = 124 + 2*(u-1)
            e("s_nop 1")
            e(f"v_permlane16_swap_b32 v{b}, v{b+2}"); e(f"v_permlane16_swap_b32 v{b+1}, v{b+3}")
            e(f"buffer_store_dwordx4 {vr(b,4)}, v14, {SWS}, s{18+(u>>1)} offen sc1")
    if hf == 1: e("s_branch L_conv_j")
lab("L_conv_j")
mark(9, "p2")
e("v_and_b32 v3, 15, v2"); e("v_lshrrev_b32 v4, 4, v2"); e("v_lshrrev_b32 v5, 2, v3"); e("v_and_b32 v6, 3, v3")
e("v_lshrrev_b32 v7, 5, v2"); e("v_and_b32 v8, 1, v4"); e("v_lshl_add_u32 v9, v7, 3, v5")
e("v_lshlrev_b32 v10, 8, v9"); e("v_lshl_add_u32 v10, v8, 5, v10"); e("v_lshl_add_u32 v10, v6, 3, v10"); e(f"v_add_u32 v10, {A_L}, v10")
e("v_mul_u32_u24 v12, 192, v9"); e(f"v_mul_u32_u24 v13, {W_U}, v8"); e("v_add_u32 v12, v12, v13"); e("v_lshl_add_u32 v12, v6, 3, v12")
e("s_min_u32 s26, s11, 2"); e("s_lshl_b32 s16, s26, 6"); e(f"s_mul_i32 s17, s10, {32*192}"); e("s_add_u32 s16, s16, s17"); e("v_add_u32 v28, s16, v12")
e("s_mul_i32 s15, s21, 96"); e("v_add_u32 v12, s15, v12")
e("s_lshl_b32 s15, s20, 1"); e("v_xor_b32 v13, s15, v5"); e("v_lshl_add_u32 v13, v13, 6, v10")
e("s_add_u32 s15, s15, 1"); e("v_xor_b32 v18, s15, v5"); e("v_lshl_add_u32 v18, v18, 6, v10")
e("v_mov_b32 v15, v12"); e("v_mov_b32 v16, v13"); e("v_mov_b32 v17, v18")
e("s_waitcnt vmcnt(0)")
mark(10, "p2")
e("s_barrier")
mark(6)
ACC = 64
FR = [20, 40]
def g1reads(ks, buf):
    l = []; b = FR[buf]
    for hh in range(2): l.append(f"ds_read_b64_tr_b16 {vr(b+2*hh,2)}, v15 offset:{(16*ks+4*hh)*192}")
    for hh in range(2): l.append(f"ds_read_b64_tr_b16 {vr(b+12+2*hh,2)}, v16 offset:{4096*ks+1024*hh}")
    for hh in range(2): l.append(f"ds_read_b64_tr_b16 {vr(b+16+2*hh,2)}, v17 offset:{4096*ks+1024*hh}")
    for mb in (1, 2):
        for hh in range(2): l.append(f"ds_read_b64_tr_b16 {vr(b+4*mb+2*hh,2)}, v15 offset:{(16*ks+4*hh)*192+32*mb}")
    return l
e("v_and_b32 v9, 31, v2")
for r in range(20): e(f"v_mov_b32 v{200+r}, 0")
e("s_and_b32 s27, s77, 1"); e("s_lshl_b32 s27, s27, 6"); e("s_lshl_b32 s15, s20, 5"); e("s_add_u32 s27, s27, s15")
e("v_add_u32 v61, s27, v9")
e("v_lshlrev_b32 v62, 2, v61")
e("v_lshrrev_b32 v24, 3, v61"); e("v_and_b32 v25, 7, v61"); e("v_lshlrev_b32 v25, 1, v25"); e("v_lshl_add_u32 v25, v7, 10, v25")
for j in range(4):
    e(f"v_xor_b32 v26, {j<<2}, v24"); e(f"v_lshl_add_u32 v{241+j}, v26, 4, v25")
e("s_lshl_b32 s15, s13, 7"); e("v_add_u32 v245, s15, v61"); e("v_lshlrev_b32 v245, 10, v245"); e("v_lshl_add_u32 v245, v7, 4, v245")
e("v_lshl_add_u32 v24, v7, 2, v5"); e("v_lshlrev_b32 v24, 7, v24"); e("v_lshl_add_u32 v24, v8, 5, v24"); e("v_lshl_add_u32 v24, v6, 3, v24")
e("s_lshl_b32 s15, s21, 13"); e("v_add_u32 v24, s15, v24")
e("v_lshrrev_b32 v25, 3, v3"); e("v_xor_b32 v25, s21, v25"); e("v_lshl_add_u32 v246, v25, 6, v24"); e("v_xor_b32 v25, 1, v25"); e("v_lshl_add_u32 v247, v25, 6, v24")
e("s_lshl_b32 s16, s13, 4")
e("v_add_u32 v248, s16, v2"); e("v_lshlrev_b32 v248, 7, v248"); e(f"v_add_u32 v248, {FL3_OFF:#x}, v248")
e("v_lshlrev_b32 v11, 4, v2")
e("s_lshl_b32 s17, s6, 2"); e("s_lshl_b32 s18, s20, 1"); e("s_add_u32 s17, s17, s18"); e(f"s_mul_i32 s17, s17, {HH_KS}")
e("s_mul_i32 s18, s7, 6"); e("s_mul_i32 s19, s21, 3"); e("s_add_u32 s19, s19, s18")
e("s_add_u32 s17, s17, s19")
e("s_lshl_b32 s17, s17, 10"); e(f"s_add_u32 s17, s17, {HH_OFF:#x}"); e(f"s_add_u32 s18, s17, {HH_KS*1024}")
e("s_cmp_eq_u32 s7, 15"); e("s_cbranch_scc0 L_c_p3")
def sp_loads():
    e("s_mul_i32 s16, s6, 24576"); e(f"s_add_u32 s16, s16, {CSP_OFF:#x}")
    for m in range(16):
        if m and m % 2 == 0: e("s_add_u32 s16, s16, 3072")
        e(f"buffer_load_dwordx2 {vr(64+2*m,2)}, v28, {SWS}, s16 offen offset:{1536*(m%2)} sc1")
e("s_lshl_b32 s15, s11, 6"); e("v_add_u32 v20, s15, v2"); e("v_lshlrev_b32 v28, 3, v20")
e("s_lshl_b32 s15, s6, 4"); e("s_add_u32 s15, s15, s7"); e("s_lshl_b32 s15, s15, 7"); e("v_mov_b32 v253, s15")
e("s_barrier")
e("s_barrier")
sp_loads()
e("s_barrier")
e("s_cmp_eq_u32 s6, 15"); e("s_cbranch_scc1 L_c_sp2"); e("s_cmp_eq_u32 s11, 3"); e("s_cbranch_scc1 L_c_sp2")
e("s_mov_b32 s30, 0x100000")
mark(1, "it2")
lab("L_c_sp1")
e("s_waitcnt vmcnt(0)")
e("v_xor_b32 v50, s9, v65")
for m in range(1, 16):
    e(f"v_xor_b32 v51, s9, v{65+2*m}"); e("v_or_b32 v50, v50, v51")
e("v_cmp_ne_u32 vcc, 0, v50")
e("s_cbranch_vccz L_c_sp1x")
e("s_sub_u32 s30, s30, 1"); e("s_cbranch_scc1 L_c_sp1x")
sp_loads()
e("s_branch L_c_sp1")
lab("L_c_sp1x")
for m in range(1, 16): e(f"v_add_f32 v64, v64, v{64+2*m}")
e("v_mov_b32 v54, 0")
e("v_cvt_pk_bf16_f32 v53, v64, v54")
e("v_lshlrev_b32 v51, 16, v53"); e("v_sub_f32 v51, v64, v51")
e("v_cvt_pk_bf16_f32 v52, v64, v51")
e("v_mov_b32 v55, v254")
e("v_lshlrev_b32 v28, 4, v20"); e("s_mul_i32 s16, s6, 3072"); e(f"s_add_u32 s16, s16, {CSF_OFF:#x}")
e(f"buffer_store_dwordx4 v[52:55], v28, {SWS}, s16 offen sc1")
mark(2, "it2")
lab("L_c_sp2")
e("s_barrier")
e("s_branch L_c_p4")
lab("L_c_p3")
for blk in range(2):
    for ks in range(2):
        for hh in range(2): e(f"ds_read_b64_tr_b16 {vr(32+8*blk+4*ks+2*hh,2)}, v28 offset:{(16*ks+4*hh)*192+32*blk}")
e("v_mov_b32 v30, 0"); e("v_mov_b32 v31, 0"); e("s_mov_b32 s27, 0x3f803f80")
e("s_lshl_b32 s15, s6, 4"); e("s_add_u32 s15, s15, s7"); e("s_lshl_b32 s15, s15, 7"); e("v_mov_b32 v253, s15"); e("s_lshl_b32 s16, s7, 4"); e("s_add_u32 s16, s16, s6"); e("s_mul_i32 s16, s16, 1536"); e("s_lshl_b32 s15, s26, 9"); e("s_add_u32 s16, s16, s15"); e(f"s_add_u32 s16, s16, {CSP_OFF:#x}")
e("v_lshlrev_b32 v29, 3, v2")
e("s_waitcnt lgkmcnt(0)")
for r in range(8):
    e(f"v_dot2_f32_bf16 v30, v{32+r}, s27, v30"); e(f"v_dot2_f32_bf16 v31, v{40+r}, s27, v31")
e("s_nop 3")
e("v_permlane32_swap_b32 v30, v31")
e("s_nop 1")
e("v_add_f32 v30, v30, v31")
e("v_mov_b32 v250, v30"); e("v_mov_b32 v251, v254"); e("v_mov_b32 v249, v29")
e("s_cmp_eq_u32 s11, 3"); e("s_cselect_b32 s16, 0x7f000000, s16")
e(f"buffer_store_dwordx2 v[250:251], v249, {SWS}, s16 offen sc1")
for r in range(96): e(f"v_mov_b32 v{ACC+r}, 0")
e("s_mul_i32 s22, s7, 3072"); e("s_mul_i32 s15, s21, 1536"); e("s_add_u32 s22, s22, s15"); e(f"s_add_u32 s22, s22, {CSF_OFF:#x}")
e("s_lshl_b32 s23, s6, 11"); e("s_lshl_b32 s15, s20, 10"); e("s_add_u32 s23, s23, s15"); e(f"s_add_u32 s23, s23, {ST2_OFF:#x}")
e("s_mul_i32 s15, s21, 1536"); e(f"s_add_u32 s15, s15, {CORR_L}"); e("v_add_u32 v19, s15, v11")
e("s_lshl_b32 s15, s20, 10"); e(f"s_add_u32 s15, s15, {CORR_L+3072}"); e("v_add_u32 v14, s15, v11")
e("s_mov_b32 s24, 0"); e("s_mov_b32 s25, 0"); e("s_mov_b32 s26, 0")
e("s_barrier")
e("s_barrier")
mark(7)
e("s_lshl_b32 s15, s7, 1"); e("s_add_u32 s15, s15, s21"); e("s_cmp_lg_u32 s15, 29"); e("s_cbranch_scc1 L_c_full")
for nb in range(2): e(f"buffer_store_dwordx4 v[64:67], v11, {SWS}, s{17+nb} offen sc1")
for _ in range(8): e("s_barrier")
e("s_branch L_c_p4")
lab("L_c_full")
for s in g1reads(0, 0): e(s)
def corr_loads():
    e("s_mov_b32 exec_hi, 0")
    for mb in range(3): e(f"buffer_load_dwordx4 {vr(200+4*mb,4)}, v11, {SWS}, s22 offen offset:{512*mb} sc1")
    for nb in range(2): e(f"buffer_load_dwordx4 {vr(212+4*nb,4)}, v11, {SWS}, s23 offen offset:{512*nb} sc1")
    e("s_mov_b64 exec, -1")
lab("L_g1_loop")
for ks in range(4):
    buf = ks & 1
    e("s_waitcnt lgkmcnt(0)")
    if ks == 3:
        e("s_barrier")
    nxt = g1reads((ks+1) & 3, buf ^ 1)
    sched = [3, 3, 2, 2, 0, 0]; p = 0
    for n, (mb, nb) in enumerate([(0,0),(0,1),(1,0),(1,1),(2,0),(2,1)] if "snake" not in X else [(0,0),(0,1),(1,1),(1,0),(2,0),(2,1)]):
        a = ACC + 16*(2*mb+nb)
        if "mf16" in X:
            o = 8*(ks & 1)
            e(f"v_mfma_f32_16x16x32_bf16 {vr(a+o,4)}, {vr(FR[buf]+4*mb,4)}, {vr(FR[buf]+12+4*nb,4)}, {vr(a+o,4)}")
            for _ in range((sched[n]+1)//2): e(nxt[p]); p += 1
            e(f"v_mfma_f32_16x16x32_bf16 {vr(a+o+4,4)}, {vr(FR[buf]+12+4*nb,4)}, {vr(FR[buf]+4*mb,4)}, {vr(a+o+4,4)}")
            for _ in range(sched[n]//2): e(nxt[p]); p += 1
        else:
            e(f"v_mfma_f32_32x32x16_bf16 {vr(a,16)}, {vr(FR[buf]+4*mb,4)}, {vr(FR[buf]+12+4*nb,4)}, {vr(a,16)}")
            for _ in range(sched[n]): e(nxt[p]); p += 1
        if ks == 2 and n == 4:
            e(f"s_add_u32 s25, s25, {WSLOT}"); e(f"s_cmp_eq_u32 s25, {4*WSLOT}"); e("s_cselect_b32 s25, 0, s25")
            e(f"s_add_u32 s26, s26, 16384"); e(f"s_cmp_eq_u32 s26, {3*16384}"); e("s_cselect_b32 s26, 0, s26")
        if ks == 2 and n == 5:
            e("v_add_u32 v15, s25, v12"); e("v_add_u32 v16, s26, v13"); e("v_add_u32 v17, s26, v18")
e("s_add_u32 s24, s24, 1"); e("s_cmp_lt_u32 s24, 7"); e("s_cbranch_scc1 L_g1_loop")
FK = [20, 40, 160, 180]
lg.clear(); lg.add(("k0",), 10)
rd = []
def rdA(ks, mb): return [(f"ds_read_b64_tr_b16 {vr(FK[ks]+4*mb+2*hh,2)}, v15 offset:{(16*ks+4*hh)*192+32*mb}", ("A", ks, mb)) for hh in range(2)]
def rdB(ks, nb): return [(f"ds_read_b64_tr_b16 {vr(FK[ks]+12+4*nb+2*hh,2)}, v{16+nb} offset:{4096*ks+1024*hh}", ("B", ks, nb)) for hh in range(2)]
for ks in (1, 2, 3): rd += rdA(ks, 0) + rdB(ks, 0) + rdB(ks, 1)
for mb in (1, 2):
    for ks in (1, 2, 3): rd += rdA(ks, mb)
def epi(mb):
    l = []
    for nb in range(2):
        a = ACC + 16*(2*mb+nb)
        for r in range(8): l.append(f"v_max_f32 v{a+r}, 0, v{a+r}")
        for r in range(8): l.append(f"v_mul_f32 v{a+r}, v{a+r}, v{a+8+r}")
        for p in range(4): l.append(f"v_cvt_pk_bf16_f32 v{a+8+p}, v{a+2*p}, v{a+2*p+1}")
        l.append(f"buffer_store_dwordx4 {vr(a+8,4)}, v11, {SWS}, s{17+nb} offen offset:{1024*mb} sc1")
    return l
lg.wait(("k0",))
seq = [(0, mb, nb) for mb in range(3) for nb in range(2)] + [(ks, 0, nb) for ks in (1, 2, 3) for nb in range(2)] + ["bar"]
seq += [(1, 1, 0), (1, 1, 1), "chk", ("c", 0, 0), ("c", 0, 1)] + [(ks, 1, nb) for ks in (2, 3) for nb in range(2)] + [("c", 1, 0), ("c", 1, 1)]
seq += [("c", 2, 0), ("c", 2, 1)] + [(ks, 2, nb) for ks in (1, 2) for nb in range(2)] + [(3, 2, 0), (3, 2, 1)]
last = {}
for n, x in enumerate(seq):
    if isinstance(x, tuple): last[(x[1], x[2])] = n
epq = []
def epi1(mb, nb):
    a = ACC + 16*(2*mb+nb); l = []
    for r in range(8): l.append(f"v_max_f32 v{a+r}, 0, v{a+r}")
    for r in range(8): l.append(f"v_mul_f32 v{a+r}, v{a+r}, v{a+8+r}")
    for p in range(4): l.append(f"v_cvt_pk_bf16_f32 v{a+8+p}, v{a+2*p}, v{a+2*p+1}")
    l.append(f"buffer_store_dwordx4 {vr(a+8,4)}, v11, {SWS}, s{17+nb} offen offset:{1024*mb} sc1")
    return l
for n, x in enumerate(seq):
    if x == "bar":
        e("s_waitcnt lgkmcnt(0)"); lg.clear(); assert not rd
        e("s_barrier")
        e("s_mov_b32 exec_hi, 0")
        for mb in range(3): e(f"ds_read_b128 {vr(200+4*mb,4)}, v19 offset:{512*mb}")
        for nb in range(2): e(f"ds_read_b128 {vr(212+4*nb,4)}, v14 offset:{512*nb}")
        e("s_mov_b64 exec, -1")
        e("s_mov_b32 s30, 0x100000")
        continue
    if x == "chk":
        e("s_waitcnt lgkmcnt(0)")
        mark(1, "it2")
        lab("L_corr")
        e("v_xor_b32 v60, s9, v203")
        for r in (207, 211, 215, 219):
            e(f"v_xor_b32 v63, s9, v{r}"); e("v_or_b32 v60, v60, v63")
        e("v_cmp_ne_u32 vcc, 0, v60")
        e("s_cmp_eq_u32 vcc_lo, 0"); e("s_cbranch_scc1 L_corrx")
        e("s_sub_u32 s30, s30, 1"); e("s_cbranch_scc1 L_corrx")
        corr_loads()
        e("s_waitcnt vmcnt(0)")
        e("s_branch L_corr")
        lab("L_corrx")
        mark(2, "it2")
        for r in (203, 207, 211, 215, 219): e(f"v_mov_b32 v{r}, 0")
        e("s_nop 1")
        continue
    ks, mb, nb = x
    a = ACC + 16*(2*mb+nb)
    if ks == "c":
        e(f"v_mfma_f32_32x32x16_bf16 {vr(a,16)}, {vr(200+4*mb,4)}, {vr(212+4*nb,4)}, {vr(a,16)}")
    else:
        need = [("A", ks, mb), ("B", ks, nb)]
        while any(y[1] in need for y in rd):
            s_, tg = rd.pop(0); e(s_); lg.add(tg)
        lg.wait(*need)
        e(f"v_mfma_f32_32x32x16_bf16 {vr(a,16)}, {vr(FK[ks]+4*mb,4)}, {vr(FK[ks]+12+4*nb,4)}, {vr(a,16)}")
    if last[(mb, nb)] == n: epq += [(len(L) + 12, t) for t in epi1(mb, nb)]
    for _ in range(3):
        if rd: s_, tg = rd.pop(0); e(s_); lg.add(tg)
    k = 0
    while epq and k < 6:
        short = epq[0][0] - len(L)
        if short > 0:
            p_ = min(short, 6 - k)
            e(f"s_nop {p_-1}"); L.extend(["    ; pad"] * (p_ - 1)); k += p_
            continue
        e(epq.pop(0)[1]); k += 1
mark(8); mark(3, "it2")
while epq:
    short = epq[0][0] - len(L)
    if short > 0:
        e(f"s_nop {short-1}"); L.extend(["    ; pad"] * (short - 1))
    e(epq.pop(0)[1])
mark(4, "it2")
lab("L_c_p4")
RES = 224
for r in range(16): e(f"v_mov_b32 v{RES+r}, 0")
e("s_lshl_b32 s22, s13, 17"); e("s_lshl_b32 s16, s28, 14"); e("s_add_u32 s22, s22, s16"); e("s_lshl_b32 s16, s21, 13"); e("s_add_u32 s22, s22, s16")
e(f"s_add_u32 s22, s22, {HT_OFF:#x}"); e("s_add_u32 s23, s22, 4096")
e("s_lshl_b32 s25, s77, 1"); e("s_add_u32 s25, s25, s20")
e(f"s_mul_i32 s25, s25, {HH_KS*1024}"); e("s_lshl_b32 s16, s21, 12"); e("s_add_u32 s25, s25, s16"); e(f"s_add_u32 s25, s25, {HH_OFF:#x}")
e("s_lshl_b32 s27, s28, 7"); e("s_lshl_b32 s15, s21, 6"); e("s_add_u32 s27, s27, s15")
e("s_waitcnt vmcnt(0)"); mark(5, "it2"); e("s_barrier")
mark(9); mark(6, "it2")
ACC = 160
FR = [20, 36, 192]
PD = int(os.environ.get("PD", "2"))
e("v_add_u32 v52, 0x10000, v246"); e("v_add_u32 v53, 0x10000, v247"); e("v_add_u32 v54, 0x20000, v246"); e("v_add_u32 v55, 0x20000, v247")
def g2reads(G):
    i = G >> 1; slot = i % 10; l = []
    base = [("v246", "v247"), ("v52", "v53"), ("v54", "v55")][slot >> 2]
    for q in range(2):
        ks = 2*(G & 1) + q
        for db in range(2):
            b = FR[G % 3] + 8*q + 4*db
            off = (slot & 3)*16384 + ks*2048
            l.append((f"ds_read_b64_tr_b16 {vr(b,2)}, {base[db]} offset:{off}", ("W", G, q, db)))
            l.append((f"ds_read_b64_tr_b16 {vr(b+2,2)}, {base[db]} offset:{off+1024}", ("W", G, q, db)))
    return l
post_flag(FL3_OFF, 0)
lg.clear()
for G0 in range(2):
    for s, t in g2reads(G0): e(s)
e("s_waitcnt lgkmcnt(0)"); e("s_barrier")
for ii in range(4 if "nores" not in X else 0):
    for j in range(4):
        e(f"buffer_load_short_d16_hi v{RES+4*ii+j}, v{241+j}, {SWS}, s{22+(ii>>1)} offen offset:{2048*(ii&1)+256*j} sc1")
e("s_cmp_lg_u32 s3, 0"); e("s_cbranch_scc1 L_c_np3")
e("s_mov_b64 exec, 0xffff")
poll("v248", "v249", "s9", "ap3" in X)
lab("L_c_np3")
mark(7, "it2")
e("s_barrier")
mark(8, "it2"); mark(1, "p4")
vm = Trk("vmcnt", 63)
NHR = 6; HB = 64
def issueHH(i):
    rot11(i if "hhsame" not in X else i % 2)
    e("s_lshl_b32 s15, s15, 13"); e("s_add_u32 s15, s15, s25")
    for q in range(4):
        e(f"buffer_load_dwordx4 {vr(HB+16*(i % NHR)+4*q,4)}, v11, {SWS}, s15 offen offset:{1024*q} sc1"); vm.add(("HH", i, q))
NH0 = int(os.environ.get("NH0", "3"))
for i in range(NH0): issueHH(i)
def hh1(i, q):
    if q == 0:
        rot11(i)
        e("s_lshl_b32 s15, s15, 13"); e("s_add_u32 s17, s15, s25")
    e(f"buffer_load_dwordx4 {vr(HB+16*(i % NHR)+4*q,4)}, v11, {SWS}, s17 offen offset:{1024*q} sc1"); vm.add(("HH", i, q))
mark(10)
assert PD == 2
for G in range(20):
    i = G >> 1
    if G in (1, 6, 12, 16, 18, 20): mark(2 + (1, 6, 12, 16, 18, 20).index(G), "p4")
    if G == 8: e("s_barrier")
    if G == 2: mark(9, "it2")
    if G == 12: mark(10, "it2")
    nxt = g2reads(G+PD) if G + PD < 22 else []
    p = 0
    for q in range(2):
        ks = 2*(G & 1) + q
        vm.wait(("HH", i, ks))
        for db in range(2):
            lg.wait(("W", G, q, db))
            b = FR[G % 3] + 8*q + 4*db
            c = vr(ACC+16*db, 16) if (G or q) else "0"
            e(f"v_mfma_f32_32x32x16_bf16 {vr(ACC+16*db,16)}, {vr(b,4)}, {vr(HB+16*(i % NHR)+4*ks,4)}, {c}")
            for _ in range(2):
                if p < len(nxt): e(nxt[p][0]); lg.add(nxt[p][1]); p += 1
            if db == 0 and i + NH0 <= 10: hh1(i + NH0, ks)
    if G == 17:
        e("s_lshl_b32 s15, s13, 9"); e(f"s_add_u32 s15, s15, {R2_OFF:#x}")
        e(f"buffer_load_dword v240, v62, {SWS}, s15 offen sc1"); vm.add("res")
e("s_lshl_b32 s15, s11, 12"); e("s_add_u32 s15, s15, 16384"); e("s_xor_b32 s16, s15, 4096")
e("v_add_u32 v56, s15, v11"); e("v_add_u32 v57, s16, v11")
for db in (1, 0):
    for G in (20, 21):
        for q in range(2):
            ks = 2*(G & 1) + q
            vm.wait(("HH", 10, ks)); lg.wait(("W", G, q, db))
            b = FR[G % 3] + 8*q + 4*db
            e(f"v_mfma_f32_32x32x16_bf16 {vr(ACC+16*db,16)}, {vr(b,4)}, {vr(HB+16*(10 % NHR)+4*ks,4)}, {vr(ACC+16*db,16)}")
            if db == 0 and G == 20: e("s_nop 5")
            if db == 0 and G == 21:
                for u in (2*q, 2*q+1): e(f"ds_write_b128 v56, {vr(ACC+16+4*u,4)} offset:{1024*u}")
mark(8, "p4")
e("s_waitcnt vmcnt(0) lgkmcnt(0)")
e("s_barrier")
mark(9, "p4")
for u in range(4): e(f"ds_read_b128 {vr(64+4*u,4)}, v57 offset:{1024*u}")
e("v_mov_b32 v241, v240")
e("s_nop 5")
for u in range(4):
    e(f"s_waitcnt lgkmcnt({3-u})")
    for p in range(2): e(f"v_pk_add_f32 {vr(ACC+4*u+2*p,2)}, {vr(ACC+4*u+2*p,2)}, {vr(64+4*u+2*p,2)}")
    for p in range(2): e(f"v_pk_fma_f32 {vr(ACC+4*u+2*p,2)}, {vr(ACC+4*u+2*p,2)}, v[240:241], {vr(RES+4*u+2*p,2)}")
    for p in range(2): e(f"v_cvt_pk_bf16_f32 v{32+2*u+p}, v{ACC+4*u+2*p}, v{ACC+4*u+2*p+1}")
    if u & 1:
        b = 32 + 2*(u-1)
        e("s_nop 1")
        e(f"v_permlane32_swap_b32 v{b}, v{b+2}"); e(f"v_permlane32_swap_b32 v{b+1}, v{b+3}")
        e(f"buffer_store_dwordx4 {vr(b,4)}, v245, {SOUT}, s27 offen offset:{16*(u-1)}")
mark(10, "p4")
endpgm()

lab("L_H")
vm = Trk("vmcnt", 63)
e(f"v_lshlrev_b32 v4, 2, v2"); e(f"v_add_u32 v4, {FLG_L}, v4"); e("v_mov_b32 v5, 0")
e("s_mov_b64 exec, 0xffff")
e("ds_write_b32 v4, v5")
e("s_mov_b64 exec, -1")
e("v_lshlrev_b32 v11, 4, v2")
e("s_lshl_b32 s24, s2, 13"); e("s_lshl_b32 s16, s11, 11"); e("s_add_u32 s24, s24, s16")
QR = " nt" if "qrnt" in X else ""
e(f"buffer_load_dwordx4 {vr(56,4)}, v11, {SQ}, s24 offen{QR}"); e(f"buffer_load_dwordx4 {vr(60,4)}, v11, {SQ}, s24 offen offset:1024{QR}")
e("v_lshlrev_b32 v17, 7, v2")
pass
for j in range(3):
    e(f"v_add_u32 v20, {j*64}, v2")
    e("v_mul_u32_u24 v21, 0x5556, v20"); e("v_lshrrev_b32 v21, 18, v21")
    e("v_mul_u32_u24 v22, 12, v21"); e("v_sub_u32 v22, v20, v22")
    e("v_mul_u32_u24 v21, 2752, v21"); e(f"v_lshl_add_u32 v{14+j}, v22, 4, v21")
    if j: e(f"v_subrev_u32 v{14+j}, {1024*j}, v{14+j}")
e(f"s_mul_i32 s22, s11, {16*2752}"); e("s_mul_i32 s15, s7, 192"); e("s_add_u32 s22, s22, s15")
e(f"s_mul_i32 s23, s11, {16*192}")
e("s_mov_b32 s16, 0x05040100"); e("s_mov_b32 s17, 0x07060302")
e("s_waitcnt vmcnt(3)")
mark(1)
for c in range(4):
    sel = "s17" if c & 1 else "s16"
    e(f"v_perm_b32 v{92+2*c}, v{40+(c>>1)}, v{38+(c>>1)}, {sel}")
    e(f"v_perm_b32 v{93+2*c}, v{44+(c>>1)}, v{42+(c>>1)}, {sel}")
    e(f"ds_write_b64 v13, {vr(92+2*c,2)} offset:{128*c}")
e("s_and_b32 s15, s2, 0xc7"); e("s_or_b32 s15, s15, s11"); e("s_cmp_lg_u32 s15, 0"); e("s_cbranch_scc1 L_noinit")
e("s_waitcnt vmcnt(2)")
e("v_add_u32 v116, 1, v254"); e("v_lshlrev_b32 v116, 6, v116"); e("v_lshlrev_b32 v117, 10, v2")
e("s_lshl_b32 s15, s2, 4"); e(f"s_add_u32 s15, s15, {FL2_OFF:#x}")
e(f"s_mov_b32 exec_lo, {(1 << NREP) - 1:#x}"); e("s_mov_b32 exec_hi, 0")
e(f"buffer_store_dword v116, v117, {SWS}, s15 offen sc1")
e("s_mov_b64 exec, -1")
lab("L_noinit")
mark(7, "p1")
e("s_waitcnt lgkmcnt(0)"); e("s_barrier")
mark(8, "p1")
e("ds_read_b128 v[28:31], v124"); e("ds_read_b128 v[32:35], v125 offset:1024")
e("s_waitcnt lgkmcnt(1)")
e(f"buffer_store_dwordx4 v[28:31], v126, {SWS}, s18 offen sc1")
e("s_waitcnt lgkmcnt(0)")
e(f"buffer_store_dwordx4 v[32:35], v126, {SWS}, s19 offen sc1")
mark(9, "p1")
e("s_waitcnt vmcnt(2)")
e("v_add_u32 v254, 1, v254")
e("s_nop 0")
e("v_readfirstlane_b32 s9, v254")
for rr in range(2):
    for c in range(8): unpack(64+8*rr+c, 56+4*rr+2*(c>>2), c & 3)
def tree(dst, base):
    e(f"v_add_f32 v{dst}, v{base}, v{base+1}")
    for c in range(2, 8): e(f"v_add_f32 v{dst}, v{dst}, v{base+c}")
def reduce2(a, b):
    for m in ("row_shr:1", "row_shr:2", "row_shr:4", "row_shr:8"):
        e("s_nop 0")
        e(f"v_add_f32_dpp v{a}, v{a}, v{a} {m} row_mask:0xf bank_mask:0xf bound_ctrl:0")
        e(f"v_add_f32_dpp v{b}, v{b}, v{b} {m} row_mask:0xf bank_mask:0xf bound_ctrl:0")
    for m, rm in (("row_bcast:15", "0xa"), ("row_bcast:31", "0xc")):
        e("s_nop 0")
        e(f"v_add_f32_dpp v{a}, v{a}, v{a} {m} row_mask:{rm} bank_mask:0xf")
        e(f"v_add_f32_dpp v{b}, v{b}, v{b} {m} row_mask:{rm} bank_mask:0xf")
tree(100, 64); tree(101, 72)
e("s_nop 0")
reduce2(100, 101)
e("s_mov_b32 s18, 0x3b000000")
e("v_mul_f32 v100, s18, v100"); e("v_mul_f32 v101, s18, v101")
e("s_nop 0")
e("v_readlane_b32 s16, v100, 63"); e("v_readlane_b32 s17, v101, 63")
e("s_nop 1")
for c in range(8):
    e(f"v_subrev_f32 v{64+c}, s16, v{64+c}"); e(f"v_subrev_f32 v{72+c}, s17, v{72+c}")
e("v_mul_f32 v102, v64, v64"); e("v_mul_f32 v103, v72, v72")
for c in range(1, 8):
    e(f"v_fmac_f32 v102, v{64+c}, v{64+c}"); e(f"v_fmac_f32 v103, v{72+c}, v{72+c}")
e("s_nop 0")
reduce2(102, 103)
e("v_mov_b32 v104, 0x3727c5ac")
e("v_fma_f32 v102, v102, s18, v104"); e("v_fma_f32 v103, v103, s18, v104")
e("v_rsq_f32 v108, v102"); e("v_rsq_f32 v112, v103")
e("v_mov_b32 v110, v254"); e("v_mov_b32 v114, v254"); e("v_mov_b32 v111, v254"); e("v_mov_b32 v115, v254")
e("v_mul_f32 v109, v100, v108"); e("v_mul_f32 v113, v101, v112")
e("v_sub_f32 v109, 0, v109"); e("v_sub_f32 v113, 0, v113")
e("s_lshr_b32 s15, s2, 5"); e("s_lshl_b32 s15, s15, 12"); e("s_lshl_b32 s16, s21, 11"); e("s_add_u32 s15, s15, s16")
e("s_bfe_u32 s16, s2, 0x40001"); e("s_lshl_b32 s16, s16, 5"); e("s_add_u32 s15, s15, s16")
e("s_and_b32 s16, s2, 1"); e("s_lshl_b32 s16, s16, 1"); e("s_add_u32 s16, s16, s20"); e("s_lshl_b32 s16, s16, 9"); e("s_add_u32 s15, s15, s16")
e(f"s_add_u32 s15, s15, {STG_OFF:#x}")
e("s_mov_b32 exec_lo, 0"); e("s_mov_b32 exec_hi, 0x80000000")
e(f"buffer_store_dwordx4 v[108:111], v5, {SWS}, s15 offen sc1")
e(f"buffer_store_dwordx4 v[112:115], v5, {SWS}, s15 offen offset:16 sc1")
e("s_mov_b64 exec, -1")
mark(3)
e("s_waitcnt vmcnt(2)")
mark(10, "p1")
e("s_barrier")
mark(2)
post_flag(FL1_OFF, 4)
e("s_cmp_lg_u32 s3, 4"); e("s_cbranch_scc1 L_h_np1")
e("s_lshl_b32 s16, s4, 12"); e(f"s_add_u32 s16, s16, {FL1_OFF:#x}"); e("v_add_u32 v7, s16, v17")
e("s_mov_b32 exec_hi, 0")
poll("v7", "v8", "s9", "ap1" in X)
lab("L_h_np1")
e("s_barrier")
e("v_lshlrev_b32 v9, 4, v3")
e("v_lshlrev_b32 v10, 3, v3"); e(f"v_add_u32 v10, {ST_L}, v10")
for j in range(8):
    e(f"s_add_u32 s16, s5, {j}"); e("s_and_b32 s16, s16, 7"); e("s_lshl_b32 s16, s16, 11"); e(f"v_add_u32 v{100+j}, s16, v10")
def issueW(i, emit=True):
    l = []
    l.append([f"s_add_u32 s15, s8, {i}", "s_and_b32 s15, s15, 7", f"s_mul_i32 s15, s15, {64*2752}", "s_add_u32 s15, s15, s22",
              f"s_add_u32 m0, s23, {(i % 4)*WSLOT}", "s_nop 0", f"buffer_load_dwordx4 v14, {SWG}, s15 offen lds"])
    for j in (1, 2): l.append([f"buffer_load_dwordx4 v{14+j}, {SWG}, s15 offen offset:{1024*j} lds"])
    l.append([f"s_add_u32 s15, s8, {i}", "s_and_b32 s15, s15, 7", f"s_mul_i32 s15, s15, {64*2752}", "s_add_u32 s15, s15, s22",
              f"s_add_u32 m0, s23, {(i % 4)*WSLOT + W_U}", "s_nop 0", f"buffer_load_dwordx4 v14, {SWU}, s15 offen lds"])
    for j in (1, 2): l.append([f"buffer_load_dwordx4 v{14+j}, {SWU}, s15 offen offset:{1024*j} lds"])
    return [(x, ("W", i)) for x in l]
def emit_all(items):
    for x, t in items:
        for s in x: e(s)
        vm.add(t)
def stg_loads():
    for j in range(8):
        e(f"s_add_u32 s16, s5, {j}"); e("s_and_b32 s16, s16, 7"); e("s_lshl_b32 s16, s16, 12"); e(f"s_add_u32 s16, s16, {STG_OFF:#x}")
        e(f"buffer_load_dwordx4 {vr(64+4*j,4)}, v9, {SWS}, s16 offen sc1")
stg_loads()
e("s_barrier")
mark(4)
NWPRE = int(os.environ.get("NWPRE", "2"))
e("s_cmp_eq_u32 s7, 15"); e("s_cbranch_scc1 L_h_now0")
emit_all(issueW(0))
e("s_waitcnt vmcnt(6)")
e("s_branch L_stg0")
lab("L_h_now0")
e("s_waitcnt vmcnt(0)")
lab("L_stg0")
if "noprio" not in X: e("s_setprio 3")
mark(9, "p2")
e("s_mov_b32 s30, 0x100000")
lab("L_stg")
e("v_xor_b32 v50, s9, v66")
for j in range(1, 8):
    e(f"v_xor_b32 v51, s9, v{66+4*j}"); e("v_or_b32 v50, v50, v51")
e("v_cmp_ne_u32 vcc, 0, v50")
e("s_cbranch_vccz L_stgx")
e("s_sub_u32 s30, s30, 1"); e("s_cbranch_scc1 L_stgx")
stg_loads()
e("s_waitcnt vmcnt(0)")
e("s_branch L_stg")
lab("L_stgx")
mark(10, "p2")
for j in range(8): e(f"ds_write_b64 v{100+j}, {vr(64+4*j,2)}")
e("s_lshl_b32 s15, s11, 2"); e(f"s_add_u32 s15, s15, {FLG_L+16}"); e("v_mov_b32 v50, s15"); e("v_mov_b32 v51, 1")
e("ds_write_b32 v50, v51")
if "noprio" not in X: e("s_setprio 0")
mark(5)
if "nowdt" not in X:
    e("s_mul_i32 s15, s2, 5504"); e("s_mul_i32 s16, s11, 1408"); e("s_add_u32 s15, s15, s16")
    e("s_mov_b64 exec, 0x7ff")
    e(f"buffer_load_dword v250, v17, {SWD}, s15 offen"); vm.add("t")
    e("s_mov_b64 exec, -1")
e("s_cmp_eq_u32 s7, 15"); e("s_cbranch_scc1 L_h_now")
for i in range(1, NWPRE): emit_all(issueW(i))
lab("L_h_now")
mark(7, "p2")
e("v_and_b32 v20, 15, v2"); e("v_lshrrev_b32 v21, 4, v2"); e("v_lshrrev_b32 v22, 2, v20"); e("v_and_b32 v23, 3, v20")
e("v_lshrrev_b32 v24, 5, v2"); e("v_and_b32 v25, 1, v21"); e("v_lshl_add_u32 v26, v24, 3, v22")
e("v_lshlrev_b32 v27, 8, v26"); e("v_lshl_add_u32 v27, v25, 5, v27"); e("v_lshl_add_u32 v27, v23, 3, v27")
e("v_xor_b32 v17, s11, v22"); e("v_lshl_add_u32 v17, v17, 6, v27"); e(f"v_add_u32 v17, {A_L}, v17")
e("v_add_u32 v18, 16384, v17"); e("v_add_u32 v19, 32768, v17")
e("v_lshrrev_b32 v7, 3, v2"); e("v_lshlrev_b32 v7, 5, v7"); e("v_and_b32 v8, 7, v2"); e("v_add_u32 v7, v7, v8")
e("s_lshl_b32 s16, s11, 3"); e("v_add_u32 v7, s16, v7"); e("v_lshlrev_b32 v7, 7, v7"); e("s_lshl_b32 s16, s4, 15"); e(f"s_add_u32 s16, s16, {FL2_OFF:#x}"); e("v_add_u32 v7, s16, v7")
e("s_lshl_b32 s26, s6, 17"); e("s_lshl_b32 s19, s11, 12"); e("s_add_u32 s26, s26, s19"); e(f"s_add_u32 s26, s26, {HT_OFF:#x}")
for r in range(4): e(f"v_mov_b32 v{20+r}, 0")
e("s_mov_b32 s27, 0x3f803f80")
e("v_lshrrev_b32 v12, 3, v2"); e("v_and_b32 v13, 7, v2"); e("v_bfe_u32 v28, v2, 4, 1"); e("v_lshlrev_b32 v28, 2, v28"); e("v_xor_b32 v13, v13, v28")
e("v_lshlrev_b32 v12, 10, v12"); e("v_lshl_add_u32 v12, v13, 4, v12")
e("s_lshl_b32 s24, s11, 15"); e("s_lshl_b32 s16, s28, 7"); e("s_add_u32 s24, s24, s16")
def issueWd(i):
    l = [[f"s_add_u32 s15, s29, {i if 'wdsame' not in X else i % 3}", "s_cmp_ge_u32 s15, 11", "s_cselect_b32 s16, 11, 0", "s_sub_u32 s15, s15, s16",
          "s_lshl_b32 s15, s15, 17", "s_add_u32 s15, s15, s24", f"s_add_u32 m0, s19, {(i % 10)*16384}", "s_nop 0",
          f"buffer_load_dwordx4 v12, {SWD}, s15 offen lds"]]
    for j in (1, 2, 3): l.append([f"s_add_u32 s16, s15, {j*7168}", f"buffer_load_dwordx4 v12, {SWD}, s16 offen offset:{1024*j} lds"])
    return [(x, ("Wd", i)) for x in l]
WR = 122
def issueWdR(i):
    r = WR + 16*(i-3)
    l = [[f"s_add_u32 s15, s29, {i}", "s_cmp_ge_u32 s15, 11", "s_cselect_b32 s16, 11, 0", "s_sub_u32 s15, s15, s16",
          "s_lshl_b32 s15, s15, 17", "s_add_u32 s15, s15, s24", f"buffer_load_dwordx4 {vr(r,4)}, v12, {SWD}, s15 offen"]]
    for j in (1, 2, 3): l.append([f"s_add_u32 s16, s15, {j*8192}", f"buffer_load_dwordx4 {vr(r+4*j,4)}, v12, {SWD}, s16 offen"])
    return [(x, ("Wd", i)) for x in l]
def writeWdR(i):
    r = WR + 16*(i-3); off = (i % 10)*16384
    for j in range(4): e(f"ds_write_b128 v{30 + (off >> 16)}, {vr(r+4*j,4)} offset:{(off & 0xffff) + 1024*j}")
RSCH = eval(os.environ.get("RSCH", "{'w': [10], 0: [9,8,7]}"))
e("v_mov_b32 v118, 1"); e("v_lshlrev_b32 v119, 10, v2"); e("s_lshl_b32 s16, s4, 7"); e(f"s_add_u32 s16, s16, {FL2_OFF:#x}"); e("v_add_u32 v119, s16, v119")
e("v_lshlrev_b32 v120, 7, v2"); e(f"s_and_b32 s16, s2, {NREP-1}"); e("s_lshl_b32 s16, s16, 10"); e(f"s_add_u32 s16, s16, {FL2_OFF:#x}"); e("v_add_u32 v120, s16, v120")
e("s_lshl_b32 s25, s9, 6"); e("s_add_u32 s25, s25, 32")
if RSCH.get('p'):
    e("s_cmp_eq_u32 s7, 15"); e("s_cbranch_scc1 L_now3")
    for k in RSCH['p']: emit_all(issueWdR(k))
    lab("L_now3")
vm.wait(("W", 0))
mark(8, "p2")
e("s_barrier")
mark(6)
if "f256" in X:
    post_flag(FL2_OFF, 4, 8)
    poll("v7", "v8"); vm.clear()
else:
    e("s_cmp_lg_u32 s3, 4"); e("s_cbranch_scc1 L_noadd")
    e(f"s_mov_b32 exec_lo, {(1 << NREP) - 1:#x}"); e("s_mov_b32 exec_hi, 0")
    e(f"buffer_atomic_add v118, v119, {SWS}, 0 offen sc1")
    e("s_mov_b64 exec, -1")
    lab("L_noadd")
    e("s_cmp_eq_u32 s7, 15"); e("s_cbranch_scc1 L_now2")
    for k in range(NWPRE, 4): emit_all(issueW(k))
    for k in RSCH.get('w', []): emit_all(issueWdR(k))
    lab("L_now2")
    e("s_cmp_lg_u32 s3, 4"); e("s_cbranch_scc1 L_nopoll2")
    e("s_mov_b64 exec, 0xff")
    poll("v120", "v8", "s25", "ap2" in X)
    lab("L_nopoll2")
e("s_barrier")
e("s_cmp_eq_u32 s7, 15"); e("s_cbranch_scc1 L_h_idle")
def issueA(i, dst=None):
    if dst is None: dst = A_L + (i % 3)*16384
    l = [[f"s_add_u32 s15, s8, {i}", "s_and_b32 s15, s15, 7", "s_lshl_b32 s15, s15, 14", "s_add_u32 s15, s15, s26",
          f"s_add_u32 m0, s19, {dst}", "s_nop 0", f"buffer_load_dwordx4 v11, {SWS}, s15 offen sc1 lds"]]
    for j in (1, 2, 3): l.append([f"buffer_load_dwordx4 v11, {SWS}, s15 offen offset:{1024*j} sc1 lds"])
    return [(x, ("A", i)) for x in l]
for i in range(3): emit_all(issueA(i))
mark(7)
vm.wait(("A", 0))
e("s_barrier")
mark(1, "it2"); mark(1, "it3")
corr_items = [(["s_mul_i32 s15, s7, 3072", "s_lshl_b32 s16, s11, 10", "s_add_u32 s15, s15, s16", f"s_add_u32 s15, s15, {CSF_OFF:#x}",
                "s_lshl_b32 s17, s6, 11", f"s_add_u32 s17, s17, {ST2_OFF:#x}", "s_cmp_eq_u32 s11, 3", "s_cselect_b32 s15, s17, s15",
                f"s_add_u32 m0, s16, {CORR_L}", "s_nop 0", f"buffer_load_dwordx4 v11, {SWS}, s15 offen sc1 lds"], "corr"),
              ([f"s_mov_b32 m0, {CORR_L+3072}", "s_nop 0", f"buffer_load_dwordx4 v11, {SWS}, s17 offen offset:1024 sc1 lds"], "corr")]
Wh = lambda k, h: issueW(k)[3*h:3*h+3]
SCHED = {1: Wh(4,0)+Wh(4,1), 2: Wh(5,0), 3: Wh(5,1)+Wh(6,0), 4: Wh(6,1)+Wh(7,0), 5: Wh(7,1)+issueWd(0), 6: corr_items+issueWd(1)+issueWd(2)}
if "nosmooth" in X:
    SCHED = {1: issueW(4), 2: issueW(5), 3: issueW(6), 4: issueW(7), 5: issueWd(0)+corr_items, 6: issueWd(1)+issueWd(2), 7: issueWd(3)}
for i in range(8):
    items = []
    if 1 <= i <= 5: items += issueA(i+2)
    items += SCHED.get(i, [])
    for k in RSCH.get(i, []): items += issueWdR(k)
    emit_all(items)
    if i < 7:
        vm.wait(("A", i+1), ("W", i+1))
        mark(2+i, "it3")
        e("s_barrier")
        mark(2+i, "it2")
vm.wait("corr"); mark(9, "it3"); e("s_barrier")
mark(9, "it2")
mark(8)
NPRE = int(os.environ.get("NPRE", "10"))
e("v_add_u32 v30, s19, v11"); e("v_add_u32 v31, 0x10000, v30"); e("v_add_u32 v32, 0x20000, v30")
RSET = sorted(sum(RSCH.values(), []))
assert 9 in RSET and 10 in RSET
for i in range(3, 9):
    if i not in RSET: emit_all(issueWd(i))
for i in range(3, 9):
    if i in RSET: vm.wait(("Wd", i)); writeWdR(i)
vm.wait(("Wd", 0), ("Wd", 9), ("Wd", 10))
e("s_barrier")
mark(9)
writeWdR(9)
e("s_barrier")
writeWdR(10)
e("s_waitcnt vmcnt(0) lgkmcnt(0)")
e("s_branch L_h_p40")
lab("L_h_idle")
mark(1, "it2")
for i in range(8): emit_all(issueA(i, i*16384))
mark(2, "it2")
e(f"v_subrev_u32 v17, {A_L}, v17")
for r in range(4): e(f"v_mov_b32 v{28+r}, s27")
FS = 100
for half in range(2):
    e(f"s_waitcnt vmcnt({16 - 16*half})"); e("s_barrier")
    mark(3+half, "it2")
    lg.clear()
    rds = [(f"ds_read_b64_tr_b16 {vr(FS+64*half+4*q+2*hh,2)}, v17 offset:{4096*q+1024*hh}", q) for q in range(16) for hh in range(2)]
    for s_, t in rds[:12]: e(s_); lg.add(t)
    rds = rds[12:]
    for q in range(16):
        lg.wait(q)
        e(f"v_mfma_f32_32x32x16_bf16 v[64:79], v[28:31], {vr(FS+64*half+4*q,4)}, {'v[64:79]' if (half or q) else '0'}")
        for s_, t in rds[:2]: e(s_); lg.add(t)
        rds = rds[2:]
    e("v_add_u32 v17, 0x10000, v17")
for q in range(4): e(f"v_mfma_f32_32x32x16_bf16 v[80:95], {vr(FS+4*q,4)}, {vr(FS+4*q,4)}, {'v[80:95]' if q else '0'}")
e("s_nop 7")
e("v_mul_f32 v27, s18, v64")
e("v_sub_f32 v24, 0, v27")
e("v_cvt_pk_bf16_f32 v20, v24, v24")
e("v_and_b32 v25, s14, v20"); e("v_sub_f32 v25, v24, v25"); e("v_mov_b32 v22, 0")
e("v_cvt_pk_bf16_f32 v21, v25, v22")
e("v_mov_b32 v23, v254")
e("s_lshl_b32 s15, s6, 11"); e("s_lshl_b32 s16, s11, 9"); e("s_add_u32 s15, s15, s16"); e(f"s_add_u32 s15, s15, {ST2_OFF:#x}")
e("s_mov_b32 exec_hi, 0")
e(f"buffer_store_dwordx4 v[20:23], v11, {SWS}, s15 offen sc1")
e("s_mov_b64 exec, -1")
mark(7, "it2")
e("s_barrier")
for q in range(4, 32): e(f"v_mfma_f32_32x32x16_bf16 v[80:95], {vr(FS+4*q,4)}, {vr(FS+4*q,4)}, v[80:95]")
e("v_bfe_u32 v22, v2, 3, 2"); e("v_lshlrev_b32 v22, 2, v22"); e("v_and_b32 v23, 3, v2"); e("v_add_u32 v22, v22, v23")
e("v_bfe_u32 v23, v2, 2, 1"); e("v_lshrrev_b32 v24, 5, v2"); e("v_xor_b32 v23, v23, v24"); e("v_lshl_add_u32 v22, v23, 4, v22")
e("v_mov_b32 v21, 0")
e("s_nop 7")
for r in range(16):
    e(f"v_cmp_eq_u32 s[{100 if False else 76}:{77}], {r}, v22" if r & 1 else f"v_cmp_eq_u32 vcc, {r}, v22")
    e("s_nop 1")
    e(f"v_cndmask_b32 v21, v21, v{80+r}, s[76:77]" if r & 1 else f"v_cndmask_b32 v21, v21, v{80+r}, vcc")
e("v_mov_b32 v23, v21")
e("s_nop 1")
e("v_permlane32_swap_b32 v23, v21")
e("s_nop 1")
e("v_add_f32 v21, v21, v23")
e("v_mul_f32 v21, s18, v21")
e("v_fma_f32 v21, -v27, v27, v21"); e("v_max_f32 v21, 0, v21"); e("v_add_f32 v21, 0x3727c5ac, v21")
e("v_rcp_f32 v22, v21")
e("v_lshlrev_b32 v23, 2, v2")
e("s_lshl_b32 s15, s6, 9"); e("s_lshl_b32 s16, s11, 7"); e("s_add_u32 s15, s15, s16"); e(f"s_add_u32 s15, s15, {R2_OFF:#x}")
e("s_mov_b32 exec_hi, 0")
e(f"buffer_store_dword v22, v23, {SWS}, s15 offen sc1")
e("s_mov_b64 exec, -1")
e("s_waitcnt vmcnt(0)")
mark(8); mark(8, "it2")
vm.clear()
for i in range(0, NPRE): emit_all(issueWd(i))
vm.wait(("Wd", 0))
e("s_barrier")
mark(9)
e("s_barrier")
for i in range(NPRE, 11): emit_all(issueWd(i))
e("s_waitcnt vmcnt(0)")
lab("L_h_p40")
mark(10)
e("s_barrier")
e("s_cmp_lg_u32 s2, 0"); e("s_cbranch_scc1 L_hend")
e("s_cmp_lg_u32 s3, 4"); e("s_cbranch_scc1 L_hend")
e("s_mov_b64 exec, 1")
e(f"buffer_store_dword v254, v255, {SWS}, 0 offen sc1")
lab("L_hend")
if STAMP: e("s_barrier"); e("s_barrier")
endpgm()
lab("L_end")

hdr = open("sequential_preLN__ssm_conv_h3__glu_gated_reglu__prompt.s.ref").read().split("; Override")[0]
s = hdr + f"; @launch grid=(256,1,1) block=(512,1,1) lds={LDS_BYTES}\n"
s += '.amdgcn_target "amdgcn-amd-amdhsa--gfx950"\n.text\n'
s += f".globl {NAME}\n.p2align 8\n.type {NAME},@function\n{NAME}:\n" + "\n".join(L) + "\n    s_endpgm\n"
s += f""".section .rodata,"a"
.p2align 6
.amdhsa_kernel {NAME}
  .amdhsa_next_free_vgpr 256
  .amdhsa_next_free_sgpr 102
  .amdhsa_accum_offset 256
  .amdhsa_group_segment_fixed_size 0
  .amdhsa_kernarg_size 104
  .amdhsa_user_sgpr_count 2
  .amdhsa_user_sgpr_kernarg_segment_ptr 1
  .amdhsa_system_sgpr_workgroup_id_x 1
  .amdhsa_float_denorm_mode_32 3
.end_amdhsa_kernel
"""
open(OUT, "w").write(s)
```

```python
import sys, os
OUT = sys.argv[1] if len(sys.argv) > 1 else "v8.s"
STAMP = int(os.environ.get("STAMP", "0"))
X = os.environ.get("X", "").split(",") + ["ap2", "ap3", "qnt", "qrnt", "m2"]
SLP = int(os.environ.get("SLP", "1"))
NREP = int(os.environ.get("NREP", "32"))
NT = "" if "nont" in X else " nt"
NAME = "sequential_preLN__ssm_conv_h3__glu_gated_reglu__prompt_kernel"

RS      = 4224
KVT_OFF = 0
QT_OFF  = 0x210000
STG_OFF = 0x420000
EPO_OFF = 0x428000
FL1_OFF = 0x430000
FL3_OFF = 0x440000
ST2_OFF = 0x448000
CSF_OFF = 0x450000
R2_OFF  = 0x460000
CSP_OFF = 0x468000
FL2_OFF = 0x4D0000
HT_OFF  = 0x510000
HH_OFF  = 0x710000
HH_KS   = 96
WS_END  = HH_OFF + 64 * HH_KS * 1024
STAMP_OFF = 0x1000000
if STAMP and "dbg" not in X: WS_END = 0x2000000

WSLOT = 24640; W_U = 12320
RB = 4 * WSLOT
T_KV = RB
EX_L = 3 * WSLOT
Q_L = EX_L + 16384
T_Q = RB + 8192
CP = 4160; HREG = 4 * CP; XREG = 4608; CH_L = HREG + XREG
ST_L = RB + 2 * CH_L
FLG_L = 163840 - 64
assert ST_L + 16384 <= FLG_L
A_L = RB
MEAN_L = RB + 49152
CORR_L = RB + 49152
LDS_BYTES = 163840

L = []
def e(s): L.append("    " + s)
def lab(s): L.append(s + ":")
def vr(a, n): return f"v[{a}:{a+n-1}]"
def mark(i, grp=None):
    if "p1" in X and i in (7, 8, 9, 10) and grp != "p1": return
    if "it" in X and i in (1, 2, 3) and grp != "it": return
    if "p2" in X and i in (7, 8, 9, 10) and grp != "p2": return
    if ("it2" in X or "it3" in X) and 1 <= i <= 10 and grp not in ("it2", "it3"): return
    if "p4" in X and 1 <= i <= 10 and grp != "p4": return
    if grp and grp not in X: return
    if STAMP: e(f"{'s_memtime' if 'cyc' in X else 's_memrealtime'} s[{78+2*i}:{79+2*i}]")
def srd(d, base, nbytes):
    e(f"s_mov_b32 s{d}, s{base}"); e(f"s_mov_b32 s{d+1}, s{base+1}"); e(f"s_mov_b32 s{d+2}, {nbytes:#x}"); e(f"s_mov_b32 s{d+3}, 0x20000")
NST = 12
def endpgm():
    if STAMP:
        e("s_mov_b64 exec, -1")
        e("s_waitcnt vmcnt(0) lgkmcnt(0)")
        mark(NST-1)
        if "dbg" in X:
            n = nid()
            e("s_cmp_lg_u32 s3, 0"); e(f"s_cbranch_scc1 L_nd{n}"); e("s_cmp_ge_u32 s5, 28"); e(f"s_cbranch_scc1 L_nd{n}")
            e("s_load_dwordx2 s[4:5], s[0:1], 88"); e("s_waitcnt lgkmcnt(0)")
            e("s_mov_b32 s6, 256"); e("s_mov_b32 s7, 0x20000")
            e("s_mov_b64 exec, 1"); e("v_mov_b32 v251, 0")
            e("s_not_b32 s76, s78"); e("v_mov_b32 v252, s76")
            e("buffer_atomic_umax v252, v251, s[4:7], 0 offen offset:48")
            for i in range(NST):
                e(f"v_mov_b32 v{200+i}, s{78+2*i}")
                e(f"buffer_atomic_umax v{200+i}, v251, s[4:7], 0 offen offset:{4*i}")
            lab(f"L_nd{n}")
            e("s_endpgm")
            return
        e("s_lshl_b32 s76, s2, 9"); e("s_lshl_b32 s77, s3, 6"); e("s_add_u32 s76, s76, s77"); e(f"s_add_u32 s76, s76, {STAMP_OFF}")
        e("v_mov_b32 v251, 0")
        e("s_waitcnt lgkmcnt(0)")
        for i in range(NST):
            e(f"v_mov_b32 v252, s{78+2*i}")
            e(f"buffer_store_dword v252, v251, s[40:43], s76 offen offset:{4*i}")
    e("s_endpgm")

class Trk:
    def __init__(self, name, mx): self.q = []; self.name = name; self.mx = mx
    def add(self, tag, n=1): self.q += [tag] * n
    def wait(self, *tags):
        idx = -1
        for i, t in enumerate(self.q):
            if t in tags: idx = i
        if idx < 0: return
        n = len(self.q) - 1 - idx
        n = min(n, self.mx)
        e(f"s_waitcnt {self.name}({n})")
        self.q = self.q[len(self.q) - n:] if n else []
    def clear(self): self.q = []

SQ, SK, SWS, SV, SSH, SSK, SD, SWG, SWU, SWD, SOUT = [f"s[{x}:{x+3}]" for x in (32, 36, 40, 44, 48, 52, 56, 60, 64, 68, 72)]
uid = [0]
def nid():
    uid[0] += 1; return uid[0]
def poll(addr, tmp, want="s9", atom=False):
    n = nid()
    e("s_mov_b32 s30, 0x100000")
    lab(f"L_poll{n}")
    if atom:
        e(f"v_mov_b32 {tmp}, 0")
        e(f"buffer_atomic_add {tmp}, {addr}, {SWS}, 0 offen sc0 sc1")
    else:
        e(f"buffer_load_dword {tmp}, {addr}, {SWS}, 0 offen sc1")
    e("s_waitcnt vmcnt(0)")
    e(f"v_cmp_ne_u32 vcc, {want}, {tmp}")
    e("s_sub_u32 s30, s30, 1")
    e(f"s_cbranch_scc1 L_pollx{n}")
    e("s_and_b64 exec, exec, vcc")
    if SLP:
        e(f"s_cbranch_execz L_pollx{n}")
        e(f"s_sleep {SLP}")
        e(f"s_branch L_poll{n}")
    else:
        e(f"s_cbranch_execnz L_poll{n}")
    lab(f"L_pollx{n}")
    e("s_mov_b64 exec, -1")
def post_flag(off, wave, lanes=1):
    n = nid()
    e(f"s_cmp_lg_u32 s3, {wave}"); e(f"s_cbranch_scc1 L_nopost{n}")
    e(f"s_mov_b64 exec, {(1 << lanes) - 1}")
    e(f"s_mov_b32 s31, {off:#x}")
    e(f"buffer_store_dword v254, v253, {SWS}, s31 offen sc1")
    e("s_mov_b64 exec, -1")
    lab(f"L_nopost{n}")
def unpack(dst, src, c):
    s = src + (c >> 1)
    if c & 1: e(f"v_and_b32 v{dst}, s14, v{s}")
    else: e(f"v_lshlrev_b32 v{dst}, 16, v{s}")

mark(0)
e("s_cmp_ge_u32 s2, 256"); e("s_cbranch_scc1 L_end")
e("s_load_dwordx16 s[4:19], s[0:1], 0")
e("s_load_dwordx8 s[20:27], s[0:1], 64")
e("s_load_dwordx2 s[28:29], s[0:1], 96")
e("v_lshrrev_b32 v1, 6, v0"); e("v_and_b32 v2, 63, v0")
e("v_readfirstlane_b32 s3, v1")
if "nocode" not in X:
    e("s_getpc_b64 s[76:77]")
    lab("L_pc")
    e("s_and_b32 s30, s2, 0xf8"); e("s_add_u32 s30, s30, s3"); e("s_lshl_b32 s30, s30, 7"); e("s_min_u32 s30, s30, L_end - L_pc")
    e("v_mov_b32 v250, s30")
    e("s_mov_b64 exec, 1")
    e("global_load_dword v250, v250, s[76:77]")
    e("s_mov_b64 exec, -1")
e("v_and_b32 v3, 255, v0")
e("v_and_b32 v10, 15, v3"); e("v_lshrrev_b32 v11, 4, v3")
e("s_bfe_u32 s30, s2, 0x30003"); e("s_lshr_b32 s31, s2, 6"); e("s_lshl_b32 s31, s31, 3"); e("s_and_b32 s76, s2, 7"); e("s_add_u32 s31, s31, s76")
e("s_lshl_b32 s76, s31, 16"); e("s_lshl_b32 s77, s30, 7"); e("s_add_u32 s76, s76, s77")
e("v_lshlrev_b32 v12, 12, v11"); e("v_lshl_add_u32 v12, v10, 3, v12"); e("v_add_u32 v12, s76, v12")
e("v_subrev_u32 v14, 3072, v12")
e("s_lshl_b32 s77, s30, 9"); e("v_lshlrev_b32 v15, 5, v10"); e("v_add_u32 v15, s77, v15")
e("s_lshl_b32 s77, s30, 5"); e("s_add_u32 s77, s77, s31"); e("s_lshl_b32 s77, s77, 7"); e("v_mov_b32 v253, s77")
e(f"v_mov_b32 v255, {EPO_OFF:#x}")
e("s_cmp_ge_u32 s3, 4")
e("s_waitcnt lgkmcnt(0)")
srd(36, 6, 0x200000); srd(48, 10, 4096); srd(44, 8, 0x200000); srd(32, 4, 0x200000)
e("s_cbranch_scc1 L_skipkv")
for r in range(3): e(f"buffer_load_dwordx2 {vr(16+2*r,2)}, v14, {SK}, 0 offen offset:{1024*r}{NT}")
for r in range(4): e(f"buffer_load_dwordx2 {vr(22+2*r,2)}, v12, {SK}, 0 offen offset:{1024*r}{NT}")
e(f"buffer_load_dwordx4 {vr(48,4)}, v15, {SSH}, 0 offen")
e(f"buffer_load_dwordx4 {vr(52,4)}, v15, {SSH}, 0 offen offset:16")
for r in range(4): e(f"buffer_load_dwordx2 {vr(30+2*r,2)}, v12, {SV}, 0 offen offset:{1024*r}{NT}")
e("s_branch L_kvdone")
lab("L_skipkv")
for r in range(4): e(f"buffer_load_dwordx2 {vr(38+2*r,2)}, v12, {SQ}, 0 offen offset:{1024*r}{' nt' if 'qnt' in X else ''}")
lab("L_kvdone")
srd(40, 28, WS_END)
e(f"buffer_load_dword v254, v255, {SWS}, 0 offen sc1")
srd(52, 12, 0x200000); srd(56, 14, 1024); srd(60, 18, 512*2752); srd(64, 20, 512*2752); srd(68, 22, 1376*1024); srd(72, 24, 0x200000)
e("s_and_b32 s4, s2, 7"); e("s_lshr_b32 s5, s2, 3")
e("s_and_b32 s10, s4, 1"); e("s_lshr_b32 s17, s4, 1")
e("s_mul_i32 s7, s17, 3"); e("s_lshr_b32 s16, s5, 3"); e("s_add_u32 s7, s7, s16"); e("s_and_b32 s8, s5, 7")
e("s_lshr_b32 s15, s17, 1"); e("s_add_u32 s15, s15, 12"); e("s_and_b32 s16, s17, 1"); e("s_lshl_b32 s16, s16, 2"); e("s_and_b32 s6, s5, 3"); e("s_add_u32 s16, s16, s6")
e("s_cmp_ge_u32 s5, 24"); e("s_cselect_b32 s7, s15, s7"); e("s_cselect_b32 s8, s16, s8")
e("s_lshr_b32 s15, s5, 1"); e("s_lshl_b32 s16, s17, 1"); e("s_and_b32 s6, s5, 1"); e("s_add_u32 s16, s16, s6")
e("s_cmp_ge_u32 s5, 28"); e("s_cselect_b32 s7, s15, s7"); e("s_cselect_b32 s8, s16, s8")
e("s_lshl_b32 s6, s10, 3"); e("s_add_u32 s6, s6, s8")
e("s_and_b32 s11, s3, 3")
e("s_lshl_b32 s12, s4, 6"); e("s_lshl_b32 s13, s5, 1"); e("s_add_u32 s12, s12, s13")
if "m2" in X:
    e("s_lshr_b32 s77, s4, 1"); e("s_lshl_b32 s77, s77, 3"); e("s_lshr_b32 s16, s5, 2"); e("s_add_u32 s77, s77, s16")
else:
    e("s_lshl_b32 s77, s4, 2"); e("s_lshr_b32 s16, s5, 3"); e("s_add_u32 s77, s77, s16")
e("s_lshr_b32 s13, s77, 1")
e("s_lshr_b32 s17, s3, 2"); e("s_lshl_b32 s17, s17, 13"); e(f"s_add_u32 s17, s17, {T_KV}")
e("v_lshrrev_b32 v13, 1, v11"); e("v_and_b32 v14, 7, v10"); e("v_xor_b32 v13, v13, v14"); e("v_lshlrev_b32 v13, 4, v13")
e("v_lshl_add_u32 v13, v10, 9, v13"); e("v_and_b32 v14, 1, v11"); e("v_lshl_add_u32 v13, v14, 3, v13"); e("v_add_u32 v13, s17, v13")
e("v_lshrrev_b32 v128, 3, v2"); e("s_lshl_b32 s15, s11, 4"); e("v_add_u32 v128, s15, v128")
e("v_and_b32 v129, 7, v2")
e("v_lshrrev_b32 v130, 2, v128"); e("v_and_b32 v130, 7, v130"); e("v_xor_b32 v124, v129, v130"); e("v_xor_b32 v125, 2, v124")
e("v_lshlrev_b32 v130, 7, v128"); e("v_lshl_add_u32 v124, v124, 4, v130"); e("v_lshl_add_u32 v125, v125, 4, v130")
e("v_add_u32 v124, s17, v124"); e("v_add_u32 v125, s17, v125")
e(f"v_mul_u32_u24 v126, {RS}, v128"); e("v_lshl_add_u32 v126, v129, 4, v126")
e(f"s_mul_i32 s18, s30, {64*RS}"); e("s_lshl_b32 s16, s31, 7"); e("s_add_u32 s18, s18, s16")
e("s_lshr_b32 s16, s3, 2"); e(f"s_mul_i32 s16, s16, {QT_OFF-KVT_OFF:#x}"); e("s_add_u32 s18, s18, s16")
e(f"s_add_u32 s19, s18, {8*RS}")
e("s_mov_b32 s14, 0xffff0000")
e("s_lshr_b32 s20, s11, 1"); e("s_and_b32 s21, s11, 1")
if "m2" in X:
    e("s_and_b32 s28, s4, 1"); e("s_lshl_b32 s28, s28, 2"); e("s_and_b32 s16, s5, 3"); e("s_add_u32 s28, s28, s16")
else: e("s_and_b32 s28, s5, 7")
if "m2" in X:
    e("s_lshr_b32 s16, s5, 2"); e("s_mul_i32 s29, s16, 11"); e("s_lshr_b32 s29, s29, 3")
else:
    e("s_lshr_b32 s16, s5, 3"); e("s_mul_i32 s29, s16, 3")
if "rot4" in X:
    e("s_add_u32 s29, s29, s28"); e("s_cmp_ge_u32 s29, 11"); e("s_cselect_b32 s16, 11, 0"); e("s_sub_u32 s29, s29, s16")
e("s_cmp_ge_u32 s3, 4"); e("s_cbranch_scc1 L_H")
def rot11(i):
    e(f"s_add_u32 s15, s29, {i}"); e("s_cmp_ge_u32 s15, 11"); e("s_cselect_b32 s16, 11, 0"); e("s_sub_u32 s15, s15, s16")

e("v_lshlrev_b32 v6, 4, v3"); e("v_sub_u32 v7, 4080, v6"); e("v_subrev_u32 v8, 8, v7"); e("v_max_i32 v8, 0, v8")
e("s_add_u32 s22, s12, s20")
e("s_lshl_b32 s15, s22, 1"); e("v_mov_b32 v9, s15"); e("v_mov_b32 v240, 0")
e("s_lshl_b32 s15, s12, 12"); e("s_add_u32 s16, s15, 4096")
e("s_waitcnt vmcnt(5)")
mark(1)
def ssm_loads():
    e("s_lshl_b32 s15, s12, 12"); e("s_add_u32 s16, s15, 4096")
    e(f"buffer_load_dwordx4 v[228:231], v7, {SSK}, s15 offen{NT}")
    e(f"buffer_load_dwordx2 v[226:227], v8, {SSK}, s15 offen{NT}")
    e(f"buffer_load_dwordx4 v[236:239], v7, {SSK}, s16 offen{NT}")
    e(f"buffer_load_dwordx2 v[234:235], v8, {SSK}, s16 offen{NT}")
    e(f"buffer_load_short_d16_hi v240, v9, {SD}, 0 offen")
LATE = "ssmearly" not in X
if not LATE: ssm_loads()
for r in range(7):
    for c in range(4): unpack(64+4*r+c, 16+2*r, c)
for c in range(4):
    for j in range(4): unpack(92+4*c+j, 48+2*c, j)
for r in range(4):
    for c in range(4): e(f"v_mul_f32 v{108+4*r+c}, v{64+4*r+c}, v{92+4*c+3}")
for j in (2, 1, 0):
    for r in range(4):
        for c in range(4): e(f"v_fmac_f32 v{108+4*r+c}, v{64+4*(r+3-j)+c}, v{92+4*c+j}")
e(f"s_waitcnt vmcnt({1 if LATE else 6})")
for r in range(4):
    for c in range(4): unpack(64+4*r+c, 30+2*r, c)
for r in range(4):
    for c in range(4): e(f"v_mul_f32 v{108+4*r+c}, v{108+4*r+c}, v{64+4*r+c}")
for c in range(4):
    e(f"v_cvt_pk_bf16_f32 v{80+2*c}, v{108+c}, v{112+c}")
    e(f"v_cvt_pk_bf16_f32 v{81+2*c}, v{116+c}, v{120+c}")
    e(f"ds_write_b64 v13, {vr(80+2*c,2)} offset:{128*c}")
mark(7, "p1")
e("s_waitcnt lgkmcnt(0)"); e("s_barrier")
mark(8, "p1")
e("ds_read_b128 v[28:31], v124"); e("ds_read_b128 v[32:35], v125 offset:1024")
e("s_waitcnt lgkmcnt(1)")
e(f"buffer_store_dwordx4 v[28:31], v126, {SWS}, s18 offen sc1")
e("s_waitcnt lgkmcnt(0)")
e(f"buffer_store_dwordx4 v[32:35], v126, {SWS}, s19 offen sc1")
def toeplitz_regs(waitn):
    e("s_mov_b32 s15, 0xffff")
    e("v_cmp_ne_u32 vcc, 255, v3")
    e(f"v_add_u32 v16, {RB}, v6")
    e(f"s_waitcnt vmcnt({waitn})")
    mark(9, "p1")
    e("v_add_u32 v254, 1, v254")
    for ch in range(2):
        b = 226 + 8*ch
        e(f"v_cndmask_b32 v{b}, 0, v{b}, vcc"); e(f"v_cndmask_b32 v{b+1}, 0, v{b+1}, vcc")
        w = lambda i: f"v{b+2+i}"
        o = 40 + 16*ch
        for n, i in enumerate((2, 1, 0, -1)): e(f"v_bfi_b32 v{o+n}, s15, {w(i)}, {w(i-1)}")
        for n, i in enumerate((2, 1, 0, -1)): e(f"v_alignbit_b32 v{o+4+n}, {w(i)}, {w(i)}, 16")
        for n, i in enumerate((3, 2, 1, 0)): e(f"v_bfi_b32 v{o+8+n}, s15, {w(i)}, {w(i-1)}")
        for n, i in enumerate((3, 2, 1, 0)): e(f"v_alignbit_b32 v{o+12+n}, {w(i)}, {w(i)}, 16")
    e("v_readfirstlane_b32 s9, v254")
if not LATE: toeplitz_regs(2)
for r in range(4): e(f"v_mov_b32 v{72+r}, 0")
e("v_lshrrev_b32 v17, 5, v3"); e(f"v_mul_u32_u24 v17, {CH_L}, v17"); e("v_and_b32 v18, 31, v3"); e("v_lshl_add_u32 v17, v18, 4, v17")
e(f"v_add_u32 v17, {RB+HREG}, v17")
e("v_bfe_u32 v18, v3, 4, 1"); e(f"v_mul_u32_u24 v18, {CH_L}, v18"); e("v_bfe_u32 v19, v3, 2, 2"); e(f"v_mul_u32_u24 v19, {CP}, v19")
e("v_add_u32 v18, v18, v19"); e("v_and_b32 v19, 3, v3"); e("v_lshl_add_u32 v18, v19, 4, v18"); e(f"v_add_u32 v18, {RB+4096}, v18")
e("s_lshl_b32 s16, s4, 5"); e("s_lshl_b32 s17, s21, 4"); e("s_add_u32 s16, s16, s17")
e("v_and_b32 v20, 15, v2"); e("v_add_u32 v20, s16, v20"); e("v_lshlrev_b32 v20, 7, v20"); e(f"v_add_u32 v20, {FL1_OFF:#x}, v20")
e(f"s_mul_i32 s24, s22, {RS}"); e("s_lshl_b32 s25, s21, 11"); e("s_add_u32 s24, s24, s25")
e(f"s_mul_i32 s23, s20, {CH_L}"); e(f"s_add_u32 s23, s23, {RB}")
e(f"s_add_u32 s26, s23, {HREG+512}"); e("s_add_u32 s26, s26, s25")
e("v_lshlrev_b32 v5, 4, v2")
if LATE: ssm_loads()
e(f"s_waitcnt vmcnt({5 if LATE else 0})")
mark(10, "p1")
e("s_barrier")
mark(2)
if LATE: toeplitz_regs(0)
for ch in range(2):
    for kap in range(4): e(f"ds_write_b128 v16, {vr(40+16*ch+4*kap,4)} offset:{ch*CH_L + kap*CP}")
e("s_cmp_lg_u32 s11, 0"); e("s_cbranch_scc1 L_nopad")
e("ds_write_b128 v17, v[72:75]")
e("s_mov_b32 exec_hi, 0")
e("ds_write_b128 v18, v[72:75]")
lab("L_nopad")
e("s_mov_b64 exec, -1")
e("s_barrier")
e("s_mov_b32 m0, s26")
e("s_nop 0")
e(f"buffer_load_dwordx4 v5, {SWS}, s24 offen sc1 lds")
e(f"buffer_load_dwordx4 v5, {SWS}, s24 offen offset:1024 sc1 lds")
e("s_lshl_b32 s15, s11, 11"); e(f"s_add_u32 m0, s15, {Q_L}"); e(f"s_add_u32 s24, s24, {QT_OFF-KVT_OFF:#x}")
e(f"buffer_load_dwordx4 v5, {SWS}, s24 offen sc1 lds")
e(f"buffer_load_dwordx4 v5, {SWS}, s24 offen offset:1024 sc1 lds")
mark(3)
e("v_and_b32 v6, 15, v2"); e("v_lshrrev_b32 v7, 4, v2")
e("v_lshlrev_b32 v8, 4, v6"); e("v_lshl_add_u32 v8, v7, 2, v8")
e("v_and_b32 v32, 3, v6"); e(f"v_mul_u32_u24 v32, {CP}, v32")
e("v_lshrrev_b32 v33, 2, v6"); e("v_lshlrev_b32 v33, 3, v33"); e("v_lshl_add_u32 v33, v7, 4, v33")
e("v_sub_u32 v32, v32, v33")
e("s_lshl_b32 s15, s21, 8"); e("s_sub_u32 s16, s23, s15")
e(f"s_add_u32 s17, s16, {2*2052 - 512*7 - 64*3}"); e("v_add_u32 v32, s17, v32")
e("v_lshlrev_b32 v33, 5, v6"); e("v_lshlrev_b32 v34, 4, v7"); e("v_sub_u32 v33, v33, v34")
e(f"s_add_u32 s17, s16, {HREG + 512 + 16 - 64*3}"); e("v_add_u32 v33, s17, v33")
e("v_lshlrev_b32 v9, 1, v8")
e("s_lshl_b32 s15, s11, 12"); e(f"s_add_u32 s15, s15, {EX_L}"); e("s_xor_b32 s16, s11, 1"); e("s_lshl_b32 s16, s16, 12"); e(f"s_add_u32 s16, s16, {EX_L}")
e("v_add_u32 v34, s15, v5"); e("v_add_u32 v35, s16, v5")
e("v_add_u32 v12, s26, v9")
e("s_lshl_b32 s17, s11, 11"); e(f"s_add_u32 s17, s17, {Q_L}"); e("v_add_u32 v10, s17, v9")
e("s_lshl_b32 s17, s21, 13"); e(f"s_add_u32 s17, s17, {ST_L}"); e("v_add_u32 v13, s17, v5")
e("v_and_b32 v14, 7, v6"); e("v_lshlrev_b32 v14, 1, v14"); e("v_lshrrev_b32 v15, 1, v7"); e("v_add_u32 v14, v14, v15")
e("s_and_b32 s15, s22, 3"); e("s_lshl_b32 s15, s15, 2"); e("v_xor_b32 v14, s15, v14")
e("v_lshlrev_b32 v14, 4, v14")
e("v_lshrrev_b32 v15, 3, v6"); e("v_lshl_add_u32 v14, v15, 17, v14")
e("v_and_b32 v15, 1, v7"); e("v_lshl_add_u32 v14, v15, 18, v14")
e("s_lshl_b32 s18, s22, 8"); e("s_lshl_b32 s17, s21, 20"); e("s_add_u32 s18, s18, s17"); e(f"s_add_u32 s18, s18, {HT_OFF:#x}")
e(f"s_add_u32 s19, s18, {4*131072}")
e("s_lshl_b32 s15, s11, 2"); e(f"s_add_u32 s15, s15, {FLG_L}"); e("v_mov_b32 v16, s15"); e("s_xor_b32 s15, s15, 4"); e("v_mov_b32 v17, s15")
e(f"v_mov_b32 v18, {FLG_L+16}"); e("v_mov_b32 v19, 1")
e("v_subrev_u32 v20, 8, v2"); e("v_and_b32 v21, 7, v2")
e("v_lshrrev_b32 v22, 16, v240"); e("v_and_b32 v23, 1, v21"); e("v_lshlrev_b32 v23, 4, v23"); e("v_lshlrev_b32 v22, v23, v22")
e("v_cmp_gt_u32 vcc, 16, v20"); e("v_lshrrev_b32 v21, 1, v21"); e("s_nop 0"); e("v_cndmask_b32 v22, 0, v22, vcc")
for dw in range(4):
    e(f"v_cmp_eq_u32 vcc, {dw}, v21"); e("s_nop 1"); e(f"v_cndmask_b32 v{232+dw}, 0, v22, vcc")
e("s_waitcnt vmcnt(2) lgkmcnt(0)"); e("s_barrier")
mark(4)
ACC = 36; FA = [72, 136]; FB = [104, 168]
lg = Trk("lgkmcnt", 15)
def creads(rr, buf):
    lst = []
    for i in range(8):
        off = 512*(7-i) + 64*(3-rr)
        lst.append((f"ds_read_b128 {vr(FB[buf]+4*i,4)}, v33 offset:{512*i + 64*(3-rr)}", ("B", rr, i)))
        lst.append((f"ds_read_b64 {vr(FA[buf]+4*i,2)}, v32 offset:{off}", ("A", rr, i)))
        lst.append((f"ds_read_b64 {vr(FA[buf]+4*i+2,2)}, v32 offset:{off+8}", ("A", rr, i)))
    return lst
first = creads(0, 0)
for s, t in first[:12]: e(s); lg.add(t)
pend = first[12:]
pairs = sorted([(i, j) for i in range(8) for j in range(8 - i)], key=lambda p: (max(p), p[0] + p[1]))
started = set()
def mf(rr, i, j):
    global pend
    buf = rr & 1; t = i + j
    while any(x[1] in (("A", rr, i), ("B", rr, j)) for x in pend):
        s_, tg = pend.pop(0); e(s_); lg.add(tg)
    lg.wait(("A", rr, i), ("B", rr, j))
    c = vr(ACC+4*t, 4) if t in started else "0"
    started.add(t)
    e(f"v_mfma_f32_16x16x32_bf16 {vr(ACC+4*t,4)}, {vr(FA[buf]+4*i,4)}, {vr(FB[buf]+4*j,4)}, {c}")
for rr in range(3):
    pend = pend + creads(rr+1, (rr & 1) ^ 1)
    npend = len(pend)
    for n, (i, j) in enumerate(pairs):
        mf(rr, i, j)
        want = npend - (npend * (n + 1)) // 32
        while len(pend) > max(want, 0):
            s_, tg = pend.pop(0); e(s_); lg.add(tg)
        if rr == 2 and n == 33:
            e("ds_read_b128 v[20:23], v18"); lg.add("aux")
    if rr == 0:
        e("s_cmp_lg_u32 s21, 0"); e("s_cbranch_scc1 L_nodiag")
        for t in range(8): e(f"v_mfma_f32_16x16x32_bf16 {vr(ACC+4*t,4)}, v[232:235], {vr(FB[0]+4*t,4)}, {vr(ACC+4*t,4)}")
        lab("L_nodiag")
assert not pend
lab("L_aux")
e("s_waitcnt vmcnt(0) lgkmcnt(0)"); lg.clear()
e("v_and_b32 v20, v20, v21"); e("v_and_b32 v22, v22, v23"); e("v_and_b32 v20, v20, v22")
e("v_cmp_ne_u32 vcc, 1, v20")
e("s_cbranch_vccz L_auxok")
e("ds_read_b128 v[20:23], v18")
e("s_branch L_aux")
lab("L_auxok")
mark(7, "p2")
for u in range(4):
    e(f"ds_read_b64 {vr(80+2*u,2)}, v10 offset:{512*u}")
    e(f"ds_read_b128 {vr(88+8*u,4)}, v13 offset:{2048*u}"); e(f"ds_read_b128 {vr(92+8*u,4)}, v13 offset:{2048*u+1024}")
e("s_cmp_eq_u32 s21, 0"); e("s_cbranch_scc1 L_conv_h0")
QN = 200; T0 = 216
for hf in (1, 0):
    if hf == 0: lab("L_conv_h0")
    keep = 4*hf; send = 4*(1-hf)
    def rr_order(lo):
        qs = [[p for p in pairs if p[0]+p[1] == t] for t in range(lo+3, lo-1, -1)]
        out = []
        while any(qs):
            qs.sort(key=lambda q: -len(q))
            k = [q for q in qs if q and (not out or q[0][0]+q[0][1] != out[-1][0]+out[-1][1])] or [q for q in qs if q]
            out.append(k[0].pop(0))
        return out
    order = rr_order(send) + rr_order(keep)
    if "oldorder" in X: order = [p for p in pairs if send <= p[0]+p[1] < send+4] + [p for p in pairs if keep <= p[0]+p[1] < keep+4]
    nsend = len([p for p in pairs if send <= p[0]+p[1] < send+4])
    valu = []
    for u in range(4):
        valu.append(f"s_waitcnt lgkmcnt({9-3*u})" if u < 3 else "WAITALL")
        for r in range(4):
            qs = 80 + 2*u + (r >> 1); tq = T0+4*u+r
            valu.append(f"v_and_b32 v{tq}, s14, v{qs}" if r & 1 else f"v_lshlrev_b32 v{tq}, 16, v{qs}")
        for r in range(4):
            valu.append(f"v_fma_f32 v{QN+4*u+r}, v{T0+4*u+r}, v{88+8*u+2*r}, v{89+8*u+2*r}")
    sent = False; wrote = 0
    def emitv(x):
        if x == "WAITALL" or (x.startswith("s_waitcnt") and wrote): e(f"s_waitcnt lgkmcnt({wrote})" if x == "WAITALL" or True else x)
        else: e(x)
    for n, (i, j) in enumerate(order):
        t = i + j
        e(f"v_mfma_f32_16x16x32_bf16 {vr(ACC+4*t,4)}, {vr(FA[1]+4*i,4)}, {vr(FB[1]+4*j,4)}, {vr(ACC+4*t,4)}")
        if n >= 3:
            k = 0
            while valu and k < 1:
                x = valu.pop(0); emitv(x)
                if not x.startswith("s_waitcnt") and x != "WAITALL": k += 1
        if n == nsend + 4:
            for u in range(4): e(f"ds_write_b128 v34, {vr(ACC+4*send+4*u,4)} offset:{1024*u}")
            e("ds_write_b32 v16, v19"); wrote = 5
    while valu: emitv(valu.pop(0))
    if hf == 1: mark(5)
    else: mark(5)
    n_ = nid()
    lab(f"L_pw{n_}")
    e("ds_read_b32 v20, v17")
    e("s_waitcnt lgkmcnt(0)")
    e("v_cmp_ne_u32 vcc, 1, v20")
    e(f"s_cbranch_vccnz L_pw{n_}")
    mark(8, "p2")
    for u in range(4): e(f"ds_read_b128 {vr(72+4*u,4)}, v35 offset:{1024*u}")
    for u in range(4):
        y = ACC + 4*keep + 4*u
        e(f"s_waitcnt lgkmcnt({3-u})")
        for p in range(2): e(f"v_pk_add_f32 {vr(y+2*p,2)}, {vr(y+2*p,2)}, {vr(72+4*u+2*p,2)}")
        for p in range(2): e(f"v_pk_fma_f32 {vr(y+2*p,2)}, {vr(QN+4*u+2*p,2)}, {vr(y+2*p,2)}, {vr(T0+4*u+2*p,2)}")
        e(f"v_cvt_pk_bf16_f32 v{124+2*u}, v{y}, v{y+1}")
        e(f"v_cvt_pk_bf16_f32 v{125+2*u}, v{y+2}, v{y+3}")
        if u & 1:
            b = 124 + 2*(u-1)
            e("s_nop 1")
            e(f"v_permlane16_swap_b32 v{b}, v{b+2}"); e(f"v_permlane16_swap_b32 v{b+1}, v{b+3}")
            e(f"buffer_store_dwordx4 {vr(b,4)}, v14, {SWS}, s{18+(u>>1)} offen sc1")
    if hf == 1: e("s_branch L_conv_j")
lab("L_conv_j")
mark(9, "p2")
e("v_and_b32 v3, 15, v2"); e("v_lshrrev_b32 v4, 4, v2"); e("v_lshrrev_b32 v5, 2, v3"); e("v_and_b32 v6, 3, v3")
e("v_lshrrev_b32 v7, 5, v2"); e("v_and_b32 v8, 1, v4"); e("v_lshl_add_u32 v9, v7, 3, v5")
e("v_lshlrev_b32 v10, 8, v9"); e("v_lshl_add_u32 v10, v8, 5, v10"); e("v_lshl_add_u32 v10, v6, 3, v10"); e(f"v_add_u32 v10, {A_L}, v10")
e("v_mul_u32_u24 v12, 192, v9"); e(f"v_mul_u32_u24 v13, {W_U}, v8"); e("v_add_u32 v12, v12, v13"); e("v_lshl_add_u32 v12, v6, 3, v12")
e("s_min_u32 s26, s11, 2"); e("s_lshl_b32 s16, s26, 6"); e(f"s_mul_i32 s17, s10, {32*192}"); e("s_add_u32 s16, s16, s17"); e("v_add_u32 v28, s16, v12")
e("s_mul_i32 s15, s21, 96"); e("v_add_u32 v12, s15, v12")
e("s_lshl_b32 s15, s20, 1"); e("v_xor_b32 v13, s15, v5"); e("v_lshl_add_u32 v13, v13, 6, v10")
e("s_add_u32 s15, s15, 1"); e("v_xor_b32 v18, s15, v5"); e("v_lshl_add_u32 v18, v18, 6, v10")
e("v_mov_b32 v15, v12"); e("v_mov_b32 v16, v13"); e("v_mov_b32 v17, v18")
e("s_waitcnt vmcnt(0)")
mark(10, "p2")
e("s_barrier")
mark(6)
ACC = 64
FR = [20, 40]
def g1reads(ks, buf):
    l = []; b = FR[buf]
    for hh in range(2): l.append(f"ds_read_b64_tr_b16 {vr(b+2*hh,2)}, v15 offset:{(16*ks+4*hh)*192}")
    for hh in range(2): l.append(f"ds_read_b64_tr_b16 {vr(b+12+2*hh,2)}, v16 offset:{4096*ks+1024*hh}")
    for hh in range(2): l.append(f"ds_read_b64_tr_b16 {vr(b+16+2*hh,2)}, v17 offset:{4096*ks+1024*hh}")
    for mb in (1, 2):
        for hh in range(2): l.append(f"ds_read_b64_tr_b16 {vr(b+4*mb+2*hh,2)}, v15 offset:{(16*ks+4*hh)*192+32*mb}")
    return l
e("v_and_b32 v9, 31, v2")
for r in range(20): e(f"v_mov_b32 v{200+r}, 0")
e("s_and_b32 s27, s77, 1"); e("s_lshl_b32 s27, s27, 6"); e("s_lshl_b32 s15, s20, 5"); e("s_add_u32 s27, s27, s15")
e("v_add_u32 v61, s27, v9")
e("v_lshlrev_b32 v62, 2, v61")
e("v_lshrrev_b32 v24, 3, v61"); e("v_and_b32 v25, 7, v61"); e("v_lshlrev_b32 v25, 1, v25"); e("v_lshl_add_u32 v25, v7, 10, v25")
for j in range(4):
    e(f"v_xor_b32 v26, {j<<2}, v24"); e(f"v_lshl_add_u32 v{241+j}, v26, 4, v25")
e("s_lshl_b32 s15, s13, 7"); e("v_add_u32 v245, s15, v61"); e("v_lshlrev_b32 v245, 10, v245"); e("v_lshl_add_u32 v245, v7, 4, v245")
e("v_lshl_add_u32 v24, v7, 2, v5"); e("v_lshlrev_b32 v24, 7, v24"); e("v_lshl_add_u32 v24, v8, 5, v24"); e("v_lshl_add_u32 v24, v6, 3, v24")
e("s_lshl_b32 s15, s21, 13"); e("v_add_u32 v24, s15, v24")
e("v_lshrrev_b32 v25, 3, v3"); e("v_xor_b32 v25, s21, v25"); e("v_lshl_add_u32 v246, v25, 6, v24"); e("v_xor_b32 v25, 1, v25"); e("v_lshl_add_u32 v247, v25, 6, v24")
e("s_lshl_b32 s16, s13, 4")
e("v_add_u32 v248, s16, v2"); e("v_lshlrev_b32 v248, 7, v248"); e(f"v_add_u32 v248, {FL3_OFF:#x}, v248")
e("v_lshlrev_b32 v11, 4, v2")
e("s_lshl_b32 s17, s6, 2"); e("s_lshl_b32 s18, s20, 1"); e("s_add_u32 s17, s17, s18"); e(f"s_mul_i32 s17, s17, {HH_KS}")
e("s_mul_i32 s18, s7, 6"); e("s_mul_i32 s19, s21, 3"); e("s_add_u32 s19, s19, s18")
e("s_add_u32 s17, s17, s19")
e("s_lshl_b32 s17, s17, 10"); e(f"s_add_u32 s17, s17, {HH_OFF:#x}"); e(f"s_add_u32 s18, s17, {HH_KS*1024}")
e("s_cmp_eq_u32 s7, 15"); e("s_cbranch_scc0 L_c_p3")
def sp_loads():
    e("s_mul_i32 s16, s6, 24576"); e(f"s_add_u32 s16, s16, {CSP_OFF:#x}")
    for m in range(16):
        if m and m % 2 == 0: e("s_add_u32 s16, s16, 3072")
        e(f"buffer_load_dwordx2 {vr(64+2*m,2)}, v28, {SWS}, s16 offen offset:{1536*(m%2)} sc1")
e("s_lshl_b32 s15, s11, 6"); e("v_add_u32 v20, s15, v2"); e("v_lshlrev_b32 v28, 3, v20")
e("s_lshl_b32 s15, s6, 4"); e("s_add_u32 s15, s15, s7"); e("s_lshl_b32 s15, s15, 7"); e("v_mov_b32 v253, s15")
e("s_barrier")
e("s_barrier")
sp_loads()
e("s_barrier")
e("s_cmp_eq_u32 s6, 15"); e("s_cbranch_scc1 L_c_sp2"); e("s_cmp_eq_u32 s11, 3"); e("s_cbranch_scc1 L_c_sp2")
e("s_mov_b32 s30, 0x100000")
mark(1, "it2")
lab("L_c_sp1")
e("s_waitcnt vmcnt(0)")
e("v_xor_b32 v50, s9, v65")
for m in range(1, 16):
    e(f"v_xor_b32 v51, s9, v{65+2*m}"); e("v_or_b32 v50, v50, v51")
e("v_cmp_ne_u32 vcc, 0, v50")
e("s_cbranch_vccz L_c_sp1x")
e("s_sub_u32 s30, s30, 1"); e("s_cbranch_scc1 L_c_sp1x")
sp_loads()
e("s_branch L_c_sp1")
lab("L_c_sp1x")
for m in range(1, 16): e(f"v_add_f32 v64, v64, v{64+2*m}")
e("v_mov_b32 v54, 0")
e("v_cvt_pk_bf16_f32 v53, v64, v54")
e("v_lshlrev_b32 v51, 16, v53"); e("v_sub_f32 v51, v64, v51")
e("v_cvt_pk_bf16_f32 v52, v64, v51")
e("v_mov_b32 v55, v254")
e("v_lshlrev_b32 v28, 4, v20"); e("s_mul_i32 s16, s6, 3072"); e(f"s_add_u32 s16, s16, {CSF_OFF:#x}")
e(f"buffer_store_dwordx4 v[52:55], v28, {SWS}, s16 offen sc1")
mark(2, "it2")
lab("L_c_sp2")
e("s_barrier")
e("s_branch L_c_p4")
lab("L_c_p3")
for blk in range(2):
    for ks in range(2):
        for hh in range(2): e(f"ds_read_b64_tr_b16 {vr(32+8*blk+4*ks+2*hh,2)}, v28 offset:{(16*ks+4*hh)*192+32*blk}")
e("v_mov_b32 v30, 0"); e("v_mov_b32 v31, 0"); e("s_mov_b32 s27, 0x3f803f80")
e("s_lshl_b32 s15, s6, 4"); e("s_add_u32 s15, s15, s7"); e("s_lshl_b32 s15, s15, 7"); e("v_mov_b32 v253, s15"); e("s_lshl_b32 s16, s7, 4"); e("s_add_u32 s16, s16, s6"); e("s_mul_i32 s16, s16, 1536"); e("s_lshl_b32 s15, s26, 9"); e("s_add_u32 s16, s16, s15"); e(f"s_add_u32 s16, s16, {CSP_OFF:#x}")
e("v_lshlrev_b32 v29, 3, v2")
e("s_waitcnt lgkmcnt(0)")
for r in range(8):
    e(f"v_dot2_f32_bf16 v30, v{32+r}, s27, v30"); e(f"v_dot2_f32_bf16 v31, v{40+r}, s27, v31")
e("s_nop 3")
e("v_permlane32_swap_b32 v30, v31")
e("s_nop 1")
e("v_add_f32 v30, v30, v31")
e("v_mov_b32 v250, v30"); e("v_mov_b32 v251, v254"); e("v_mov_b32 v249, v29")
e("s_cmp_eq_u32 s11, 3"); e("s_cselect_b32 s16, 0x7f000000, s16")
e(f"buffer_store_dwordx2 v[250:251], v249, {SWS}, s16 offen sc1")
for r in range(96): e(f"v_mov_b32 v{ACC+r}, 0")
e("s_mul_i32 s22, s7, 3072"); e("s_mul_i32 s15, s21, 1536"); e("s_add_u32 s22, s22, s15"); e(f"s_add_u32 s22, s22, {CSF_OFF:#x}")
e("s_lshl_b32 s23, s6, 11"); e("s_lshl_b32 s15, s20, 10"); e("s_add_u32 s23, s23, s15"); e(f"s_add_u32 s23, s23, {ST2_OFF:#x}")
e("s_mul_i32 s15, s21, 1536"); e(f"s_add_u32 s15, s15, {CORR_L}"); e("v_add_u32 v19, s15, v11")
e("s_lshl_b32 s15, s20, 10"); e(f"s_add_u32 s15, s15, {CORR_L+3072}"); e("v_add_u32 v14, s15, v11")
e("s_mov_b32 s24, 0"); e("s_mov_b32 s25, 0"); e("s_mov_b32 s26, 0")
e("s_barrier")
e("s_barrier")
mark(7)
e("s_lshl_b32 s15, s7, 1"); e("s_add_u32 s15, s15, s21"); e("s_cmp_lg_u32 s15, 29"); e("s_cbranch_scc1 L_c_full")
for nb in range(2): e(f"buffer_store_dwordx4 v[64:67], v11, {SWS}, s{17+nb} offen sc1")
for _ in range(8): e("s_barrier")
e("s_branch L_c_p4")
lab("L_c_full")
for s in g1reads(0, 0): e(s)
def corr_loads():
    e("s_mov_b32 exec_hi, 0")
    for mb in range(3): e(f"buffer_load_dwordx4 {vr(200+4*mb,4)}, v11, {SWS}, s22 offen offset:{512*mb} sc1")
    for nb in range(2): e(f"buffer_load_dwordx4 {vr(212+4*nb,4)}, v11, {SWS}, s23 offen offset:{512*nb} sc1")
    e("s_mov_b64 exec, -1")
lab("L_g1_loop")
for ks in range(4):
    buf = ks & 1
    e("s_waitcnt lgkmcnt(0)")
    if ks == 3:
        e("s_barrier")
    nxt = g1reads((ks+1) & 3, buf ^ 1)
    sched = [3, 3, 2, 2, 0, 0]; p = 0
    for n, (mb, nb) in enumerate([(0,0),(0,1),(1,0),(1,1),(2,0),(2,1)] if "snake" not in X else [(0,0),(0,1),(1,1),(1,0),(2,0),(2,1)]):
        a = ACC + 16*(2*mb+nb)
        if "mf16" in X:
            o = 8*(ks & 1)
            e(f"v_mfma_f32_16x16x32_bf16 {vr(a+o,4)}, {vr(FR[buf]+4*mb,4)}, {vr(FR[buf]+12+4*nb,4)}, {vr(a+o,4)}")
            for _ in range((sched[n]+1)//2): e(nxt[p]); p += 1
            e(f"v_mfma_f32_16x16x32_bf16 {vr(a+o+4,4)}, {vr(FR[buf]+12+4*nb,4)}, {vr(FR[buf]+4*mb,4)}, {vr(a+o+4,4)}")
            for _ in range(sched[n]//2): e(nxt[p]); p += 1
        else:
            e(f"v_mfma_f32_32x32x16_bf16 {vr(a,16)}, {vr(FR[buf]+4*mb,4)}, {vr(FR[buf]+12+4*nb,4)}, {vr(a,16)}")
            for _ in range(sched[n]): e(nxt[p]); p += 1
        if ks == 2 and n == 4:
            e(f"s_add_u32 s25, s25, {WSLOT}"); e(f"s_cmp_eq_u32 s25, {4*WSLOT}"); e("s_cselect_b32 s25, 0, s25")
            e(f"s_add_u32 s26, s26, 16384"); e(f"s_cmp_eq_u32 s26, {3*16384}"); e("s_cselect_b32 s26, 0, s26")
        if ks == 2 and n == 5:
            e("v_add_u32 v15, s25, v12"); e("v_add_u32 v16, s26, v13"); e("v_add_u32 v17, s26, v18")
e("s_add_u32 s24, s24, 1"); e("s_cmp_lt_u32 s24, 7"); e("s_cbranch_scc1 L_g1_loop")
FK = [20, 40, 160, 180]
lg.clear(); lg.add(("k0",), 10)
rd = []
def rdA(ks, mb): return [(f"ds_read_b64_tr_b16 {vr(FK[ks]+4*mb+2*hh,2)}, v15 offset:{(16*ks+4*hh)*192+32*mb}", ("A", ks, mb)) for hh in range(2)]
def rdB(ks, nb): return [(f"ds_read_b64_tr_b16 {vr(FK[ks]+12+4*nb+2*hh,2)}, v{16+nb} offset:{4096*ks+1024*hh}", ("B", ks, nb)) for hh in range(2)]
for ks in (1, 2, 3): rd += rdA(ks, 0) + rdB(ks, 0) + rdB(ks, 1)
for mb in (1, 2):
    for ks in (1, 2, 3): rd += rdA(ks, mb)
def epi(mb):
    l = []
    for nb in range(2):
        a = ACC + 16*(2*mb+nb)
        for r in range(8): l.append(f"v_max_f32 v{a+r}, 0, v{a+r}")
        for r in range(8): l.append(f"v_mul_f32 v{a+r}, v{a+r}, v{a+8+r}")
        for p in range(4): l.append(f"v_cvt_pk_bf16_f32 v{a+8+p}, v{a+2*p}, v{a+2*p+1}")
        l.append(f"buffer_store_dwordx4 {vr(a+8,4)}, v11, {SWS}, s{17+nb} offen offset:{1024*mb} sc1")
    return l
lg.wait(("k0",))
seq = [(0, mb, nb) for mb in range(3) for nb in range(2)] + [(ks, 0, nb) for ks in (1, 2, 3) for nb in range(2)] + ["bar"]
seq += [(1, 1, 0), (1, 1, 1), "chk", ("c", 0, 0), ("c", 0, 1)] + [(ks, 1, nb) for ks in (2, 3) for nb in range(2)] + [("c", 1, 0), ("c", 1, 1)]
seq += [("c", 2, 0), ("c", 2, 1)] + [(ks, 2, nb) for ks in (1, 2) for nb in range(2)] + [(3, 2, 0), (3, 2, 1)]
last = {}
for n, x in enumerate(seq):
    if isinstance(x, tuple): last[(x[1], x[2])] = n
epq = []
def epi1(mb, nb):
    a = ACC + 16*(2*mb+nb); l = []
    for r in range(8): l.append(f"v_max_f32 v{a+r}, 0, v{a+r}")
    for r in range(8): l.append(f"v_mul_f32 v{a+r}, v{a+r}, v{a+8+r}")
    for p in range(4): l.append(f"v_cvt_pk_bf16_f32 v{a+8+p}, v{a+2*p}, v{a+2*p+1}")
    l.append(f"buffer_store_dwordx4 {vr(a+8,4)}, v11, {SWS}, s{17+nb} offen offset:{1024*mb} sc1")
    return l
for n, x in enumerate(seq):
    if x == "bar":
        e("s_waitcnt lgkmcnt(0)"); lg.clear(); assert not rd
        e("s_barrier")
        e("s_mov_b32 exec_hi, 0")
        for mb in range(3): e(f"ds_read_b128 {vr(200+4*mb,4)}, v19 offset:{512*mb}")
        for nb in range(2): e(f"ds_read_b128 {vr(212+4*nb,4)}, v14 offset:{512*nb}")
        e("s_mov_b64 exec, -1")
        e("s_mov_b32 s30, 0x100000")
        continue
    if x == "chk":
        e("s_waitcnt lgkmcnt(0)")
        mark(1, "it2")
        lab("L_corr")
        e("v_xor_b32 v60, s9, v203")
        for r in (207, 211, 215, 219):
            e(f"v_xor_b32 v63, s9, v{r}"); e("v_or_b32 v60, v60, v63")
        e("v_cmp_ne_u32 vcc, 0, v60")
        e("s_cmp_eq_u32 vcc_lo, 0"); e("s_cbranch_scc1 L_corrx")
        e("s_sub_u32 s30, s30, 1"); e("s_cbranch_scc1 L_corrx")
        corr_loads()
        e("s_waitcnt vmcnt(0)")
        e("s_branch L_corr")
        lab("L_corrx")
        mark(2, "it2")
        for r in (203, 207, 211, 215, 219): e(f"v_mov_b32 v{r}, 0")
        e("s_nop 1")
        continue
    ks, mb, nb = x
    a = ACC + 16*(2*mb+nb)
    if ks == "c":
        e(f"v_mfma_f32_32x32x16_bf16 {vr(a,16)}, {vr(200+4*mb,4)}, {vr(212+4*nb,4)}, {vr(a,16)}")
    else:
        need = [("A", ks, mb), ("B", ks, nb)]
        while any(y[1] in need for y in rd):
            s_, tg = rd.pop(0); e(s_); lg.add(tg)
        lg.wait(*need)
        e(f"v_mfma_f32_32x32x16_bf16 {vr(a,16)}, {vr(FK[ks]+4*mb,4)}, {vr(FK[ks]+12+4*nb,4)}, {vr(a,16)}")
    if last[(mb, nb)] == n: epq += [(len(L) + 12, t) for t in epi1(mb, nb)]
    for _ in range(3):
        if rd: s_, tg = rd.pop(0); e(s_); lg.add(tg)
    k = 0
    while epq and k < 6:
        short = epq[0][0] - len(L)
        if short > 0:
            p_ = min(short, 6 - k)
            e(f"s_nop {p_-1}"); L.extend(["    ; pad"] * (p_ - 1)); k += p_
            continue
        e(epq.pop(0)[1]); k += 1
mark(8); mark(3, "it2")
while epq:
    short = epq[0][0] - len(L)
    if short > 0:
        e(f"s_nop {short-1}"); L.extend(["    ; pad"] * (short - 1))
    e(epq.pop(0)[1])
mark(4, "it2")
lab("L_c_p4")
RES = 224
for r in range(16): e(f"v_mov_b32 v{RES+r}, 0")
e("s_lshl_b32 s22, s13, 17"); e("s_lshl_b32 s16, s28, 14"); e("s_add_u32 s22, s22, s16"); e("s_lshl_b32 s16, s21, 13"); e("s_add_u32 s22, s22, s16")
e(f"s_add_u32 s22, s22, {HT_OFF:#x}"); e("s_add_u32 s23, s22, 4096")
e("s_lshl_b32 s25, s77, 1"); e("s_add_u32 s25, s25, s20")
e(f"s_mul_i32 s25, s25, {HH_KS*1024}"); e("s_lshl_b32 s16, s21, 12"); e("s_add_u32 s25, s25, s16"); e(f"s_add_u32 s25, s25, {HH_OFF:#x}")
e("s_lshl_b32 s27, s28, 7"); e("s_lshl_b32 s15, s21, 6"); e("s_add_u32 s27, s27, s15")
e("s_waitcnt vmcnt(0)"); mark(5, "it2"); e("s_barrier")
mark(9); mark(6, "it2")
ACC = 160
FR = [20, 36, 192]
PD = int(os.environ.get("PD", "2"))
e("v_add_u32 v52, 0x10000, v246"); e("v_add_u32 v53, 0x10000, v247"); e("v_add_u32 v54, 0x20000, v246"); e("v_add_u32 v55, 0x20000, v247")
def g2reads(G):
    i = G >> 1; slot = i % 10; l = []
    base = [("v246", "v247"), ("v52", "v53"), ("v54", "v55")][slot >> 2]
    for q in range(2):
        ks = 2*(G & 1) + q
        for db in range(2):
            b = FR[G % 3] + 8*q + 4*db
            off = (slot & 3)*16384 + ks*2048
            l.append((f"ds_read_b64_tr_b16 {vr(b,2)}, {base[db]} offset:{off}", ("W", G, q, db)))
            l.append((f"ds_read_b64_tr_b16 {vr(b+2,2)}, {base[db]} offset:{off+1024}", ("W", G, q, db)))
    return l
post_flag(FL3_OFF, 0)
lg.clear()
for G0 in range(2):
    for s, t in g2reads(G0): e(s)
e("s_waitcnt lgkmcnt(0)"); e("s_barrier")
for ii in range(4 if "nores" not in X else 0):
    for j in range(4):
        e(f"buffer_load_short_d16_hi v{RES+4*ii+j}, v{241+j}, {SWS}, s{22+(ii>>1)} offen offset:{2048*(ii&1)+256*j} sc1")
e("s_cmp_lg_u32 s3, 0"); e("s_cbranch_scc1 L_c_np3")
e("s_mov_b64 exec, 0xffff")
poll("v248", "v249", "s9", "ap3" in X)
lab("L_c_np3")
mark(7, "it2")
e("s_barrier")
mark(8, "it2"); mark(1, "p4")
vm = Trk("vmcnt", 63)
NHR = 6; HB = 64
def issueHH(i):
    rot11(i if "hhsame" not in X else i % 2)
    e("s_lshl_b32 s15, s15, 13"); e("s_add_u32 s15, s15, s25")
    for q in range(4):
        e(f"buffer_load_dwordx4 {vr(HB+16*(i % NHR)+4*q,4)}, v11, {SWS}, s15 offen offset:{1024*q} sc1"); vm.add(("HH", i, q))
NH0 = int(os.environ.get("NH0", "3"))
for i in range(NH0): issueHH(i)
def hh1(i, q):
    if q == 0:
        rot11(i)
        e("s_lshl_b32 s15, s15, 13"); e("s_add_u32 s17, s15, s25")
    e(f"buffer_load_dwordx4 {vr(HB+16*(i % NHR)+4*q,4)}, v11, {SWS}, s17 offen offset:{1024*q} sc1"); vm.add(("HH", i, q))
mark(10)
assert PD == 2
for G in range(20):
    i = G >> 1
    if G in (1, 6, 12, 16, 18, 20): mark(2 + (1, 6, 12, 16, 18, 20).index(G), "p4")
    if G == 8: e("s_barrier")
    if G == 2: mark(9, "it2")
    if G == 12: mark(10, "it2")
    nxt = g2reads(G+PD) if G + PD < 22 else []
    p = 0
    for q in range(2):
        ks = 2*(G & 1) + q
        vm.wait(("HH", i, ks))
        for db in range(2):
            lg.wait(("W", G, q, db))
            b = FR[G % 3] + 8*q + 4*db
            c = vr(ACC+16*db, 16) if (G or q) else "0"
            e(f"v_mfma_f32_32x32x16_bf16 {vr(ACC+16*db,16)}, {vr(b,4)}, {vr(HB+16*(i % NHR)+4*ks,4)}, {c}")
            for _ in range(2):
                if p < len(nxt): e(nxt[p][0]); lg.add(nxt[p][1]); p += 1
            if db == 0 and i + NH0 <= 10: hh1(i + NH0, ks)
    if G == 17:
        e("s_lshl_b32 s15, s13, 9"); e(f"s_add_u32 s15, s15, {R2_OFF:#x}")
        e(f"buffer_load_dword v240, v62, {SWS}, s15 offen sc1"); vm.add("res")
e("s_lshl_b32 s15, s11, 12"); e("s_add_u32 s15, s15, 16384"); e("s_xor_b32 s16, s15, 4096")
e("v_add_u32 v56, s15, v11"); e("v_add_u32 v57, s16, v11")
for db in (1, 0):
    for G in (20, 21):
        for q in range(2):
            ks = 2*(G & 1) + q
            vm.wait(("HH", 10, ks)); lg.wait(("W", G, q, db))
            b = FR[G % 3] + 8*q + 4*db
            e(f"v_mfma_f32_32x32x16_bf16 {vr(ACC+16*db,16)}, {vr(b,4)}, {vr(HB+16*(10 % NHR)+4*ks,4)}, {vr(ACC+16*db,16)}")
            if db == 0 and G == 20: e("s_nop 5")
            if db == 0 and G == 21:
                for u in (2*q, 2*q+1): e(f"ds_write_b128 v56, {vr(ACC+16+4*u,4)} offset:{1024*u}")
mark(8, "p4")
e("s_waitcnt vmcnt(0) lgkmcnt(0)")
e("s_barrier")
mark(9, "p4")
for u in range(4): e(f"ds_read_b128 {vr(64+4*u,4)}, v57 offset:{1024*u}")
e("v_mov_b32 v241, v240")
e("s_nop 5")
for u in range(4):
    e(f"s_waitcnt lgkmcnt({3-u})")
    for p in range(2): e(f"v_pk_add_f32 {vr(ACC+4*u+2*p,2)}, {vr(ACC+4*u+2*p,2)}, {vr(64+4*u+2*p,2)}")
    for p in range(2): e(f"v_pk_fma_f32 {vr(ACC+4*u+2*p,2)}, {vr(ACC+4*u+2*p,2)}, v[240:241], {vr(RES+4*u+2*p,2)}")
    for p in range(2): e(f"v_cvt_pk_bf16_f32 v{32+2*u+p}, v{ACC+4*u+2*p}, v{ACC+4*u+2*p+1}")
    if u & 1:
        b = 32 + 2*(u-1)
        e("s_nop 1")
        e(f"v_permlane32_swap_b32 v{b}, v{b+2}"); e(f"v_permlane32_swap_b32 v{b+1}, v{b+3}")
        e(f"buffer_store_dwordx4 {vr(b,4)}, v245, {SOUT}, s27 offen offset:{16*(u-1)}{os.environ.get('OUTF', '')}")
mark(10, "p4")
endpgm()

lab("L_H")
vm = Trk("vmcnt", 63)
e(f"v_lshlrev_b32 v4, 2, v2"); e(f"v_add_u32 v4, {FLG_L}, v4"); e("v_mov_b32 v5, 0")
e("s_mov_b64 exec, 0xffff")
e("ds_write_b32 v4, v5")
e("s_mov_b64 exec, -1")
e("v_lshlrev_b32 v11, 4, v2")
e("s_lshl_b32 s24, s2, 13"); e("s_lshl_b32 s16, s11, 11"); e("s_add_u32 s24, s24, s16")
QR = " nt" if "qrnt" in X else ""
e(f"buffer_load_dwordx4 {vr(56,4)}, v11, {SQ}, s24 offen{QR}"); e(f"buffer_load_dwordx4 {vr(60,4)}, v11, {SQ}, s24 offen offset:1024{QR}")
if "tlb" in X:
    e("s_cmp_lg_u32 s3, 7"); e("s_cbranch_scc1 L_notlb")
    e("v_lshlrev_b32 v46, 20, v2"); e("s_lshl_b32 s15, s2, 7"); e("v_add_u32 v46, s15, v46")
    e("s_mov_b64 exec, 0x3fff")
    e(f"buffer_load_dword v47, v46, {SWS}, 0 offen")
    e("s_mov_b64 exec, 3")
    for n, sr in enumerate((SOUT, SWD, SWG, SWU, SSK)): e(f"buffer_load_dword v{48+n}, v46, {sr}, 0 offen")
    e("s_mov_b64 exec, -1")
    lab("L_notlb")
e("v_lshlrev_b32 v17, 7, v2")
pass
for j in range(3):
    e(f"v_add_u32 v20, {j*64}, v2")
    e("v_mul_u32_u24 v21, 0x5556, v20"); e("v_lshrrev_b32 v21, 18, v21")
    e("v_mul_u32_u24 v22, 12, v21"); e("v_sub_u32 v22, v20, v22")
    e("v_mul_u32_u24 v21, 2752, v21"); e(f"v_lshl_add_u32 v{14+j}, v22, 4, v21")
    if j: e(f"v_subrev_u32 v{14+j}, {1024*j}, v{14+j}")
e(f"s_mul_i32 s22, s11, {16*2752}"); e("s_mul_i32 s15, s7, 192"); e("s_add_u32 s22, s22, s15")
e(f"s_mul_i32 s23, s11, {16*192}")
e("s_mov_b32 s16, 0x05040100"); e("s_mov_b32 s17, 0x07060302")
e("s_waitcnt vmcnt(3)")
mark(1)
for c in range(4):
    sel = "s17" if c & 1 else "s16"
    e(f"v_perm_b32 v{92+2*c}, v{40+(c>>1)}, v{38+(c>>1)}, {sel}")
    e(f"v_perm_b32 v{93+2*c}, v{44+(c>>1)}, v{42+(c>>1)}, {sel}")
    e(f"ds_write_b64 v13, {vr(92+2*c,2)} offset:{128*c}")
e("s_and_b32 s15, s2, 0xc7"); e("s_or_b32 s15, s15, s11"); e("s_cmp_lg_u32 s15, 0"); e("s_cbranch_scc1 L_noinit")
e("s_waitcnt vmcnt(2)")
e("v_add_u32 v116, 1, v254"); e("v_lshlrev_b32 v116, 6, v116"); e("v_lshlrev_b32 v117, 10, v2")
e("s_lshl_b32 s15, s2, 4"); e(f"s_add_u32 s15, s15, {FL2_OFF:#x}")
e(f"s_mov_b32 exec_lo, {(1 << NREP) - 1:#x}"); e("s_mov_b32 exec_hi, 0")
e(f"buffer_store_dword v116, v117, {SWS}, s15 offen sc1")
e("s_mov_b64 exec, -1")
lab("L_noinit")
mark(7, "p1")
e("s_waitcnt lgkmcnt(0)"); e("s_barrier")
mark(8, "p1")
e("ds_read_b128 v[28:31], v124"); e("ds_read_b128 v[32:35], v125 offset:1024")
e("s_waitcnt lgkmcnt(1)")
e(f"buffer_store_dwordx4 v[28:31], v126, {SWS}, s18 offen sc1")
e("s_waitcnt lgkmcnt(0)")
e(f"buffer_store_dwordx4 v[32:35], v126, {SWS}, s19 offen sc1")
mark(9, "p1")
e("s_waitcnt vmcnt(2)")
e("v_add_u32 v254, 1, v254")
e("s_nop 0")
e("v_readfirstlane_b32 s9, v254")
for rr in range(2):
    for c in range(8): unpack(64+8*rr+c, 56+4*rr+2*(c>>2), c & 3)
def tree(dst, base):
    e(f"v_add_f32 v{dst}, v{base}, v{base+1}")
    for c in range(2, 8): e(f"v_add_f32 v{dst}, v{dst}, v{base+c}")
def reduce2(a, b):
    for m in ("row_shr:1", "row_shr:2", "row_shr:4", "row_shr:8"):
        e("s_nop 0")
        e(f"v_add_f32_dpp v{a}, v{a}, v{a} {m} row_mask:0xf bank_mask:0xf bound_ctrl:0")
        e(f"v_add_f32_dpp v{b}, v{b}, v{b} {m} row_mask:0xf bank_mask:0xf bound_ctrl:0")
    for m, rm in (("row_bcast:15", "0xa"), ("row_bcast:31", "0xc")):
        e("s_nop 0")
        e(f"v_add_f32_dpp v{a}, v{a}, v{a} {m} row_mask:{rm} bank_mask:0xf")
        e(f"v_add_f32_dpp v{b}, v{b}, v{b} {m} row_mask:{rm} bank_mask:0xf")
tree(100, 64); tree(101, 72)
e("s_nop 0")
reduce2(100, 101)
e("s_mov_b32 s18, 0x3b000000")
e("v_mul_f32 v100, s18, v100"); e("v_mul_f32 v101, s18, v101")
e("s_nop 0")
e("v_readlane_b32 s16, v100, 63"); e("v_readlane_b32 s17, v101, 63")
e("s_nop 1")
for c in range(8):
    e(f"v_subrev_f32 v{64+c}, s16, v{64+c}"); e(f"v_subrev_f32 v{72+c}, s17, v{72+c}")
e("v_mul_f32 v102, v64, v64"); e("v_mul_f32 v103, v72, v72")
for c in range(1, 8):
    e(f"v_fmac_f32 v102, v{64+c}, v{64+c}"); e(f"v_fmac_f32 v103, v{72+c}, v{72+c}")
e("s_nop 0")
reduce2(102, 103)
e("v_mov_b32 v104, 0x3727c5ac")
e("v_fma_f32 v102, v102, s18, v104"); e("v_fma_f32 v103, v103, s18, v104")
e("v_rsq_f32 v108, v102"); e("v_rsq_f32 v112, v103")
e("v_mov_b32 v110, v254"); e("v_mov_b32 v114, v254"); e("v_mov_b32 v111, v254"); e("v_mov_b32 v115, v254")
e("v_mul_f32 v109, v100, v108"); e("v_mul_f32 v113, v101, v112")
e("v_sub_f32 v109, 0, v109"); e("v_sub_f32 v113, 0, v113")
e("s_lshr_b32 s15, s2, 5"); e("s_lshl_b32 s15, s15, 12"); e("s_lshl_b32 s16, s21, 11"); e("s_add_u32 s15, s15, s16")
e("s_bfe_u32 s16, s2, 0x40001"); e("s_lshl_b32 s16, s16, 5"); e("s_add_u32 s15, s15, s16")
e("s_and_b32 s16, s2, 1"); e("s_lshl_b32 s16, s16, 1"); e("s_add_u32 s16, s16, s20"); e("s_lshl_b32 s16, s16, 9"); e("s_add_u32 s15, s15, s16")
e(f"s_add_u32 s15, s15, {STG_OFF:#x}")
e("s_mov_b32 exec_lo, 0"); e("s_mov_b32 exec_hi, 0x80000000")
e(f"buffer_store_dwordx4 v[108:111], v5, {SWS}, s15 offen sc1")
e(f"buffer_store_dwordx4 v[112:115], v5, {SWS}, s15 offen offset:16 sc1")
e("s_mov_b64 exec, -1")
mark(3)
e("s_waitcnt vmcnt(2)")
mark(10, "p1")
e("s_barrier")
mark(2)
post_flag(FL1_OFF, 4)
e("s_cmp_lg_u32 s3, 4"); e("s_cbranch_scc1 L_h_np1")
e("s_lshl_b32 s16, s4, 12"); e(f"s_add_u32 s16, s16, {FL1_OFF:#x}"); e("v_add_u32 v7, s16, v17")
e("s_mov_b32 exec_hi, 0")
poll("v7", "v8", "s9", "ap1" in X)
lab("L_h_np1")
e("s_barrier")
e("v_lshlrev_b32 v9, 4, v3")
e("v_lshlrev_b32 v10, 3, v3"); e(f"v_add_u32 v10, {ST_L}, v10")
for j in range(8):
    e(f"s_add_u32 s16, s5, {j}"); e("s_and_b32 s16, s16, 7"); e("s_lshl_b32 s16, s16, 11"); e(f"v_add_u32 v{100+j}, s16, v10")
def issueW(i, emit=True):
    l = []
    l.append([f"s_add_u32 s15, s8, {i}", "s_and_b32 s15, s15, 7", f"s_mul_i32 s15, s15, {64*2752}", "s_add_u32 s15, s15, s22",
              f"s_add_u32 m0, s23, {(i % 4)*WSLOT}", "s_nop 0", f"buffer_load_dwordx4 v14, {SWG}, s15 offen lds"])
    for j in (1, 2): l.append([f"buffer_load_dwordx4 v{14+j}, {SWG}, s15 offen offset:{1024*j} lds"])
    l.append([f"s_add_u32 s15, s8, {i}", "s_and_b32 s15, s15, 7", f"s_mul_i32 s15, s15, {64*2752}", "s_add_u32 s15, s15, s22",
              f"s_add_u32 m0, s23, {(i % 4)*WSLOT + W_U}", "s_nop 0", f"buffer_load_dwordx4 v14, {SWU}, s15 offen lds"])
    for j in (1, 2): l.append([f"buffer_load_dwordx4 v{14+j}, {SWU}, s15 offen offset:{1024*j} lds"])
    return [(x, ("W", i)) for x in l]
def emit_all(items):
    for x, t in items:
        for s in x: e(s)
        vm.add(t)
def stg_loads():
    for j in range(8):
        e(f"s_add_u32 s16, s5, {j}"); e("s_and_b32 s16, s16, 7"); e("s_lshl_b32 s16, s16, 12"); e(f"s_add_u32 s16, s16, {STG_OFF:#x}")
        e(f"buffer_load_dwordx4 {vr(64+4*j,4)}, v9, {SWS}, s16 offen sc1")
stg_loads()
e("s_barrier")
mark(4)
NWPRE = int(os.environ.get("NWPRE", "3"))
e("s_cmp_eq_u32 s7, 15"); e("s_cbranch_scc1 L_h_now0")
emit_all(issueW(0))
e("s_waitcnt vmcnt(6)")
e("s_branch L_stg0")
lab("L_h_now0")
e("s_waitcnt vmcnt(0)")
lab("L_stg0")
if "noprio" not in X: e("s_setprio 3")
mark(9, "p2")
e("s_mov_b32 s30, 0x100000")
lab("L_stg")
e("v_xor_b32 v50, s9, v66")
for j in range(1, 8):
    e(f"v_xor_b32 v51, s9, v{66+4*j}"); e("v_or_b32 v50, v50, v51")
e("v_cmp_ne_u32 vcc, 0, v50")
e("s_cbranch_vccz L_stgx")
e("s_sub_u32 s30, s30, 1"); e("s_cbranch_scc1 L_stgx")
stg_loads()
e("s_waitcnt vmcnt(0)")
e("s_branch L_stg")
lab("L_stgx")
mark(10, "p2")
for j in range(8): e(f"ds_write_b64 v{100+j}, {vr(64+4*j,2)}")
e("s_lshl_b32 s15, s11, 2"); e(f"s_add_u32 s15, s15, {FLG_L+16}"); e("v_mov_b32 v50, s15"); e("v_mov_b32 v51, 1")
e("ds_write_b32 v50, v51")
if "noprio" not in X: e("s_setprio 0")
mark(5)
if "nowdt" not in X:
    e("s_mul_i32 s15, s2, 5504"); e("s_mul_i32 s16, s11, 1408"); e("s_add_u32 s15, s15, s16")
    e("s_mov_b64 exec, 0x7ff")
    e(f"buffer_load_dword v250, v17, {SWD}, s15 offen"); vm.add("t")
    e("s_mov_b64 exec, -1")
e("s_cmp_eq_u32 s7, 15"); e("s_cbranch_scc1 L_h_now")
for i in range(1, NWPRE): emit_all(issueW(i))
lab("L_h_now")
mark(7, "p2")
e("v_and_b32 v20, 15, v2"); e("v_lshrrev_b32 v21, 4, v2"); e("v_lshrrev_b32 v22, 2, v20"); e("v_and_b32 v23, 3, v20")
e("v_lshrrev_b32 v24, 5, v2"); e("v_and_b32 v25, 1, v21"); e("v_lshl_add_u32 v26, v24, 3, v22")
e("v_lshlrev_b32 v27, 8, v26"); e("v_lshl_add_u32 v27, v25, 5, v27"); e("v_lshl_add_u32 v27, v23, 3, v27")
e("v_xor_b32 v17, s11, v22"); e("v_lshl_add_u32 v17, v17, 6, v27"); e(f"v_add_u32 v17, {A_L}, v17")
e("v_add_u32 v18, 16384, v17"); e("v_add_u32 v19, 32768, v17")
e("v_lshrrev_b32 v7, 3, v2"); e("v_lshlrev_b32 v7, 5, v7"); e("v_and_b32 v8, 7, v2"); e("v_add_u32 v7, v7, v8")
e("s_lshl_b32 s16, s11, 3"); e("v_add_u32 v7, s16, v7"); e("v_lshlrev_b32 v7, 7, v7"); e("s_lshl_b32 s16, s4, 15"); e(f"s_add_u32 s16, s16, {FL2_OFF:#x}"); e("v_add_u32 v7, s16, v7")
e("s_lshl_b32 s26, s6, 17"); e("s_lshl_b32 s19, s11, 12"); e("s_add_u32 s26, s26, s19"); e(f"s_add_u32 s26, s26, {HT_OFF:#x}")
for r in range(4): e(f"v_mov_b32 v{20+r}, 0")
e("s_mov_b32 s27, 0x3f803f80")
e("v_lshrrev_b32 v12, 3, v2"); e("v_and_b32 v13, 7, v2"); e("v_bfe_u32 v28, v2, 4, 1"); e("v_lshlrev_b32 v28, 2, v28"); e("v_xor_b32 v13, v13, v28")
e("v_lshlrev_b32 v12, 10, v12"); e("v_lshl_add_u32 v12, v13, 4, v12")
e("s_lshl_b32 s24, s11, 15"); e("s_lshl_b32 s16, s28, 7"); e("s_add_u32 s24, s24, s16")
def issueWd(i):
    l = [[f"s_add_u32 s15, s29, {i if 'wdsame' not in X else i % 3}", "s_cmp_ge_u32 s15, 11", "s_cselect_b32 s16, 11, 0", "s_sub_u32 s15, s15, s16",
          "s_lshl_b32 s15, s15, 17", "s_add_u32 s15, s15, s24", f"s_add_u32 m0, s19, {(i % 10)*16384}", "s_nop 0",
          f"buffer_load_dwordx4 v12, {SWD}, s15 offen lds"]]
    for j in (1, 2, 3): l.append([f"s_add_u32 s16, s15, {j*7168}", f"buffer_load_dwordx4 v12, {SWD}, s16 offen offset:{1024*j} lds"])
    return [(x, ("Wd", i)) for x in l]
WR = 122
def issueWdR(i):
    r = WR + 16*(i-3)
    l = [[f"s_add_u32 s15, s29, {i}", "s_cmp_ge_u32 s15, 11", "s_cselect_b32 s16, 11, 0", "s_sub_u32 s15, s15, s16",
          "s_lshl_b32 s15, s15, 17", "s_add_u32 s15, s15, s24", f"buffer_load_dwordx4 {vr(r,4)}, v12, {SWD}, s15 offen"]]
    for j in (1, 2, 3): l.append([f"s_add_u32 s16, s15, {j*8192}", f"buffer_load_dwordx4 {vr(r+4*j,4)}, v12, {SWD}, s16 offen"])
    return [(x, ("Wd", i)) for x in l]
def writeWdR(i):
    r = WR + 16*(i-3); off = (i % 10)*16384
    for j in range(4): e(f"ds_write_b128 v{30 + (off >> 16)}, {vr(r+4*j,4)} offset:{(off & 0xffff) + 1024*j}")
RSCH = eval(os.environ.get("RSCH", "{0: [10,9,8]}"))
e("v_mov_b32 v118, 1"); e("v_lshlrev_b32 v119, 10, v2"); e("s_lshl_b32 s16, s4, 7"); e(f"s_add_u32 s16, s16, {FL2_OFF:#x}"); e("v_add_u32 v119, s16, v119")
e("v_lshlrev_b32 v120, 7, v2"); e(f"s_and_b32 s16, s2, {NREP-1}"); e("s_lshl_b32 s16, s16, 10"); e(f"s_add_u32 s16, s16, {FL2_OFF:#x}"); e("v_add_u32 v120, s16, v120")
e("s_lshl_b32 s25, s9, 6"); e("s_add_u32 s25, s25, 32")
if RSCH.get('p'):
    e("s_cmp_eq_u32 s7, 15"); e("s_cbranch_scc1 L_now3")
    for k in RSCH['p']: emit_all(issueWdR(k))
    lab("L_now3")
vm.wait(("W", 0))
mark(8, "p2")
e("s_barrier")
mark(6)
if "f256" in X:
    post_flag(FL2_OFF, 4, 8)
    poll("v7", "v8"); vm.clear()
else:
    e("s_cmp_lg_u32 s3, 4"); e("s_cbranch_scc1 L_noadd")
    e(f"s_mov_b32 exec_lo, {(1 << NREP) - 1:#x}"); e("s_mov_b32 exec_hi, 0")
    e(f"buffer_atomic_add v118, v119, {SWS}, 0 offen sc1")
    e("s_mov_b64 exec, -1")
    lab("L_noadd")
    e("s_cmp_eq_u32 s7, 15"); e("s_cbranch_scc1 L_now2")
    for k in range(NWPRE, 4 if "w3it0" not in X else 3): emit_all(issueW(k))
    for k in RSCH.get('w', []): emit_all(issueWdR(k))
    lab("L_now2")
    e("s_cmp_lg_u32 s3, 4"); e("s_cbranch_scc1 L_nopoll2")
    e("s_mov_b64 exec, 0xff")
    poll("v120", "v8", "s25", "ap2" in X)
    lab("L_nopoll2")
e("s_barrier")
e("s_cmp_eq_u32 s7, 15"); e("s_cbranch_scc1 L_h_idle")
def issueA(i, dst=None):
    if dst is None: dst = A_L + (i % 3)*16384
    l = [[f"s_add_u32 s15, s8, {i}", "s_and_b32 s15, s15, 7", "s_lshl_b32 s15, s15, 14", "s_add_u32 s15, s15, s26",
          f"s_add_u32 m0, s19, {dst}", "s_nop 0", f"buffer_load_dwordx4 v11, {SWS}, s15 offen sc1 lds"]]
    for j in (1, 2, 3): l.append([f"buffer_load_dwordx4 v11, {SWS}, s15 offen offset:{1024*j} sc1 lds"])
    return [(x, ("A", i)) for x in l]
for i in range(3): emit_all(issueA(i))
mark(7)
vm.wait(("A", 0))
e("s_barrier")
mark(1, "it2"); mark(1, "it3")
corr_items = [(["s_mul_i32 s15, s7, 3072", "s_lshl_b32 s16, s11, 10", "s_add_u32 s15, s15, s16", f"s_add_u32 s15, s15, {CSF_OFF:#x}",
                "s_lshl_b32 s17, s6, 11", f"s_add_u32 s17, s17, {ST2_OFF:#x}", "s_cmp_eq_u32 s11, 3", "s_cselect_b32 s15, s17, s15",
                f"s_add_u32 m0, s16, {CORR_L}", "s_nop 0", f"buffer_load_dwordx4 v11, {SWS}, s15 offen sc1 lds"], "corr"),
              ([f"s_mov_b32 m0, {CORR_L+3072}", "s_nop 0", f"buffer_load_dwordx4 v11, {SWS}, s17 offen offset:1024 sc1 lds"], "corr")]
Wh = lambda k, h: issueW(k)[3*h:3*h+3]
SCHED = {1: Wh(4,0)+Wh(4,1), 2: Wh(5,0), 3: Wh(5,1)+Wh(6,0), 4: Wh(6,1)+Wh(7,0), 5: Wh(7,1)+issueWd(0), 6: corr_items+issueWd(1)+issueWd(2)}
if "nosmooth" in X:
    SCHED = {1: issueW(4), 2: issueW(5), 3: issueW(6), 4: issueW(7), 5: issueWd(0)+corr_items, 6: issueWd(1)+issueWd(2), 7: issueWd(3)}
for i in range(8):
    items = []
    if 1 <= i <= 5: items += issueA(i+2)
    if i == 0 and "w3it0" in X: items += issueW(3)
    items += SCHED.get(i, [])
    for k in RSCH.get(i, []): items += issueWdR(k)
    emit_all(items)
    if i < 7:
        vm.wait(("A", i+1), ("W", i+1))
        mark(2+i, "it3")
        e("s_barrier")
        mark(2+i, "it2")
vm.wait("corr"); mark(9, "it3"); e("s_barrier")
mark(9, "it2")
mark(8)
NPRE = int(os.environ.get("NPRE", "10"))
e("v_add_u32 v30, s19, v11"); e("v_add_u32 v31, 0x10000, v30"); e("v_add_u32 v32, 0x20000, v30")
RSET = sorted(sum(RSCH.values(), []))
assert 9 in RSET and 10 in RSET
for i in range(3, 9):
    if i not in RSET: emit_all(issueWd(i))
for i in range(3, 9):
    if i in RSET: vm.wait(("Wd", i)); writeWdR(i)
vm.wait(("Wd", 0), ("Wd", 9), ("Wd", 10))
e("s_barrier")
mark(9)
writeWdR(9)
e("s_barrier")
writeWdR(10)
e("s_waitcnt vmcnt(0) lgkmcnt(0)")
e("s_branch L_h_p40")
lab("L_h_idle")
mark(1, "it2")
for i in range(8): emit_all(issueA(i, i*16384))
mark(2, "it2")
e(f"v_subrev_u32 v17, {A_L}, v17")
for r in range(4): e(f"v_mov_b32 v{28+r}, s27")
FS = 100
for half in range(2):
    e(f"s_waitcnt vmcnt({16 - 16*half})"); e("s_barrier")
    mark(3+half, "it2")
    lg.clear()
    rds = [(f"ds_read_b64_tr_b16 {vr(FS+64*half+4*q+2*hh,2)}, v17 offset:{4096*q+1024*hh}", q) for q in range(16) for hh in range(2)]
    for s_, t in rds[:12]: e(s_); lg.add(t)
    rds = rds[12:]
    for q in range(16):
        lg.wait(q)
        e(f"v_mfma_f32_32x32x16_bf16 v[64:79], v[28:31], {vr(FS+64*half+4*q,4)}, {'v[64:79]' if (half or q) else '0'}")
        for s_, t in rds[:2]: e(s_); lg.add(t)
        rds = rds[2:]
    e("v_add_u32 v17, 0x10000, v17")
for q in range(4): e(f"v_mfma_f32_32x32x16_bf16 v[80:95], {vr(FS+4*q,4)}, {vr(FS+4*q,4)}, {'v[80:95]' if q else '0'}")
e("s_nop 7")
e("v_mul_f32 v27, s18, v64")
e("v_sub_f32 v24, 0, v27")
e("v_cvt_pk_bf16_f32 v20, v24, v24")
e("v_and_b32 v25, s14, v20"); e("v_sub_f32 v25, v24, v25"); e("v_mov_b32 v22, 0")
e("v_cvt_pk_bf16_f32 v21, v25, v22")
e("v_mov_b32 v23, v254")
e("s_lshl_b32 s15, s6, 11"); e("s_lshl_b32 s16, s11, 9"); e("s_add_u32 s15, s15, s16"); e(f"s_add_u32 s15, s15, {ST2_OFF:#x}")
e("s_mov_b32 exec_hi, 0")
e(f"buffer_store_dwordx4 v[20:23], v11, {SWS}, s15 offen sc1")
e("s_mov_b64 exec, -1")
mark(7, "it2")
e("s_barrier")
for q in range(4, 32): e(f"v_mfma_f32_32x32x16_bf16 v[80:95], {vr(FS+4*q,4)}, {vr(FS+4*q,4)}, v[80:95]")
e("v_bfe_u32 v22, v2, 3, 2"); e("v_lshlrev_b32 v22, 2, v22"); e("v_and_b32 v23, 3, v2"); e("v_add_u32 v22, v22, v23")
e("v_bfe_u32 v23, v2, 2, 1"); e("v_lshrrev_b32 v24, 5, v2"); e("v_xor_b32 v23, v23, v24"); e("v_lshl_add_u32 v22, v23, 4, v22")
e("v_mov_b32 v21, 0")
e("s_nop 7")
for r in range(16):
    e(f"v_cmp_eq_u32 s[{100 if False else 76}:{77}], {r}, v22" if r & 1 else f"v_cmp_eq_u32 vcc, {r}, v22")
    e("s_nop 1")
    e(f"v_cndmask_b32 v21, v21, v{80+r}, s[76:77]" if r & 1 else f"v_cndmask_b32 v21, v21, v{80+r}, vcc")
e("v_mov_b32 v23, v21")
e("s_nop 1")
e("v_permlane32_swap_b32 v23, v21")
e("s_nop 1")
e("v_add_f32 v21, v21, v23")
e("v_mul_f32 v21, s18, v21")
e("v_fma_f32 v21, -v27, v27, v21"); e("v_max_f32 v21, 0, v21"); e("v_add_f32 v21, 0x3727c5ac, v21")
e("v_rcp_f32 v22, v21")
e("v_lshlrev_b32 v23, 2, v2")
e("s_lshl_b32 s15, s6, 9"); e("s_lshl_b32 s16, s11, 7"); e("s_add_u32 s15, s15, s16"); e(f"s_add_u32 s15, s15, {R2_OFF:#x}")
e("s_mov_b32 exec_hi, 0")
e(f"buffer_store_dword v22, v23, {SWS}, s15 offen sc1")
e("s_mov_b64 exec, -1")
e("s_waitcnt vmcnt(0)")
mark(8); mark(8, "it2")
vm.clear()
for i in range(0, NPRE): emit_all(issueWd(i))
vm.wait(("Wd", 0))
e("s_barrier")
mark(9)
e("s_barrier")
for i in range(NPRE, 11): emit_all(issueWd(i))
e("s_waitcnt vmcnt(0)")
lab("L_h_p40")
mark(10)
e("s_barrier")
e("s_cmp_lg_u32 s2, 0"); e("s_cbranch_scc1 L_hend")
e("s_cmp_lg_u32 s3, 4"); e("s_cbranch_scc1 L_hend")
e("s_mov_b64 exec, 1")
e(f"buffer_store_dword v254, v255, {SWS}, 0 offen sc1")
lab("L_hend")
if STAMP: e("s_barrier"); e("s_barrier")
endpgm()
lab("L_end")

hdr = open("sequential_preLN__ssm_conv_h3__glu_gated_reglu__prompt.s.ref").read().split("; Override")[0]
s = hdr + f"; @launch grid=(256,1,1) block=(512,1,1) lds={LDS_BYTES}\n"
s += '.amdgcn_target "amdgcn-amd-amdhsa--gfx950"\n.text\n'
s += f".globl {NAME}\n.p2align 8\n.type {NAME},@function\n{NAME}:\n" + "\n".join(L) + "\n    s_endpgm\n"
s += f""".section .rodata,"a"
.p2align 6
.amdhsa_kernel {NAME}
  .amdhsa_next_free_vgpr 256
  .amdhsa_next_free_sgpr 102
  .amdhsa_accum_offset 256
  .amdhsa_group_segment_fixed_size 0
  .amdhsa_kernarg_size 104
  .amdhsa_user_sgpr_count 2
  .amdhsa_user_sgpr_kernarg_segment_ptr 1
  .amdhsa_system_sgpr_workgroup_id_x 1
  .amdhsa_float_denorm_mode_32 3
.end_amdhsa_kernel
"""
open(OUT, "w").write(s)
```

```python
import sys, os
OUT = sys.argv[1] if len(sys.argv) > 1 else "v8.s"
STAMP = int(os.environ.get("STAMP", "0"))
X = os.environ.get("X", "").split(",") + ["ap2", "ap3", "qnt", "qrnt", "m2"]
SLP = int(os.environ.get("SLP", "1"))
NREP = int(os.environ.get("NREP", "32"))
NT = "" if "nont" in X else " nt"
NAME = "sequential_preLN__ssm_conv_h3__glu_gated_reglu__prompt_kernel"

RS      = 4224
KVT_OFF = 0
QT_OFF  = 0x210000
STG_OFF = 0x420000
EPO_OFF = 0x428000
FL1_OFF = 0x430000
FL3_OFF = 0x440000
ST2_OFF = 0x448000
CSF_OFF = 0x450000
R2_OFF  = 0x460000
CSP_OFF = 0x468000
FL2_OFF = 0x4D0000
HT_OFF  = 0x510000
HH_OFF  = 0x710000
HH_KS   = 96
WS_END  = HH_OFF + 64 * HH_KS * 1024
STAMP_OFF = 0x1000000
if STAMP and "dbg" not in X: WS_END = 0x2000000

WSLOT = 24640; W_U = 12320
RB = 4 * WSLOT
T_KV = RB
EX_L = 3 * WSLOT
Q_L = EX_L + 16384
T_Q = RB + 8192
CP = 4160; HREG = 4 * CP; XREG = 4608; CH_L = HREG + XREG
ST_L = RB + 2 * CH_L
FLG_L = 163840 - 64
assert ST_L + 16384 <= FLG_L
A_L = RB
MEAN_L = RB + 49152
CORR_L = RB + 49152
LDS_BYTES = 163840

L = []
def e(s): L.append("    " + s)
def lab(s): L.append(s + ":")
def vr(a, n): return f"v[{a}:{a+n-1}]"
def mark(i, grp=None):
    if "p1" in X and i in (7, 8, 9, 10) and grp != "p1": return
    if "it" in X and i in (1, 2, 3) and grp != "it": return
    if "p2" in X and i in (7, 8, 9, 10) and grp != "p2": return
    if ("it2" in X or "it3" in X) and 1 <= i <= 10 and grp not in ("it2", "it3"): return
    if "p4" in X and 1 <= i <= 10 and grp != "p4": return
    if grp and grp not in X: return
    if STAMP: e(f"{'s_memtime' if 'cyc' in X else 's_memrealtime'} s[{78+2*i}:{79+2*i}]")
def srd(d, base, nbytes):
    e(f"s_mov_b32 s{d}, s{base}"); e(f"s_mov_b32 s{d+1}, s{base+1}"); e(f"s_mov_b32 s{d+2}, {nbytes:#x}"); e(f"s_mov_b32 s{d+3}, 0x20000")
NST = 12
def endpgm():
    if STAMP:
        e("s_mov_b64 exec, -1")
        e("s_waitcnt vmcnt(0) lgkmcnt(0)")
        mark(NST-1)
        if "dbg" in X:
            n = nid()
            e("s_cmp_lg_u32 s3, 0"); e(f"s_cbranch_scc1 L_nd{n}"); e("s_cmp_ge_u32 s5, 28"); e(f"s_cbranch_scc1 L_nd{n}")
            e("s_load_dwordx2 s[4:5], s[0:1], 88"); e("s_waitcnt lgkmcnt(0)")
            e("s_mov_b32 s6, 256"); e("s_mov_b32 s7, 0x20000")
            e("s_mov_b64 exec, 1"); e("v_mov_b32 v251, 0")
            e("s_not_b32 s76, s78"); e("v_mov_b32 v252, s76")
            e("buffer_atomic_umax v252, v251, s[4:7], 0 offen offset:48")
            for i in range(NST):
                e(f"v_mov_b32 v{200+i}, s{78+2*i}")
                e(f"buffer_atomic_umax v{200+i}, v251, s[4:7], 0 offen offset:{4*i}")
            lab(f"L_nd{n}")
            e("s_endpgm")
            return
        e("s_lshl_b32 s76, s2, 9"); e("s_lshl_b32 s77, s3, 6"); e("s_add_u32 s76, s76, s77"); e(f"s_add_u32 s76, s76, {STAMP_OFF}")
        e("v_mov_b32 v251, 0")
        e("s_waitcnt lgkmcnt(0)")
        for i in range(NST):
            e(f"v_mov_b32 v252, s{78+2*i}")
            e(f"buffer_store_dword v252, v251, s[40:43], s76 offen offset:{4*i}")
    e("s_endpgm")

class Trk:
    def __init__(self, name, mx): self.q = []; self.name = name; self.mx = mx
    def add(self, tag, n=1): self.q += [tag] * n
    def wait(self, *tags):
        idx = -1
        for i, t in enumerate(self.q):
            if t in tags: idx = i
        if idx < 0: return
        n = len(self.q) - 1 - idx
        n = min(n, self.mx)
        e(f"s_waitcnt {self.name}({n})")
        self.q = self.q[len(self.q) - n:] if n else []
    def clear(self): self.q = []

SQ, SK, SWS, SV, SSH, SSK, SD, SWG, SWU, SWD, SOUT = [f"s[{x}:{x+3}]" for x in (32, 36, 40, 44, 48, 52, 56, 60, 64, 68, 72)]
uid = [0]
def nid():
    uid[0] += 1; return uid[0]
def poll(addr, tmp, want="s9", atom=False):
    n = nid()
    e("s_mov_b32 s30, 0x100000")
    lab(f"L_poll{n}")
    if atom:
        e(f"v_mov_b32 {tmp}, 0")
        e(f"buffer_atomic_add {tmp}, {addr}, {SWS}, 0 offen sc0 sc1")
    else:
        e(f"buffer_load_dword {tmp}, {addr}, {SWS}, 0 offen sc1")
    e("s_waitcnt vmcnt(0)")
    e(f"v_cmp_ne_u32 vcc, {want}, {tmp}")
    e("s_sub_u32 s30, s30, 1")
    e(f"s_cbranch_scc1 L_pollx{n}")
    e("s_and_b64 exec, exec, vcc")
    if SLP:
        e(f"s_cbranch_execz L_pollx{n}")
        e(f"s_sleep {SLP}")
        e(f"s_branch L_poll{n}")
    else:
        e(f"s_cbranch_execnz L_poll{n}")
    lab(f"L_pollx{n}")
    e("s_mov_b64 exec, -1")
def post_flag(off, wave, lanes=1):
    n = nid()
    e(f"s_cmp_lg_u32 s3, {wave}"); e(f"s_cbranch_scc1 L_nopost{n}")
    e(f"s_mov_b64 exec, {(1 << lanes) - 1}")
    e(f"s_mov_b32 s31, {off:#x}")
    e(f"buffer_store_dword v254, v253, {SWS}, s31 offen sc1")
    e("s_mov_b64 exec, -1")
    lab(f"L_nopost{n}")
def unpack(dst, src, c):
    s = src + (c >> 1)
    if c & 1: e(f"v_and_b32 v{dst}, s14, v{s}")
    else: e(f"v_lshlrev_b32 v{dst}, 16, v{s}")

mark(0)
e("s_cmp_ge_u32 s2, 256"); e("s_cbranch_scc1 L_end")
e("s_load_dwordx16 s[4:19], s[0:1], 0")
e("s_load_dwordx8 s[20:27], s[0:1], 64")
e("s_load_dwordx2 s[28:29], s[0:1], 96")
e("v_lshrrev_b32 v1, 6, v0"); e("v_and_b32 v2, 63, v0")
e("v_readfirstlane_b32 s3, v1")
if "nocode" not in X:
    e("s_getpc_b64 s[76:77]")
    lab("L_pc")
    e("s_and_b32 s30, s2, 0xf8"); e("s_add_u32 s30, s30, s3"); e("s_lshl_b32 s30, s30, 7"); e("s_min_u32 s30, s30, L_end - L_pc")
    e("v_mov_b32 v250, s30")
    e("s_mov_b64 exec, 1")
    e("global_load_dword v250, v250, s[76:77]")
    e("s_mov_b64 exec, -1")
e("v_and_b32 v3, 255, v0")
e("v_and_b32 v10, 15, v3"); e("v_lshrrev_b32 v11, 4, v3")
e("s_bfe_u32 s30, s2, 0x30003"); e("s_lshr_b32 s31, s2, 6"); e("s_lshl_b32 s31, s31, 3"); e("s_and_b32 s76, s2, 7"); e("s_add_u32 s31, s31, s76")
e("s_lshl_b32 s76, s31, 16"); e("s_lshl_b32 s77, s30, 7"); e("s_add_u32 s76, s76, s77")
e("v_lshlrev_b32 v12, 12, v11"); e("v_lshl_add_u32 v12, v10, 3, v12"); e("v_add_u32 v12, s76, v12")
e("v_subrev_u32 v14, 3072, v12")
e("s_lshl_b32 s77, s30, 9"); e("v_lshlrev_b32 v15, 5, v10"); e("v_add_u32 v15, s77, v15")
e("s_lshl_b32 s77, s30, 5"); e("s_add_u32 s77, s77, s31"); e("s_lshl_b32 s77, s77, 7"); e("v_mov_b32 v253, s77")
e(f"v_mov_b32 v255, {EPO_OFF:#x}")
e("s_cmp_ge_u32 s3, 4")
e("s_waitcnt lgkmcnt(0)")
srd(36, 6, 0x200000); srd(48, 10, 4096); srd(44, 8, 0x200000); srd(32, 4, 0x200000)
e("s_cbranch_scc1 L_skipkv")
for r in range(3): e(f"buffer_load_dwordx2 {vr(16+2*r,2)}, v14, {SK}, 0 offen offset:{1024*r}{NT}")
for r in range(4): e(f"buffer_load_dwordx2 {vr(22+2*r,2)}, v12, {SK}, 0 offen offset:{1024*r}{NT}")
e(f"buffer_load_dwordx4 {vr(48,4)}, v15, {SSH}, 0 offen")
e(f"buffer_load_dwordx4 {vr(52,4)}, v15, {SSH}, 0 offen offset:16")
for r in range(4): e(f"buffer_load_dwordx2 {vr(30+2*r,2)}, v12, {SV}, 0 offen offset:{1024*r}{NT}")
e("s_branch L_kvdone")
lab("L_skipkv")
for r in range(4): e(f"buffer_load_dwordx2 {vr(38+2*r,2)}, v12, {SQ}, 0 offen offset:{1024*r}{' nt' if 'qnt' in X else ''}")
lab("L_kvdone")
srd(40, 28, WS_END)
e(f"buffer_load_dword v254, v255, {SWS}, 0 offen sc1")
srd(52, 12, 0x200000); srd(56, 14, 1024); srd(60, 18, 512*2752); srd(64, 20, 512*2752); srd(68, 22, 1376*1024); srd(72, 24, 0x200000)
e("s_and_b32 s4, s2, 7"); e("s_lshr_b32 s5, s2, 3")
e("s_and_b32 s10, s4, 1"); e("s_lshr_b32 s17, s4, 1")
e("s_mul_i32 s7, s17, 3"); e("s_lshr_b32 s16, s5, 3"); e("s_add_u32 s7, s7, s16"); e("s_and_b32 s8, s5, 7")
e("s_lshr_b32 s15, s17, 1"); e("s_add_u32 s15, s15, 12"); e("s_and_b32 s16, s17, 1"); e("s_lshl_b32 s16, s16, 2"); e("s_and_b32 s6, s5, 3"); e("s_add_u32 s16, s16, s6")
e("s_cmp_ge_u32 s5, 24"); e("s_cselect_b32 s7, s15, s7"); e("s_cselect_b32 s8, s16, s8")
e("s_lshr_b32 s15, s5, 1"); e("s_lshl_b32 s16, s17, 1"); e("s_and_b32 s6, s5, 1"); e("s_add_u32 s16, s16, s6")
e("s_cmp_ge_u32 s5, 28"); e("s_cselect_b32 s7, s15, s7"); e("s_cselect_b32 s8, s16, s8")
e("s_lshl_b32 s6, s10, 3"); e("s_add_u32 s6, s6, s8")
e("s_and_b32 s11, s3, 3")
e("s_lshl_b32 s12, s4, 6"); e("s_lshl_b32 s13, s5, 1"); e("s_add_u32 s12, s12, s13")
if "m2" in X:
    e("s_lshr_b32 s77, s4, 1"); e("s_lshl_b32 s77, s77, 3"); e("s_lshr_b32 s16, s5, 2"); e("s_add_u32 s77, s77, s16")
else:
    e("s_lshl_b32 s77, s4, 2"); e("s_lshr_b32 s16, s5, 3"); e("s_add_u32 s77, s77, s16")
e("s_lshr_b32 s13, s77, 1")
e("s_lshr_b32 s17, s3, 2"); e("s_lshl_b32 s17, s17, 13"); e(f"s_add_u32 s17, s17, {T_KV}")
e("v_lshrrev_b32 v13, 1, v11"); e("v_and_b32 v14, 7, v10"); e("v_xor_b32 v13, v13, v14"); e("v_lshlrev_b32 v13, 4, v13")
e("v_lshl_add_u32 v13, v10, 9, v13"); e("v_and_b32 v14, 1, v11"); e("v_lshl_add_u32 v13, v14, 3, v13"); e("v_add_u32 v13, s17, v13")
e("v_lshrrev_b32 v128, 3, v2"); e("s_lshl_b32 s15, s11, 4"); e("v_add_u32 v128, s15, v128")
e("v_and_b32 v129, 7, v2")
e("v_lshrrev_b32 v130, 2, v128"); e("v_and_b32 v130, 7, v130"); e("v_xor_b32 v124, v129, v130"); e("v_xor_b32 v125, 2, v124")
e("v_lshlrev_b32 v130, 7, v128"); e("v_lshl_add_u32 v124, v124, 4, v130"); e("v_lshl_add_u32 v125, v125, 4, v130")
e("v_add_u32 v124, s17, v124"); e("v_add_u32 v125, s17, v125")
e(f"v_mul_u32_u24 v126, {RS}, v128"); e("v_lshl_add_u32 v126, v129, 4, v126")
e(f"s_mul_i32 s18, s30, {64*RS}"); e("s_lshl_b32 s16, s31, 7"); e("s_add_u32 s18, s18, s16")
e("s_lshr_b32 s16, s3, 2"); e(f"s_mul_i32 s16, s16, {QT_OFF-KVT_OFF:#x}"); e("s_add_u32 s18, s18, s16")
e(f"s_add_u32 s19, s18, {8*RS}")
e("s_mov_b32 s14, 0xffff0000")
e("s_lshr_b32 s20, s11, 1"); e("s_and_b32 s21, s11, 1")
if "m2" in X:
    e("s_and_b32 s28, s4, 1"); e("s_lshl_b32 s28, s28, 2"); e("s_and_b32 s16, s5, 3"); e("s_add_u32 s28, s28, s16")
else: e("s_and_b32 s28, s5, 7")
if "m2" in X:
    e("s_lshr_b32 s16, s5, 2"); e("s_mul_i32 s29, s16, 11"); e("s_lshr_b32 s29, s29, 3")
else:
    e("s_lshr_b32 s16, s5, 3"); e("s_mul_i32 s29, s16, 3")
if "rot4" in X:
    e("s_add_u32 s29, s29, s28"); e("s_cmp_ge_u32 s29, 11"); e("s_cselect_b32 s16, 11, 0"); e("s_sub_u32 s29, s29, s16")
e("s_cmp_ge_u32 s3, 4"); e("s_cbranch_scc1 L_H")
def rot11(i):
    e(f"s_add_u32 s15, s29, {i}"); e("s_cmp_ge_u32 s15, 11"); e("s_cselect_b32 s16, 11, 0"); e("s_sub_u32 s15, s15, s16")

e("v_lshlrev_b32 v6, 4, v3"); e("v_sub_u32 v7, 4080, v6"); e("v_subrev_u32 v8, 8, v7"); e("v_max_i32 v8, 0, v8")
e("s_add_u32 s22, s12, s20")
e("s_lshl_b32 s15, s22, 1"); e("v_mov_b32 v9, s15"); e("v_mov_b32 v240, 0")
e("s_lshl_b32 s15, s12, 12"); e("s_add_u32 s16, s15, 4096")
e("s_waitcnt vmcnt(5)")
mark(1)
def ssm_loads():
    e("s_lshl_b32 s15, s12, 12"); e("s_add_u32 s16, s15, 4096")
    e(f"buffer_load_dwordx4 v[228:231], v7, {SSK}, s15 offen{NT}")
    e(f"buffer_load_dwordx2 v[226:227], v8, {SSK}, s15 offen{NT}")
    e(f"buffer_load_dwordx4 v[236:239], v7, {SSK}, s16 offen{NT}")
    e(f"buffer_load_dwordx2 v[234:235], v8, {SSK}, s16 offen{NT}")
    e(f"buffer_load_short_d16_hi v240, v9, {SD}, 0 offen")
LATE = "ssmearly" not in X
if not LATE: ssm_loads()
for r in range(7):
    for c in range(4): unpack(64+4*r+c, 16+2*r, c)
for c in range(4):
    for j in range(4): unpack(92+4*c+j, 48+2*c, j)
for r in range(4):
    for c in range(4): e(f"v_mul_f32 v{108+4*r+c}, v{64+4*r+c}, v{92+4*c+3}")
for j in (2, 1, 0):
    for r in range(4):
        for c in range(4): e(f"v_fmac_f32 v{108+4*r+c}, v{64+4*(r+3-j)+c}, v{92+4*c+j}")
e(f"s_waitcnt vmcnt({1 if LATE else 6})")
for r in range(4):
    for c in range(4): unpack(64+4*r+c, 30+2*r, c)
for r in range(4):
    for c in range(4): e(f"v_mul_f32 v{108+4*r+c}, v{108+4*r+c}, v{64+4*r+c}")
for c in range(4):
    e(f"v_cvt_pk_bf16_f32 v{80+2*c}, v{108+c}, v{112+c}")
    e(f"v_cvt_pk_bf16_f32 v{81+2*c}, v{116+c}, v{120+c}")
    e(f"ds_write_b64 v13, {vr(80+2*c,2)} offset:{128*c}")
mark(7, "p1")
e("s_waitcnt lgkmcnt(0)"); e("s_barrier")
mark(8, "p1")
e("ds_read_b128 v[28:31], v124"); e("ds_read_b128 v[32:35], v125 offset:1024")
e("s_waitcnt lgkmcnt(1)")
e(f"buffer_store_dwordx4 v[28:31], v126, {SWS}, s18 offen sc1")
e("s_waitcnt lgkmcnt(0)")
e(f"buffer_store_dwordx4 v[32:35], v126, {SWS}, s19 offen sc1")
def toeplitz_regs(waitn):
    e("s_mov_b32 s15, 0xffff")
    e("v_cmp_ne_u32 vcc, 255, v3")
    e(f"v_add_u32 v16, {RB}, v6")
    e(f"s_waitcnt vmcnt({waitn})")
    mark(9, "p1")
    e("v_add_u32 v254, 1, v254")
    for ch in range(2):
        b = 226 + 8*ch
        e(f"v_cndmask_b32 v{b}, 0, v{b}, vcc"); e(f"v_cndmask_b32 v{b+1}, 0, v{b+1}, vcc")
        w = lambda i: f"v{b+2+i}"
        o = 40 + 16*ch
        for n, i in enumerate((2, 1, 0, -1)): e(f"v_bfi_b32 v{o+n}, s15, {w(i)}, {w(i-1)}")
        for n, i in enumerate((2, 1, 0, -1)): e(f"v_alignbit_b32 v{o+4+n}, {w(i)}, {w(i)}, 16")
        for n, i in enumerate((3, 2, 1, 0)): e(f"v_bfi_b32 v{o+8+n}, s15, {w(i)}, {w(i-1)}")
        for n, i in enumerate((3, 2, 1, 0)): e(f"v_alignbit_b32 v{o+12+n}, {w(i)}, {w(i)}, 16")
    e("v_readfirstlane_b32 s9, v254")
if not LATE: toeplitz_regs(2)
for r in range(4): e(f"v_mov_b32 v{72+r}, 0")
e("v_lshrrev_b32 v17, 5, v3"); e(f"v_mul_u32_u24 v17, {CH_L}, v17"); e("v_and_b32 v18, 31, v3"); e("v_lshl_add_u32 v17, v18, 4, v17")
e(f"v_add_u32 v17, {RB+HREG}, v17")
e("v_bfe_u32 v18, v3, 4, 1"); e(f"v_mul_u32_u24 v18, {CH_L}, v18"); e("v_bfe_u32 v19, v3, 2, 2"); e(f"v_mul_u32_u24 v19, {CP}, v19")
e("v_add_u32 v18, v18, v19"); e("v_and_b32 v19, 3, v3"); e("v_lshl_add_u32 v18, v19, 4, v18"); e(f"v_add_u32 v18, {RB+4096}, v18")
e("s_lshl_b32 s16, s4, 5"); e("s_lshl_b32 s17, s21, 4"); e("s_add_u32 s16, s16, s17")
e("v_and_b32 v20, 15, v2"); e("v_add_u32 v20, s16, v20"); e("v_lshlrev_b32 v20, 7, v20"); e(f"v_add_u32 v20, {FL1_OFF:#x}, v20")
e(f"s_mul_i32 s24, s22, {RS}"); e("s_lshl_b32 s25, s21, 11"); e("s_add_u32 s24, s24, s25")
e(f"s_mul_i32 s23, s20, {CH_L}"); e(f"s_add_u32 s23, s23, {RB}")
e(f"s_add_u32 s26, s23, {HREG+512}"); e("s_add_u32 s26, s26, s25")
e("v_lshlrev_b32 v5, 4, v2")
if LATE: ssm_loads()
e(f"s_waitcnt vmcnt({5 if LATE else 0})")
mark(10, "p1")
e("s_barrier")
mark(2)
if LATE: toeplitz_regs(0)
for ch in range(2):
    for kap in range(4): e(f"ds_write_b128 v16, {vr(40+16*ch+4*kap,4)} offset:{ch*CH_L + kap*CP}")
e("s_cmp_lg_u32 s11, 0"); e("s_cbranch_scc1 L_nopad")
e("ds_write_b128 v17, v[72:75]")
e("s_mov_b32 exec_hi, 0")
e("ds_write_b128 v18, v[72:75]")
lab("L_nopad")
e("s_mov_b64 exec, -1")
e("s_barrier")
e("s_mov_b32 m0, s26")
e("s_nop 0")
e(f"buffer_load_dwordx4 v5, {SWS}, s24 offen sc1 lds")
e(f"buffer_load_dwordx4 v5, {SWS}, s24 offen offset:1024 sc1 lds")
e("s_lshl_b32 s15, s11, 11"); e(f"s_add_u32 m0, s15, {Q_L}"); e(f"s_add_u32 s24, s24, {QT_OFF-KVT_OFF:#x}")
e(f"buffer_load_dwordx4 v5, {SWS}, s24 offen sc1 lds")
e(f"buffer_load_dwordx4 v5, {SWS}, s24 offen offset:1024 sc1 lds")
mark(3)
e("v_and_b32 v6, 15, v2"); e("v_lshrrev_b32 v7, 4, v2")
e("v_lshlrev_b32 v8, 4, v6"); e("v_lshl_add_u32 v8, v7, 2, v8")
e("v_and_b32 v32, 3, v6"); e(f"v_mul_u32_u24 v32, {CP}, v32")
e("v_lshrrev_b32 v33, 2, v6"); e("v_lshlrev_b32 v33, 3, v33"); e("v_lshl_add_u32 v33, v7, 4, v33")
e("v_sub_u32 v32, v32, v33")
e("s_lshl_b32 s15, s21, 8"); e("s_sub_u32 s16, s23, s15")
e(f"s_add_u32 s17, s16, {2*2052 - 512*7 - 64*3}"); e("v_add_u32 v32, s17, v32")
e("v_lshlrev_b32 v33, 5, v6"); e("v_lshlrev_b32 v34, 4, v7"); e("v_sub_u32 v33, v33, v34")
e(f"s_add_u32 s17, s16, {HREG + 512 + 16 - 64*3}"); e("v_add_u32 v33, s17, v33")
e("v_lshlrev_b32 v9, 1, v8")
e("s_lshl_b32 s15, s11, 12"); e(f"s_add_u32 s15, s15, {EX_L}"); e("s_xor_b32 s16, s11, 1"); e("s_lshl_b32 s16, s16, 12"); e(f"s_add_u32 s16, s16, {EX_L}")
e("v_add_u32 v34, s15, v5"); e("v_add_u32 v35, s16, v5")
e("v_add_u32 v12, s26, v9")
e("s_lshl_b32 s17, s11, 11"); e(f"s_add_u32 s17, s17, {Q_L}"); e("v_add_u32 v10, s17, v9")
e("s_lshl_b32 s17, s21, 13"); e(f"s_add_u32 s17, s17, {ST_L}"); e("v_add_u32 v13, s17, v5")
e("v_and_b32 v14, 7, v6"); e("v_lshlrev_b32 v14, 1, v14"); e("v_lshrrev_b32 v15, 1, v7"); e("v_add_u32 v14, v14, v15")
e("s_and_b32 s15, s22, 3"); e("s_lshl_b32 s15, s15, 2"); e("v_xor_b32 v14, s15, v14")
e("v_lshlrev_b32 v14, 4, v14")
e("v_lshrrev_b32 v15, 3, v6"); e("v_lshl_add_u32 v14, v15, 17, v14")
e("v_and_b32 v15, 1, v7"); e("v_lshl_add_u32 v14, v15, 18, v14")
e("s_lshl_b32 s18, s22, 8"); e("s_lshl_b32 s17, s21, 20"); e("s_add_u32 s18, s18, s17"); e(f"s_add_u32 s18, s18, {HT_OFF:#x}")
e(f"s_add_u32 s19, s18, {4*131072}")
e("s_lshl_b32 s15, s11, 2"); e(f"s_add_u32 s15, s15, {FLG_L}"); e("v_mov_b32 v16, s15"); e("s_xor_b32 s15, s15, 4"); e("v_mov_b32 v17, s15")
e(f"v_mov_b32 v18, {FLG_L+16}"); e("v_mov_b32 v19, 1")
e("v_subrev_u32 v20, 8, v2"); e("v_and_b32 v21, 7, v2")
e("v_lshrrev_b32 v22, 16, v240"); e("v_and_b32 v23, 1, v21"); e("v_lshlrev_b32 v23, 4, v23"); e("v_lshlrev_b32 v22, v23, v22")
e("v_cmp_gt_u32 vcc, 16, v20"); e("v_lshrrev_b32 v21, 1, v21"); e("s_nop 0"); e("v_cndmask_b32 v22, 0, v22, vcc")
for dw in range(4):
    e(f"v_cmp_eq_u32 vcc, {dw}, v21"); e("s_nop 1"); e(f"v_cndmask_b32 v{232+dw}, 0, v22, vcc")
e("s_waitcnt vmcnt(2) lgkmcnt(0)"); e("s_barrier")
mark(4)
ACC = 36; FA = [72, 136]; FB = [104, 168]
lg = Trk("lgkmcnt", 15)
def creads(rr, buf):
    lst = []
    for i in range(8):
        off = 512*(7-i) + 64*(3-rr)
        lst.append((f"ds_read_b128 {vr(FB[buf]+4*i,4)}, v33 offset:{512*i + 64*(3-rr)}", ("B", rr, i)))
        lst.append((f"ds_read_b64 {vr(FA[buf]+4*i,2)}, v32 offset:{off}", ("A", rr, i)))
        lst.append((f"ds_read_b64 {vr(FA[buf]+4*i+2,2)}, v32 offset:{off+8}", ("A", rr, i)))
    return lst
first = creads(0, 0)
for s, t in first[:12]: e(s); lg.add(t)
pend = first[12:]
pairs = sorted([(i, j) for i in range(8) for j in range(8 - i)], key=lambda p: (max(p), p[0] + p[1]))
started = set()
def mf(rr, i, j):
    global pend
    buf = rr & 1; t = i + j
    while any(x[1] in (("A", rr, i), ("B", rr, j)) for x in pend):
        s_, tg = pend.pop(0); e(s_); lg.add(tg)
    lg.wait(("A", rr, i), ("B", rr, j))
    c = vr(ACC+4*t, 4) if t in started else "0"
    started.add(t)
    e(f"v_mfma_f32_16x16x32_bf16 {vr(ACC+4*t,4)}, {vr(FA[buf]+4*i,4)}, {vr(FB[buf]+4*j,4)}, {c}")
for rr in range(3):
    pend = pend + creads(rr+1, (rr & 1) ^ 1)
    npend = len(pend)
    for n, (i, j) in enumerate(pairs):
        mf(rr, i, j)
        want = npend - (npend * (n + 1)) // 32
        while len(pend) > max(want, 0):
            s_, tg = pend.pop(0); e(s_); lg.add(tg)
        if rr == 2 and n == 33:
            e("ds_read_b128 v[20:23], v18"); lg.add("aux")
    if rr == 0:
        e("s_cmp_lg_u32 s21, 0"); e("s_cbranch_scc1 L_nodiag")
        for t in range(8): e(f"v_mfma_f32_16x16x32_bf16 {vr(ACC+4*t,4)}, v[232:235], {vr(FB[0]+4*t,4)}, {vr(ACC+4*t,4)}")
        lab("L_nodiag")
assert not pend
lab("L_aux")
e("s_waitcnt vmcnt(0) lgkmcnt(0)"); lg.clear()
e("v_and_b32 v20, v20, v21"); e("v_and_b32 v22, v22, v23"); e("v_and_b32 v20, v20, v22")
e("v_cmp_ne_u32 vcc, 1, v20")
e("s_cbranch_vccz L_auxok")
e("ds_read_b128 v[20:23], v18")
e("s_branch L_aux")
lab("L_auxok")
mark(7, "p2")
for u in range(4):
    e(f"ds_read_b64 {vr(80+2*u,2)}, v10 offset:{512*u}")
    e(f"ds_read_b128 {vr(88+8*u,4)}, v13 offset:{2048*u}"); e(f"ds_read_b128 {vr(92+8*u,4)}, v13 offset:{2048*u+1024}")
e("s_cmp_eq_u32 s21, 0"); e("s_cbranch_scc1 L_conv_h0")
QN = 200; T0 = 216
for hf in (1, 0):
    if hf == 0: lab("L_conv_h0")
    keep = 4*hf; send = 4*(1-hf)
    def rr_order(lo):
        qs = [[p for p in pairs if p[0]+p[1] == t] for t in range(lo+3, lo-1, -1)]
        out = []
        while any(qs):
            qs.sort(key=lambda q: -len(q))
            k = [q for q in qs if q and (not out or q[0][0]+q[0][1] != out[-1][0]+out[-1][1])] or [q for q in qs if q]
            out.append(k[0].pop(0))
        return out
    order = rr_order(send) + rr_order(keep)
    if "oldorder" in X: order = [p for p in pairs if send <= p[0]+p[1] < send+4] + [p for p in pairs if keep <= p[0]+p[1] < keep+4]
    nsend = len([p for p in pairs if send <= p[0]+p[1] < send+4])
    valu = []
    for u in range(4):
        valu.append(f"s_waitcnt lgkmcnt({9-3*u})" if u < 3 else "WAITALL")
        for r in range(4):
            qs = 80 + 2*u + (r >> 1); tq = T0+4*u+r
            valu.append(f"v_and_b32 v{tq}, s14, v{qs}" if r & 1 else f"v_lshlrev_b32 v{tq}, 16, v{qs}")
        for r in range(4):
            valu.append(f"v_fma_f32 v{QN+4*u+r}, v{T0+4*u+r}, v{88+8*u+2*r}, v{89+8*u+2*r}")
    sent = False; wrote = 0
    def emitv(x):
        if x == "WAITALL" or (x.startswith("s_waitcnt") and wrote): e(f"s_waitcnt lgkmcnt({wrote})" if x == "WAITALL" or True else x)
        else: e(x)
    for n, (i, j) in enumerate(order):
        t = i + j
        e(f"v_mfma_f32_16x16x32_bf16 {vr(ACC+4*t,4)}, {vr(FA[1]+4*i,4)}, {vr(FB[1]+4*j,4)}, {vr(ACC+4*t,4)}")
        if n >= 3:
            k = 0
            while valu and k < 1:
                x = valu.pop(0); emitv(x)
                if not x.startswith("s_waitcnt") and x != "WAITALL": k += 1
        if n == nsend + 4:
            for u in range(4): e(f"ds_write_b128 v34, {vr(ACC+4*send+4*u,4)} offset:{1024*u}")
            e("ds_write_b32 v16, v19"); wrote = 5
    while valu: emitv(valu.pop(0))
    if hf == 1: mark(5)
    else: mark(5)
    n_ = nid()
    lab(f"L_pw{n_}")
    e("ds_read_b32 v20, v17")
    e("s_waitcnt lgkmcnt(0)")
    e("v_cmp_ne_u32 vcc, 1, v20")
    e(f"s_cbranch_vccnz L_pw{n_}")
    mark(8, "p2")
    for u in range(4): e(f"ds_read_b128 {vr(72+4*u,4)}, v35 offset:{1024*u}")
    for u in range(4):
        y = ACC + 4*keep + 4*u
        e(f"s_waitcnt lgkmcnt({3-u})")
        for p in range(2): e(f"v_pk_add_f32 {vr(y+2*p,2)}, {vr(y+2*p,2)}, {vr(72+4*u+2*p,2)}")
        for p in range(2): e(f"v_pk_fma_f32 {vr(y+2*p,2)}, {vr(QN+4*u+2*p,2)}, {vr(y+2*p,2)}, {vr(T0+4*u+2*p,2)}")
        e(f"v_cvt_pk_bf16_f32 v{124+2*u}, v{y}, v{y+1}")
        e(f"v_cvt_pk_bf16_f32 v{125+2*u}, v{y+2}, v{y+3}")
        if u & 1:
            b = 124 + 2*(u-1)
            e("s_nop 1")
            e(f"v_permlane16_swap_b32 v{b}, v{b+2}"); e(f"v_permlane16_swap_b32 v{b+1}, v{b+3}")
            e(f"buffer_store_dwordx4 {vr(b,4)}, v14, {SWS}, s{18+(u>>1)} offen sc1")
    if hf == 1: e("s_branch L_conv_j")
lab("L_conv_j")
mark(9, "p2")
e("v_and_b32 v3, 15, v2"); e("v_lshrrev_b32 v4, 4, v2"); e("v_lshrrev_b32 v5, 2, v3"); e("v_and_b32 v6, 3, v3")
e("v_lshrrev_b32 v7, 5, v2"); e("v_and_b32 v8, 1, v4"); e("v_lshl_add_u32 v9, v7, 3, v5")
e("v_lshlrev_b32 v10, 8, v9"); e("v_lshl_add_u32 v10, v8, 5, v10"); e("v_lshl_add_u32 v10, v6, 3, v10"); e(f"v_add_u32 v10, {A_L}, v10")
e("v_mul_u32_u24 v12, 192, v9"); e(f"v_mul_u32_u24 v13, {W_U}, v8"); e("v_add_u32 v12, v12, v13"); e("v_lshl_add_u32 v12, v6, 3, v12")
e("s_min_u32 s26, s11, 2"); e("s_lshl_b32 s16, s26, 6"); e(f"s_mul_i32 s17, s10, {32*192}"); e("s_add_u32 s16, s16, s17"); e("v_add_u32 v28, s16, v12")
e("s_mul_i32 s15, s21, 96"); e("v_add_u32 v12, s15, v12")
e("s_lshl_b32 s15, s20, 1"); e("v_xor_b32 v13, s15, v5"); e("v_lshl_add_u32 v13, v13, 6, v10")
e("s_add_u32 s15, s15, 1"); e("v_xor_b32 v18, s15, v5"); e("v_lshl_add_u32 v18, v18, 6, v10")
e("v_mov_b32 v15, v12"); e("v_mov_b32 v16, v13"); e("v_mov_b32 v17, v18")
e("s_waitcnt vmcnt(0)")
mark(10, "p2")
e("s_barrier")
mark(6)
ACC = 64
FR = [20, 40]
def g1reads(ks, buf):
    l = []; b = FR[buf]
    for hh in range(2): l.append(f"ds_read_b64_tr_b16 {vr(b+2*hh,2)}, v15 offset:{(16*ks+4*hh)*192}")
    for hh in range(2): l.append(f"ds_read_b64_tr_b16 {vr(b+12+2*hh,2)}, v16 offset:{4096*ks+1024*hh}")
    for hh in range(2): l.append(f"ds_read_b64_tr_b16 {vr(b+16+2*hh,2)}, v17 offset:{4096*ks+1024*hh}")
    for mb in (1, 2):
        for hh in range(2): l.append(f"ds_read_b64_tr_b16 {vr(b+4*mb+2*hh,2)}, v15 offset:{(16*ks+4*hh)*192+32*mb}")
    return l
e("v_and_b32 v9, 31, v2")
for r in range(20): e(f"v_mov_b32 v{200+r}, 0")
e("s_and_b32 s27, s77, 1"); e("s_lshl_b32 s27, s27, 6"); e("s_lshl_b32 s15, s20, 5"); e("s_add_u32 s27, s27, s15")
e("v_add_u32 v61, s27, v9")
e("v_lshlrev_b32 v62, 2, v61")
e("v_lshrrev_b32 v24, 3, v61"); e("v_and_b32 v25, 7, v61"); e("v_lshlrev_b32 v25, 1, v25"); e("v_lshl_add_u32 v25, v7, 10, v25")
for j in range(4):
    e(f"v_xor_b32 v26, {j<<2}, v24"); e(f"v_lshl_add_u32 v{241+j}, v26, 4, v25")
e("s_lshl_b32 s15, s13, 7"); e("v_add_u32 v245, s15, v61"); e("v_lshlrev_b32 v245, 10, v245"); e("v_lshl_add_u32 v245, v7, 4, v245")
e("v_lshl_add_u32 v24, v7, 2, v5"); e("v_lshlrev_b32 v24, 7, v24"); e("v_lshl_add_u32 v24, v8, 5, v24"); e("v_lshl_add_u32 v24, v6, 3, v24")
e("s_lshl_b32 s15, s21, 13"); e("v_add_u32 v24, s15, v24")
e("v_lshrrev_b32 v25, 3, v3"); e("v_xor_b32 v25, s21, v25"); e("v_lshl_add_u32 v246, v25, 6, v24"); e("v_xor_b32 v25, 1, v25"); e("v_lshl_add_u32 v247, v25, 6, v24")
e("s_lshl_b32 s16, s13, 4")
e("v_add_u32 v248, s16, v2"); e("v_lshlrev_b32 v248, 7, v248"); e(f"v_add_u32 v248, {FL3_OFF:#x}, v248")
e("v_lshlrev_b32 v11, 4, v2")
e("s_lshl_b32 s17, s6, 2"); e("s_lshl_b32 s18, s20, 1"); e("s_add_u32 s17, s17, s18"); e(f"s_mul_i32 s17, s17, {HH_KS}")
e("s_mul_i32 s18, s7, 6"); e("s_mul_i32 s19, s21, 3"); e("s_add_u32 s19, s19, s18")
e("s_add_u32 s17, s17, s19")
e("s_lshl_b32 s17, s17, 10"); e(f"s_add_u32 s17, s17, {HH_OFF:#x}"); e(f"s_add_u32 s18, s17, {HH_KS*1024}")
e("s_cmp_eq_u32 s7, 15"); e("s_cbranch_scc0 L_c_p3")
def sp_loads():
    e("s_mul_i32 s16, s6, 24576"); e(f"s_add_u32 s16, s16, {CSP_OFF:#x}")
    for m in range(16):
        if m and m % 2 == 0: e("s_add_u32 s16, s16, 3072")
        e(f"buffer_load_dwordx2 {vr(64+2*m,2)}, v28, {SWS}, s16 offen offset:{1536*(m%2)} sc1")
e("s_lshl_b32 s15, s11, 6"); e("v_add_u32 v20, s15, v2"); e("v_lshlrev_b32 v28, 3, v20")
e("s_lshl_b32 s15, s6, 4"); e("s_add_u32 s15, s15, s7"); e("s_lshl_b32 s15, s15, 7"); e("v_mov_b32 v253, s15")
e("s_barrier")
e("s_barrier")
sp_loads()
e("s_barrier")
e("s_cmp_eq_u32 s6, 15"); e("s_cbranch_scc1 L_c_sp2"); e("s_cmp_eq_u32 s11, 3"); e("s_cbranch_scc1 L_c_sp2")
e("s_mov_b32 s30, 0x100000")
mark(1, "it2")
lab("L_c_sp1")
e("s_waitcnt vmcnt(0)")
e("v_xor_b32 v50, s9, v65")
for m in range(1, 16):
    e(f"v_xor_b32 v51, s9, v{65+2*m}"); e("v_or_b32 v50, v50, v51")
e("v_cmp_ne_u32 vcc, 0, v50")
e("s_cbranch_vccz L_c_sp1x")
e("s_sub_u32 s30, s30, 1"); e("s_cbranch_scc1 L_c_sp1x")
sp_loads()
e("s_branch L_c_sp1")
lab("L_c_sp1x")
for m in range(1, 16): e(f"v_add_f32 v64, v64, v{64+2*m}")
e("v_mov_b32 v54, 0")
e("v_cvt_pk_bf16_f32 v53, v64, v54")
e("v_lshlrev_b32 v51, 16, v53"); e("v_sub_f32 v51, v64, v51")
e("v_cvt_pk_bf16_f32 v52, v64, v51")
e("v_mov_b32 v55, v254")
e("v_lshlrev_b32 v28, 4, v20"); e("s_mul_i32 s16, s6, 3072"); e(f"s_add_u32 s16, s16, {CSF_OFF:#x}")
e(f"buffer_store_dwordx4 v[52:55], v28, {SWS}, s16 offen sc1")
mark(2, "it2")
lab("L_c_sp2")
e("s_barrier")
e("s_branch L_c_p4")
lab("L_c_p3")
for blk in range(2):
    for ks in range(2):
        for hh in range(2): e(f"ds_read_b64_tr_b16 {vr(32+8*blk+4*ks+2*hh,2)}, v28 offset:{(16*ks+4*hh)*192+32*blk}")
e("v_mov_b32 v30, 0"); e("v_mov_b32 v31, 0"); e("s_mov_b32 s27, 0x3f803f80")
e("s_lshl_b32 s15, s6, 4"); e("s_add_u32 s15, s15, s7"); e("s_lshl_b32 s15, s15, 7"); e("v_mov_b32 v253, s15"); e("s_lshl_b32 s16, s7, 4"); e("s_add_u32 s16, s16, s6"); e("s_mul_i32 s16, s16, 1536"); e("s_lshl_b32 s15, s26, 9"); e("s_add_u32 s16, s16, s15"); e(f"s_add_u32 s16, s16, {CSP_OFF:#x}")
e("v_lshlrev_b32 v29, 3, v2")
e("s_waitcnt lgkmcnt(0)")
for r in range(8):
    e(f"v_dot2_f32_bf16 v30, v{32+r}, s27, v30"); e(f"v_dot2_f32_bf16 v31, v{40+r}, s27, v31")
e("s_nop 3")
e("v_permlane32_swap_b32 v30, v31")
e("s_nop 1")
e("v_add_f32 v30, v30, v31")
e("v_mov_b32 v250, v30"); e("v_mov_b32 v251, v254"); e("v_mov_b32 v249, v29")
e("s_cmp_eq_u32 s11, 3"); e("s_cselect_b32 s16, 0x7f000000, s16")
e(f"buffer_store_dwordx2 v[250:251], v249, {SWS}, s16 offen sc1")
for r in range(96): e(f"v_mov_b32 v{ACC+r}, 0")
e("s_mul_i32 s22, s7, 3072"); e("s_mul_i32 s15, s21, 1536"); e("s_add_u32 s22, s22, s15"); e(f"s_add_u32 s22, s22, {CSF_OFF:#x}")
e("s_lshl_b32 s23, s6, 11"); e("s_lshl_b32 s15, s20, 10"); e("s_add_u32 s23, s23, s15"); e(f"s_add_u32 s23, s23, {ST2_OFF:#x}")
e("s_mul_i32 s15, s21, 1536"); e(f"s_add_u32 s15, s15, {CORR_L}"); e("v_add_u32 v19, s15, v11")
e("s_lshl_b32 s15, s20, 10"); e(f"s_add_u32 s15, s15, {CORR_L+3072}"); e("v_add_u32 v14, s15, v11")
e("s_mov_b32 s24, 0"); e("s_mov_b32 s25, 0"); e("s_mov_b32 s26, 0")
e("s_barrier")
e("s_barrier")
mark(7)
e("s_lshl_b32 s15, s7, 1"); e("s_add_u32 s15, s15, s21"); e("s_cmp_lg_u32 s15, 29"); e("s_cbranch_scc1 L_c_full")
for nb in range(2): e(f"buffer_store_dwordx4 v[64:67], v11, {SWS}, s{17+nb} offen sc1")
for _ in range(8): e("s_barrier")
e("s_branch L_c_p4")
lab("L_c_full")
for s in g1reads(0, 0): e(s)
def corr_loads():
    e("s_mov_b32 exec_hi, 0")
    for mb in range(3): e(f"buffer_load_dwordx4 {vr(200+4*mb,4)}, v11, {SWS}, s22 offen offset:{512*mb} sc1")
    for nb in range(2): e(f"buffer_load_dwordx4 {vr(212+4*nb,4)}, v11, {SWS}, s23 offen offset:{512*nb} sc1")
    e("s_mov_b64 exec, -1")
lab("L_g1_loop")
for ks in range(4):
    buf = ks & 1
    e("s_waitcnt lgkmcnt(0)")
    if ks == 3:
        e("s_barrier")
    nxt = g1reads((ks+1) & 3, buf ^ 1)
    sched = [3, 3, 2, 2, 0, 0]; p = 0
    for n, (mb, nb) in enumerate([(0,0),(0,1),(1,0),(1,1),(2,0),(2,1)] if "snake" not in X else [(0,0),(0,1),(1,1),(1,0),(2,0),(2,1)]):
        a = ACC + 16*(2*mb+nb)
        if "mf16" in X:
            o = 8*(ks & 1)
            e(f"v_mfma_f32_16x16x32_bf16 {vr(a+o,4)}, {vr(FR[buf]+4*mb,4)}, {vr(FR[buf]+12+4*nb,4)}, {vr(a+o,4)}")
            for _ in range((sched[n]+1)//2): e(nxt[p]); p += 1
            e(f"v_mfma_f32_16x16x32_bf16 {vr(a+o+4,4)}, {vr(FR[buf]+12+4*nb,4)}, {vr(FR[buf]+4*mb,4)}, {vr(a+o+4,4)}")
            for _ in range(sched[n]//2): e(nxt[p]); p += 1
        else:
            e(f"v_mfma_f32_32x32x16_bf16 {vr(a,16)}, {vr(FR[buf]+4*mb,4)}, {vr(FR[buf]+12+4*nb,4)}, {vr(a,16)}")
            for _ in range(sched[n]): e(nxt[p]); p += 1
        if ks == 2 and n == 4:
            e(f"s_add_u32 s25, s25, {WSLOT}"); e(f"s_cmp_eq_u32 s25, {4*WSLOT}"); e("s_cselect_b32 s25, 0, s25")
            e(f"s_add_u32 s26, s26, 16384"); e(f"s_cmp_eq_u32 s26, {3*16384}"); e("s_cselect_b32 s26, 0, s26")
        if ks == 2 and n == 5:
            e("v_add_u32 v15, s25, v12"); e("v_add_u32 v16, s26, v13"); e("v_add_u32 v17, s26, v18")
e("s_add_u32 s24, s24, 1"); e("s_cmp_lt_u32 s24, 7"); e("s_cbranch_scc1 L_g1_loop")
FK = [20, 40, 160, 180]
lg.clear(); lg.add(("k0",), 10)
rd = []
def rdA(ks, mb): return [(f"ds_read_b64_tr_b16 {vr(FK[ks]+4*mb+2*hh,2)}, v15 offset:{(16*ks+4*hh)*192+32*mb}", ("A", ks, mb)) for hh in range(2)]
def rdB(ks, nb): return [(f"ds_read_b64_tr_b16 {vr(FK[ks]+12+4*nb+2*hh,2)}, v{16+nb} offset:{4096*ks+1024*hh}", ("B", ks, nb)) for hh in range(2)]
for ks in (1, 2, 3): rd += rdA(ks, 0) + rdB(ks, 0) + rdB(ks, 1)
for mb in (1, 2):
    for ks in (1, 2, 3): rd += rdA(ks, mb)
def epi(mb):
    l = []
    for nb in range(2):
        a = ACC + 16*(2*mb+nb)
        for r in range(8): l.append(f"v_max_f32 v{a+r}, 0, v{a+r}")
        for r in range(8): l.append(f"v_mul_f32 v{a+r}, v{a+r}, v{a+8+r}")
        for p in range(4): l.append(f"v_cvt_pk_bf16_f32 v{a+8+p}, v{a+2*p}, v{a+2*p+1}")
        l.append(f"buffer_store_dwordx4 {vr(a+8,4)}, v11, {SWS}, s{17+nb} offen offset:{1024*mb} sc1")
    return l
lg.wait(("k0",))
seq = [(0, mb, nb) for mb in range(3) for nb in range(2)] + [(ks, 0, nb) for ks in (1, 2, 3) for nb in range(2)] + ["bar"]
seq += [(1, 1, 0), (1, 1, 1), "chk", ("c", 0, 0), ("c", 0, 1)] + [(ks, 1, nb) for ks in (2, 3) for nb in range(2)] + [("c", 1, 0), ("c", 1, 1)]
seq += [("c", 2, 0), ("c", 2, 1)] + [(ks, 2, nb) for ks in (1, 2) for nb in range(2)] + [(3, 2, 0), (3, 2, 1)]
last = {}
for n, x in enumerate(seq):
    if isinstance(x, tuple): last[(x[1], x[2])] = n
epq = []
def epi1(mb, nb):
    a = ACC + 16*(2*mb+nb); l = []
    for r in range(8): l.append(f"v_max_f32 v{a+r}, 0, v{a+r}")
    for r in range(8): l.append(f"v_mul_f32 v{a+r}, v{a+r}, v{a+8+r}")
    for p in range(4): l.append(f"v_cvt_pk_bf16_f32 v{a+8+p}, v{a+2*p}, v{a+2*p+1}")
    l.append(f"buffer_store_dwordx4 {vr(a+8,4)}, v11, {SWS}, s{17+nb} offen offset:{1024*mb} sc1")
    return l
for n, x in enumerate(seq):
    if x == "bar":
        e("s_waitcnt lgkmcnt(0)"); lg.clear(); assert not rd
        e("s_barrier")
        e("s_mov_b32 exec_hi, 0")
        for mb in range(3): e(f"ds_read_b128 {vr(200+4*mb,4)}, v19 offset:{512*mb}")
        for nb in range(2): e(f"ds_read_b128 {vr(212+4*nb,4)}, v14 offset:{512*nb}")
        e("s_mov_b64 exec, -1")
        e("s_mov_b32 s30, 0x100000")
        continue
    if x == "chk":
        e("s_waitcnt lgkmcnt(0)")
        mark(1, "it2")
        lab("L_corr")
        e("v_xor_b32 v60, s9, v203")
        for r in (207, 211, 215, 219):
            e(f"v_xor_b32 v63, s9, v{r}"); e("v_or_b32 v60, v60, v63")
        e("v_cmp_ne_u32 vcc, 0, v60")
        e("s_cmp_eq_u32 vcc_lo, 0"); e("s_cbranch_scc1 L_corrx")
        e("s_sub_u32 s30, s30, 1"); e("s_cbranch_scc1 L_corrx")
        corr_loads()
        e("s_waitcnt vmcnt(0)")
        e("s_branch L_corr")
        lab("L_corrx")
        mark(2, "it2")
        for r in (203, 207, 211, 215, 219): e(f"v_mov_b32 v{r}, 0")
        e("s_nop 1")
        continue
    ks, mb, nb = x
    a = ACC + 16*(2*mb+nb)
    if ks == "c":
        e(f"v_mfma_f32_32x32x16_bf16 {vr(a,16)}, {vr(200+4*mb,4)}, {vr(212+4*nb,4)}, {vr(a,16)}")
    else:
        need = [("A", ks, mb), ("B", ks, nb)]
        while any(y[1] in need for y in rd):
            s_, tg = rd.pop(0); e(s_); lg.add(tg)
        lg.wait(*need)
        e(f"v_mfma_f32_32x32x16_bf16 {vr(a,16)}, {vr(FK[ks]+4*mb,4)}, {vr(FK[ks]+12+4*nb,4)}, {vr(a,16)}")
    if last[(mb, nb)] == n: epq += [(len(L) + 12, t) for t in epi1(mb, nb)]
    for _ in range(3):
        if rd: s_, tg = rd.pop(0); e(s_); lg.add(tg)
    k = 0
    while epq and k < 6:
        short = epq[0][0] - len(L)
        if short > 0:
            p_ = min(short, 6 - k)
            e(f"s_nop {p_-1}"); L.extend(["    ; pad"] * (p_ - 1)); k += p_
            continue
        e(epq.pop(0)[1]); k += 1
mark(8); mark(3, "it2")
while epq:
    short = epq[0][0] - len(L)
    if short > 0:
        e(f"s_nop {short-1}"); L.extend(["    ; pad"] * (short - 1))
    e(epq.pop(0)[1])
mark(4, "it2")
lab("L_c_p4")
RES = 224
for r in range(16): e(f"v_mov_b32 v{RES+r}, 0")
e("s_lshl_b32 s22, s13, 17"); e("s_lshl_b32 s16, s28, 14"); e("s_add_u32 s22, s22, s16"); e("s_lshl_b32 s16, s21, 13"); e("s_add_u32 s22, s22, s16")
e(f"s_add_u32 s22, s22, {HT_OFF:#x}"); e("s_add_u32 s23, s22, 4096")
e("s_lshl_b32 s25, s77, 1"); e("s_add_u32 s25, s25, s20")
e(f"s_mul_i32 s25, s25, {HH_KS*1024}"); e("s_lshl_b32 s16, s21, 12"); e("s_add_u32 s25, s25, s16"); e(f"s_add_u32 s25, s25, {HH_OFF:#x}")
e("s_lshl_b32 s27, s28, 7"); e("s_lshl_b32 s15, s21, 6"); e("s_add_u32 s27, s27, s15")
e("s_waitcnt vmcnt(0)"); mark(5, "it2"); e("s_barrier")
mark(9); mark(6, "it2")
ACC = 160
FR = [20, 36, 192]
PD = int(os.environ.get("PD", "2"))
e("v_add_u32 v52, 0x10000, v246"); e("v_add_u32 v53, 0x10000, v247"); e("v_add_u32 v54, 0x20000, v246"); e("v_add_u32 v55, 0x20000, v247")
def g2reads(G):
    i = G >> 1; slot = i % 10; l = []
    base = [("v246", "v247"), ("v52", "v53"), ("v54", "v55")][slot >> 2]
    for q in range(2):
        ks = 2*(G & 1) + q
        for db in range(2):
            b = FR[G % 3] + 8*q + 4*db
            off = (slot & 3)*16384 + ks*2048
            l.append((f"ds_read_b64_tr_b16 {vr(b,2)}, {base[db]} offset:{off}", ("W", G, q, db)))
            l.append((f"ds_read_b64_tr_b16 {vr(b+2,2)}, {base[db]} offset:{off+1024}", ("W", G, q, db)))
    return l
post_flag(FL3_OFF, 0)
lg.clear()
for G0 in range(2):
    for s, t in g2reads(G0): e(s)
e("s_waitcnt lgkmcnt(0)"); e("s_barrier")
for ii in range(4 if "nores" not in X else 0):
    for j in range(4):
        e(f"buffer_load_short_d16_hi v{RES+4*ii+j}, v{241+j}, {SWS}, s{22+(ii>>1)} offen offset:{2048*(ii&1)+256*j} sc1")
e("s_cmp_lg_u32 s3, 0"); e("s_cbranch_scc1 L_c_np3")
e("s_mov_b64 exec, 0xffff")
poll("v248", "v249", "s9", "ap3" in X)
lab("L_c_np3")
mark(7, "it2")
e("s_barrier")
mark(8, "it2"); mark(1, "p4")
vm = Trk("vmcnt", 63)
NHR = 6; HB = 64
def issueHH(i):
    rot11(i if "hhsame" not in X else i % 2)
    e("s_lshl_b32 s15, s15, 13"); e("s_add_u32 s15, s15, s25")
    for q in range(4):
        e(f"buffer_load_dwordx4 {vr(HB+16*(i % NHR)+4*q,4)}, v11, {SWS}, s15 offen offset:{1024*q} sc1"); vm.add(("HH", i, q))
NH0 = int(os.environ.get("NH0", "3"))
for i in range(NH0): issueHH(i)
def hh1(i, q):
    if q == 0:
        rot11(i)
        e("s_lshl_b32 s15, s15, 13"); e("s_add_u32 s17, s15, s25")
    e(f"buffer_load_dwordx4 {vr(HB+16*(i % NHR)+4*q,4)}, v11, {SWS}, s17 offen offset:{1024*q} sc1"); vm.add(("HH", i, q))
mark(10)
assert PD == 2
for G in range(20):
    i = G >> 1
    if G in (1, 6, 12, 16, 18, 20): mark(2 + (1, 6, 12, 16, 18, 20).index(G), "p4")
    if G == 8: e("s_barrier")
    if G == 2: mark(9, "it2")
    if G == 12: mark(10, "it2")
    nxt = g2reads(G+PD) if G + PD < 22 else []
    p = 0
    for q in range(2):
        ks = 2*(G & 1) + q
        vm.wait(("HH", i, ks))
        for db in range(2):
            lg.wait(("W", G, q, db))
            b = FR[G % 3] + 8*q + 4*db
            c = vr(ACC+16*db, 16) if (G or q) else "0"
            e(f"v_mfma_f32_32x32x16_bf16 {vr(ACC+16*db,16)}, {vr(b,4)}, {vr(HB+16*(i % NHR)+4*ks,4)}, {c}")
            for _ in range(2):
                if p < len(nxt): e(nxt[p][0]); lg.add(nxt[p][1]); p += 1
            if db == 0 and i + NH0 <= 10: hh1(i + NH0, ks)
    if G == 17:
        e("s_lshl_b32 s15, s13, 9"); e(f"s_add_u32 s15, s15, {R2_OFF:#x}")
        e(f"buffer_load_dword v240, v62, {SWS}, s15 offen sc1"); vm.add("res")
e("s_lshl_b32 s15, s11, 12"); e("s_add_u32 s15, s15, 16384"); e("s_xor_b32 s16, s15, 4096")
e("v_add_u32 v56, s15, v11"); e("v_add_u32 v57, s16, v11")
FULL = "nofull" not in X
if FULL:
    e("s_lshl_b32 s15, s21, 2"); e("v_add_u32 v58, s15, v7"); e("v_and_b32 v59, 7, v2"); e("v_xor_b32 v58, v58, v59"); e("v_xor_b32 v60, 2, v58")
    e("s_lshl_b32 s15, s20, 12"); e("s_add_u32 s15, s15, 32768"); e("v_lshlrev_b32 v63, 7, v9"); e("v_add_u32 v63, s15, v63")
    e("v_lshl_add_u32 v58, v58, 4, v63"); e("v_lshl_add_u32 v60, v60, 4, v63")
    e("v_lshrrev_b32 v63, 3, v2"); e("v_xor_b32 v242, v59, v63"); e("v_lshlrev_b32 v242, 4, v242"); e("v_lshl_add_u32 v242, v63, 7, v242")
    e("s_lshl_b32 s15, s11, 11"); e("s_add_u32 s15, s15, 32768"); e("v_add_u32 v242, s15, v242")
    e("v_lshlrev_b32 v243, 10, v63"); e("v_lshl_add_u32 v243, v59, 4, v243")
    e("s_lshl_b32 s27, s77, 16"); e("s_lshl_b32 s15, s11, 14"); e("s_add_u32 s27, s27, s15"); e("s_lshl_b32 s15, s28, 7"); e("s_add_u32 s27, s27, s15")
    e("s_add_u32 s26, s27, 8192")
for db in (1, 0):
    for G in (20, 21):
        for q in range(2):
            ks = 2*(G & 1) + q
            vm.wait(("HH", 10, ks)); lg.wait(("W", G, q, db))
            b = FR[G % 3] + 8*q + 4*db
            e(f"v_mfma_f32_32x32x16_bf16 {vr(ACC+16*db,16)}, {vr(b,4)}, {vr(HB+16*(10 % NHR)+4*ks,4)}, {vr(ACC+16*db,16)}")
            if db == 0 and G == 20: e("s_nop 5")
            if db == 0 and G == 21:
                for u in (2*q, 2*q+1): e(f"ds_write_b128 v56, {vr(ACC+16+4*u,4)} offset:{1024*u}")
mark(8, "p4")
e("s_waitcnt vmcnt(0) lgkmcnt(0)")
e("s_barrier")
mark(9, "p4")
for u in range(4): e(f"ds_read_b128 {vr(64+4*u,4)}, v57 offset:{1024*u}")
e("v_mov_b32 v241, v240")
e("s_nop 5")
for u in range(4):
    e(f"s_waitcnt lgkmcnt({3-u})")
    for p in range(2): e(f"v_pk_add_f32 {vr(ACC+4*u+2*p,2)}, {vr(ACC+4*u+2*p,2)}, {vr(64+4*u+2*p,2)}")
    for p in range(2): e(f"v_pk_fma_f32 {vr(ACC+4*u+2*p,2)}, {vr(ACC+4*u+2*p,2)}, v[240:241], {vr(RES+4*u+2*p,2)}")
    for p in range(2): e(f"v_cvt_pk_bf16_f32 v{32+2*u+p}, v{ACC+4*u+2*p}, v{ACC+4*u+2*p+1}")
    if u & 1:
        b = 32 + 2*(u-1)
        e("s_nop 1")
        e(f"v_permlane32_swap_b32 v{b}, v{b+2}"); e(f"v_permlane32_swap_b32 v{b+1}, v{b+3}")
        if FULL: e(f"ds_write_b128 v{58 if u == 1 else 60}, {vr(b,4)}")
        else: e(f"buffer_store_dwordx4 {vr(b,4)}, v245, {SOUT}, s27 offen offset:{16*(u-1)}{os.environ.get('OUTF', '')}")
if FULL:
    e("s_waitcnt lgkmcnt(0)"); e("s_barrier")
    e("ds_read_b128 v[40:43], v242"); e("ds_read_b128 v[44:47], v242 offset:1024")
    e("s_waitcnt lgkmcnt(1)")
    e(f"buffer_store_dwordx4 v[40:43], v243, {SOUT}, s27 offen{os.environ.get('OUTF', ' sc1')}")
    e("s_waitcnt lgkmcnt(0)")
    e(f"buffer_store_dwordx4 v[44:47], v243, {SOUT}, s26 offen{os.environ.get('OUTF', ' sc1')}")
mark(10, "p4")
endpgm()

lab("L_H")
vm = Trk("vmcnt", 63)
e(f"v_lshlrev_b32 v4, 2, v2"); e(f"v_add_u32 v4, {FLG_L}, v4"); e("v_mov_b32 v5, 0")
e("s_mov_b64 exec, 0xffff")
e("ds_write_b32 v4, v5")
e("s_mov_b64 exec, -1")
e("v_lshlrev_b32 v11, 4, v2")
e("s_lshl_b32 s24, s2, 13"); e("s_lshl_b32 s16, s11, 11"); e("s_add_u32 s24, s24, s16")
QR = " nt" if "qrnt" in X else ""
e(f"buffer_load_dwordx4 {vr(56,4)}, v11, {SQ}, s24 offen{QR}"); e(f"buffer_load_dwordx4 {vr(60,4)}, v11, {SQ}, s24 offen offset:1024{QR}")
if "tlb" in X:
    e("s_cmp_lg_u32 s3, 7"); e("s_cbranch_scc1 L_notlb")
    e("v_lshlrev_b32 v46, 20, v2"); e("s_lshl_b32 s15, s2, 7"); e("v_add_u32 v46, s15, v46")
    e("s_mov_b64 exec, 0x3fff")
    e(f"buffer_load_dword v47, v46, {SWS}, 0 offen")
    e("s_mov_b64 exec, 3")
    for n, sr in enumerate((SOUT, SWD, SWG, SWU, SSK)): e(f"buffer_load_dword v{48+n}, v46, {sr}, 0 offen")
    e("s_mov_b64 exec, -1")
    lab("L_notlb")
e("v_lshlrev_b32 v17, 7, v2")
pass
for j in range(3):
    e(f"v_add_u32 v20, {j*64}, v2")
    e("v_mul_u32_u24 v21, 0x5556, v20"); e("v_lshrrev_b32 v21, 18, v21")
    e("v_mul_u32_u24 v22, 12, v21"); e("v_sub_u32 v22, v20, v22")
    e("v_mul_u32_u24 v21, 2752, v21"); e(f"v_lshl_add_u32 v{14+j}, v22, 4, v21")
    if j: e(f"v_subrev_u32 v{14+j}, {1024*j}, v{14+j}")
e(f"s_mul_i32 s22, s11, {16*2752}"); e("s_mul_i32 s15, s7, 192"); e("s_add_u32 s22, s22, s15")
e(f"s_mul_i32 s23, s11, {16*192}")
e("s_mov_b32 s16, 0x05040100"); e("s_mov_b32 s17, 0x07060302")
e("s_waitcnt vmcnt(3)")
mark(1)
for c in range(4):
    sel = "s17" if c & 1 else "s16"
    e(f"v_perm_b32 v{92+2*c}, v{40+(c>>1)}, v{38+(c>>1)}, {sel}")
    e(f"v_perm_b32 v{93+2*c}, v{44+(c>>1)}, v{42+(c>>1)}, {sel}")
    e(f"ds_write_b64 v13, {vr(92+2*c,2)} offset:{128*c}")
e("s_and_b32 s15, s2, 0xc7"); e("s_or_b32 s15, s15, s11"); e("s_cmp_lg_u32 s15, 0"); e("s_cbranch_scc1 L_noinit")
e("s_waitcnt vmcnt(2)")
e("v_add_u32 v116, 1, v254"); e("v_lshlrev_b32 v116, 6, v116"); e("v_lshlrev_b32 v117, 10, v2")
e("s_lshl_b32 s15, s2, 4"); e(f"s_add_u32 s15, s15, {FL2_OFF:#x}")
e(f"s_mov_b32 exec_lo, {(1 << NREP) - 1:#x}"); e("s_mov_b32 exec_hi, 0")
e(f"buffer_store_dword v116, v117, {SWS}, s15 offen sc1")
e("s_mov_b64 exec, -1")
lab("L_noinit")
mark(7, "p1")
e("s_waitcnt lgkmcnt(0)"); e("s_barrier")
mark(8, "p1")
e("ds_read_b128 v[28:31], v124"); e("ds_read_b128 v[32:35], v125 offset:1024")
e("s_waitcnt lgkmcnt(1)")
e(f"buffer_store_dwordx4 v[28:31], v126, {SWS}, s18 offen sc1")
e("s_waitcnt lgkmcnt(0)")
e(f"buffer_store_dwordx4 v[32:35], v126, {SWS}, s19 offen sc1")
mark(9, "p1")
e("s_waitcnt vmcnt(2)")
e("v_add_u32 v254, 1, v254")
e("s_nop 0")
e("v_readfirstlane_b32 s9, v254")
for rr in range(2):
    for c in range(8): unpack(64+8*rr+c, 56+4*rr+2*(c>>2), c & 3)
def tree(dst, base):
    e(f"v_add_f32 v{dst}, v{base}, v{base+1}")
    for c in range(2, 8): e(f"v_add_f32 v{dst}, v{dst}, v{base+c}")
def reduce2(a, b):
    for m in ("row_shr:1", "row_shr:2", "row_shr:4", "row_shr:8"):
        e("s_nop 0")
        e(f"v_add_f32_dpp v{a}, v{a}, v{a} {m} row_mask:0xf bank_mask:0xf bound_ctrl:0")
        e(f"v_add_f32_dpp v{b}, v{b}, v{b} {m} row_mask:0xf bank_mask:0xf bound_ctrl:0")
    for m, rm in (("row_bcast:15", "0xa"), ("row_bcast:31", "0xc")):
        e("s_nop 0")
        e(f"v_add_f32_dpp v{a}, v{a}, v{a} {m} row_mask:{rm} bank_mask:0xf")
        e(f"v_add_f32_dpp v{b}, v{b}, v{b} {m} row_mask:{rm} bank_mask:0xf")
tree(100, 64); tree(101, 72)
e("s_nop 0")
reduce2(100, 101)
e("s_mov_b32 s18, 0x3b000000")
e("v_mul_f32 v100, s18, v100"); e("v_mul_f32 v101, s18, v101")
e("s_nop 0")
e("v_readlane_b32 s16, v100, 63"); e("v_readlane_b32 s17, v101, 63")
e("s_nop 1")
for c in range(8):
    e(f"v_subrev_f32 v{64+c}, s16, v{64+c}"); e(f"v_subrev_f32 v{72+c}, s17, v{72+c}")
e("v_mul_f32 v102, v64, v64"); e("v_mul_f32 v103, v72, v72")
for c in range(1, 8):
    e(f"v_fmac_f32 v102, v{64+c}, v{64+c}"); e(f"v_fmac_f32 v103, v{72+c}, v{72+c}")
e("s_nop 0")
reduce2(102, 103)
e("v_mov_b32 v104, 0x3727c5ac")
e("v_fma_f32 v102, v102, s18, v104"); e("v_fma_f32 v103, v103, s18, v104")
e("v_rsq_f32 v108, v102"); e("v_rsq_f32 v112, v103")
e("v_mov_b32 v110, v254"); e("v_mov_b32 v114, v254"); e("v_mov_b32 v111, v254"); e("v_mov_b32 v115, v254")
e("v_mul_f32 v109, v100, v108"); e("v_mul_f32 v113, v101, v112")
e("v_sub_f32 v109, 0, v109"); e("v_sub_f32 v113, 0, v113")
e("s_lshr_b32 s15, s2, 5"); e("s_lshl_b32 s15, s15, 12"); e("s_lshl_b32 s16, s21, 11"); e("s_add_u32 s15, s15, s16")
e("s_bfe_u32 s16, s2, 0x40001"); e("s_lshl_b32 s16, s16, 5"); e("s_add_u32 s15, s15, s16")
e("s_and_b32 s16, s2, 1"); e("s_lshl_b32 s16, s16, 1"); e("s_add_u32 s16, s16, s20"); e("s_lshl_b32 s16, s16, 9"); e("s_add_u32 s15, s15, s16")
e(f"s_add_u32 s15, s15, {STG_OFF:#x}")
e("s_mov_b32 exec_lo, 0"); e("s_mov_b32 exec_hi, 0x80000000")
e(f"buffer_store_dwordx4 v[108:111], v5, {SWS}, s15 offen sc1")
e(f"buffer_store_dwordx4 v[112:115], v5, {SWS}, s15 offen offset:16 sc1")
e("s_mov_b64 exec, -1")
mark(3)
e("s_waitcnt vmcnt(2)")
mark(10, "p1")
e("s_barrier")
mark(2)
post_flag(FL1_OFF, 4)
e("s_cmp_lg_u32 s3, 4"); e("s_cbranch_scc1 L_h_np1")
e("s_lshl_b32 s16, s4, 12"); e(f"s_add_u32 s16, s16, {FL1_OFF:#x}"); e("v_add_u32 v7, s16, v17")
e("s_mov_b32 exec_hi, 0")
poll("v7", "v8", "s9", "ap1" in X)
lab("L_h_np1")
e("s_barrier")
e("v_lshlrev_b32 v9, 4, v3")
e("v_lshlrev_b32 v10, 3, v3"); e(f"v_add_u32 v10, {ST_L}, v10")
for j in range(8):
    e(f"s_add_u32 s16, s5, {j}"); e("s_and_b32 s16, s16, 7"); e("s_lshl_b32 s16, s16, 11"); e(f"v_add_u32 v{100+j}, s16, v10")
def issueW(i, emit=True):
    l = []
    l.append([f"s_add_u32 s15, s8, {i}", "s_and_b32 s15, s15, 7", f"s_mul_i32 s15, s15, {64*2752}", "s_add_u32 s15, s15, s22",
              f"s_add_u32 m0, s23, {(i % 4)*WSLOT}", "s_nop 0", f"buffer_load_dwordx4 v14, {SWG}, s15 offen lds"])
    for j in (1, 2): l.append([f"buffer_load_dwordx4 v{14+j}, {SWG}, s15 offen offset:{1024*j} lds"])
    l.append([f"s_add_u32 s15, s8, {i}", "s_and_b32 s15, s15, 7", f"s_mul_i32 s15, s15, {64*2752}", "s_add_u32 s15, s15, s22",
              f"s_add_u32 m0, s23, {(i % 4)*WSLOT + W_U}", "s_nop 0", f"buffer_load_dwordx4 v14, {SWU}, s15 offen lds"])
    for j in (1, 2): l.append([f"buffer_load_dwordx4 v{14+j}, {SWU}, s15 offen offset:{1024*j} lds"])
    return [(x, ("W", i)) for x in l]
def emit_all(items):
    for x, t in items:
        for s in x: e(s)
        vm.add(t)
def stg_loads():
    for j in range(8):
        e(f"s_add_u32 s16, s5, {j}"); e("s_and_b32 s16, s16, 7"); e("s_lshl_b32 s16, s16, 12"); e(f"s_add_u32 s16, s16, {STG_OFF:#x}")
        e(f"buffer_load_dwordx4 {vr(64+4*j,4)}, v9, {SWS}, s16 offen sc1")
stg_loads()
e("s_barrier")
mark(4)
NWPRE = int(os.environ.get("NWPRE", "3"))
e("s_cmp_eq_u32 s7, 15"); e("s_cbranch_scc1 L_h_now0")
emit_all(issueW(0))
e("s_waitcnt vmcnt(6)")
e("s_branch L_stg0")
lab("L_h_now0")
e("s_waitcnt vmcnt(0)")
lab("L_stg0")
if "noprio" not in X: e("s_setprio 3")
mark(9, "p2")
e("s_mov_b32 s30, 0x100000")
lab("L_stg")
e("v_xor_b32 v50, s9, v66")
for j in range(1, 8):
    e(f"v_xor_b32 v51, s9, v{66+4*j}"); e("v_or_b32 v50, v50, v51")
e("v_cmp_ne_u32 vcc, 0, v50")
e("s_cbranch_vccz L_stgx")
e("s_sub_u32 s30, s30, 1"); e("s_cbranch_scc1 L_stgx")
stg_loads()
e("s_waitcnt vmcnt(0)")
e("s_branch L_stg")
lab("L_stgx")
mark(10, "p2")
for j in range(8): e(f"ds_write_b64 v{100+j}, {vr(64+4*j,2)}")
e("s_lshl_b32 s15, s11, 2"); e(f"s_add_u32 s15, s15, {FLG_L+16}"); e("v_mov_b32 v50, s15"); e("v_mov_b32 v51, 1")
e("ds_write_b32 v50, v51")
if "noprio" not in X: e("s_setprio 0")
mark(5)
if "nowdt" not in X:
    e("s_mul_i32 s15, s2, 5504"); e("s_mul_i32 s16, s11, 1408"); e("s_add_u32 s15, s15, s16")
    e("s_mov_b64 exec, 0x7ff")
    e(f"buffer_load_dword v250, v17, {SWD}, s15 offen"); vm.add("t")
    e("s_mov_b64 exec, -1")
e("s_cmp_eq_u32 s7, 15"); e("s_cbranch_scc1 L_h_now")
for i in range(1, NWPRE): emit_all(issueW(i))
lab("L_h_now")
mark(7, "p2")
e("v_and_b32 v20, 15, v2"); e("v_lshrrev_b32 v21, 4, v2"); e("v_lshrrev_b32 v22, 2, v20"); e("v_and_b32 v23, 3, v20")
e("v_lshrrev_b32 v24, 5, v2"); e("v_and_b32 v25, 1, v21"); e("v_lshl_add_u32 v26, v24, 3, v22")
e("v_lshlrev_b32 v27, 8, v26"); e("v_lshl_add_u32 v27, v25, 5, v27"); e("v_lshl_add_u32 v27, v23, 3, v27")
e("v_xor_b32 v17, s11, v22"); e("v_lshl_add_u32 v17, v17, 6, v27"); e(f"v_add_u32 v17, {A_L}, v17")
e("v_add_u32 v18, 16384, v17"); e("v_add_u32 v19, 32768, v17")
e("v_lshrrev_b32 v7, 3, v2"); e("v_lshlrev_b32 v7, 5, v7"); e("v_and_b32 v8, 7, v2"); e("v_add_u32 v7, v7, v8")
e("s_lshl_b32 s16, s11, 3"); e("v_add_u32 v7, s16, v7"); e("v_lshlrev_b32 v7, 7, v7"); e("s_lshl_b32 s16, s4, 15"); e(f"s_add_u32 s16, s16, {FL2_OFF:#x}"); e("v_add_u32 v7, s16, v7")
e("s_lshl_b32 s26, s6, 17"); e("s_lshl_b32 s19, s11, 12"); e("s_add_u32 s26, s26, s19"); e(f"s_add_u32 s26, s26, {HT_OFF:#x}")
for r in range(4): e(f"v_mov_b32 v{20+r}, 0")
e("s_mov_b32 s27, 0x3f803f80")
e("v_lshrrev_b32 v12, 3, v2"); e("v_and_b32 v13, 7, v2"); e("v_bfe_u32 v28, v2, 4, 1"); e("v_lshlrev_b32 v28, 2, v28"); e("v_xor_b32 v13, v13, v28")
e("v_lshlrev_b32 v12, 10, v12"); e("v_lshl_add_u32 v12, v13, 4, v12")
e("s_lshl_b32 s24, s11, 15"); e("s_lshl_b32 s16, s28, 7"); e("s_add_u32 s24, s24, s16")
def issueWd(i):
    l = [[f"s_add_u32 s15, s29, {i if 'wdsame' not in X else i % 3}", "s_cmp_ge_u32 s15, 11", "s_cselect_b32 s16, 11, 0", "s_sub_u32 s15, s15, s16",
          "s_lshl_b32 s15, s15, 17", "s_add_u32 s15, s15, s24", f"s_add_u32 m0, s19, {(i % 10)*16384}", "s_nop 0",
          f"buffer_load_dwordx4 v12, {SWD}, s15 offen lds"]]
    for j in (1, 2, 3): l.append([f"s_add_u32 s16, s15, {j*7168}", f"buffer_load_dwordx4 v12, {SWD}, s16 offen offset:{1024*j} lds"])
    return [(x, ("Wd", i)) for x in l]
WR = 122
def issueWdR(i):
    r = WR + 16*(i-3)
    l = [[f"s_add_u32 s15, s29, {i}", "s_cmp_ge_u32 s15, 11", "s_cselect_b32 s16, 11, 0", "s_sub_u32 s15, s15, s16",
          "s_lshl_b32 s15, s15, 17", "s_add_u32 s15, s15, s24", f"buffer_load_dwordx4 {vr(r,4)}, v12, {SWD}, s15 offen"]]
    for j in (1, 2, 3): l.append([f"s_add_u32 s16, s15, {j*8192}", f"buffer_load_dwordx4 {vr(r+4*j,4)}, v12, {SWD}, s16 offen"])
    return [(x, ("Wd", i)) for x in l]
def writeWdR(i):
    r = WR + 16*(i-3); off = (i % 10)*16384
    for j in range(4): e(f"ds_write_b128 v{30 + (off >> 16)}, {vr(r+4*j,4)} offset:{(off & 0xffff) + 1024*j}")
RSCH = eval(os.environ.get("RSCH", "{0: [10,9,8]}"))
e("v_mov_b32 v118, 1"); e("v_lshlrev_b32 v119, 10, v2"); e("s_lshl_b32 s16, s4, 7"); e(f"s_add_u32 s16, s16, {FL2_OFF:#x}"); e("v_add_u32 v119, s16, v119")
e("v_lshlrev_b32 v120, 7, v2"); e(f"s_and_b32 s16, s2, {NREP-1}"); e("s_lshl_b32 s16, s16, 10"); e(f"s_add_u32 s16, s16, {FL2_OFF:#x}"); e("v_add_u32 v120, s16, v120")
e("s_lshl_b32 s25, s9, 6"); e("s_add_u32 s25, s25, 32")
if RSCH.get('p'):
    e("s_cmp_eq_u32 s7, 15"); e("s_cbranch_scc1 L_now3")
    for k in RSCH['p']: emit_all(issueWdR(k))
    lab("L_now3")
vm.wait(("W", 0))
mark(8, "p2")
e("s_barrier")
mark(6)
if "f256" in X:
    post_flag(FL2_OFF, 4, 8)
    poll("v7", "v8"); vm.clear()
else:
    e("s_cmp_lg_u32 s3, 4"); e("s_cbranch_scc1 L_noadd")
    e(f"s_mov_b32 exec_lo, {(1 << NREP) - 1:#x}"); e("s_mov_b32 exec_hi, 0")
    e(f"buffer_atomic_add v118, v119, {SWS}, 0 offen sc1")
    e("s_mov_b64 exec, -1")
    lab("L_noadd")
    e("s_cmp_eq_u32 s7, 15"); e("s_cbranch_scc1 L_now2")
    for k in range(NWPRE, 4 if "w3it0" not in X else 3): emit_all(issueW(k))
    for k in RSCH.get('w', []): emit_all(issueWdR(k))
    lab("L_now2")
    e("s_cmp_lg_u32 s3, 4"); e("s_cbranch_scc1 L_nopoll2")
    e("s_mov_b64 exec, 0xff")
    poll("v120", "v8", "s25", "ap2" in X)
    lab("L_nopoll2")
e("s_barrier")
e("s_cmp_eq_u32 s7, 15"); e("s_cbranch_scc1 L_h_idle")
def issueA(i, dst=None):
    if dst is None: dst = A_L + (i % 3)*16384
    l = [[f"s_add_u32 s15, s8, {i}", "s_and_b32 s15, s15, 7", "s_lshl_b32 s15, s15, 14", "s_add_u32 s15, s15, s26",
          f"s_add_u32 m0, s19, {dst}", "s_nop 0", f"buffer_load_dwordx4 v11, {SWS}, s15 offen sc1 lds"]]
    for j in (1, 2, 3): l.append([f"buffer_load_dwordx4 v11, {SWS}, s15 offen offset:{1024*j} sc1 lds"])
    return [(x, ("A", i)) for x in l]
for i in range(3): emit_all(issueA(i))
mark(7)
vm.wait(("A", 0))
e("s_barrier")
mark(1, "it2"); mark(1, "it3")
corr_items = [(["s_mul_i32 s15, s7, 3072", "s_lshl_b32 s16, s11, 10", "s_add_u32 s15, s15, s16", f"s_add_u32 s15, s15, {CSF_OFF:#x}",
                "s_lshl_b32 s17, s6, 11", f"s_add_u32 s17, s17, {ST2_OFF:#x}", "s_cmp_eq_u32 s11, 3", "s_cselect_b32 s15, s17, s15",
                f"s_add_u32 m0, s16, {CORR_L}", "s_nop 0", f"buffer_load_dwordx4 v11, {SWS}, s15 offen sc1 lds"], "corr"),
              ([f"s_mov_b32 m0, {CORR_L+3072}", "s_nop 0", f"buffer_load_dwordx4 v11, {SWS}, s17 offen offset:1024 sc1 lds"], "corr")]
Wh = lambda k, h: issueW(k)[3*h:3*h+3]
SCHED = {1: Wh(4,0)+Wh(4,1), 2: Wh(5,0), 3: Wh(5,1)+Wh(6,0), 4: Wh(6,1)+Wh(7,0), 5: Wh(7,1)+issueWd(0), 6: corr_items+issueWd(1)+issueWd(2)}
if "nosmooth" in X:
    SCHED = {1: issueW(4), 2: issueW(5), 3: issueW(6), 4: issueW(7), 5: issueWd(0)+corr_items, 6: issueWd(1)+issueWd(2), 7: issueWd(3)}
for i in range(8):
    items = []
    if 1 <= i <= 5: items += issueA(i+2)
    if i == 0 and "w3it0" in X: items += issueW(3)
    items += SCHED.get(i, [])
    for k in RSCH.get(i, []): items += issueWdR(k)
    emit_all(items)
    if i < 7:
        vm.wait(("A", i+1), ("W", i+1))
        mark(2+i, "it3")
        e("s_barrier")
        mark(2+i, "it2")
vm.wait("corr"); mark(9, "it3"); e("s_barrier")
mark(9, "it2")
mark(8)
NPRE = int(os.environ.get("NPRE", "10"))
e("v_add_u32 v30, s19, v11"); e("v_add_u32 v31, 0x10000, v30"); e("v_add_u32 v32, 0x20000, v30")
RSET = sorted(sum(RSCH.values(), []))
assert 9 in RSET and 10 in RSET
for i in range(3, 9):
    if i not in RSET: emit_all(issueWd(i))
for i in range(3, 9):
    if i in RSET: vm.wait(("Wd", i)); writeWdR(i)
vm.wait(("Wd", 0), ("Wd", 9), ("Wd", 10))
e("s_barrier")
mark(9)
writeWdR(9)
e("s_barrier")
writeWdR(10)
e("s_waitcnt vmcnt(0) lgkmcnt(0)")
e("s_branch L_h_p40")
lab("L_h_idle")
mark(1, "it2")
for i in range(8): emit_all(issueA(i, i*16384))
mark(2, "it2")
e(f"v_subrev_u32 v17, {A_L}, v17")
for r in range(4): e(f"v_mov_b32 v{28+r}, s27")
FS = 100
for half in range(2):
    e(f"s_waitcnt vmcnt({16 - 16*half})"); e("s_barrier")
    mark(3+half, "it2")
    lg.clear()
    rds = [(f"ds_read_b64_tr_b16 {vr(FS+64*half+4*q+2*hh,2)}, v17 offset:{4096*q+1024*hh}", q) for q in range(16) for hh in range(2)]
    for s_, t in rds[:12]: e(s_); lg.add(t)
    rds = rds[12:]
    for q in range(16):
        lg.wait(q)
        e(f"v_mfma_f32_32x32x16_bf16 v[64:79], v[28:31], {vr(FS+64*half+4*q,4)}, {'v[64:79]' if (half or q) else '0'}")
        for s_, t in rds[:2]: e(s_); lg.add(t)
        rds = rds[2:]
    e("v_add_u32 v17, 0x10000, v17")
for q in range(4): e(f"v_mfma_f32_32x32x16_bf16 v[80:95], {vr(FS+4*q,4)}, {vr(FS+4*q,4)}, {'v[80:95]' if q else '0'}")
e("s_nop 7")
e("v_mul_f32 v27, s18, v64")
e("v_sub_f32 v24, 0, v27")
e("v_cvt_pk_bf16_f32 v20, v24, v24")
e("v_and_b32 v25, s14, v20"); e("v_sub_f32 v25, v24, v25"); e("v_mov_b32 v22, 0")
e("v_cvt_pk_bf16_f32 v21, v25, v22")
e("v_mov_b32 v23, v254")
e("s_lshl_b32 s15, s6, 11"); e("s_lshl_b32 s16, s11, 9"); e("s_add_u32 s15, s15, s16"); e(f"s_add_u32 s15, s15, {ST2_OFF:#x}")
e("s_mov_b32 exec_hi, 0")
e(f"buffer_store_dwordx4 v[20:23], v11, {SWS}, s15 offen sc1")
e("s_mov_b64 exec, -1")
mark(7, "it2")
e("s_barrier")
for q in range(4, 32): e(f"v_mfma_f32_32x32x16_bf16 v[80:95], {vr(FS+4*q,4)}, {vr(FS+4*q,4)}, v[80:95]")
e("v_bfe_u32 v22, v2, 3, 2"); e("v_lshlrev_b32 v22, 2, v22"); e("v_and_b32 v23, 3, v2"); e("v_add_u32 v22, v22, v23")
e("v_bfe_u32 v23, v2, 2, 1"); e("v_lshrrev_b32 v24, 5, v2"); e("v_xor_b32 v23, v23, v24"); e("v_lshl_add_u32 v22, v23, 4, v22")
e("v_mov_b32 v21, 0")
e("s_nop 7")
for r in range(16):
    e(f"v_cmp_eq_u32 s[{100 if False else 76}:{77}], {r}, v22" if r & 1 else f"v_cmp_eq_u32 vcc, {r}, v22")
    e("s_nop 1")
    e(f"v_cndmask_b32 v21, v21, v{80+r}, s[76:77]" if r & 1 else f"v_cndmask_b32 v21, v21, v{80+r}, vcc")
e("v_mov_b32 v23, v21")
e("s_nop 1")
e("v_permlane32_swap_b32 v23, v21")
e("s_nop 1")
e("v_add_f32 v21, v21, v23")
e("v_mul_f32 v21, s18, v21")
e("v_fma_f32 v21, -v27, v27, v21"); e("v_max_f32 v21, 0, v21"); e("v_add_f32 v21, 0x3727c5ac, v21")
e("v_rcp_f32 v22, v21")
e("v_lshlrev_b32 v23, 2, v2")
e("s_lshl_b32 s15, s6, 9"); e("s_lshl_b32 s16, s11, 7"); e("s_add_u32 s15, s15, s16"); e(f"s_add_u32 s15, s15, {R2_OFF:#x}")
e("s_mov_b32 exec_hi, 0")
e(f"buffer_store_dword v22, v23, {SWS}, s15 offen sc1")
e("s_mov_b64 exec, -1")
e("s_waitcnt vmcnt(0)")
mark(8); mark(8, "it2")
vm.clear()
for i in range(0, NPRE): emit_all(issueWd(i))
vm.wait(("Wd", 0))
e("s_barrier")
mark(9)
e("s_barrier")
for i in range(NPRE, 11): emit_all(issueWd(i))
e("s_waitcnt vmcnt(0)")
lab("L_h_p40")
mark(10)
e("s_barrier")
e("s_cmp_lg_u32 s2, 0"); e("s_cbranch_scc1 L_hend")
e("s_cmp_lg_u32 s3, 4"); e("s_cbranch_scc1 L_hend")
e("s_mov_b64 exec, 1")
e(f"buffer_store_dword v254, v255, {SWS}, 0 offen sc1")
lab("L_hend")
if STAMP: e("s_barrier"); e("s_barrier"); e("s_barrier")
endpgm()
lab("L_end")

hdr = open("sequential_preLN__ssm_conv_h3__glu_gated_reglu__prompt.s.ref").read().split("; Override")[0]
s = hdr + f"; @launch grid=(256,1,1) block=(512,1,1) lds={LDS_BYTES}\n"
s += '.amdgcn_target "amdgcn-amd-amdhsa--gfx950"\n.text\n'
s += f".globl {NAME}\n.p2align 8\n.type {NAME},@function\n{NAME}:\n" + "\n".join(L) + "\n    s_endpgm\n"
s += f""".section .rodata,"a"
.p2align 6
.amdhsa_kernel {NAME}
  .amdhsa_next_free_vgpr 256
  .amdhsa_next_free_sgpr 102
  .amdhsa_accum_offset 256
  .amdhsa_group_segment_fixed_size 0
  .amdhsa_kernarg_size 104
  .amdhsa_user_sgpr_count 2
  .amdhsa_user_sgpr_kernarg_segment_ptr 1
  .amdhsa_system_sgpr_workgroup_id_x 1
  .amdhsa_float_denorm_mode_32 3
.end_amdhsa_kernel
"""
open(OUT, "w").write(s)
```

```python
import sys, os
OUT = sys.argv[1] if len(sys.argv) > 1 else "v9.s"
STAMP = int(os.environ.get("STAMP", "0"))
X = os.environ.get("X", "").split(",") + ["ap2", "ap3", "m2", "qnt", "qrnt"]
SLP = int(os.environ.get("SLP", "1"))
NREP = int(os.environ.get("NREP", "32"))
NT = "" if "nont" in X else " nt"
NAME = "sequential_preLN__ssm_conv_h3__glu_gated_reglu__prompt_kernel"

RS      = 4224
KVT_OFF = 0
QT_OFF  = 0x210000
STG_OFF = 0x420000
EPO_OFF = 0x428000
FL1_OFF = 0x430000
FL3_OFF = 0x440000
ST2_OFF = 0x448000
CSF_OFF = 0x450000
R2_OFF  = 0x460000
CSP_OFF = 0x468000
FL2_OFF = 0x4D0000
HT_OFF  = 0x510000
HH_OFF  = 0x710000
HH_KS   = 96
WS_END  = HH_OFF + 64 * HH_KS * 1024
STAMP_OFF = 0x1000000
if STAMP and "dbg" not in X: WS_END = 0x2000000

WSLOT = 24640; W_U = 12320
RB = 4 * WSLOT
T_KV = RB
EX_L = 3 * WSLOT
Q_L = EX_L + 16384
T_Q = RB + 8192
CP = 4160; HREG = 4 * CP; XREG = 4608; CH_L = HREG + XREG
ST_L = RB + 2 * CH_L
FLG_L = 163840 - 64
assert ST_L + 16384 <= FLG_L
A_L = RB
MEAN_L = RB + 49152
CORR_L = RB + 49152
LDS_BYTES = 163840

L = []
def e(s): L.append("    " + s)
def lab(s): L.append(s + ":")
def vr(a, n): return f"v[{a}:{a+n-1}]"
def mark(i, grp=None):
    if "p1" in X and i in (7, 8, 9, 10) and grp != "p1": return
    if "it" in X and i in (1, 2, 3) and grp != "it": return
    if "p2" in X and i in (7, 8, 9, 10) and grp != "p2": return
    if ("it2" in X or "it3" in X) and 1 <= i <= 10 and grp not in ("it2", "it3"): return
    if "p4" in X and 1 <= i <= 10 and grp != "p4": return
    if grp and grp not in X: return
    if STAMP: e(f"{'s_memtime' if 'cyc' in X else 's_memrealtime'} s[{78+2*i}:{79+2*i}]")
def srd(d, base, nbytes):
    e(f"s_mov_b32 s{d}, s{base}"); e(f"s_mov_b32 s{d+1}, s{base+1}"); e(f"s_mov_b32 s{d+2}, {nbytes:#x}"); e(f"s_mov_b32 s{d+3}, 0x20000")
NST = 12
def endpgm():
    if STAMP:
        e("s_mov_b64 exec, -1")
        e("s_waitcnt vmcnt(0) lgkmcnt(0)")
        mark(NST-1)
        if "dbg" in X:
            n = nid()
            e("s_cmp_lg_u32 s3, 0"); e(f"s_cbranch_scc1 L_nd{n}"); e("s_cmp_ge_u32 s5, 28"); e(f"s_cbranch_scc1 L_nd{n}")
            e("s_load_dwordx2 s[4:5], s[0:1], 88"); e("s_waitcnt lgkmcnt(0)")
            e("s_mov_b32 s6, 256"); e("s_mov_b32 s7, 0x20000")
            e("s_mov_b64 exec, 1"); e("v_mov_b32 v251, 0")
            e("s_not_b32 s76, s78"); e("v_mov_b32 v252, s76")
            e("buffer_atomic_umax v252, v251, s[4:7], 0 offen offset:48")
            for i in range(NST):
                e(f"v_mov_b32 v{200+i}, s{78+2*i}")
                e(f"buffer_atomic_umax v{200+i}, v251, s[4:7], 0 offen offset:{4*i}")
            lab(f"L_nd{n}")
            e("s_endpgm")
            return
        e("s_lshl_b32 s76, s2, 9"); e("s_lshl_b32 s77, s3, 6"); e("s_add_u32 s76, s76, s77"); e(f"s_add_u32 s76, s76, {STAMP_OFF}")
        e("v_mov_b32 v251, 0")
        e("s_waitcnt lgkmcnt(0)")
        for i in range(NST):
            e(f"v_mov_b32 v252, s{78+2*i}")
            e(f"buffer_store_dword v252, v251, s[40:43], s76 offen offset:{4*i}")
    e("s_endpgm")

class Trk:
    def __init__(self, name, mx): self.q = []; self.name = name; self.mx = mx
    def add(self, tag, n=1): self.q += [tag] * n
    def wait(self, *tags):
        idx = -1
        for i, t in enumerate(self.q):
            if t in tags: idx = i
        if idx < 0: return
        n = len(self.q) - 1 - idx
        n = min(n, self.mx)
        e(f"s_waitcnt {self.name}({n})")
        self.q = self.q[len(self.q) - n:] if n else []
    def clear(self): self.q = []

SQ, SK, SWS, SV, SSH, SSK, SD, SWG, SWU, SWD, SOUT = [f"s[{x}:{x+3}]" for x in (32, 36, 40, 44, 48, 52, 56, 60, 64, 68, 72)]
uid = [0]
def nid():
    uid[0] += 1; return uid[0]
def poll(addr, tmp, want="s9", atom=False):
    n = nid()
    e("s_mov_b32 s30, 0x100000")
    lab(f"L_poll{n}")
    if atom:
        e(f"v_mov_b32 {tmp}, 0")
        e(f"buffer_atomic_add {tmp}, {addr}, {SWS}, 0 offen sc0 sc1")
    else:
        e(f"buffer_load_dword {tmp}, {addr}, {SWS}, 0 offen sc1")
    e("s_waitcnt vmcnt(0)")
    e(f"v_cmp_ne_u32 vcc, {want}, {tmp}")
    e("s_sub_u32 s30, s30, 1")
    e(f"s_cbranch_scc1 L_pollx{n}")
    e("s_and_b64 exec, exec, vcc")
    if SLP:
        e(f"s_cbranch_execz L_pollx{n}")
        e(f"s_sleep {SLP}")
        e(f"s_branch L_poll{n}")
    else:
        e(f"s_cbranch_execnz L_poll{n}")
    lab(f"L_pollx{n}")
    e("s_mov_b64 exec, -1")
def post_flag(off, wave, lanes=1):
    n = nid()
    e(f"s_cmp_lg_u32 s3, {wave}"); e(f"s_cbranch_scc1 L_nopost{n}")
    e(f"s_mov_b64 exec, {(1 << lanes) - 1}")
    e(f"s_mov_b32 s31, {off:#x}")
    e(f"buffer_store_dword v254, v253, {SWS}, s31 offen sc1")
    e("s_mov_b64 exec, -1")
    lab(f"L_nopost{n}")
def unpack(dst, src, c):
    s = src + (c >> 1)
    if c & 1: e(f"v_and_b32 v{dst}, s14, v{s}")
    else: e(f"v_lshlrev_b32 v{dst}, 16, v{s}")

mark(0)
e("s_cmp_ge_u32 s2, 256"); e("s_cbranch_scc1 L_end")
e("s_load_dwordx16 s[4:19], s[0:1], 0")
e("s_load_dwordx8 s[20:27], s[0:1], 64")
e("s_load_dwordx2 s[28:29], s[0:1], 96")
e("v_lshrrev_b32 v1, 6, v0"); e("v_and_b32 v2, 63, v0")
e("v_readfirstlane_b32 s3, v1")
if "nocode" not in X:
    e("s_getpc_b64 s[76:77]")
    lab("L_pc")
    e("s_and_b32 s30, s2, 0xf8"); e("s_add_u32 s30, s30, s3"); e("s_lshl_b32 s30, s30, 7"); e("s_min_u32 s30, s30, L_end - L_pc")
    e("v_mov_b32 v250, s30")
    e("s_mov_b64 exec, 1")
    e("global_load_dword v250, v250, s[76:77]")
    e("s_mov_b64 exec, -1")
e("v_and_b32 v3, 255, v0")
e("v_and_b32 v10, 15, v3"); e("v_lshrrev_b32 v11, 4, v3")
e("s_bfe_u32 s30, s2, 0x30003"); e("s_lshr_b32 s31, s2, 6"); e("s_lshl_b32 s31, s31, 3"); e("s_and_b32 s76, s2, 7"); e("s_add_u32 s31, s31, s76")
e("s_lshl_b32 s76, s31, 16"); e("s_lshl_b32 s77, s30, 7"); e("s_add_u32 s76, s76, s77")
e("v_lshlrev_b32 v12, 12, v11"); e("v_lshl_add_u32 v12, v10, 3, v12"); e("v_add_u32 v12, s76, v12")
e("v_subrev_u32 v14, 3072, v12")
e("s_lshl_b32 s77, s30, 9"); e("v_lshlrev_b32 v15, 5, v10"); e("v_add_u32 v15, s77, v15")
e("s_lshl_b32 s77, s30, 5"); e("s_add_u32 s77, s77, s31"); e("s_lshl_b32 s77, s77, 7"); e("v_mov_b32 v253, s77")
e(f"v_mov_b32 v255, {EPO_OFF:#x}")
e("s_cmp_ge_u32 s3, 4")
e("s_waitcnt lgkmcnt(0)")
srd(36, 6, 0x200000); srd(48, 10, 4096); srd(44, 8, 0x200000); srd(32, 4, 0x200000)
e("s_cbranch_scc1 L_skipkv")
e(f"buffer_load_dwordx4 {vr(48,4)}, v15, {SSH}, 0 offen")
e(f"buffer_load_dwordx4 {vr(52,4)}, v15, {SSH}, 0 offen offset:16")
for r in range(3): e(f"buffer_load_dwordx2 {vr(16+2*r,2)}, v14, {SK}, 0 offen offset:{1024*r}{NT}")
for r in range(4): e(f"buffer_load_dwordx2 {vr(22+2*r,2)}, v12, {SK}, 0 offen offset:{1024*r}{NT}")
for r in range(4): e(f"buffer_load_dwordx2 {vr(30+2*r,2)}, v12, {SV}, 0 offen offset:{1024*r}{NT}")
e("s_branch L_kvdone")
lab("L_skipkv")
for r in range(4): e(f"buffer_load_dwordx2 {vr(38+2*r,2)}, v12, {SQ}, 0 offen offset:{1024*r}{' nt' if 'qnt' in X else ''}")
lab("L_kvdone")
srd(40, 28, WS_END)
e(f"buffer_load_dword v254, v255, {SWS}, 0 offen sc1")
srd(52, 12, 0x200000); srd(56, 14, 1024); srd(60, 18, 512*2752); srd(64, 20, 512*2752); srd(68, 22, 1376*1024); srd(72, 24, 0x200000)
e("s_and_b32 s4, s2, 7"); e("s_lshr_b32 s5, s2, 3")
e("s_and_b32 s10, s4, 1"); e("s_lshr_b32 s17, s4, 1")
e("s_mul_i32 s7, s17, 3"); e("s_lshr_b32 s16, s5, 3"); e("s_add_u32 s7, s7, s16"); e("s_and_b32 s8, s5, 7")
e("s_lshr_b32 s15, s17, 1"); e("s_add_u32 s15, s15, 12"); e("s_and_b32 s16, s17, 1"); e("s_lshl_b32 s16, s16, 2"); e("s_and_b32 s6, s5, 3"); e("s_add_u32 s16, s16, s6")
e("s_cmp_ge_u32 s5, 24"); e("s_cselect_b32 s7, s15, s7"); e("s_cselect_b32 s8, s16, s8")
e("s_lshr_b32 s15, s5, 1"); e("s_lshl_b32 s16, s17, 1"); e("s_and_b32 s6, s5, 1"); e("s_add_u32 s16, s16, s6")
e("s_cmp_ge_u32 s5, 28"); e("s_cselect_b32 s7, s15, s7"); e("s_cselect_b32 s8, s16, s8")
e("s_lshl_b32 s6, s10, 3"); e("s_add_u32 s6, s6, s8")
e("s_and_b32 s11, s3, 3")
e("s_lshl_b32 s12, s4, 6"); e("s_lshl_b32 s13, s5, 1"); e("s_add_u32 s12, s12, s13")
if "m2" in X:
    e("s_lshr_b32 s77, s4, 1"); e("s_lshl_b32 s77, s77, 3"); e("s_lshr_b32 s16, s5, 2"); e("s_add_u32 s77, s77, s16")
else:
    e("s_lshl_b32 s77, s4, 2"); e("s_lshr_b32 s16, s5, 3"); e("s_add_u32 s77, s77, s16")
e("s_lshr_b32 s13, s77, 1")
e("s_lshr_b32 s17, s3, 2"); e("s_lshl_b32 s17, s17, 13"); e(f"s_add_u32 s17, s17, {T_KV}")
e("v_lshrrev_b32 v13, 1, v11"); e("v_and_b32 v14, 7, v10"); e("v_xor_b32 v13, v13, v14"); e("v_lshlrev_b32 v13, 4, v13")
e("v_lshl_add_u32 v13, v10, 9, v13"); e("v_and_b32 v14, 1, v11"); e("v_lshl_add_u32 v13, v14, 3, v13"); e("v_add_u32 v13, s17, v13")
e("v_lshrrev_b32 v128, 3, v2"); e("s_lshl_b32 s15, s11, 4"); e("v_add_u32 v128, s15, v128")
e("v_and_b32 v129, 7, v2")
e("v_lshrrev_b32 v130, 2, v128"); e("v_and_b32 v130, 7, v130"); e("v_xor_b32 v124, v129, v130"); e("v_xor_b32 v125, 2, v124")
e("v_lshlrev_b32 v130, 7, v128"); e("v_lshl_add_u32 v124, v124, 4, v130"); e("v_lshl_add_u32 v125, v125, 4, v130")
e("v_add_u32 v124, s17, v124"); e("v_add_u32 v125, s17, v125")
e(f"v_mul_u32_u24 v126, {RS}, v128"); e("v_lshl_add_u32 v126, v129, 4, v126")
e(f"s_mul_i32 s18, s30, {64*RS}"); e("s_lshl_b32 s16, s31, 7"); e("s_add_u32 s18, s18, s16")
e("s_lshr_b32 s16, s3, 2"); e(f"s_mul_i32 s16, s16, {QT_OFF-KVT_OFF:#x}"); e("s_add_u32 s18, s18, s16")
e(f"s_add_u32 s19, s18, {8*RS}")
e("s_mov_b32 s14, 0xffff0000")
e("s_lshr_b32 s20, s11, 1"); e("s_and_b32 s21, s11, 1")
if "m2" in X:
    e("s_and_b32 s28, s4, 1"); e("s_lshl_b32 s28, s28, 2"); e("s_and_b32 s16, s5, 3"); e("s_add_u32 s28, s28, s16")
else: e("s_and_b32 s28, s5, 7")
if "m2" in X:
    e("s_lshr_b32 s16, s5, 2"); e("s_mul_i32 s29, s16, 11"); e("s_lshr_b32 s29, s29, 3")
else:
    e("s_lshr_b32 s16, s5, 3"); e("s_mul_i32 s29, s16, 3")
if "rot4" in X:
    e("s_add_u32 s29, s29, s28"); e("s_cmp_ge_u32 s29, 11"); e("s_cselect_b32 s16, 11, 0"); e("s_sub_u32 s29, s29, s16")
e("s_cmp_ge_u32 s3, 4"); e("s_cbranch_scc1 L_H")
def rot11(i):
    e(f"s_add_u32 s15, s29, {i}"); e("s_cmp_ge_u32 s15, 11"); e("s_cselect_b32 s16, 11, 0"); e("s_sub_u32 s15, s15, s16")

e("v_lshlrev_b32 v6, 4, v3"); e("v_sub_u32 v7, 4080, v6"); e("v_subrev_u32 v8, 8, v7"); e("v_max_i32 v8, 0, v8")
e("s_add_u32 s22, s12, s20")
e("s_lshl_b32 s15, s22, 1"); e("v_mov_b32 v9, s15"); e("v_mov_b32 v240, 0")
e("s_lshl_b32 s15, s12, 12"); e("s_add_u32 s16, s15, 4096")
e("s_waitcnt vmcnt(12)")
for c in range(4):
    for j in range(4): unpack(92+4*j+c, 48+2*c, j)
e("s_waitcnt vmcnt(5)")
mark(1)
def ssm_loads():
    e("s_lshl_b32 s15, s12, 12"); e("s_add_u32 s16, s15, 4096")
    e(f"buffer_load_dwordx4 v[228:231], v7, {SSK}, s15 offen{NT}")
    e(f"buffer_load_dwordx2 v[226:227], v8, {SSK}, s15 offen{NT}")
    e(f"buffer_load_dwordx4 v[236:239], v7, {SSK}, s16 offen{NT}")
    e(f"buffer_load_dwordx2 v[234:235], v8, {SSK}, s16 offen{NT}")
    e(f"buffer_load_short_d16_hi v240, v9, {SD}, 0 offen")
LATE = "ssmearly" not in X
if not LATE: ssm_loads()
for r in range(7):
    for c in range(4): unpack(64+4*r+c, 16+2*r, c)
for r in range(4):
    for p in range(2): e(f"v_pk_mul_f32 {vr(108+4*r+2*p,2)}, {vr(64+4*r+2*p,2)}, {vr(92+12+2*p,2)}")
for j in (2, 1, 0):
    for r in range(4):
        for p in range(2): e(f"v_pk_fma_f32 {vr(108+4*r+2*p,2)}, {vr(64+4*(r+3-j)+2*p,2)}, {vr(92+4*j+2*p,2)}, {vr(108+4*r+2*p,2)}")
e(f"s_waitcnt vmcnt({1 if LATE else 6})")
for r in range(4):
    for c in range(4): unpack(64+4*r+c, 30+2*r, c)
for r in range(4):
    for p in range(2): e(f"v_pk_mul_f32 {vr(108+4*r+2*p,2)}, {vr(108+4*r+2*p,2)}, {vr(64+4*r+2*p,2)}")
for c in range(4):
    e(f"v_cvt_pk_bf16_f32 v{80+2*c}, v{108+c}, v{112+c}")
    e(f"v_cvt_pk_bf16_f32 v{81+2*c}, v{116+c}, v{120+c}")
    e(f"ds_write_b64 v13, {vr(80+2*c,2)} offset:{128*c}")
assert LATE
e("s_and_b32 s15, s2, 0xc7"); e("s_or_b32 s15, s15, s11"); e("s_cmp_lg_u32 s15, 0"); e("s_cbranch_scc1 L_noinit")
e("s_waitcnt vmcnt(0)")
e("v_add_u32 v132, 1, v254"); e("v_lshlrev_b32 v132, 6, v132"); e("v_lshlrev_b32 v133, 10, v2")
e("s_lshl_b32 s15, s2, 4"); e(f"s_add_u32 s15, s15, {FL2_OFF:#x}")
e(f"s_mov_b32 exec_lo, {(1 << NREP) - 1:#x}"); e("s_mov_b32 exec_hi, 0")
e(f"buffer_store_dword v132, v133, {SWS}, s15 offen sc1")
e("s_mov_b64 exec, -1")
lab("L_noinit")
mark(7, "p1")
e("s_waitcnt lgkmcnt(0)"); e("s_barrier")
mark(8, "p1")
e("ds_read_b128 v[28:31], v124"); e("ds_read_b128 v[32:35], v125 offset:1024")
e("s_waitcnt lgkmcnt(1)")
e(f"buffer_store_dwordx4 v[28:31], v126, {SWS}, s18 offen sc1")
e("s_waitcnt lgkmcnt(0)")
e(f"buffer_store_dwordx4 v[32:35], v126, {SWS}, s19 offen sc1")
def toeplitz_regs(waitn):
    e("s_mov_b32 s15, 0xffff")
    e("v_cmp_ne_u32 vcc, 255, v3")
    e(f"v_add_u32 v16, {RB}, v6")
    e(f"s_waitcnt vmcnt({waitn})")
    mark(9, "p1")
    e("v_add_u32 v254, 1, v254")
    for ch in range(2):
        b = 226 + 8*ch
        e(f"v_cndmask_b32 v{b}, 0, v{b}, vcc"); e(f"v_cndmask_b32 v{b+1}, 0, v{b+1}, vcc")
        w = lambda i: f"v{b+2+i}"
        o = 40 + 16*ch
        for n, i in enumerate((2, 1, 0, -1)): e(f"v_bfi_b32 v{o+n}, s15, {w(i)}, {w(i-1)}")
        for n, i in enumerate((2, 1, 0, -1)): e(f"v_alignbit_b32 v{o+4+n}, {w(i)}, {w(i)}, 16")
        for n, i in enumerate((3, 2, 1, 0)): e(f"v_bfi_b32 v{o+8+n}, s15, {w(i)}, {w(i-1)}")
        for n, i in enumerate((3, 2, 1, 0)): e(f"v_alignbit_b32 v{o+12+n}, {w(i)}, {w(i)}, 16")
    e("v_readfirstlane_b32 s9, v254")
if not LATE: toeplitz_regs(2)
for r in range(4): e(f"v_mov_b32 v{72+r}, 0")
e("v_lshrrev_b32 v17, 5, v3"); e(f"v_mul_u32_u24 v17, {CH_L}, v17"); e("v_and_b32 v18, 31, v3"); e("v_lshl_add_u32 v17, v18, 4, v17")
e(f"v_add_u32 v17, {RB+HREG}, v17")
e("v_bfe_u32 v18, v3, 4, 1"); e(f"v_mul_u32_u24 v18, {CH_L}, v18"); e("v_bfe_u32 v19, v3, 2, 2"); e(f"v_mul_u32_u24 v19, {CP}, v19")
e("v_add_u32 v18, v18, v19"); e("v_and_b32 v19, 3, v3"); e("v_lshl_add_u32 v18, v19, 4, v18"); e(f"v_add_u32 v18, {RB+4096}, v18")
e("s_lshl_b32 s16, s4, 5"); e("s_lshl_b32 s17, s21, 4"); e("s_add_u32 s16, s16, s17")
e("v_and_b32 v20, 15, v2"); e("v_add_u32 v20, s16, v20"); e("v_lshlrev_b32 v20, 7, v20"); e(f"v_add_u32 v20, {FL1_OFF:#x}, v20")
e(f"s_mul_i32 s24, s22, {RS}"); e("s_lshl_b32 s25, s21, 11"); e("s_add_u32 s24, s24, s25")
e(f"s_mul_i32 s23, s20, {CH_L}"); e(f"s_add_u32 s23, s23, {RB}")
e(f"s_add_u32 s26, s23, {HREG+512}"); e("s_add_u32 s26, s26, s25")
e("v_lshlrev_b32 v5, 4, v2")
if LATE: ssm_loads()
e(f"s_waitcnt vmcnt({5 if LATE else 0})")
mark(10, "p1")
e("s_barrier")
mark(2)
if LATE: toeplitz_regs(0)
for ch in range(2):
    for kap in range(4): e(f"ds_write_b128 v16, {vr(40+16*ch+4*kap,4)} offset:{ch*CH_L + kap*CP}")
e("s_cmp_lg_u32 s11, 0"); e("s_cbranch_scc1 L_nopad")
e("ds_write_b128 v17, v[72:75]")
e("s_mov_b32 exec_hi, 0")
e("ds_write_b128 v18, v[72:75]")
lab("L_nopad")
e("s_mov_b64 exec, -1")
e("s_waitcnt lgkmcnt(0)")
e("s_barrier")
e("s_mov_b32 m0, s26")
e("s_nop 0")
e(f"buffer_load_dwordx4 v5, {SWS}, s24 offen sc1 lds")
e(f"buffer_load_dwordx4 v5, {SWS}, s24 offen offset:1024 sc1 lds")
e("s_sub_u32 s24, s24, s25"); e("s_xor_b32 s31, s21, 1"); e("s_lshl_b32 s15, s31, 11"); e("s_add_u32 s24, s24, s15")
e("s_lshl_b32 s15, s11, 11"); e(f"s_add_u32 m0, s15, {Q_L}"); e(f"s_add_u32 s24, s24, {QT_OFF-KVT_OFF:#x}")
e(f"buffer_load_dwordx4 v5, {SWS}, s24 offen sc1 lds")
e(f"buffer_load_dwordx4 v5, {SWS}, s24 offen offset:1024 sc1 lds")
mark(3)
e("v_and_b32 v6, 15, v2"); e("v_lshrrev_b32 v7, 4, v2")
e("v_lshlrev_b32 v8, 4, v6"); e("v_lshl_add_u32 v8, v7, 2, v8")
e("v_and_b32 v32, 3, v6"); e(f"v_mul_u32_u24 v32, {CP}, v32")
e("v_lshrrev_b32 v33, 2, v6"); e("v_lshlrev_b32 v33, 3, v33"); e("v_lshl_add_u32 v33, v7, 4, v33")
e("v_sub_u32 v32, v32, v33")
e("s_lshl_b32 s15, s21, 8"); e("s_sub_u32 s16, s23, s15")
e(f"s_add_u32 s17, s16, {2*2052 - 512*7 - 64*3}"); e("v_add_u32 v32, s17, v32")
e("v_lshlrev_b32 v33, 5, v6"); e("v_lshlrev_b32 v34, 4, v7"); e("v_sub_u32 v33, v33, v34")
e(f"s_add_u32 s17, s16, {HREG + 512 + 16 - 64*3}"); e("v_add_u32 v33, s17, v33")
e("v_lshlrev_b32 v9, 1, v8")
e("s_lshl_b32 s15, s11, 12"); e(f"s_add_u32 s15, s15, {EX_L}"); e("s_xor_b32 s16, s11, 1"); e("s_lshl_b32 s16, s16, 12"); e(f"s_add_u32 s16, s16, {EX_L}")
e("v_add_u32 v34, s15, v5"); e("v_add_u32 v35, s16, v5")
e("v_add_u32 v12, s26, v9")
e("s_lshl_b32 s17, s11, 11"); e(f"s_add_u32 s17, s17, {Q_L}"); e("v_add_u32 v10, s17, v9")
e("s_lshl_b32 s17, s31, 13"); e(f"s_add_u32 s17, s17, {ST_L}"); e("v_add_u32 v13, s17, v5")
e("v_and_b32 v14, 7, v6"); e("v_lshlrev_b32 v14, 1, v14"); e("v_lshrrev_b32 v15, 1, v7"); e("v_add_u32 v14, v14, v15")
e("s_and_b32 s15, s22, 3"); e("s_lshl_b32 s15, s15, 2"); e("v_xor_b32 v14, s15, v14")
e("v_lshlrev_b32 v14, 4, v14")
e("v_lshrrev_b32 v15, 3, v6"); e("v_lshl_add_u32 v14, v15, 17, v14")
e("v_and_b32 v15, 1, v7"); e("v_lshl_add_u32 v14, v15, 18, v14")
e("s_lshl_b32 s18, s22, 8"); e("s_lshl_b32 s17, s31, 20"); e("s_add_u32 s18, s18, s17"); e(f"s_add_u32 s18, s18, {HT_OFF:#x}")
e(f"s_add_u32 s19, s18, {4*131072}")
e("s_lshl_b32 s15, s11, 2"); e(f"s_add_u32 s15, s15, {FLG_L}"); e("v_mov_b32 v16, s15"); e("s_xor_b32 s15, s15, 4"); e("v_mov_b32 v17, s15")
e(f"v_mov_b32 v18, {FLG_L+16}"); e("v_mov_b32 v19, 1")
e("v_subrev_u32 v20, 8, v2"); e("v_and_b32 v21, 7, v2")
e("v_lshrrev_b32 v22, 16, v240"); e("v_and_b32 v23, 1, v21"); e("v_lshlrev_b32 v23, 4, v23"); e("v_lshlrev_b32 v22, v23, v22")
e("v_cmp_gt_u32 vcc, 16, v20"); e("v_lshrrev_b32 v21, 1, v21"); e("s_nop 0"); e("v_cndmask_b32 v22, 0, v22, vcc")
for dw in range(4):
    e(f"v_cmp_eq_u32 vcc, {dw}, v21"); e("s_nop 1"); e(f"v_cndmask_b32 v{232+dw}, 0, v22, vcc")
ACC = 36; FA = [72, 136]; FB = [104, 168]
lg = Trk("lgkmcnt", 15)
def creads(rr, buf):
    lst = []
    for i in range(8):
        off = 512*(7-i) + 64*(3-rr)
        lst.append((f"ds_read_b128 {vr(FB[buf]+4*i,4)}, v33 offset:{512*i + 64*(3-rr)}", ("B", rr, i)))
        lst.append((f"ds_read_b64 {vr(FA[buf]+4*i,2)}, v32 offset:{off}", ("A", rr, i)))
        lst.append((f"ds_read_b64 {vr(FA[buf]+4*i+2,2)}, v32 offset:{off+8}", ("A", rr, i)))
    return lst
first = creads(0, 0)
for s, t in first:
    if t[0] == "A": e(s)
if "cprio" in X: e("s_setprio 2")
e("s_waitcnt vmcnt(2) lgkmcnt(0)"); e("s_barrier")
mark(4)
for s, t in first:
    if t[0] == "B": e(s); lg.add(t)
pend = []
pairs = sorted([(i, j) for i in range(8) for j in range(8 - i)], key=lambda p: (max(p), p[0] + p[1]))
started = set()
def mf(rr, i, j):
    global pend
    buf = rr & 1; t = i + j
    while any(x[1] in (("A", rr, i), ("B", rr, j)) for x in pend):
        s_, tg = pend.pop(0); e(s_); lg.add(tg)
    lg.wait(("A", rr, i), ("B", rr, j))
    c = vr(ACC+4*t, 4) if t in started else "0"
    started.add(t)
    e(f"v_mfma_f32_16x16x32_bf16 {vr(ACC+4*t,4)}, {vr(FA[buf]+4*i,4)}, {vr(FB[buf]+4*j,4)}, {c}")
for rr in range(3):
    pend = pend + creads(rr+1, (rr & 1) ^ 1)
    npend = len(pend)
    for n, (i, j) in enumerate(pairs):
        mf(rr, i, j)
        want = npend - (npend * (n + 1)) // int(os.environ.get("SPR", "32"))
        while len(pend) > max(want, 0):
            s_, tg = pend.pop(0); e(s_); lg.add(tg)
        if rr == 2 and n == 26:
            e("ds_read_b128 v[20:23], v18"); lg.add("aux")
        if rr == 2 and n == 32:
            lg.wait("aux"); e("v_and_b32 v20, v20, v21")
        if rr == 2 and n == 33: e("v_and_b32 v22, v22, v23")
        if rr == 2 and n == 34: e("v_and_b32 v20, v20, v22")
        if rr == 2 and n == 35: e("v_cmp_ne_u32 vcc, 1, v20")
    if rr == 0:
        e("s_cmp_lg_u32 s21, 0"); e("s_cbranch_scc1 L_nodiag")
        for t in range(8): e(f"v_mfma_f32_16x16x32_bf16 {vr(ACC+4*t,4)}, v[232:235], {vr(FB[0]+4*t,4)}, {vr(ACC+4*t,4)}")
        lab("L_nodiag")
assert not pend
e("s_cbranch_vccz L_auxok")
lab("L_aux")
e("ds_read_b128 v[20:23], v18")
e("s_waitcnt lgkmcnt(0)")
e("v_and_b32 v20, v20, v21"); e("v_and_b32 v22, v22, v23"); e("v_and_b32 v20, v20, v22")
e("v_cmp_ne_u32 vcc, 1, v20")
e("s_cbranch_vccnz L_aux")
lab("L_auxok")
e("s_waitcnt vmcnt(0) lgkmcnt(0)")
mark(7, "p2")
e("s_cmp_eq_u32 s21, 0"); e("s_cbranch_scc1 L_conv_h0")
QN = 200; T0 = 216
for hf in (1, 0):
    if hf == 0: lab("L_conv_h0")
    keep = 4*(1-hf); send = 4*hf
    def rr_order(lo):
        qs = [[p for p in pairs if p[0]+p[1] == t] for t in range(lo+3, lo-1, -1)]
        out = []
        while any(qs):
            qs.sort(key=lambda q: -len(q))
            k = [q for q in qs if q and (not out or q[0][0]+q[0][1] != out[-1][0]+out[-1][1])] or [q for q in qs if q]
            out.append(k[0].pop(0))
        return out
    order = rr_order(send) + rr_order(keep)
    if "oldorder" in X: order = [p for p in pairs if send <= p[0]+p[1] < send+4] + [p for p in pairs if keep <= p[0]+p[1] < keep+4]
    nsend = len([p for p in pairs if send <= p[0]+p[1] < send+4])
    lg.clear()
    fill = []
    for u in range(4):
        fill.append(("ld", f"ds_read_b64 {vr(80+2*u,2)}, v10 offset:{512*u}", ("e", u)))
        fill.append(("ld", f"ds_read_b128 {vr(88+8*u,4)}, v13 offset:{2048*u}", ("e", u)))
        fill.append(("ld", f"ds_read_b128 {vr(92+8*u,4)}, v13 offset:{2048*u+1024}", ("e", u)))
    valu = []
    for u in range(4):
        for r in range(4):
            qs = 80 + 2*u + (r >> 1); tq = T0+4*u+r
            valu.append((u, f"v_and_b32 v{tq}, s14, v{qs}" if r & 1 else f"v_lshlrev_b32 v{tq}, 16, v{qs}"))
        for r in range(4):
            valu.append((u, f"v_fma_f32 v{QN+4*u+r}, v{T0+4*u+r}, v{88+8*u+2*r}, v{89+8*u+2*r}"))
    wr = [f"ds_write_b128 v34, {vr(ACC+4*send+4*u,4)} offset:{1024*u}" for u in range(4)] + ["ds_write_b32 v16, v19"]
    for n, (i, j) in enumerate(order):
        t = i + j
        e(f"v_mfma_f32_16x16x32_bf16 {vr(ACC+4*t,4)}, {vr(FA[1]+4*i,4)}, {vr(FB[1]+4*j,4)}, {vr(ACC+4*t,4)}")
        if n >= nsend + 4 and wr:
            e(wr.pop(0)); lg.add("w")
            if len(wr) == 1: e(wr.pop(0)); lg.add("w")
        elif fill and n < 6:
            for _ in range(2):
                k_, t_, g_ = fill.pop(0); e(t_); lg.add(g_)
        elif valu:
            u_, t_ = valu.pop(0); lg.wait(("e", u_)); e(t_)
        else: e("s_nop 0")
        if n == 34: e("ds_read_b32 v20, v17"); lg.add("pf")
    while valu:
        u_, t_ = valu.pop(0); lg.wait(("e", u_)); e(t_)
    mark(5)
    n_ = nid()
    lab(f"L_pw{n_}")
    e("s_waitcnt lgkmcnt(0)")
    e("v_cmp_ne_u32 vcc, 1, v20")
    e(f"s_cbranch_vccz L_pwx{n_}")
    e("ds_read_b32 v20, v17")
    e(f"s_branch L_pw{n_}")
    lab(f"L_pwx{n_}")
    mark(8, "p2")
    for u in range(4): e(f"ds_read_b128 {vr(72+4*u,4)}, v35 offset:{1024*u}")
    for u in range(4):
        y = ACC + 4*keep + 4*u
        e(f"s_waitcnt lgkmcnt({3-u})")
        for p in range(2): e(f"v_pk_add_f32 {vr(y+2*p,2)}, {vr(y+2*p,2)}, {vr(72+4*u+2*p,2)}")
        for p in range(2): e(f"v_pk_fma_f32 {vr(y+2*p,2)}, {vr(QN+4*u+2*p,2)}, {vr(y+2*p,2)}, {vr(T0+4*u+2*p,2)}")
        e(f"v_cvt_pk_bf16_f32 v{124+2*u}, v{y}, v{y+1}")
        e(f"v_cvt_pk_bf16_f32 v{125+2*u}, v{y+2}, v{y+3}")
        if u & 1:
            b = 124 + 2*(u-1)
            e("s_nop 1")
            e(f"v_permlane16_swap_b32 v{b}, v{b+2}"); e(f"v_permlane16_swap_b32 v{b+1}, v{b+3}")
            e(f"buffer_store_dwordx4 {vr(b,4)}, v14, {SWS}, s{18+(u>>1)} offen sc1")
    if hf == 1: e("s_branch L_conv_j")
lab("L_conv_j")
mark(9, "p2")
e("v_and_b32 v3, 15, v2"); e("v_lshrrev_b32 v4, 4, v2"); e("v_lshrrev_b32 v5, 2, v3"); e("v_and_b32 v6, 3, v3")
e("v_lshrrev_b32 v7, 5, v2"); e("v_and_b32 v8, 1, v4"); e("v_lshl_add_u32 v9, v7, 3, v5")
e("v_lshlrev_b32 v10, 8, v9"); e("v_lshl_add_u32 v10, v8, 5, v10"); e("v_lshl_add_u32 v10, v6, 3, v10"); e(f"v_add_u32 v10, {A_L}, v10")
e("v_mul_u32_u24 v12, 192, v9"); e(f"v_mul_u32_u24 v13, {W_U}, v8"); e("v_add_u32 v12, v12, v13"); e("v_lshl_add_u32 v12, v6, 3, v12")
e("s_min_u32 s26, s11, 2"); e("s_lshl_b32 s16, s26, 6"); e(f"s_mul_i32 s17, s10, {32*192}"); e("s_add_u32 s16, s16, s17"); e("v_add_u32 v28, s16, v12")
e("s_mul_i32 s15, s21, 96"); e("v_add_u32 v12, s15, v12")
e("s_lshl_b32 s15, s20, 1"); e("v_xor_b32 v13, s15, v5"); e("v_lshl_add_u32 v13, v13, 6, v10")
e("s_add_u32 s15, s15, 1"); e("v_xor_b32 v18, s15, v5"); e("v_lshl_add_u32 v18, v18, 6, v10")
e("v_mov_b32 v15, v12"); e("v_mov_b32 v16, v13"); e("v_mov_b32 v17, v18")
e("s_waitcnt vmcnt(0)")
mark(10, "p2")
e("s_barrier")
mark(6)
ACC = 64
FR = [20, 40]
def g1reads(ks, buf):
    l = []; b = FR[buf]
    for hh in range(2): l.append(f"ds_read_b64_tr_b16 {vr(b+2*hh,2)}, v15 offset:{(16*ks+4*hh)*192}")
    for hh in range(2): l.append(f"ds_read_b64_tr_b16 {vr(b+12+2*hh,2)}, v16 offset:{4096*ks+1024*hh}")
    for hh in range(2): l.append(f"ds_read_b64_tr_b16 {vr(b+16+2*hh,2)}, v17 offset:{4096*ks+1024*hh}")
    for mb in (1, 2):
        for hh in range(2): l.append(f"ds_read_b64_tr_b16 {vr(b+4*mb+2*hh,2)}, v15 offset:{(16*ks+4*hh)*192+32*mb}")
    return l
e("v_and_b32 v9, 31, v2")
for r in range(20): e(f"v_mov_b32 v{200+r}, 0")
e("s_and_b32 s27, s77, 1"); e("s_lshl_b32 s27, s27, 6"); e("s_lshl_b32 s15, s20, 5"); e("s_add_u32 s27, s27, s15")
e("v_add_u32 v61, s27, v9")
e("v_lshlrev_b32 v62, 2, v61")
e("v_lshrrev_b32 v24, 3, v61"); e("v_and_b32 v25, 7, v61"); e("v_lshlrev_b32 v25, 1, v25"); e("v_lshl_add_u32 v25, v7, 10, v25")
for j in range(4):
    e(f"v_xor_b32 v26, {j<<2}, v24"); e(f"v_lshl_add_u32 v{241+j}, v26, 4, v25")
e("s_lshl_b32 s15, s13, 7"); e("v_add_u32 v245, s15, v61"); e("v_lshlrev_b32 v245, 10, v245"); e("v_lshl_add_u32 v245, v7, 4, v245")
e("v_lshl_add_u32 v24, v7, 2, v5"); e("v_lshlrev_b32 v24, 7, v24"); e("v_lshl_add_u32 v24, v8, 5, v24"); e("v_lshl_add_u32 v24, v6, 3, v24")
e("s_lshl_b32 s15, s21, 13"); e("v_add_u32 v24, s15, v24")
e("v_lshrrev_b32 v25, 3, v3"); e("v_xor_b32 v25, s21, v25"); e("v_lshl_add_u32 v246, v25, 6, v24"); e("v_xor_b32 v25, 1, v25"); e("v_lshl_add_u32 v247, v25, 6, v24")
e("s_lshl_b32 s16, s13, 4")
e("v_add_u32 v248, s16, v2"); e("v_lshlrev_b32 v248, 7, v248"); e(f"v_add_u32 v248, {FL3_OFF:#x}, v248")
e("v_lshlrev_b32 v11, 4, v2")
e("s_lshl_b32 s17, s6, 2"); e("s_lshl_b32 s18, s20, 1"); e("s_add_u32 s17, s17, s18"); e(f"s_mul_i32 s17, s17, {HH_KS}")
e("s_mul_i32 s18, s7, 6"); e("s_mul_i32 s19, s21, 3"); e("s_add_u32 s19, s19, s18")
e("s_add_u32 s17, s17, s19")
e("s_lshl_b32 s17, s17, 10"); e(f"s_add_u32 s17, s17, {HH_OFF:#x}"); e(f"s_add_u32 s18, s17, {HH_KS*1024}")
e("s_cmp_eq_u32 s7, 15"); e("s_cbranch_scc0 L_c_p3")
def sp_loads():
    e("s_mul_i32 s16, s6, 24576"); e(f"s_add_u32 s16, s16, {CSP_OFF:#x}")
    for m in range(16):
        if m and m % 2 == 0: e("s_add_u32 s16, s16, 3072")
        e(f"buffer_load_dwordx2 {vr(64+2*m,2)}, v28, {SWS}, s16 offen offset:{1536*(m%2)} sc1")
e("s_lshl_b32 s15, s11, 6"); e("v_add_u32 v20, s15, v2"); e("v_lshlrev_b32 v28, 3, v20")
e("s_lshl_b32 s15, s6, 4"); e("s_add_u32 s15, s15, s7"); e("s_lshl_b32 s15, s15, 7"); e("v_mov_b32 v253, s15")
e("s_barrier")
e("s_barrier")
sp_loads()
e("s_barrier")
e("s_cmp_eq_u32 s6, 15"); e("s_cbranch_scc1 L_c_sp2"); e("s_cmp_eq_u32 s11, 3"); e("s_cbranch_scc1 L_c_sp2")
e("s_mov_b32 s30, 0x100000")
mark(1, "it2")
lab("L_c_sp1")
e("s_waitcnt vmcnt(0)")
e("v_xor_b32 v50, s9, v65")
for m in range(1, 16):
    e(f"v_xor_b32 v51, s9, v{65+2*m}"); e("v_or_b32 v50, v50, v51")
e("v_cmp_ne_u32 vcc, 0, v50")
e("s_cbranch_vccz L_c_sp1x")
e("s_sub_u32 s30, s30, 1"); e("s_cbranch_scc1 L_c_sp1x")
sp_loads()
e("s_branch L_c_sp1")
lab("L_c_sp1x")
for m in range(1, 16): e(f"v_add_f32 v64, v64, v{64+2*m}")
e("v_mov_b32 v54, 0")
e("v_cvt_pk_bf16_f32 v53, v64, v54")
e("v_lshlrev_b32 v51, 16, v53"); e("v_sub_f32 v51, v64, v51")
e("v_cvt_pk_bf16_f32 v52, v64, v51")
e("v_mov_b32 v55, v254")
e("v_lshlrev_b32 v28, 4, v20"); e("s_mul_i32 s16, s6, 3072"); e(f"s_add_u32 s16, s16, {CSF_OFF:#x}")
e(f"buffer_store_dwordx4 v[52:55], v28, {SWS}, s16 offen sc1")
mark(2, "it2")
lab("L_c_sp2")
e("s_barrier")
e("s_branch L_c_p4")
lab("L_c_p3")
for blk in range(2):
    for ks in range(2):
        for hh in range(2): e(f"ds_read_b64_tr_b16 {vr(32+8*blk+4*ks+2*hh,2)}, v28 offset:{(16*ks+4*hh)*192+32*blk}")
e("v_mov_b32 v30, 0"); e("v_mov_b32 v31, 0"); e("s_mov_b32 s27, 0x3f803f80")
e("s_lshl_b32 s15, s6, 4"); e("s_add_u32 s15, s15, s7"); e("s_lshl_b32 s15, s15, 7"); e("v_mov_b32 v253, s15"); e("s_lshl_b32 s16, s7, 4"); e("s_add_u32 s16, s16, s6"); e("s_mul_i32 s16, s16, 1536"); e("s_lshl_b32 s15, s26, 9"); e("s_add_u32 s16, s16, s15"); e(f"s_add_u32 s16, s16, {CSP_OFF:#x}")
e("v_lshlrev_b32 v29, 3, v2")
e("s_waitcnt lgkmcnt(0)")
for r in range(8):
    e(f"v_dot2_f32_bf16 v30, v{32+r}, s27, v30"); e(f"v_dot2_f32_bf16 v31, v{40+r}, s27, v31")
e("s_nop 3")
e("v_permlane32_swap_b32 v30, v31")
e("s_nop 1")
e("v_add_f32 v30, v30, v31")
e("v_mov_b32 v250, v30"); e("v_mov_b32 v251, v254"); e("v_mov_b32 v249, v29")
e("s_cmp_eq_u32 s11, 3"); e("s_cselect_b32 s16, 0x7f000000, s16")
e(f"buffer_store_dwordx2 v[250:251], v249, {SWS}, s16 offen sc1")
for r in range(96): e(f"v_mov_b32 v{ACC+r}, 0")
e("s_mul_i32 s22, s7, 3072"); e("s_mul_i32 s15, s21, 1536"); e("s_add_u32 s22, s22, s15"); e(f"s_add_u32 s22, s22, {CSF_OFF:#x}")
e("s_lshl_b32 s23, s6, 11"); e("s_lshl_b32 s15, s20, 10"); e("s_add_u32 s23, s23, s15"); e(f"s_add_u32 s23, s23, {ST2_OFF:#x}")
e("s_mul_i32 s15, s21, 1536"); e(f"s_add_u32 s15, s15, {CORR_L}"); e("v_add_u32 v19, s15, v11")
e("s_lshl_b32 s15, s20, 10"); e(f"s_add_u32 s15, s15, {CORR_L+3072}"); e("v_add_u32 v14, s15, v11")
e("s_mov_b32 s24, 0"); e("s_mov_b32 s25, 0"); e("s_mov_b32 s26, 0")
e("s_barrier")
e("s_barrier")
mark(7)
e("s_lshl_b32 s15, s7, 1"); e("s_add_u32 s15, s15, s21"); e("s_cmp_lg_u32 s15, 29"); e("s_cbranch_scc1 L_c_full")
for nb in range(2): e(f"buffer_store_dwordx4 v[64:67], v11, {SWS}, s{17+nb} offen sc1")
for _ in range(8): e("s_barrier")
e("s_branch L_c_p4")
lab("L_c_full")
for s in g1reads(0, 0): e(s)
def corr_loads():
    e("s_mov_b32 exec_hi, 0")
    for mb in range(3): e(f"buffer_load_dwordx4 {vr(200+4*mb,4)}, v11, {SWS}, s22 offen offset:{512*mb} sc1")
    for nb in range(2): e(f"buffer_load_dwordx4 {vr(212+4*nb,4)}, v11, {SWS}, s23 offen offset:{512*nb} sc1")
    e("s_mov_b64 exec, -1")
lab("L_g1_loop")
for ks in range(4):
    buf = ks & 1
    e("s_waitcnt lgkmcnt(0)")
    if ks == 3:
        e("s_barrier")
    nxt = g1reads((ks+1) & 3, buf ^ 1)
    sched = [3, 3, 2, 2, 0, 0]; p = 0
    for n, (mb, nb) in enumerate([(0,0),(0,1),(1,0),(1,1),(2,0),(2,1)] if "snake" not in X else [(0,0),(0,1),(1,1),(1,0),(2,0),(2,1)]):
        a = ACC + 16*(2*mb+nb)
        if "mf16" in X:
            o = 8*(ks & 1)
            e(f"v_mfma_f32_16x16x32_bf16 {vr(a+o,4)}, {vr(FR[buf]+4*mb,4)}, {vr(FR[buf]+12+4*nb,4)}, {vr(a+o,4)}")
            for _ in range((sched[n]+1)//2): e(nxt[p]); p += 1
            e(f"v_mfma_f32_16x16x32_bf16 {vr(a+o+4,4)}, {vr(FR[buf]+12+4*nb,4)}, {vr(FR[buf]+4*mb,4)}, {vr(a+o+4,4)}")
            for _ in range(sched[n]//2): e(nxt[p]); p += 1
        else:
            e(f"v_mfma_f32_32x32x16_bf16 {vr(a,16)}, {vr(FR[buf]+4*mb,4)}, {vr(FR[buf]+12+4*nb,4)}, {vr(a,16)}")
            for _ in range(sched[n]): e(nxt[p]); p += 1
        if ks == 2 and n == 4:
            e(f"s_add_u32 s25, s25, {WSLOT}"); e(f"s_cmp_eq_u32 s25, {4*WSLOT}"); e("s_cselect_b32 s25, 0, s25")
            e(f"s_add_u32 s26, s26, 16384"); e(f"s_cmp_eq_u32 s26, {3*16384}"); e("s_cselect_b32 s26, 0, s26")
        if ks == 2 and n == 5:
            e("v_add_u32 v15, s25, v12"); e("v_add_u32 v16, s26, v13"); e("v_add_u32 v17, s26, v18")
e("s_add_u32 s24, s24, 1"); e("s_cmp_lt_u32 s24, 7"); e("s_cbranch_scc1 L_g1_loop")
FK = [20, 40, 160, 180]
lg.clear(); lg.add(("k0",), 10)
rd = []
def rdA(ks, mb): return [(f"ds_read_b64_tr_b16 {vr(FK[ks]+4*mb+2*hh,2)}, v15 offset:{(16*ks+4*hh)*192+32*mb}", ("A", ks, mb)) for hh in range(2)]
def rdB(ks, nb): return [(f"ds_read_b64_tr_b16 {vr(FK[ks]+12+4*nb+2*hh,2)}, v{16+nb} offset:{4096*ks+1024*hh}", ("B", ks, nb)) for hh in range(2)]
for ks in (1, 2, 3): rd += rdA(ks, 0) + rdB(ks, 0) + rdB(ks, 1)
for mb in (1, 2):
    for ks in (1, 2, 3): rd += rdA(ks, mb)
def epi(mb):
    l = []
    for nb in range(2):
        a = ACC + 16*(2*mb+nb)
        for r in range(8): l.append(f"v_max_f32 v{a+r}, 0, v{a+r}")
        for r in range(8): l.append(f"v_mul_f32 v{a+r}, v{a+r}, v{a+8+r}")
        for p in range(4): l.append(f"v_cvt_pk_bf16_f32 v{a+8+p}, v{a+2*p}, v{a+2*p+1}")
        l.append(f"buffer_store_dwordx4 {vr(a+8,4)}, v11, {SWS}, s{17+nb} offen offset:{1024*mb} sc1")
    return l
lg.wait(("k0",))
seq = [(0, mb, nb) for mb in range(3) for nb in range(2)] + [(ks, 0, nb) for ks in (1, 2, 3) for nb in range(2)] + ["bar"]
seq += [(1, 1, 0), (1, 1, 1), "chk", ("c", 0, 0), ("c", 0, 1)] + [(ks, 1, nb) for ks in (2, 3) for nb in range(2)] + [("c", 1, 0), ("c", 1, 1)]
seq += [("c", 2, 0), ("c", 2, 1)] + [(ks, 2, nb) for ks in (1, 2) for nb in range(2)] + [(3, 2, 0), (3, 2, 1)]
last = {}
for n, x in enumerate(seq):
    if isinstance(x, tuple): last[(x[1], x[2])] = n
epq = []
def epi1(mb, nb):
    a = ACC + 16*(2*mb+nb); l = []
    for r in range(8): l.append(f"v_max_f32 v{a+r}, 0, v{a+r}")
    for r in range(8): l.append(f"v_mul_f32 v{a+r}, v{a+r}, v{a+8+r}")
    for p in range(4): l.append(f"v_cvt_pk_bf16_f32 v{a+8+p}, v{a+2*p}, v{a+2*p+1}")
    l.append(f"buffer_store_dwordx4 {vr(a+8,4)}, v11, {SWS}, s{17+nb} offen offset:{1024*mb} sc1")
    return l
for n, x in enumerate(seq):
    if x == "bar":
        e("s_waitcnt lgkmcnt(0)"); lg.clear(); assert not rd
        e("s_barrier")
        e("s_mov_b32 exec_hi, 0")
        for mb in range(3): e(f"ds_read_b128 {vr(200+4*mb,4)}, v19 offset:{512*mb}")
        for nb in range(2): e(f"ds_read_b128 {vr(212+4*nb,4)}, v14 offset:{512*nb}")
        e("s_mov_b64 exec, -1")
        e("s_mov_b32 s30, 0x100000")
        continue
    if x == "chk":
        e("s_waitcnt lgkmcnt(0)")
        mark(1, "it2")
        lab("L_corr")
        e("v_xor_b32 v60, s9, v203")
        for r in (207, 211, 215, 219):
            e(f"v_xor_b32 v63, s9, v{r}"); e("v_or_b32 v60, v60, v63")
        e("v_cmp_ne_u32 vcc, 0, v60")
        e("s_cmp_eq_u32 vcc_lo, 0"); e("s_cbranch_scc1 L_corrx")
        e("s_sub_u32 s30, s30, 1"); e("s_cbranch_scc1 L_corrx")
        corr_loads()
        e("s_waitcnt vmcnt(0)")
        e("s_branch L_corr")
        lab("L_corrx")
        mark(2, "it2")
        for r in (203, 207, 211, 215, 219): e(f"v_mov_b32 v{r}, 0")
        e("s_nop 1")
        continue
    ks, mb, nb = x
    a = ACC + 16*(2*mb+nb)
    if ks == "c":
        e(f"v_mfma_f32_32x32x16_bf16 {vr(a,16)}, {vr(200+4*mb,4)}, {vr(212+4*nb,4)}, {vr(a,16)}")
    else:
        need = [("A", ks, mb), ("B", ks, nb)]
        while any(y[1] in need for y in rd):
            s_, tg = rd.pop(0); e(s_); lg.add(tg)
        lg.wait(*need)
        e(f"v_mfma_f32_32x32x16_bf16 {vr(a,16)}, {vr(FK[ks]+4*mb,4)}, {vr(FK[ks]+12+4*nb,4)}, {vr(a,16)}")
    if last[(mb, nb)] == n: epq += [(len(L) + 12, t) for t in epi1(mb, nb)]
    for _ in range(3):
        if rd: s_, tg = rd.pop(0); e(s_); lg.add(tg)
    k = 0
    while epq and k < 6:
        short = epq[0][0] - len(L)
        if short > 0:
            p_ = min(short, 6 - k)
            e(f"s_nop {p_-1}"); L.extend(["    ; pad"] * (p_ - 1)); k += p_
            continue
        e(epq.pop(0)[1]); k += 1
mark(8); mark(3, "it2")
while epq:
    short = epq[0][0] - len(L)
    if short > 0:
        e(f"s_nop {short-1}"); L.extend(["    ; pad"] * (short - 1))
    e(epq.pop(0)[1])
mark(4, "it2")
lab("L_c_p4")
RES = 224
for r in range(16): e(f"v_mov_b32 v{RES+r}, 0")
e("s_lshl_b32 s22, s13, 17"); e("s_lshl_b32 s16, s28, 14"); e("s_add_u32 s22, s22, s16"); e("s_lshl_b32 s16, s21, 13"); e("s_add_u32 s22, s22, s16")
e(f"s_add_u32 s22, s22, {HT_OFF:#x}"); e("s_add_u32 s23, s22, 4096")
e("s_lshl_b32 s25, s77, 1"); e("s_add_u32 s25, s25, s20")
e(f"s_mul_i32 s25, s25, {HH_KS*1024}"); e("s_lshl_b32 s16, s21, 12"); e("s_add_u32 s25, s25, s16"); e(f"s_add_u32 s25, s25, {HH_OFF:#x}")
e("s_lshl_b32 s27, s28, 7"); e("s_lshl_b32 s15, s21, 6"); e("s_add_u32 s27, s27, s15")
e("s_waitcnt vmcnt(0)"); mark(5, "it2"); e("s_barrier")
mark(9); mark(6, "it2")
ACC = 160
FR = [20, 36, 192]
PD = int(os.environ.get("PD", "2"))
e("v_add_u32 v52, 0x10000, v246"); e("v_add_u32 v53, 0x10000, v247"); e("v_add_u32 v54, 0x20000, v246"); e("v_add_u32 v55, 0x20000, v247")
def g2reads(G):
    i = G >> 1; slot = i % 10; l = []
    base = [("v246", "v247"), ("v52", "v53"), ("v54", "v55")][slot >> 2]
    for q in range(2):
        ks = 2*(G & 1) + q
        for db in range(2):
            b = FR[G % 3] + 8*q + 4*db
            off = (slot & 3)*16384 + ks*2048
            l.append((f"ds_read_b64_tr_b16 {vr(b,2)}, {base[db]} offset:{off}", ("W", G, q, db)))
            l.append((f"ds_read_b64_tr_b16 {vr(b+2,2)}, {base[db]} offset:{off+1024}", ("W", G, q, db)))
    return l
post_flag(FL3_OFF, 0)
lg.clear()
for G0 in range(2):
    for s, t in g2reads(G0): e(s)
e("s_waitcnt lgkmcnt(0)"); e("s_barrier")
for ii in range(4 if "nores" not in X else 0):
    for j in range(4):
        e(f"buffer_load_short_d16_hi v{RES+4*ii+j}, v{241+j}, {SWS}, s{22+(ii>>1)} offen offset:{2048*(ii&1)+256*j} sc1")
e("s_cmp_lg_u32 s3, 0"); e("s_cbranch_scc1 L_c_np3")
e("s_mov_b64 exec, 0xffff")
poll("v248", "v249", "s9", "ap3" in X)
lab("L_c_np3")
mark(7, "it2")
e("s_barrier")
mark(8, "it2"); mark(1, "p4")
vm = Trk("vmcnt", 63)
NHR = 6; HB = 64
def issueHH(i):
    rot11(i if "hhsame" not in X else i % 2)
    e("s_lshl_b32 s15, s15, 13"); e("s_add_u32 s15, s15, s25")
    for q in range(4):
        e(f"buffer_load_dwordx4 {vr(HB+16*(i % NHR)+4*q,4)}, v11, {SWS}, s15 offen offset:{1024*q} sc1"); vm.add(("HH", i, q))
NH0 = int(os.environ.get("NH0", "3"))
for i in range(NH0): issueHH(i)
def hh1(i, q):
    if q == 0:
        rot11(i)
        e("s_lshl_b32 s15, s15, 13"); e("s_add_u32 s17, s15, s25")
    e(f"buffer_load_dwordx4 {vr(HB+16*(i % NHR)+4*q,4)}, v11, {SWS}, s17 offen offset:{1024*q} sc1"); vm.add(("HH", i, q))
mark(10)
assert PD == 2
for G in range(20):
    i = G >> 1
    if G in (1, 6, 12, 16, 18, 20): mark(2 + (1, 6, 12, 16, 18, 20).index(G), "p4")
    if G == 8: e("s_barrier")
    if G == 2: mark(9, "it2")
    if G == 12: mark(10, "it2")
    nxt = g2reads(G+PD) if G + PD < 22 else []
    p = 0
    for q in range(2):
        ks = 2*(G & 1) + q
        vm.wait(("HH", i, ks))
        for db in range(2):
            lg.wait(("W", G, q, db))
            b = FR[G % 3] + 8*q + 4*db
            c = vr(ACC+16*db, 16) if (G or q) else "0"
            e(f"v_mfma_f32_32x32x16_bf16 {vr(ACC+16*db,16)}, {vr(b,4)}, {vr(HB+16*(i % NHR)+4*ks,4)}, {c}")
            for _ in range(2):
                if p < len(nxt): e(nxt[p][0]); lg.add(nxt[p][1]); p += 1
            if db == 0 and i + NH0 <= 10: hh1(i + NH0, ks)
    if G == 17:
        e("s_lshl_b32 s15, s13, 9"); e(f"s_add_u32 s15, s15, {R2_OFF:#x}")
        e(f"buffer_load_dword v240, v62, {SWS}, s15 offen sc1"); vm.add("res")
e("s_lshl_b32 s15, s11, 12"); e("s_add_u32 s15, s15, 16384"); e("s_xor_b32 s16, s15, 4096")
e("v_add_u32 v56, s15, v11"); e("v_add_u32 v57, s16, v11")
FULL = "nofull" not in X
if FULL:
    e("s_lshl_b32 s15, s21, 2"); e("v_add_u32 v58, s15, v7"); e("v_and_b32 v59, 7, v2"); e("v_xor_b32 v58, v58, v59"); e("v_xor_b32 v60, 2, v58")
    e("s_lshl_b32 s15, s20, 12"); e("s_add_u32 s15, s15, 32768"); e("v_lshlrev_b32 v63, 7, v9"); e("v_add_u32 v63, s15, v63")
    e("v_lshl_add_u32 v58, v58, 4, v63"); e("v_lshl_add_u32 v60, v60, 4, v63")
    e("v_lshrrev_b32 v63, 3, v2"); e("v_xor_b32 v242, v59, v63"); e("v_lshlrev_b32 v242, 4, v242"); e("v_lshl_add_u32 v242, v63, 7, v242")
    e("s_lshl_b32 s15, s11, 11"); e("s_add_u32 s15, s15, 32768"); e("v_add_u32 v242, s15, v242")
    e("v_lshlrev_b32 v243, 10, v63"); e("v_lshl_add_u32 v243, v59, 4, v243")
    e("s_lshl_b32 s27, s77, 16"); e("s_lshl_b32 s15, s11, 14"); e("s_add_u32 s27, s27, s15"); e("s_lshl_b32 s15, s28, 7"); e("s_add_u32 s27, s27, s15")
    e("s_add_u32 s26, s27, 8192")
for db in (1, 0):
    for G in (20, 21):
        for q in range(2):
            ks = 2*(G & 1) + q
            vm.wait(("HH", 10, ks)); lg.wait(("W", G, q, db))
            b = FR[G % 3] + 8*q + 4*db
            e(f"v_mfma_f32_32x32x16_bf16 {vr(ACC+16*db,16)}, {vr(b,4)}, {vr(HB+16*(10 % NHR)+4*ks,4)}, {vr(ACC+16*db,16)}")
            if db == 0 and G == 20: e("s_nop 5")
            if db == 0 and G == 21:
                for u in (2*q, 2*q+1): e(f"ds_write_b128 v56, {vr(ACC+16+4*u,4)} offset:{1024*u}")
mark(8, "p4")
e("s_waitcnt vmcnt(0) lgkmcnt(0)")
e("s_barrier")
mark(9, "p4")
for u in range(4): e(f"ds_read_b128 {vr(64+4*u,4)}, v57 offset:{1024*u}")
e("v_mov_b32 v241, v240")
e("s_nop 5")
for u in range(4):
    e(f"s_waitcnt lgkmcnt({3-u})")
    for p in range(2): e(f"v_pk_add_f32 {vr(ACC+4*u+2*p,2)}, {vr(ACC+4*u+2*p,2)}, {vr(64+4*u+2*p,2)}")
    for p in range(2): e(f"v_pk_fma_f32 {vr(ACC+4*u+2*p,2)}, {vr(ACC+4*u+2*p,2)}, v[240:241], {vr(RES+4*u+2*p,2)}")
    for p in range(2): e(f"v_cvt_pk_bf16_f32 v{32+2*u+p}, v{ACC+4*u+2*p}, v{ACC+4*u+2*p+1}")
    if u & 1:
        b = 32 + 2*(u-1)
        e("s_nop 1")
        e(f"v_permlane32_swap_b32 v{b}, v{b+2}"); e(f"v_permlane32_swap_b32 v{b+1}, v{b+3}")
        if FULL: e(f"ds_write_b128 v{58 if u == 1 else 60}, {vr(b,4)}")
        else: e(f"buffer_store_dwordx4 {vr(b,4)}, v245, {SOUT}, s27 offen offset:{16*(u-1)}{os.environ.get('OUTF', '')}")
if FULL:
    e("s_waitcnt lgkmcnt(0)"); e("s_barrier")
    e("ds_read_b128 v[40:43], v242"); e("ds_read_b128 v[44:47], v242 offset:1024")
    e("s_waitcnt lgkmcnt(1)")
    e(f"buffer_store_dwordx4 v[40:43], v243, {SOUT}, s27 offen{os.environ.get('OUTF', ' sc1')}")
    e("s_waitcnt lgkmcnt(0)")
    e(f"buffer_store_dwordx4 v[44:47], v243, {SOUT}, s26 offen{os.environ.get('OUTF', ' sc1')}")
mark(10, "p4")
endpgm()

lab("L_H")
vm = Trk("vmcnt", 63)
e(f"v_lshlrev_b32 v4, 2, v2"); e(f"v_add_u32 v4, {FLG_L}, v4"); e("v_mov_b32 v5, 0")
e("s_mov_b64 exec, 0xffff")
e("ds_write_b32 v4, v5")
e("s_mov_b64 exec, -1")
e("v_lshlrev_b32 v11, 4, v2")
if "rowb" in X: e("s_mov_b32 s26, s2")
else: e("s_lshl_b32 s26, s31, 3"); e("s_add_u32 s26, s26, s30")
e("s_lshl_b32 s24, s26, 13"); e("s_lshl_b32 s16, s11, 11"); e("s_add_u32 s24, s24, s16")
QR = " nt" if "qrnt" in X else ""
e(f"buffer_load_dwordx4 {vr(56,4)}, v11, {SQ}, s24 offen{QR}"); e(f"buffer_load_dwordx4 {vr(60,4)}, v11, {SQ}, s24 offen offset:1024{QR}")
if "tlb" in X:
    e("s_cmp_lg_u32 s3, 7"); e("s_cbranch_scc1 L_notlb")
    e("v_lshlrev_b32 v46, 20, v2"); e("s_lshl_b32 s15, s2, 7"); e("v_add_u32 v46, s15, v46")
    e("s_mov_b64 exec, 0x3fff")
    e(f"buffer_load_dword v47, v46, {SWS}, 0 offen")
    e("s_mov_b64 exec, 3")
    for n, sr in enumerate((SOUT, SWD, SWG, SWU, SSK)): e(f"buffer_load_dword v{48+n}, v46, {sr}, 0 offen")
    e("s_mov_b64 exec, -1")
    lab("L_notlb")
e("v_lshlrev_b32 v17, 7, v2")
pass
for j in range(3):
    e(f"v_add_u32 v20, {j*64}, v2")
    e("v_mul_u32_u24 v21, 0x5556, v20"); e("v_lshrrev_b32 v21, 18, v21")
    e("v_mul_u32_u24 v22, 12, v21"); e("v_sub_u32 v22, v20, v22")
    e("v_mul_u32_u24 v21, 2752, v21"); e(f"v_lshl_add_u32 v{14+j}, v22, 4, v21")
    if j: e(f"v_subrev_u32 v{14+j}, {1024*j}, v{14+j}")
e(f"s_mul_i32 s22, s11, {16*2752}"); e("s_mul_i32 s15, s7, 192"); e("s_add_u32 s22, s22, s15")
e(f"s_mul_i32 s23, s11, {16*192}")
e("s_mov_b32 s16, 0x05040100"); e("s_mov_b32 s17, 0x07060302")
e("s_waitcnt vmcnt(3)")
mark(1)
for c in range(4):
    sel = "s17" if c & 1 else "s16"
    e(f"v_perm_b32 v{92+2*c}, v{40+(c>>1)}, v{38+(c>>1)}, {sel}")
    e(f"v_perm_b32 v{93+2*c}, v{44+(c>>1)}, v{42+(c>>1)}, {sel}")
    e(f"ds_write_b64 v13, {vr(92+2*c,2)} offset:{128*c}")
mark(7, "p1")
e("s_waitcnt lgkmcnt(0)"); e("s_barrier")
mark(8, "p1")
e("ds_read_b128 v[28:31], v124"); e("ds_read_b128 v[32:35], v125 offset:1024")
e("s_waitcnt lgkmcnt(1)")
e(f"buffer_store_dwordx4 v[28:31], v126, {SWS}, s18 offen sc1")
e("s_waitcnt lgkmcnt(0)")
e(f"buffer_store_dwordx4 v[32:35], v126, {SWS}, s19 offen sc1")
mark(9, "p1")
e("s_waitcnt vmcnt(2)")
e("v_add_u32 v254, 1, v254")
e("s_nop 0")
e("v_readfirstlane_b32 s9, v254")
for rr in range(2):
    for c in range(8): unpack(64+8*rr+c, 56+4*rr+2*(c>>2), c & 3)
def tree(dst, base):
    e(f"v_add_f32 v{dst}, v{base}, v{base+1}")
    for c in range(2, 8): e(f"v_add_f32 v{dst}, v{dst}, v{base+c}")
def reduce2(a, b):
    for m in ("row_shr:1", "row_shr:2", "row_shr:4", "row_shr:8"):
        e("s_nop 0")
        e(f"v_add_f32_dpp v{a}, v{a}, v{a} {m} row_mask:0xf bank_mask:0xf bound_ctrl:0")
        e(f"v_add_f32_dpp v{b}, v{b}, v{b} {m} row_mask:0xf bank_mask:0xf bound_ctrl:0")
    for m, rm in (("row_bcast:15", "0xa"), ("row_bcast:31", "0xc")):
        e("s_nop 0")
        e(f"v_add_f32_dpp v{a}, v{a}, v{a} {m} row_mask:{rm} bank_mask:0xf")
        e(f"v_add_f32_dpp v{b}, v{b}, v{b} {m} row_mask:{rm} bank_mask:0xf")
tree(100, 64); tree(101, 72)
e("s_nop 0")
reduce2(100, 101)
e("s_mov_b32 s18, 0x3b000000")
e("v_mul_f32 v100, s18, v100"); e("v_mul_f32 v101, s18, v101")
e("s_nop 0")
e("v_readlane_b32 s16, v100, 63"); e("v_readlane_b32 s17, v101, 63")
e("s_nop 1")
for c in range(8):
    e(f"v_subrev_f32 v{64+c}, s16, v{64+c}"); e(f"v_subrev_f32 v{72+c}, s17, v{72+c}")
e("v_mul_f32 v102, v64, v64"); e("v_mul_f32 v103, v72, v72")
for c in range(1, 8):
    e(f"v_fmac_f32 v102, v{64+c}, v{64+c}"); e(f"v_fmac_f32 v103, v{72+c}, v{72+c}")
e("s_nop 0")
reduce2(102, 103)
e("v_mov_b32 v104, 0x3727c5ac")
e("v_fma_f32 v102, v102, s18, v104"); e("v_fma_f32 v103, v103, s18, v104")
e("v_rsq_f32 v108, v102"); e("v_rsq_f32 v112, v103")
e("v_mov_b32 v110, v254"); e("v_mov_b32 v114, v254"); e("v_mov_b32 v111, v254"); e("v_mov_b32 v115, v254")
e("v_mul_f32 v109, v100, v108"); e("v_mul_f32 v113, v101, v112")
e("v_sub_f32 v109, 0, v109"); e("v_sub_f32 v113, 0, v113")
e("s_lshr_b32 s15, s26, 5"); e("s_lshl_b32 s15, s15, 12"); e("s_lshl_b32 s16, s21, 11"); e("s_add_u32 s15, s15, s16")
e("s_bfe_u32 s16, s26, 0x40001"); e("s_lshl_b32 s16, s16, 5"); e("s_add_u32 s15, s15, s16")
e("s_and_b32 s16, s26, 1"); e("s_lshl_b32 s16, s16, 1"); e("s_add_u32 s16, s16, s20"); e("s_lshl_b32 s16, s16, 9"); e("s_add_u32 s15, s15, s16")
e(f"s_add_u32 s15, s15, {STG_OFF:#x}")
e("s_mov_b32 exec_lo, 0"); e("s_mov_b32 exec_hi, 0x80000000")
e(f"buffer_store_dwordx4 v[108:111], v5, {SWS}, s15 offen sc1")
e(f"buffer_store_dwordx4 v[112:115], v5, {SWS}, s15 offen offset:16 sc1")
e("s_mov_b64 exec, -1")
mark(3)
e("s_waitcnt vmcnt(2)")
mark(10, "p1")
e("s_barrier")
mark(2)
post_flag(FL1_OFF, 4)
e("s_cmp_lg_u32 s3, 4"); e("s_cbranch_scc1 L_h_np1")
e("s_lshl_b32 s16, s4, 12"); e(f"s_add_u32 s16, s16, {FL1_OFF:#x}"); e("v_add_u32 v7, s16, v17")
e("s_mov_b32 exec_hi, 0")
poll("v7", "v8", "s9", "ap1" in X)
lab("L_h_np1")
e("s_barrier")
e("v_lshlrev_b32 v9, 4, v3")
e("v_lshlrev_b32 v10, 3, v3"); e(f"v_add_u32 v10, {ST_L}, v10")
for j in range(8):
    e(f"s_add_u32 s16, s5, {j}"); e("s_and_b32 s16, s16, 7"); e("s_lshl_b32 s16, s16, 11"); e(f"v_add_u32 v{100+j}, s16, v10")
def issueW(i, emit=True):
    l = []
    l.append([f"s_add_u32 s15, s8, {i}", "s_and_b32 s15, s15, 7", f"s_mul_i32 s15, s15, {64*2752}", "s_add_u32 s15, s15, s22",
              f"s_add_u32 m0, s23, {(i % 4)*WSLOT}", "s_nop 0", f"buffer_load_dwordx4 v14, {SWG}, s15 offen lds"])
    for j in (1, 2): l.append([f"buffer_load_dwordx4 v{14+j}, {SWG}, s15 offen offset:{1024*j} lds"])
    l.append([f"s_add_u32 s15, s8, {i}", "s_and_b32 s15, s15, 7", f"s_mul_i32 s15, s15, {64*2752}", "s_add_u32 s15, s15, s22",
              f"s_add_u32 m0, s23, {(i % 4)*WSLOT + W_U}", "s_nop 0", f"buffer_load_dwordx4 v14, {SWU}, s15 offen lds"])
    for j in (1, 2): l.append([f"buffer_load_dwordx4 v{14+j}, {SWU}, s15 offen offset:{1024*j} lds"])
    return [(x, ("W", i)) for x in l]
def emit_all(items):
    for x, t in items:
        for s in x: e(s)
        vm.add(t)
def stg_loads():
    for j in range(8):
        e(f"s_add_u32 s16, s5, {j}"); e("s_and_b32 s16, s16, 7"); e("s_lshl_b32 s16, s16, 12"); e(f"s_add_u32 s16, s16, {STG_OFF:#x}")
        e(f"buffer_load_dwordx4 {vr(64+4*j,4)}, v9, {SWS}, s16 offen sc1")
stg_loads()
e("s_barrier")
mark(4)
NWPRE = int(os.environ.get("NWPRE", "3"))
e("s_cmp_eq_u32 s7, 15"); e("s_cbranch_scc1 L_h_now0")
emit_all(issueW(0))
e("s_waitcnt vmcnt(6)")
e("s_branch L_stg0")
lab("L_h_now0")
e("s_waitcnt vmcnt(0)")
lab("L_stg0")
if "noprio" not in X: e("s_setprio 3")
mark(9, "p2")
e("s_mov_b32 s30, 0x100000")
lab("L_stg")
e("v_xor_b32 v50, s9, v66")
for j in range(1, 8):
    e(f"v_xor_b32 v51, s9, v{66+4*j}"); e("v_or_b32 v50, v50, v51")
e("v_cmp_ne_u32 vcc, 0, v50")
e("s_cbranch_vccz L_stgx")
e("s_sub_u32 s30, s30, 1"); e("s_cbranch_scc1 L_stgx")
stg_loads()
e("s_waitcnt vmcnt(0)")
e("s_branch L_stg")
lab("L_stgx")
mark(10, "p2")
for j in range(8): e(f"ds_write_b64 v{100+j}, {vr(64+4*j,2)}")
e("s_lshl_b32 s15, s11, 2"); e(f"s_add_u32 s15, s15, {FLG_L+16}"); e("v_mov_b32 v50, s15"); e("v_mov_b32 v51, 1")
e("ds_write_b32 v50, v51")
if "noprio" not in X: e("s_setprio 0")
mark(5)
if "nowdt" not in X:
    e("s_mul_i32 s15, s2, 5504"); e("s_mul_i32 s16, s11, 1408"); e("s_add_u32 s15, s15, s16")
    e("s_mov_b64 exec, 0x7ff")
    e(f"buffer_load_dword v250, v17, {SWD}, s15 offen"); vm.add("t")
    e("s_mov_b64 exec, -1")
e("s_cmp_eq_u32 s7, 15"); e("s_cbranch_scc1 L_h_now")
for i in range(1, NWPRE): emit_all(issueW(i))
lab("L_h_now")
mark(7, "p2")
e("v_and_b32 v20, 15, v2"); e("v_lshrrev_b32 v21, 4, v2"); e("v_lshrrev_b32 v22, 2, v20"); e("v_and_b32 v23, 3, v20")
e("v_lshrrev_b32 v24, 5, v2"); e("v_and_b32 v25, 1, v21"); e("v_lshl_add_u32 v26, v24, 3, v22")
e("v_lshlrev_b32 v27, 8, v26"); e("v_lshl_add_u32 v27, v25, 5, v27"); e("v_lshl_add_u32 v27, v23, 3, v27")
e("v_xor_b32 v17, s11, v22"); e("v_lshl_add_u32 v17, v17, 6, v27"); e(f"v_add_u32 v17, {A_L}, v17")
e("v_add_u32 v18, 16384, v17"); e("v_add_u32 v19, 32768, v17")
e("v_lshrrev_b32 v7, 3, v2"); e("v_lshlrev_b32 v7, 5, v7"); e("v_and_b32 v8, 7, v2"); e("v_add_u32 v7, v7, v8")
e("s_lshl_b32 s16, s11, 3"); e("v_add_u32 v7, s16, v7"); e("v_lshlrev_b32 v7, 7, v7"); e("s_lshl_b32 s16, s4, 15"); e(f"s_add_u32 s16, s16, {FL2_OFF:#x}"); e("v_add_u32 v7, s16, v7")
e("s_lshl_b32 s26, s6, 17"); e("s_lshl_b32 s19, s11, 12"); e("s_add_u32 s26, s26, s19"); e(f"s_add_u32 s26, s26, {HT_OFF:#x}")
for r in range(4): e(f"v_mov_b32 v{20+r}, 0")
e("s_mov_b32 s27, 0x3f803f80")
e("v_lshrrev_b32 v12, 3, v2"); e("v_and_b32 v13, 7, v2"); e("v_bfe_u32 v28, v2, 4, 1"); e("v_lshlrev_b32 v28, 2, v28"); e("v_xor_b32 v13, v13, v28")
e("v_lshlrev_b32 v12, 10, v12"); e("v_lshl_add_u32 v12, v13, 4, v12")
e("s_lshl_b32 s24, s11, 15"); e("s_lshl_b32 s16, s28, 7"); e("s_add_u32 s24, s24, s16")
def issueWd(i):
    l = [[f"s_add_u32 s15, s29, {i if 'wdsame' not in X else i % 3}", "s_cmp_ge_u32 s15, 11", "s_cselect_b32 s16, 11, 0", "s_sub_u32 s15, s15, s16",
          "s_lshl_b32 s15, s15, 17", "s_add_u32 s15, s15, s24", f"s_add_u32 m0, s19, {(i % 10)*16384}", "s_nop 0",
          f"buffer_load_dwordx4 v12, {SWD}, s15 offen lds"]]
    for j in (1, 2, 3): l.append([f"s_add_u32 s16, s15, {j*7168}", f"buffer_load_dwordx4 v12, {SWD}, s16 offen offset:{1024*j} lds"])
    return [(x, ("Wd", i)) for x in l]
WR = 122
def issueWdR(i):
    r = WR + 16*(i-3)
    l = [[f"s_add_u32 s15, s29, {i}", "s_cmp_ge_u32 s15, 11", "s_cselect_b32 s16, 11, 0", "s_sub_u32 s15, s15, s16",
          "s_lshl_b32 s15, s15, 17", "s_add_u32 s15, s15, s24", f"buffer_load_dwordx4 {vr(r,4)}, v12, {SWD}, s15 offen"]]
    for j in (1, 2, 3): l.append([f"s_add_u32 s16, s15, {j*8192}", f"buffer_load_dwordx4 {vr(r+4*j,4)}, v12, {SWD}, s16 offen"])
    return [(x, ("Wd", i)) for x in l]
def writeWdR(i):
    r = WR + 16*(i-3); off = (i % 10)*16384
    for j in range(4): e(f"ds_write_b128 v{30 + (off >> 16)}, {vr(r+4*j,4)} offset:{(off & 0xffff) + 1024*j}")
RSCH = eval(os.environ.get("RSCH", "{0: [10,9,8]}"))
e("v_mov_b32 v118, 1"); e("v_lshlrev_b32 v119, 10, v2"); e("s_lshl_b32 s16, s4, 7"); e(f"s_add_u32 s16, s16, {FL2_OFF:#x}"); e("v_add_u32 v119, s16, v119")
e("v_lshlrev_b32 v120, 7, v2"); e(f"s_and_b32 s16, s2, {NREP-1}"); e("s_lshl_b32 s16, s16, 10"); e(f"s_add_u32 s16, s16, {FL2_OFF:#x}"); e("v_add_u32 v120, s16, v120")
e("s_lshl_b32 s25, s9, 6"); e("s_add_u32 s25, s25, 32")
if RSCH.get('p'):
    e("s_cmp_eq_u32 s7, 15"); e("s_cbranch_scc1 L_now3")
    for k in RSCH['p']: emit_all(issueWdR(k))
    lab("L_now3")
vm.wait(("W", 0))
mark(8, "p2")
e("s_barrier")
mark(6)
if "f256" in X:
    post_flag(FL2_OFF, 4, 8)
    poll("v7", "v8"); vm.clear()
else:
    e("s_cmp_lg_u32 s3, 4"); e("s_cbranch_scc1 L_noadd")
    e(f"s_mov_b32 exec_lo, {(1 << NREP) - 1:#x}"); e("s_mov_b32 exec_hi, 0")
    e(f"buffer_atomic_add v118, v119, {SWS}, 0 offen sc1")
    e("s_mov_b64 exec, -1")
    lab("L_noadd")
    e("s_cmp_eq_u32 s7, 15"); e("s_cbranch_scc1 L_now2")
    for k in range(NWPRE, 4 if "w3it0" not in X else 3): emit_all(issueW(k))
    for k in RSCH.get('w', []): emit_all(issueWdR(k))
    lab("L_now2")
    e("s_cmp_lg_u32 s3, 4"); e("s_cbranch_scc1 L_nopoll2")
    e("s_mov_b64 exec, 0xff")
    poll("v120", "v8", "s25", "ap2" in X)
    lab("L_nopoll2")
e("s_barrier")
e("s_cmp_eq_u32 s7, 15"); e("s_cbranch_scc1 L_h_idle")
def issueA(i, dst=None):
    if dst is None: dst = A_L + (i % 3)*16384
    l = [[f"s_add_u32 s15, s8, {i}", "s_and_b32 s15, s15, 7", "s_lshl_b32 s15, s15, 14", "s_add_u32 s15, s15, s26",
          f"s_add_u32 m0, s19, {dst}", "s_nop 0", f"buffer_load_dwordx4 v11, {SWS}, s15 offen sc1 lds"]]
    for j in (1, 2, 3): l.append([f"buffer_load_dwordx4 v11, {SWS}, s15 offen offset:{1024*j} sc1 lds"])
    return [(x, ("A", i)) for x in l]
for i in range(3): emit_all(issueA(i))
mark(7)
vm.wait(("A", 0))
e("s_barrier")
mark(1, "it2"); mark(1, "it3")
corr_items = [(["s_mul_i32 s15, s7, 3072", "s_lshl_b32 s16, s11, 10", "s_add_u32 s15, s15, s16", f"s_add_u32 s15, s15, {CSF_OFF:#x}",
                "s_lshl_b32 s17, s6, 11", f"s_add_u32 s17, s17, {ST2_OFF:#x}", "s_cmp_eq_u32 s11, 3", "s_cselect_b32 s15, s17, s15",
                f"s_add_u32 m0, s16, {CORR_L}", "s_nop 0", f"buffer_load_dwordx4 v11, {SWS}, s15 offen sc1 lds"], "corr"),
              ([f"s_mov_b32 m0, {CORR_L+3072}", "s_nop 0", f"buffer_load_dwordx4 v11, {SWS}, s17 offen offset:1024 sc1 lds"], "corr")]
Wh = lambda k, h: issueW(k)[3*h:3*h+3]
SCHED = {1: Wh(4,0)+Wh(4,1), 2: Wh(5,0), 3: Wh(5,1)+Wh(6,0), 4: Wh(6,1)+Wh(7,0), 5: Wh(7,1)+issueWd(0), 6: corr_items+issueWd(1)+issueWd(2)}
if "nosmooth" in X:
    SCHED = {1: issueW(4), 2: issueW(5), 3: issueW(6), 4: issueW(7), 5: issueWd(0)+corr_items, 6: issueWd(1)+issueWd(2), 7: issueWd(3)}
for i in range(8):
    items = []
    if 1 <= i <= 5: items += issueA(i+2)
    if i == 0 and "w3it0" in X: items += issueW(3)
    items += SCHED.get(i, [])
    for k in RSCH.get(i, []): items += issueWdR(k)
    emit_all(items)
    if i < 7:
        vm.wait(("A", i+1), ("W", i+1))
        mark(2+i, "it3")
        e("s_barrier")
        mark(2+i, "it2")
vm.wait("corr"); mark(9, "it3"); e("s_barrier")
mark(9, "it2")
mark(8)
NPRE = int(os.environ.get("NPRE", "10"))
e("v_add_u32 v30, s19, v11"); e("v_add_u32 v31, 0x10000, v30"); e("v_add_u32 v32, 0x20000, v30")
RSET = sorted(sum(RSCH.values(), []))
assert 9 in RSET and 10 in RSET
for i in range(3, 9):
    if i not in RSET: emit_all(issueWd(i))
for i in range(3, 9):
    if i in RSET: vm.wait(("Wd", i)); writeWdR(i)
vm.wait(("Wd", 0), ("Wd", 9), ("Wd", 10))
e("s_barrier")
mark(9)
writeWdR(9)
e("s_barrier")
writeWdR(10)
e("s_waitcnt vmcnt(0) lgkmcnt(0)")
e("s_branch L_h_p40")
lab("L_h_idle")
mark(1, "it2")
for i in range(8): emit_all(issueA(i, i*16384))
mark(2, "it2")
e(f"v_subrev_u32 v17, {A_L}, v17")
for r in range(4): e(f"v_mov_b32 v{28+r}, s27")
FS = 100
for half in range(2):
    e(f"s_waitcnt vmcnt({16 - 16*half})"); e("s_barrier")
    mark(3+half, "it2")
    lg.clear()
    rds = [(f"ds_read_b64_tr_b16 {vr(FS+64*half+4*q+2*hh,2)}, v17 offset:{4096*q+1024*hh}", q) for q in range(16) for hh in range(2)]
    for s_, t in rds[:12]: e(s_); lg.add(t)
    rds = rds[12:]
    for q in range(16):
        lg.wait(q)
        e(f"v_mfma_f32_32x32x16_bf16 v[64:79], v[28:31], {vr(FS+64*half+4*q,4)}, {'v[64:79]' if (half or q) else '0'}")
        for s_, t in rds[:2]: e(s_); lg.add(t)
        rds = rds[2:]
    e("v_add_u32 v17, 0x10000, v17")
for q in range(4): e(f"v_mfma_f32_32x32x16_bf16 v[80:95], {vr(FS+4*q,4)}, {vr(FS+4*q,4)}, {'v[80:95]' if q else '0'}")
e("s_nop 7")
e("v_mul_f32 v27, s18, v64")
e("v_sub_f32 v24, 0, v27")
e("v_cvt_pk_bf16_f32 v20, v24, v24")
e("v_and_b32 v25, s14, v20"); e("v_sub_f32 v25, v24, v25"); e("v_mov_b32 v22, 0")
e("v_cvt_pk_bf16_f32 v21, v25, v22")
e("v_mov_b32 v23, v254")
e("s_lshl_b32 s15, s6, 11"); e("s_lshl_b32 s16, s11, 9"); e("s_add_u32 s15, s15, s16"); e(f"s_add_u32 s15, s15, {ST2_OFF:#x}")
e("s_mov_b32 exec_hi, 0")
e(f"buffer_store_dwordx4 v[20:23], v11, {SWS}, s15 offen sc1")
e("s_mov_b64 exec, -1")
mark(7, "it2")
e("s_barrier")
spw = sum([issueWd(i) for i in range(10)], [])
for q in range(4, 32):
    e(f"v_mfma_f32_32x32x16_bf16 v[80:95], {vr(FS+4*q,4)}, {vr(FS+4*q,4)}, v[80:95]")
    emit_all(spw[:1]); spw = spw[1:]
emit_all(spw)
e("v_bfe_u32 v22, v2, 3, 2"); e("v_lshlrev_b32 v22, 2, v22"); e("v_and_b32 v23, 3, v2"); e("v_add_u32 v22, v22, v23")
e("v_bfe_u32 v23, v2, 2, 1"); e("v_lshrrev_b32 v24, 5, v2"); e("v_xor_b32 v23, v23, v24"); e("v_lshl_add_u32 v22, v23, 4, v22")
e("v_mov_b32 v21, 0")
e("s_nop 7")
for r in range(16):
    e(f"v_cmp_eq_u32 s[{100 if False else 76}:{77}], {r}, v22" if r & 1 else f"v_cmp_eq_u32 vcc, {r}, v22")
    e("s_nop 1")
    e(f"v_cndmask_b32 v21, v21, v{80+r}, s[76:77]" if r & 1 else f"v_cndmask_b32 v21, v21, v{80+r}, vcc")
e("v_mov_b32 v23, v21")
e("s_nop 1")
e("v_permlane32_swap_b32 v23, v21")
e("s_nop 1")
e("v_add_f32 v21, v21, v23")
e("v_mul_f32 v21, s18, v21")
e("v_fma_f32 v21, -v27, v27, v21"); e("v_max_f32 v21, 0, v21"); e("v_add_f32 v21, 0x3727c5ac, v21")
e("v_rcp_f32 v22, v21")
e("v_lshlrev_b32 v23, 2, v2")
e("s_lshl_b32 s15, s6, 9"); e("s_lshl_b32 s16, s11, 7"); e("s_add_u32 s15, s15, s16"); e(f"s_add_u32 s15, s15, {R2_OFF:#x}")
e("s_mov_b32 exec_hi, 0")
e(f"buffer_store_dword v22, v23, {SWS}, s15 offen sc1")
e("s_mov_b64 exec, -1")
e("s_waitcnt vmcnt(0)")
mark(8); mark(8, "it2")
vm.clear()
assert NPRE == 10
e("s_barrier")
mark(9)
e("s_barrier")
for i in range(NPRE, 11): emit_all(issueWd(i))
e("s_waitcnt vmcnt(0)")
lab("L_h_p40")
mark(10)
e("s_barrier")
e("s_cmp_lg_u32 s2, 0"); e("s_cbranch_scc1 L_hend")
e("s_cmp_lg_u32 s3, 4"); e("s_cbranch_scc1 L_hend")
e("s_mov_b64 exec, 1")
e(f"buffer_store_dword v254, v255, {SWS}, 0 offen sc1")
lab("L_hend")
if STAMP: e("s_barrier"); e("s_barrier"); e("s_barrier")
endpgm()
lab("L_end")

hdr = open("sequential_preLN__ssm_conv_h3__glu_gated_reglu__prompt.s.ref").read().split("; Override")[0]
s = hdr + f"; @launch grid=(256,1,1) block=(512,1,1) lds={LDS_BYTES}\n"
s += '.amdgcn_target "amdgcn-amd-amdhsa--gfx950"\n.text\n'
s += f".globl {NAME}\n.p2align 8\n.type {NAME},@function\n{NAME}:\n" + "\n".join(L) + "\n    s_endpgm\n"
s += f""".section .rodata,"a"
.p2align 6
.amdhsa_kernel {NAME}
  .amdhsa_next_free_vgpr 256
  .amdhsa_next_free_sgpr 102
  .amdhsa_accum_offset 256
  .amdhsa_group_segment_fixed_size 0
  .amdhsa_kernarg_size 104
  .amdhsa_user_sgpr_count 2
  .amdhsa_user_sgpr_kernarg_segment_ptr 1
  .amdhsa_system_sgpr_workgroup_id_x 1
  .amdhsa_float_denorm_mode_32 3
.end_amdhsa_kernel
"""
open(OUT, "w").write(s)
```

```python
import sys, os
OUT = sys.argv[1] if len(sys.argv) > 1 else "v9.s"
STAMP = int(os.environ.get("STAMP", "0"))
X = os.environ.get("X", "").split(",") + ["ap2", "ap3", "m2", "qnt", "qrnt"]
SLP = int(os.environ.get("SLP", "1"))
NREP = int(os.environ.get("NREP", "32"))
NT = "" if "nont" in X else " nt"
NAME = "sequential_preLN__ssm_conv_h3__glu_gated_reglu__prompt_kernel"

RS      = 4224
KVT_OFF = 0
QT_OFF  = 0x210000
STG_OFF = 0x420000
EPO_OFF = 0x428000
FL1_OFF = 0x430000
FL3_OFF = 0x440000
ST2_OFF = 0x448000
CSF_OFF = 0x450000
R2_OFF  = 0x460000
CSP_OFF = 0x468000
FL2_OFF = 0x4D0000
HT_OFF  = 0x510000
HH_OFF  = 0x710000
HH_KS   = 96
WS_END  = HH_OFF + 64 * HH_KS * 1024
STAMP_OFF = 0x1000000
if STAMP and "dbg" not in X: WS_END = 0x2000000

WSLOT = 24640; W_U = 12320
RB = 4 * WSLOT
T_KV = RB
EX_L = 3 * WSLOT
Q_L = EX_L + 16384
T_Q = RB + 8192
CP = 4160; HREG = 4 * CP; XREG = 4608; CH_L = HREG + XREG
ST_L = RB + 2 * CH_L
FLG_L = 163840 - 64
assert ST_L + 16384 <= FLG_L
A_L = RB
MEAN_L = RB + 49152
CORR_L = RB + 49152
LDS_BYTES = 163840

L = []
def e(s): L.append("    " + s)
def lab(s): L.append(s + ":")
def vr(a, n): return f"v[{a}:{a+n-1}]"
def mark(i, grp=None):
    if "p1" in X and i in (7, 8, 9, 10) and grp != "p1": return
    if "it" in X and i in (1, 2, 3) and grp != "it": return
    if "p2" in X and i in (7, 8, 9, 10) and grp != "p2": return
    if ("it2" in X or "it3" in X) and 1 <= i <= 10 and grp not in ("it2", "it3"): return
    if "p4" in X and 1 <= i <= 10 and grp != "p4": return
    if grp and grp not in X: return
    if STAMP: e(f"{'s_memtime' if 'cyc' in X else 's_memrealtime'} s[{78+2*i}:{79+2*i}]")
def srd(d, base, nbytes):
    e(f"s_mov_b32 s{d}, s{base}"); e(f"s_mov_b32 s{d+1}, s{base+1}"); e(f"s_mov_b32 s{d+2}, {nbytes:#x}"); e(f"s_mov_b32 s{d+3}, 0x20000")
NST = 12
def endpgm():
    if STAMP:
        e("s_mov_b64 exec, -1")
        e("s_waitcnt vmcnt(0) lgkmcnt(0)")
        mark(NST-1)
        if "dbg" in X:
            n = nid()
            e("s_cmp_lg_u32 s3, 0"); e(f"s_cbranch_scc1 L_nd{n}"); e("s_cmp_ge_u32 s5, 28"); e(f"s_cbranch_scc1 L_nd{n}")
            e("s_load_dwordx2 s[4:5], s[0:1], 88"); e("s_waitcnt lgkmcnt(0)")
            e("s_mov_b32 s6, 256"); e("s_mov_b32 s7, 0x20000")
            e("s_mov_b64 exec, 1"); e("v_mov_b32 v251, 0")
            e("s_not_b32 s76, s78"); e("v_mov_b32 v252, s76")
            e("buffer_atomic_umax v252, v251, s[4:7], 0 offen offset:48")
            for i in range(NST):
                e(f"v_mov_b32 v{200+i}, s{78+2*i}")
                e(f"buffer_atomic_umax v{200+i}, v251, s[4:7], 0 offen offset:{4*i}")
            lab(f"L_nd{n}")
            e("s_endpgm")
            return
        e("s_lshl_b32 s76, s2, 9"); e("s_lshl_b32 s77, s3, 6"); e("s_add_u32 s76, s76, s77"); e(f"s_add_u32 s76, s76, {STAMP_OFF}")
        e("v_mov_b32 v251, 0")
        e("s_waitcnt lgkmcnt(0)")
        for i in range(NST):
            e(f"v_mov_b32 v252, s{78+2*i}")
            e(f"buffer_store_dword v252, v251, s[40:43], s76 offen offset:{4*i}")
    e("s_endpgm")

class Trk:
    def __init__(self, name, mx): self.q = []; self.name = name; self.mx = mx
    def add(self, tag, n=1): self.q += [tag] * n
    def wait(self, *tags):
        idx = -1
        for i, t in enumerate(self.q):
            if t in tags: idx = i
        if idx < 0: return
        n = len(self.q) - 1 - idx
        n = min(n, self.mx)
        e(f"s_waitcnt {self.name}({n})")
        self.q = self.q[len(self.q) - n:] if n else []
    def clear(self): self.q = []

SQ, SK, SWS, SV, SSH, SSK, SD, SWG, SWU, SWD, SOUT = [f"s[{x}:{x+3}]" for x in (32, 36, 40, 44, 48, 52, 56, 60, 64, 68, 72)]
uid = [0]
def nid():
    uid[0] += 1; return uid[0]
def poll(addr, tmp, want="s9", atom=False):
    n = nid()
    e("s_mov_b32 s30, 0x100000")
    lab(f"L_poll{n}")
    if atom:
        e(f"v_mov_b32 {tmp}, 0")
        e(f"buffer_atomic_add {tmp}, {addr}, {SWS}, 0 offen sc0 sc1")
    else:
        e(f"buffer_load_dword {tmp}, {addr}, {SWS}, 0 offen sc1")
    e("s_waitcnt vmcnt(0)")
    e(f"v_cmp_ne_u32 vcc, {want}, {tmp}")
    e("s_sub_u32 s30, s30, 1")
    e(f"s_cbranch_scc1 L_pollx{n}")
    e("s_and_b64 exec, exec, vcc")
    if SLP:
        e(f"s_cbranch_execz L_pollx{n}")
        e(f"s_sleep {SLP}")
        e(f"s_branch L_poll{n}")
    else:
        e(f"s_cbranch_execnz L_poll{n}")
    lab(f"L_pollx{n}")
    e("s_mov_b64 exec, -1")
def post_flag(off, wave, lanes=1):
    n = nid()
    e(f"s_cmp_lg_u32 s3, {wave}"); e(f"s_cbranch_scc1 L_nopost{n}")
    e(f"s_mov_b64 exec, {(1 << lanes) - 1}")
    e(f"s_mov_b32 s31, {off:#x}")
    e(f"buffer_store_dword v254, v253, {SWS}, s31 offen sc1")
    e("s_mov_b64 exec, -1")
    lab(f"L_nopost{n}")
def hold(tag):
    T = int(os.environ.get("HOLD_" + tag, "0"))
    if not T: return
    n = nid()
    lab(f"L_dd{n}")
    e("s_memrealtime s[80:81]"); e("s_waitcnt lgkmcnt(0)"); e("s_sub_u32 s82, s80, s78"); e(f"s_cmp_lt_u32 s82, {T}"); e(f"s_cbranch_scc1 L_dd{n}")
def unpack(dst, src, c):
    s = src + (c >> 1)
    if c & 1: e(f"v_and_b32 v{dst}, s14, v{s}")
    else: e(f"v_lshlrev_b32 v{dst}, 16, v{s}")

e("s_memrealtime s[78:79]")
e("s_cmp_ge_u32 s2, 256"); e("s_cbranch_scc1 L_end")
e("s_load_dwordx16 s[4:19], s[0:1], 0")
e("s_load_dwordx8 s[20:27], s[0:1], 64")
e("s_load_dwordx2 s[28:29], s[0:1], 96")
e("v_lshrrev_b32 v1, 6, v0"); e("v_and_b32 v2, 63, v0")
e("v_readfirstlane_b32 s3, v1")
if "nocode" not in X:
    e("s_getpc_b64 s[76:77]")
    lab("L_pc")
    e("s_and_b32 s30, s2, 0xf8"); e("s_add_u32 s30, s30, s3"); e("s_lshl_b32 s30, s30, 7"); e("s_min_u32 s30, s30, L_end - L_pc")
    e("v_mov_b32 v250, s30")
    e("s_mov_b64 exec, 1")
    e("global_load_dword v250, v250, s[76:77]")
    e("s_mov_b64 exec, -1")
e("v_and_b32 v3, 255, v0")
e("v_and_b32 v10, 15, v3"); e("v_lshrrev_b32 v11, 4, v3")
e("s_bfe_u32 s30, s2, 0x30003"); e("s_lshr_b32 s31, s2, 6"); e("s_lshl_b32 s31, s31, 3"); e("s_and_b32 s76, s2, 7"); e("s_add_u32 s31, s31, s76")
e("s_lshl_b32 s76, s31, 16"); e("s_lshl_b32 s77, s30, 7"); e("s_add_u32 s76, s76, s77")
e("v_lshlrev_b32 v12, 12, v11"); e("v_lshl_add_u32 v12, v10, 3, v12"); e("v_add_u32 v12, s76, v12")
e("v_subrev_u32 v14, 3072, v12")
e("s_lshl_b32 s77, s30, 9"); e("v_lshlrev_b32 v15, 5, v10"); e("v_add_u32 v15, s77, v15")
e("s_lshl_b32 s77, s30, 5"); e("s_add_u32 s77, s77, s31"); e("s_lshl_b32 s77, s77, 7"); e("v_mov_b32 v253, s77")
e(f"v_mov_b32 v255, {EPO_OFF:#x}")
e("s_cmp_ge_u32 s3, 4")
e("s_waitcnt lgkmcnt(0)")
srd(36, 6, 0x200000); srd(48, 10, 4096); srd(44, 8, 0x200000); srd(32, 4, 0x200000)
e("s_cbranch_scc1 L_skipkv")
e(f"buffer_load_dwordx4 {vr(48,4)}, v15, {SSH}, 0 offen")
e(f"buffer_load_dwordx4 {vr(52,4)}, v15, {SSH}, 0 offen offset:16")
for r in range(3): e(f"buffer_load_dwordx2 {vr(16+2*r,2)}, v14, {SK}, 0 offen offset:{1024*r}{NT}")
for r in range(4): e(f"buffer_load_dwordx2 {vr(22+2*r,2)}, v12, {SK}, 0 offen offset:{1024*r}{NT}")
for r in range(4): e(f"buffer_load_dwordx2 {vr(30+2*r,2)}, v12, {SV}, 0 offen offset:{1024*r}{NT}")
e("s_branch L_kvdone")
lab("L_skipkv")
for r in range(4): e(f"buffer_load_dwordx2 {vr(38+2*r,2)}, v12, {SQ}, 0 offen offset:{1024*r}{' nt' if 'qnt' in X else ''}")
lab("L_kvdone")
srd(40, 28, WS_END)
e(f"buffer_load_dword v254, v255, {SWS}, 0 offen sc1")
srd(52, 12, 0x200000); srd(56, 14, 1024); srd(60, 18, 512*2752); srd(64, 20, 512*2752); srd(68, 22, 1376*1024); srd(72, 24, 0x200000)
e("s_and_b32 s4, s2, 7"); e("s_lshr_b32 s5, s2, 3")
e("s_and_b32 s10, s4, 1"); e("s_lshr_b32 s17, s4, 1")
e("s_mul_i32 s7, s17, 3"); e("s_lshr_b32 s16, s5, 3"); e("s_add_u32 s7, s7, s16"); e("s_and_b32 s8, s5, 7")
e("s_lshr_b32 s15, s17, 1"); e("s_add_u32 s15, s15, 12"); e("s_and_b32 s16, s17, 1"); e("s_lshl_b32 s16, s16, 2"); e("s_and_b32 s6, s5, 3"); e("s_add_u32 s16, s16, s6")
e("s_cmp_ge_u32 s5, 24"); e("s_cselect_b32 s7, s15, s7"); e("s_cselect_b32 s8, s16, s8")
e("s_lshr_b32 s15, s5, 1"); e("s_lshl_b32 s16, s17, 1"); e("s_and_b32 s6, s5, 1"); e("s_add_u32 s16, s16, s6")
e("s_cmp_ge_u32 s5, 28"); e("s_cselect_b32 s7, s15, s7"); e("s_cselect_b32 s8, s16, s8")
e("s_lshl_b32 s6, s10, 3"); e("s_add_u32 s6, s6, s8")
e("s_and_b32 s11, s3, 3")
e("s_lshl_b32 s12, s4, 6"); e("s_lshl_b32 s13, s5, 1"); e("s_add_u32 s12, s12, s13")
if "m2" in X:
    e("s_lshr_b32 s77, s4, 1"); e("s_lshl_b32 s77, s77, 3"); e("s_lshr_b32 s16, s5, 2"); e("s_add_u32 s77, s77, s16")
else:
    e("s_lshl_b32 s77, s4, 2"); e("s_lshr_b32 s16, s5, 3"); e("s_add_u32 s77, s77, s16")
e("s_lshr_b32 s13, s77, 1")
e("s_lshr_b32 s17, s3, 2"); e("s_lshl_b32 s17, s17, 13"); e(f"s_add_u32 s17, s17, {T_KV}")
e("v_lshrrev_b32 v13, 1, v11"); e("v_and_b32 v14, 7, v10"); e("v_xor_b32 v13, v13, v14"); e("v_lshlrev_b32 v13, 4, v13")
e("v_lshl_add_u32 v13, v10, 9, v13"); e("v_and_b32 v14, 1, v11"); e("v_lshl_add_u32 v13, v14, 3, v13"); e("v_add_u32 v13, s17, v13")
e("v_lshrrev_b32 v128, 3, v2"); e("s_lshl_b32 s15, s11, 4"); e("v_add_u32 v128, s15, v128")
e("v_and_b32 v129, 7, v2")
e("v_lshrrev_b32 v130, 2, v128"); e("v_and_b32 v130, 7, v130"); e("v_xor_b32 v124, v129, v130"); e("v_xor_b32 v125, 2, v124")
e("v_lshlrev_b32 v130, 7, v128"); e("v_lshl_add_u32 v124, v124, 4, v130"); e("v_lshl_add_u32 v125, v125, 4, v130")
e("v_add_u32 v124, s17, v124"); e("v_add_u32 v125, s17, v125")
e(f"v_mul_u32_u24 v126, {RS}, v128"); e("v_lshl_add_u32 v126, v129, 4, v126")
e(f"s_mul_i32 s18, s30, {64*RS}"); e("s_lshl_b32 s16, s31, 7"); e("s_add_u32 s18, s18, s16")
e("s_lshr_b32 s16, s3, 2"); e(f"s_mul_i32 s16, s16, {QT_OFF-KVT_OFF:#x}"); e("s_add_u32 s18, s18, s16")
e(f"s_add_u32 s19, s18, {8*RS}")
e("s_mov_b32 s14, 0xffff0000")
e("s_lshr_b32 s20, s11, 1"); e("s_and_b32 s21, s11, 1")
if "m2" in X:
    e("s_and_b32 s28, s4, 1"); e("s_lshl_b32 s28, s28, 2"); e("s_and_b32 s16, s5, 3"); e("s_add_u32 s28, s28, s16")
else: e("s_and_b32 s28, s5, 7")
if "m2" in X:
    e("s_lshr_b32 s16, s5, 2"); e("s_mul_i32 s29, s16, 11"); e("s_lshr_b32 s29, s29, 3")
else:
    e("s_lshr_b32 s16, s5, 3"); e("s_mul_i32 s29, s16, 3")
if "rot4" in X:
    e("s_add_u32 s29, s29, s28"); e("s_cmp_ge_u32 s29, 11"); e("s_cselect_b32 s16, 11, 0"); e("s_sub_u32 s29, s29, s16")
e("s_cmp_ge_u32 s3, 4"); e("s_cbranch_scc1 L_H")
def rot11(i):
    e(f"s_add_u32 s15, s29, {i}"); e("s_cmp_ge_u32 s15, 11"); e("s_cselect_b32 s16, 11, 0"); e("s_sub_u32 s15, s15, s16")

e("v_lshlrev_b32 v6, 4, v3"); e("v_sub_u32 v7, 4080, v6"); e("v_subrev_u32 v8, 8, v7"); e("v_max_i32 v8, 0, v8")
e("s_add_u32 s22, s12, s20")
e("s_lshl_b32 s15, s22, 1"); e("v_mov_b32 v9, s15"); e("v_mov_b32 v240, 0")
e("s_lshl_b32 s15, s12, 12"); e("s_add_u32 s16, s15, 4096")
e("s_waitcnt vmcnt(12)")
for c in range(4):
    for j in range(4): unpack(92+4*j+c, 48+2*c, j)
e("s_waitcnt vmcnt(5)")
mark(1)
def ssm_loads():
    e("s_lshl_b32 s15, s12, 12"); e("s_add_u32 s16, s15, 4096")
    e(f"buffer_load_dwordx4 v[228:231], v7, {SSK}, s15 offen{NT}")
    e(f"buffer_load_dwordx2 v[226:227], v8, {SSK}, s15 offen{NT}")
    e(f"buffer_load_dwordx4 v[236:239], v7, {SSK}, s16 offen{NT}")
    e(f"buffer_load_dwordx2 v[234:235], v8, {SSK}, s16 offen{NT}")
    e(f"buffer_load_short_d16_hi v240, v9, {SD}, 0 offen")
LATE = "ssmearly" not in X
if not LATE: ssm_loads()
for r in range(7):
    for c in range(4): unpack(64+4*r+c, 16+2*r, c)
for r in range(4):
    for p in range(2): e(f"v_pk_mul_f32 {vr(108+4*r+2*p,2)}, {vr(64+4*r+2*p,2)}, {vr(92+12+2*p,2)}")
for j in (2, 1, 0):
    for r in range(4):
        for p in range(2): e(f"v_pk_fma_f32 {vr(108+4*r+2*p,2)}, {vr(64+4*(r+3-j)+2*p,2)}, {vr(92+4*j+2*p,2)}, {vr(108+4*r+2*p,2)}")
e(f"s_waitcnt vmcnt({1 if LATE else 6})")
for r in range(4):
    for c in range(4): unpack(64+4*r+c, 30+2*r, c)
for r in range(4):
    for p in range(2): e(f"v_pk_mul_f32 {vr(108+4*r+2*p,2)}, {vr(108+4*r+2*p,2)}, {vr(64+4*r+2*p,2)}")
for c in range(4):
    e(f"v_cvt_pk_bf16_f32 v{80+2*c}, v{108+c}, v{112+c}")
    e(f"v_cvt_pk_bf16_f32 v{81+2*c}, v{116+c}, v{120+c}")
    e(f"ds_write_b64 v13, {vr(80+2*c,2)} offset:{128*c}")
assert LATE
e("s_and_b32 s15, s2, 0xc7"); e("s_or_b32 s15, s15, s11"); e("s_cmp_lg_u32 s15, 0"); e("s_cbranch_scc1 L_noinit")
e("s_waitcnt vmcnt(0)")
e("v_add_u32 v132, 1, v254"); e("v_lshlrev_b32 v132, 6, v132"); e("v_lshlrev_b32 v133, 10, v2")
e("s_lshl_b32 s15, s2, 4"); e(f"s_add_u32 s15, s15, {FL2_OFF:#x}")
e(f"s_mov_b32 exec_lo, {(1 << NREP) - 1:#x}"); e("s_mov_b32 exec_hi, 0")
e(f"buffer_store_dword v132, v133, {SWS}, s15 offen sc1")
e("s_mov_b64 exec, -1")
lab("L_noinit")
mark(7, "p1")
e("s_waitcnt lgkmcnt(0)"); e("s_barrier")
mark(8, "p1")
e("ds_read_b128 v[28:31], v124"); e("ds_read_b128 v[32:35], v125 offset:1024")
e("s_waitcnt lgkmcnt(1)")
e(f"buffer_store_dwordx4 v[28:31], v126, {SWS}, s18 offen sc1")
e("s_waitcnt lgkmcnt(0)")
e(f"buffer_store_dwordx4 v[32:35], v126, {SWS}, s19 offen sc1")
def toeplitz_regs(waitn):
    e("s_mov_b32 s15, 0xffff")
    e("v_cmp_ne_u32 vcc, 255, v3")
    e(f"v_add_u32 v16, {RB}, v6")
    e(f"s_waitcnt vmcnt({waitn})")
    mark(9, "p1")
    e("v_add_u32 v254, 1, v254")
    for ch in range(2):
        b = 226 + 8*ch
        e(f"v_cndmask_b32 v{b}, 0, v{b}, vcc"); e(f"v_cndmask_b32 v{b+1}, 0, v{b+1}, vcc")
        w = lambda i: f"v{b+2+i}"
        o = 40 + 16*ch
        for n, i in enumerate((2, 1, 0, -1)): e(f"v_bfi_b32 v{o+n}, s15, {w(i)}, {w(i-1)}")
        for n, i in enumerate((2, 1, 0, -1)): e(f"v_alignbit_b32 v{o+4+n}, {w(i)}, {w(i)}, 16")
        for n, i in enumerate((3, 2, 1, 0)): e(f"v_bfi_b32 v{o+8+n}, s15, {w(i)}, {w(i-1)}")
        for n, i in enumerate((3, 2, 1, 0)): e(f"v_alignbit_b32 v{o+12+n}, {w(i)}, {w(i)}, 16")
    e("v_readfirstlane_b32 s9, v254")
if not LATE: toeplitz_regs(2)
for r in range(4): e(f"v_mov_b32 v{72+r}, 0")
e("v_lshrrev_b32 v17, 5, v3"); e(f"v_mul_u32_u24 v17, {CH_L}, v17"); e("v_and_b32 v18, 31, v3"); e("v_lshl_add_u32 v17, v18, 4, v17")
e(f"v_add_u32 v17, {RB+HREG}, v17")
e("v_bfe_u32 v18, v3, 4, 1"); e(f"v_mul_u32_u24 v18, {CH_L}, v18"); e("v_bfe_u32 v19, v3, 2, 2"); e(f"v_mul_u32_u24 v19, {CP}, v19")
e("v_add_u32 v18, v18, v19"); e("v_and_b32 v19, 3, v3"); e("v_lshl_add_u32 v18, v19, 4, v18"); e(f"v_add_u32 v18, {RB+4096}, v18")
e("s_lshl_b32 s16, s4, 5"); e("s_lshl_b32 s17, s21, 4"); e("s_add_u32 s16, s16, s17")
e("v_and_b32 v20, 15, v2"); e("v_add_u32 v20, s16, v20"); e("v_lshlrev_b32 v20, 7, v20"); e(f"v_add_u32 v20, {FL1_OFF:#x}, v20")
e(f"s_mul_i32 s24, s22, {RS}"); e("s_lshl_b32 s25, s21, 11"); e("s_add_u32 s24, s24, s25")
e(f"s_mul_i32 s23, s20, {CH_L}"); e(f"s_add_u32 s23, s23, {RB}")
e(f"s_add_u32 s26, s23, {HREG+512}"); e("s_add_u32 s26, s26, s25")
e("v_lshlrev_b32 v5, 4, v2")
if LATE: ssm_loads()
e(f"s_waitcnt vmcnt({5 if LATE else 0})")
mark(10, "p1")
e("s_barrier")
mark(2)
if LATE: toeplitz_regs(0)
for ch in range(2):
    for kap in range(4): e(f"ds_write_b128 v16, {vr(40+16*ch+4*kap,4)} offset:{ch*CH_L + kap*CP}")
e("s_cmp_lg_u32 s11, 0"); e("s_cbranch_scc1 L_nopad")
e("ds_write_b128 v17, v[72:75]")
e("s_mov_b32 exec_hi, 0")
e("ds_write_b128 v18, v[72:75]")
lab("L_nopad")
e("s_mov_b64 exec, -1")
e("s_waitcnt lgkmcnt(0)")
e("s_barrier")
e("s_mov_b32 m0, s26")
e("s_nop 0")
e(f"buffer_load_dwordx4 v5, {SWS}, s24 offen sc1 lds")
e(f"buffer_load_dwordx4 v5, {SWS}, s24 offen offset:1024 sc1 lds")
e("s_sub_u32 s24, s24, s25"); e("s_xor_b32 s31, s21, 1"); e("s_lshl_b32 s15, s31, 11"); e("s_add_u32 s24, s24, s15")
e("s_lshl_b32 s15, s11, 11"); e(f"s_add_u32 m0, s15, {Q_L}"); e(f"s_add_u32 s24, s24, {QT_OFF-KVT_OFF:#x}")
e(f"buffer_load_dwordx4 v5, {SWS}, s24 offen sc1 lds")
e(f"buffer_load_dwordx4 v5, {SWS}, s24 offen offset:1024 sc1 lds")
mark(3)
e("v_and_b32 v6, 15, v2"); e("v_lshrrev_b32 v7, 4, v2")
e("v_lshlrev_b32 v8, 4, v6"); e("v_lshl_add_u32 v8, v7, 2, v8")
e("v_and_b32 v32, 3, v6"); e(f"v_mul_u32_u24 v32, {CP}, v32")
e("v_lshrrev_b32 v33, 2, v6"); e("v_lshlrev_b32 v33, 3, v33"); e("v_lshl_add_u32 v33, v7, 4, v33")
e("v_sub_u32 v32, v32, v33")
e("s_lshl_b32 s15, s21, 8"); e("s_sub_u32 s16, s23, s15")
e(f"s_add_u32 s17, s16, {2*2052 - 512*7 - 64*3}"); e("v_add_u32 v32, s17, v32")
e("v_lshlrev_b32 v33, 5, v6"); e("v_lshlrev_b32 v34, 4, v7"); e("v_sub_u32 v33, v33, v34")
e(f"s_add_u32 s17, s16, {HREG + 512 + 16 - 64*3}"); e("v_add_u32 v33, s17, v33")
e("v_lshlrev_b32 v9, 1, v8")
e("s_lshl_b32 s15, s11, 12"); e(f"s_add_u32 s15, s15, {EX_L}"); e("s_xor_b32 s16, s11, 1"); e("s_lshl_b32 s16, s16, 12"); e(f"s_add_u32 s16, s16, {EX_L}")
e("v_add_u32 v34, s15, v5"); e("v_add_u32 v35, s16, v5")
e("v_add_u32 v12, s26, v9")
e("s_lshl_b32 s17, s11, 11"); e(f"s_add_u32 s17, s17, {Q_L}"); e("v_add_u32 v10, s17, v9")
e("s_lshl_b32 s17, s31, 13"); e(f"s_add_u32 s17, s17, {ST_L}"); e("v_add_u32 v13, s17, v5")
e("v_and_b32 v14, 7, v6"); e("v_lshlrev_b32 v14, 1, v14"); e("v_lshrrev_b32 v15, 1, v7"); e("v_add_u32 v14, v14, v15")
e("s_and_b32 s15, s22, 3"); e("s_lshl_b32 s15, s15, 2"); e("v_xor_b32 v14, s15, v14")
e("v_lshlrev_b32 v14, 4, v14")
e("v_lshrrev_b32 v15, 3, v6"); e("v_lshl_add_u32 v14, v15, 17, v14")
e("v_and_b32 v15, 1, v7"); e("v_lshl_add_u32 v14, v15, 18, v14")
e("s_lshl_b32 s18, s22, 8"); e("s_lshl_b32 s17, s31, 20"); e("s_add_u32 s18, s18, s17"); e(f"s_add_u32 s18, s18, {HT_OFF:#x}")
e(f"s_add_u32 s19, s18, {4*131072}")
e("s_lshl_b32 s15, s11, 2"); e(f"s_add_u32 s15, s15, {FLG_L}"); e("v_mov_b32 v16, s15"); e("s_xor_b32 s15, s15, 4"); e("v_mov_b32 v17, s15")
e(f"v_mov_b32 v18, {FLG_L+16}"); e("v_mov_b32 v19, 1")
e("v_subrev_u32 v20, 8, v2"); e("v_and_b32 v21, 7, v2")
e("v_lshrrev_b32 v22, 16, v240"); e("v_and_b32 v23, 1, v21"); e("v_lshlrev_b32 v23, 4, v23"); e("v_lshlrev_b32 v22, v23, v22")
e("v_cmp_gt_u32 vcc, 16, v20"); e("v_lshrrev_b32 v21, 1, v21"); e("s_nop 0"); e("v_cndmask_b32 v22, 0, v22, vcc")
for dw in range(4):
    e(f"v_cmp_eq_u32 vcc, {dw}, v21"); e("s_nop 1"); e(f"v_cndmask_b32 v{232+dw}, 0, v22, vcc")
ACC = 36; FA = [72, 136]; FB = [104, 168]
lg = Trk("lgkmcnt", 15)
def creads(rr, buf):
    lst = []
    for i in range(8):
        off = 512*(7-i) + 64*(3-rr)
        lst.append((f"ds_read_b128 {vr(FB[buf]+4*i,4)}, v33 offset:{512*i + 64*(3-rr)}", ("B", rr, i)))
        lst.append((f"ds_read_b64 {vr(FA[buf]+4*i,2)}, v32 offset:{off}", ("A", rr, i)))
        lst.append((f"ds_read_b64 {vr(FA[buf]+4*i+2,2)}, v32 offset:{off+8}", ("A", rr, i)))
    return lst
first = creads(0, 0)
for s, t in first:
    if t[0] == "A": e(s)
if "cprio" in X: e("s_setprio 2")
e("s_waitcnt vmcnt(2) lgkmcnt(0)"); e("s_barrier")
mark(4)
for s, t in first:
    if t[0] == "B": e(s); lg.add(t)
pend = []
pairs = sorted([(i, j) for i in range(8) for j in range(8 - i)], key=lambda p: (max(p), p[0] + p[1]))
started = set()
def mf(rr, i, j):
    global pend
    buf = rr & 1; t = i + j
    while any(x[1] in (("A", rr, i), ("B", rr, j)) for x in pend):
        s_, tg = pend.pop(0); e(s_); lg.add(tg)
    lg.wait(("A", rr, i), ("B", rr, j))
    c = vr(ACC+4*t, 4) if t in started else "0"
    started.add(t)
    e(f"v_mfma_f32_16x16x32_bf16 {vr(ACC+4*t,4)}, {vr(FA[buf]+4*i,4)}, {vr(FB[buf]+4*j,4)}, {c}")
for rr in range(3):
    pend = pend + creads(rr+1, (rr & 1) ^ 1)
    npend = len(pend)
    for n, (i, j) in enumerate(pairs):
        mf(rr, i, j)
        want = npend - (npend * (n + 1)) // int(os.environ.get("SPR", "32"))
        while len(pend) > max(want, 0):
            s_, tg = pend.pop(0); e(s_); lg.add(tg)
        if rr == 2 and n == 26:
            e("ds_read_b128 v[20:23], v18"); lg.add("aux")
        if rr == 2 and n == 32:
            lg.wait("aux"); e("v_and_b32 v20, v20, v21")
        if rr == 2 and n == 33: e("v_and_b32 v22, v22, v23")
        if rr == 2 and n == 34: e("v_and_b32 v20, v20, v22")
        if rr == 2 and n == 35: e("v_cmp_ne_u32 vcc, 1, v20")
    if rr == 0:
        e("s_cmp_lg_u32 s21, 0"); e("s_cbranch_scc1 L_nodiag")
        for t in range(8): e(f"v_mfma_f32_16x16x32_bf16 {vr(ACC+4*t,4)}, v[232:235], {vr(FB[0]+4*t,4)}, {vr(ACC+4*t,4)}")
        lab("L_nodiag")
assert not pend
e("s_cbranch_vccz L_auxok")
lab("L_aux")
e("ds_read_b128 v[20:23], v18")
e("s_waitcnt lgkmcnt(0)")
e("v_and_b32 v20, v20, v21"); e("v_and_b32 v22, v22, v23"); e("v_and_b32 v20, v20, v22")
e("v_cmp_ne_u32 vcc, 1, v20")
e("s_cbranch_vccnz L_aux")
lab("L_auxok")
e("s_waitcnt vmcnt(0) lgkmcnt(0)")
mark(7, "p2")
e("s_cmp_eq_u32 s21, 0"); e("s_cbranch_scc1 L_conv_h0")
QN = 200; T0 = 216
for hf in (1, 0):
    if hf == 0: lab("L_conv_h0")
    keep = 4*(1-hf); send = 4*hf
    def rr_order(lo):
        qs = [[p for p in pairs if p[0]+p[1] == t] for t in range(lo+3, lo-1, -1)]
        out = []
        while any(qs):
            qs.sort(key=lambda q: -len(q))
            k = [q for q in qs if q and (not out or q[0][0]+q[0][1] != out[-1][0]+out[-1][1])] or [q for q in qs if q]
            out.append(k[0].pop(0))
        return out
    order = rr_order(send) + rr_order(keep)
    if "oldorder" in X: order = [p for p in pairs if send <= p[0]+p[1] < send+4] + [p for p in pairs if keep <= p[0]+p[1] < keep+4]
    nsend = len([p for p in pairs if send <= p[0]+p[1] < send+4])
    lg.clear()
    fill = []
    for u in range(4):
        fill.append(("ld", f"ds_read_b64 {vr(80+2*u,2)}, v10 offset:{512*u}", ("e", u)))
        fill.append(("ld", f"ds_read_b128 {vr(88+8*u,4)}, v13 offset:{2048*u}", ("e", u)))
        fill.append(("ld", f"ds_read_b128 {vr(92+8*u,4)}, v13 offset:{2048*u+1024}", ("e", u)))
    valu = []
    for u in range(4):
        for r in range(4):
            qs = 80 + 2*u + (r >> 1); tq = T0+4*u+r
            valu.append((u, f"v_and_b32 v{tq}, s14, v{qs}" if r & 1 else f"v_lshlrev_b32 v{tq}, 16, v{qs}"))
        for r in range(4):
            valu.append((u, f"v_fma_f32 v{QN+4*u+r}, v{T0+4*u+r}, v{88+8*u+2*r}, v{89+8*u+2*r}"))
    wr = [f"ds_write_b128 v34, {vr(ACC+4*send+4*u,4)} offset:{1024*u}" for u in range(4)] + ["ds_write_b32 v16, v19"]
    for n, (i, j) in enumerate(order):
        t = i + j
        e(f"v_mfma_f32_16x16x32_bf16 {vr(ACC+4*t,4)}, {vr(FA[1]+4*i,4)}, {vr(FB[1]+4*j,4)}, {vr(ACC+4*t,4)}")
        if n >= nsend + 4 and wr:
            e(wr.pop(0)); lg.add("w")
            if len(wr) == 1: e(wr.pop(0)); lg.add("w")
        elif fill and n < 6:
            for _ in range(2):
                k_, t_, g_ = fill.pop(0); e(t_); lg.add(g_)
        elif valu:
            u_, t_ = valu.pop(0); lg.wait(("e", u_)); e(t_)
        else: e("s_nop 0")
        if n == 34: e("ds_read_b32 v20, v17"); lg.add("pf")
    while valu:
        u_, t_ = valu.pop(0); lg.wait(("e", u_)); e(t_)
    mark(5)
    n_ = nid()
    lab(f"L_pw{n_}")
    e("s_waitcnt lgkmcnt(0)")
    e("v_cmp_ne_u32 vcc, 1, v20")
    e(f"s_cbranch_vccz L_pwx{n_}")
    e("ds_read_b32 v20, v17")
    e(f"s_branch L_pw{n_}")
    lab(f"L_pwx{n_}")
    mark(8, "p2")
    for u in range(4): e(f"ds_read_b128 {vr(72+4*u,4)}, v35 offset:{1024*u}")
    for u in range(4):
        y = ACC + 4*keep + 4*u
        e(f"s_waitcnt lgkmcnt({3-u})")
        for p in range(2): e(f"v_pk_add_f32 {vr(y+2*p,2)}, {vr(y+2*p,2)}, {vr(72+4*u+2*p,2)}")
        for p in range(2): e(f"v_pk_fma_f32 {vr(y+2*p,2)}, {vr(QN+4*u+2*p,2)}, {vr(y+2*p,2)}, {vr(T0+4*u+2*p,2)}")
        e(f"v_cvt_pk_bf16_f32 v{124+2*u}, v{y}, v{y+1}")
        e(f"v_cvt_pk_bf16_f32 v{125+2*u}, v{y+2}, v{y+3}")
        if u & 1:
            b = 124 + 2*(u-1)
            e("s_nop 1")
            e(f"v_permlane16_swap_b32 v{b}, v{b+2}"); e(f"v_permlane16_swap_b32 v{b+1}, v{b+3}")
            e(f"buffer_store_dwordx4 {vr(b,4)}, v14, {SWS}, s{18+(u>>1)} offen sc1")
    if hf == 1: e("s_branch L_conv_j")
lab("L_conv_j")
mark(9, "p2")
e("v_and_b32 v3, 15, v2"); e("v_lshrrev_b32 v4, 4, v2"); e("v_lshrrev_b32 v5, 2, v3"); e("v_and_b32 v6, 3, v3")
e("v_lshrrev_b32 v7, 5, v2"); e("v_and_b32 v8, 1, v4"); e("v_lshl_add_u32 v9, v7, 3, v5")
e("v_lshlrev_b32 v10, 8, v9"); e("v_lshl_add_u32 v10, v8, 5, v10"); e("v_lshl_add_u32 v10, v6, 3, v10"); e(f"v_add_u32 v10, {A_L}, v10")
e("v_mul_u32_u24 v12, 192, v9"); e(f"v_mul_u32_u24 v13, {W_U}, v8"); e("v_add_u32 v12, v12, v13"); e("v_lshl_add_u32 v12, v6, 3, v12")
e("s_min_u32 s26, s11, 2"); e("s_lshl_b32 s16, s26, 6"); e(f"s_mul_i32 s17, s10, {32*192}"); e("s_add_u32 s16, s16, s17"); e("v_add_u32 v28, s16, v12")
e("s_mul_i32 s15, s21, 96"); e("v_add_u32 v12, s15, v12")
e("s_lshl_b32 s15, s20, 1"); e("v_xor_b32 v13, s15, v5"); e("v_lshl_add_u32 v13, v13, 6, v10")
e("s_add_u32 s15, s15, 1"); e("v_xor_b32 v18, s15, v5"); e("v_lshl_add_u32 v18, v18, 6, v10")
e("v_mov_b32 v15, v12"); e("v_mov_b32 v16, v13"); e("v_mov_b32 v17, v18")
e("s_waitcnt vmcnt(0)")
mark(10, "p2")
e("s_barrier")
mark(6)
ACC = 64
FR = [20, 40]
def g1reads(ks, buf):
    l = []; b = FR[buf]
    for hh in range(2): l.append(f"ds_read_b64_tr_b16 {vr(b+2*hh,2)}, v15 offset:{(16*ks+4*hh)*192}")
    for hh in range(2): l.append(f"ds_read_b64_tr_b16 {vr(b+12+2*hh,2)}, v16 offset:{4096*ks+1024*hh}")
    for hh in range(2): l.append(f"ds_read_b64_tr_b16 {vr(b+16+2*hh,2)}, v17 offset:{4096*ks+1024*hh}")
    for mb in (1, 2):
        for hh in range(2): l.append(f"ds_read_b64_tr_b16 {vr(b+4*mb+2*hh,2)}, v15 offset:{(16*ks+4*hh)*192+32*mb}")
    return l
e("v_and_b32 v9, 31, v2")
for r in range(20): e(f"v_mov_b32 v{200+r}, 0")
e("s_and_b32 s27, s77, 1"); e("s_lshl_b32 s27, s27, 6"); e("s_lshl_b32 s15, s20, 5"); e("s_add_u32 s27, s27, s15")
e("v_add_u32 v61, s27, v9")
e("v_lshlrev_b32 v62, 2, v61")
e("v_lshrrev_b32 v24, 3, v61"); e("v_and_b32 v25, 7, v61"); e("v_lshlrev_b32 v25, 1, v25"); e("v_lshl_add_u32 v25, v7, 10, v25")
for j in range(4):
    e(f"v_xor_b32 v26, {j<<2}, v24"); e(f"v_lshl_add_u32 v{241+j}, v26, 4, v25")
e("s_lshl_b32 s15, s13, 7"); e("v_add_u32 v245, s15, v61"); e("v_lshlrev_b32 v245, 10, v245"); e("v_lshl_add_u32 v245, v7, 4, v245")
e("v_lshl_add_u32 v24, v7, 2, v5"); e("v_lshlrev_b32 v24, 7, v24"); e("v_lshl_add_u32 v24, v8, 5, v24"); e("v_lshl_add_u32 v24, v6, 3, v24")
e("s_lshl_b32 s15, s21, 13"); e("v_add_u32 v24, s15, v24")
e("v_lshrrev_b32 v25, 3, v3"); e("v_xor_b32 v25, s21, v25"); e("v_lshl_add_u32 v246, v25, 6, v24"); e("v_xor_b32 v25, 1, v25"); e("v_lshl_add_u32 v247, v25, 6, v24")
e("s_lshl_b32 s16, s13, 4")
e("v_add_u32 v248, s16, v2"); e("v_lshlrev_b32 v248, 7, v248"); e(f"v_add_u32 v248, {FL3_OFF:#x}, v248")
e("v_lshlrev_b32 v11, 4, v2")
e("s_lshl_b32 s17, s6, 2"); e("s_lshl_b32 s18, s20, 1"); e("s_add_u32 s17, s17, s18"); e(f"s_mul_i32 s17, s17, {HH_KS}")
e("s_mul_i32 s18, s7, 6"); e("s_mul_i32 s19, s21, 3"); e("s_add_u32 s19, s19, s18")
e("s_add_u32 s17, s17, s19")
e("s_lshl_b32 s17, s17, 10"); e(f"s_add_u32 s17, s17, {HH_OFF:#x}"); e(f"s_add_u32 s18, s17, {HH_KS*1024}")
e("s_cmp_eq_u32 s7, 15"); e("s_cbranch_scc0 L_c_p3")
def sp_loads():
    e("s_mul_i32 s16, s6, 24576"); e(f"s_add_u32 s16, s16, {CSP_OFF:#x}")
    for m in range(16):
        if m and m % 2 == 0: e("s_add_u32 s16, s16, 3072")
        e(f"buffer_load_dwordx2 {vr(64+2*m,2)}, v28, {SWS}, s16 offen offset:{1536*(m%2)} sc1")
e("s_lshl_b32 s15, s11, 6"); e("v_add_u32 v20, s15, v2"); e("v_lshlrev_b32 v28, 3, v20")
e("s_lshl_b32 s15, s6, 4"); e("s_add_u32 s15, s15, s7"); e("s_lshl_b32 s15, s15, 7"); e("v_mov_b32 v253, s15")
e("s_barrier")
e("s_barrier")
sp_loads()
e("s_barrier")
e("s_cmp_eq_u32 s6, 15"); e("s_cbranch_scc1 L_c_sp2"); e("s_cmp_eq_u32 s11, 3"); e("s_cbranch_scc1 L_c_sp2")
e("s_mov_b32 s30, 0x100000")
mark(1, "it2")
lab("L_c_sp1")
e("s_waitcnt vmcnt(0)")
e("v_xor_b32 v50, s9, v65")
for m in range(1, 16):
    e(f"v_xor_b32 v51, s9, v{65+2*m}"); e("v_or_b32 v50, v50, v51")
e("v_cmp_ne_u32 vcc, 0, v50")
e("s_cbranch_vccz L_c_sp1x")
e("s_sub_u32 s30, s30, 1"); e("s_cbranch_scc1 L_c_sp1x")
sp_loads()
e("s_branch L_c_sp1")
lab("L_c_sp1x")
for m in range(1, 16): e(f"v_add_f32 v64, v64, v{64+2*m}")
e("v_mov_b32 v54, 0")
e("v_cvt_pk_bf16_f32 v53, v64, v54")
e("v_lshlrev_b32 v51, 16, v53"); e("v_sub_f32 v51, v64, v51")
e("v_cvt_pk_bf16_f32 v52, v64, v51")
e("v_mov_b32 v55, v254")
e("v_lshlrev_b32 v28, 4, v20"); e("s_mul_i32 s16, s6, 3072"); e(f"s_add_u32 s16, s16, {CSF_OFF:#x}")
e(f"buffer_store_dwordx4 v[52:55], v28, {SWS}, s16 offen sc1")
mark(2, "it2")
lab("L_c_sp2")
e("s_barrier")
e("s_branch L_c_p4")
lab("L_c_p3")
for blk in range(2):
    for ks in range(2):
        for hh in range(2): e(f"ds_read_b64_tr_b16 {vr(32+8*blk+4*ks+2*hh,2)}, v28 offset:{(16*ks+4*hh)*192+32*blk}")
e("v_mov_b32 v30, 0"); e("v_mov_b32 v31, 0"); e("s_mov_b32 s27, 0x3f803f80")
e("s_lshl_b32 s15, s6, 4"); e("s_add_u32 s15, s15, s7"); e("s_lshl_b32 s15, s15, 7"); e("v_mov_b32 v253, s15"); e("s_lshl_b32 s16, s7, 4"); e("s_add_u32 s16, s16, s6"); e("s_mul_i32 s16, s16, 1536"); e("s_lshl_b32 s15, s26, 9"); e("s_add_u32 s16, s16, s15"); e(f"s_add_u32 s16, s16, {CSP_OFF:#x}")
e("v_lshlrev_b32 v29, 3, v2")
e("s_waitcnt lgkmcnt(0)")
for r in range(8):
    e(f"v_dot2_f32_bf16 v30, v{32+r}, s27, v30"); e(f"v_dot2_f32_bf16 v31, v{40+r}, s27, v31")
e("s_nop 3")
e("v_permlane32_swap_b32 v30, v31")
e("s_nop 1")
e("v_add_f32 v30, v30, v31")
e("v_mov_b32 v250, v30"); e("v_mov_b32 v251, v254"); e("v_mov_b32 v249, v29")
e("s_cmp_eq_u32 s11, 3"); e("s_cselect_b32 s16, 0x7f000000, s16")
e(f"buffer_store_dwordx2 v[250:251], v249, {SWS}, s16 offen sc1")
for r in range(96): e(f"v_mov_b32 v{ACC+r}, 0")
e("s_mul_i32 s22, s7, 3072"); e("s_mul_i32 s15, s21, 1536"); e("s_add_u32 s22, s22, s15"); e(f"s_add_u32 s22, s22, {CSF_OFF:#x}")
e("s_lshl_b32 s23, s6, 11"); e("s_lshl_b32 s15, s20, 10"); e("s_add_u32 s23, s23, s15"); e(f"s_add_u32 s23, s23, {ST2_OFF:#x}")
e("s_mul_i32 s15, s21, 1536"); e(f"s_add_u32 s15, s15, {CORR_L}"); e("v_add_u32 v19, s15, v11")
e("s_lshl_b32 s15, s20, 10"); e(f"s_add_u32 s15, s15, {CORR_L+3072}"); e("v_add_u32 v14, s15, v11")
e("s_mov_b32 s24, 0"); e("s_mov_b32 s25, 0"); e("s_mov_b32 s26, 0")
e("s_barrier")
e("s_barrier")
mark(7)
e("s_lshl_b32 s15, s7, 1"); e("s_add_u32 s15, s15, s21"); e("s_cmp_lg_u32 s15, 29"); e("s_cbranch_scc1 L_c_full")
for nb in range(2): e(f"buffer_store_dwordx4 v[64:67], v11, {SWS}, s{17+nb} offen sc1")
for _ in range(8): e("s_barrier")
e("s_branch L_c_p4")
lab("L_c_full")
for s in g1reads(0, 0): e(s)
def corr_loads():
    e("s_mov_b32 exec_hi, 0")
    for mb in range(3): e(f"buffer_load_dwordx4 {vr(200+4*mb,4)}, v11, {SWS}, s22 offen offset:{512*mb} sc1")
    for nb in range(2): e(f"buffer_load_dwordx4 {vr(212+4*nb,4)}, v11, {SWS}, s23 offen offset:{512*nb} sc1")
    e("s_mov_b64 exec, -1")
lab("L_g1_loop")
for ks in range(4):
    buf = ks & 1
    e("s_waitcnt lgkmcnt(0)")
    if ks == 3:
        e("s_barrier")
    nxt = g1reads((ks+1) & 3, buf ^ 1)
    sched = [3, 3, 2, 2, 0, 0]; p = 0
    for n, (mb, nb) in enumerate([(0,0),(0,1),(1,0),(1,1),(2,0),(2,1)] if "snake" not in X else [(0,0),(0,1),(1,1),(1,0),(2,0),(2,1)]):
        a = ACC + 16*(2*mb+nb)
        if "mf16" in X:
            o = 8*(ks & 1)
            e(f"v_mfma_f32_16x16x32_bf16 {vr(a+o,4)}, {vr(FR[buf]+4*mb,4)}, {vr(FR[buf]+12+4*nb,4)}, {vr(a+o,4)}")
            for _ in range((sched[n]+1)//2): e(nxt[p]); p += 1
            e(f"v_mfma_f32_16x16x32_bf16 {vr(a+o+4,4)}, {vr(FR[buf]+12+4*nb,4)}, {vr(FR[buf]+4*mb,4)}, {vr(a+o+4,4)}")
            for _ in range(sched[n]//2): e(nxt[p]); p += 1
        else:
            e(f"v_mfma_f32_32x32x16_bf16 {vr(a,16)}, {vr(FR[buf]+4*mb,4)}, {vr(FR[buf]+12+4*nb,4)}, {vr(a,16)}")
            for _ in range(sched[n]): e(nxt[p]); p += 1
        if ks == 2 and n == 4:
            e(f"s_add_u32 s25, s25, {WSLOT}"); e(f"s_cmp_eq_u32 s25, {4*WSLOT}"); e("s_cselect_b32 s25, 0, s25")
            e(f"s_add_u32 s26, s26, 16384"); e(f"s_cmp_eq_u32 s26, {3*16384}"); e("s_cselect_b32 s26, 0, s26")
        if ks == 2 and n == 5:
            e("v_add_u32 v15, s25, v12"); e("v_add_u32 v16, s26, v13"); e("v_add_u32 v17, s26, v18")
e("s_add_u32 s24, s24, 1"); e("s_cmp_lt_u32 s24, 7"); e("s_cbranch_scc1 L_g1_loop")
FK = [20, 40, 160, 180]
lg.clear(); lg.add(("k0",), 10)
rd = []
def rdA(ks, mb): return [(f"ds_read_b64_tr_b16 {vr(FK[ks]+4*mb+2*hh,2)}, v15 offset:{(16*ks+4*hh)*192+32*mb}", ("A", ks, mb)) for hh in range(2)]
def rdB(ks, nb): return [(f"ds_read_b64_tr_b16 {vr(FK[ks]+12+4*nb+2*hh,2)}, v{16+nb} offset:{4096*ks+1024*hh}", ("B", ks, nb)) for hh in range(2)]
for ks in (1, 2, 3): rd += rdA(ks, 0) + rdB(ks, 0) + rdB(ks, 1)
for mb in (1, 2):
    for ks in (1, 2, 3): rd += rdA(ks, mb)
def epi(mb):
    l = []
    for nb in range(2):
        a = ACC + 16*(2*mb+nb)
        for r in range(8): l.append(f"v_max_f32 v{a+r}, 0, v{a+r}")
        for r in range(8): l.append(f"v_mul_f32 v{a+r}, v{a+r}, v{a+8+r}")
        for p in range(4): l.append(f"v_cvt_pk_bf16_f32 v{a+8+p}, v{a+2*p}, v{a+2*p+1}")
        l.append(f"buffer_store_dwordx4 {vr(a+8,4)}, v11, {SWS}, s{17+nb} offen offset:{1024*mb} sc1")
    return l
lg.wait(("k0",))
seq = [(0, mb, nb) for mb in range(3) for nb in range(2)] + [(ks, 0, nb) for ks in (1, 2, 3) for nb in range(2)] + ["bar"]
seq += [(1, 1, 0), (1, 1, 1), "chk", ("c", 0, 0), ("c", 0, 1)] + [(ks, 1, nb) for ks in (2, 3) for nb in range(2)] + [("c", 1, 0), ("c", 1, 1)]
seq += [("c", 2, 0), ("c", 2, 1)] + [(ks, 2, nb) for ks in (1, 2) for nb in range(2)] + [(3, 2, 0), (3, 2, 1)]
last = {}
for n, x in enumerate(seq):
    if isinstance(x, tuple): last[(x[1], x[2])] = n
epq = []
def epi1(mb, nb):
    a = ACC + 16*(2*mb+nb); l = []
    for r in range(8): l.append(f"v_max_f32 v{a+r}, 0, v{a+r}")
    for r in range(8): l.append(f"v_mul_f32 v{a+r}, v{a+r}, v{a+8+r}")
    for p in range(4): l.append(f"v_cvt_pk_bf16_f32 v{a+8+p}, v{a+2*p}, v{a+2*p+1}")
    l.append(f"buffer_store_dwordx4 {vr(a+8,4)}, v11, {SWS}, s{17+nb} offen offset:{1024*mb} sc1")
    return l
for n, x in enumerate(seq):
    if x == "bar":
        e("s_waitcnt lgkmcnt(0)"); lg.clear(); assert not rd
        e("s_barrier")
        e("s_mov_b32 exec_hi, 0")
        for mb in range(3): e(f"ds_read_b128 {vr(200+4*mb,4)}, v19 offset:{512*mb}")
        for nb in range(2): e(f"ds_read_b128 {vr(212+4*nb,4)}, v14 offset:{512*nb}")
        e("s_mov_b64 exec, -1")
        e("s_mov_b32 s30, 0x100000")
        continue
    if x == "chk":
        e("s_waitcnt lgkmcnt(0)")
        mark(1, "it2")
        lab("L_corr")
        e("v_xor_b32 v60, s9, v203")
        for r in (207, 211, 215, 219):
            e(f"v_xor_b32 v63, s9, v{r}"); e("v_or_b32 v60, v60, v63")
        e("v_cmp_ne_u32 vcc, 0, v60")
        e("s_cmp_eq_u32 vcc_lo, 0"); e("s_cbranch_scc1 L_corrx")
        e("s_sub_u32 s30, s30, 1"); e("s_cbranch_scc1 L_corrx")
        corr_loads()
        e("s_waitcnt vmcnt(0)")
        e("s_branch L_corr")
        lab("L_corrx")
        mark(2, "it2")
        for r in (203, 207, 211, 215, 219): e(f"v_mov_b32 v{r}, 0")
        e("s_nop 1")
        continue
    ks, mb, nb = x
    a = ACC + 16*(2*mb+nb)
    if ks == "c":
        e(f"v_mfma_f32_32x32x16_bf16 {vr(a,16)}, {vr(200+4*mb,4)}, {vr(212+4*nb,4)}, {vr(a,16)}")
    else:
        need = [("A", ks, mb), ("B", ks, nb)]
        while any(y[1] in need for y in rd):
            s_, tg = rd.pop(0); e(s_); lg.add(tg)
        lg.wait(*need)
        e(f"v_mfma_f32_32x32x16_bf16 {vr(a,16)}, {vr(FK[ks]+4*mb,4)}, {vr(FK[ks]+12+4*nb,4)}, {vr(a,16)}")
    if last[(mb, nb)] == n: epq += [(len(L) + 12, t) for t in epi1(mb, nb)]
    for _ in range(3):
        if rd: s_, tg = rd.pop(0); e(s_); lg.add(tg)
    k = 0
    while epq and k < 6:
        short = epq[0][0] - len(L)
        if short > 0:
            p_ = min(short, 6 - k)
            e(f"s_nop {p_-1}"); L.extend(["    ; pad"] * (p_ - 1)); k += p_
            continue
        e(epq.pop(0)[1]); k += 1
mark(8); mark(3, "it2")
while epq:
    short = epq[0][0] - len(L)
    if short > 0:
        e(f"s_nop {short-1}"); L.extend(["    ; pad"] * (short - 1))
    e(epq.pop(0)[1])
mark(4, "it2")
lab("L_c_p4")
RES = 224
for r in range(16): e(f"v_mov_b32 v{RES+r}, 0")
e("s_lshl_b32 s22, s13, 17"); e("s_lshl_b32 s16, s28, 14"); e("s_add_u32 s22, s22, s16"); e("s_lshl_b32 s16, s21, 13"); e("s_add_u32 s22, s22, s16")
e(f"s_add_u32 s22, s22, {HT_OFF:#x}"); e("s_add_u32 s23, s22, 4096")
e("s_lshl_b32 s25, s77, 1"); e("s_add_u32 s25, s25, s20")
e(f"s_mul_i32 s25, s25, {HH_KS*1024}"); e("s_lshl_b32 s16, s21, 12"); e("s_add_u32 s25, s25, s16"); e(f"s_add_u32 s25, s25, {HH_OFF:#x}")
e("s_lshl_b32 s27, s28, 7"); e("s_lshl_b32 s15, s21, 6"); e("s_add_u32 s27, s27, s15")
e("s_waitcnt vmcnt(0)"); mark(5, "it2"); e("s_barrier")
mark(9); mark(6, "it2")
ACC = 160
FR = [20, 36, 192]
PD = int(os.environ.get("PD", "2"))
e("v_add_u32 v52, 0x10000, v246"); e("v_add_u32 v53, 0x10000, v247"); e("v_add_u32 v54, 0x20000, v246"); e("v_add_u32 v55, 0x20000, v247")
def g2reads(G):
    i = G >> 1; slot = i % 10; l = []
    base = [("v246", "v247"), ("v52", "v53"), ("v54", "v55")][slot >> 2]
    for q in range(2):
        ks = 2*(G & 1) + q
        for db in range(2):
            b = FR[G % 3] + 8*q + 4*db
            off = (slot & 3)*16384 + ks*2048
            l.append((f"ds_read_b64_tr_b16 {vr(b,2)}, {base[db]} offset:{off}", ("W", G, q, db)))
            l.append((f"ds_read_b64_tr_b16 {vr(b+2,2)}, {base[db]} offset:{off+1024}", ("W", G, q, db)))
    return l
post_flag(FL3_OFF, 0)
lg.clear()
for G0 in range(2):
    for s, t in g2reads(G0): e(s)
e("s_waitcnt lgkmcnt(0)"); e("s_barrier")
for ii in range(4 if "nores" not in X else 0):
    for j in range(4):
        e(f"buffer_load_short_d16_hi v{RES+4*ii+j}, v{241+j}, {SWS}, s{22+(ii>>1)} offen offset:{2048*(ii&1)+256*j} sc1")
e("s_cmp_lg_u32 s3, 0"); e("s_cbranch_scc1 L_c_np3")
e("s_mov_b64 exec, 0xffff")
poll("v248", "v249", "s9", "ap3" in X)
hold("3")
lab("L_c_np3")
mark(7, "it2")
e("s_barrier")
mark(8, "it2"); mark(1, "p4")
vm = Trk("vmcnt", 63)
NHR = 6; HB = 64
def issueHH(i):
    rot11(i if "hhsame" not in X else i % 2)
    e("s_lshl_b32 s15, s15, 13"); e("s_add_u32 s15, s15, s25")
    for q in range(4):
        e(f"buffer_load_dwordx4 {vr(HB+16*(i % NHR)+4*q,4)}, v11, {SWS}, s15 offen offset:{1024*q} sc1"); vm.add(("HH", i, q))
NH0 = int(os.environ.get("NH0", "3"))
for i in range(NH0): issueHH(i)
def hh1(i, q):
    if q == 0:
        rot11(i)
        e("s_lshl_b32 s15, s15, 13"); e("s_add_u32 s17, s15, s25")
    e(f"buffer_load_dwordx4 {vr(HB+16*(i % NHR)+4*q,4)}, v11, {SWS}, s17 offen offset:{1024*q} sc1"); vm.add(("HH", i, q))
mark(10)
assert PD == 2
for G in range(20):
    i = G >> 1
    if G in (1, 6, 12, 16, 18, 20): mark(2 + (1, 6, 12, 16, 18, 20).index(G), "p4")
    if G == 8: e("s_barrier")
    if G == 2: mark(9, "it2")
    if G == 12: mark(10, "it2")
    nxt = g2reads(G+PD) if G + PD < 22 else []
    p = 0
    for q in range(2):
        ks = 2*(G & 1) + q
        vm.wait(("HH", i, ks))
        for db in range(2):
            lg.wait(("W", G, q, db))
            b = FR[G % 3] + 8*q + 4*db
            c = vr(ACC+16*db, 16) if (G or q) else "0"
            e(f"v_mfma_f32_32x32x16_bf16 {vr(ACC+16*db,16)}, {vr(b,4)}, {vr(HB+16*(i % NHR)+4*ks,4)}, {c}")
            for _ in range(2):
                if p < len(nxt): e(nxt[p][0]); lg.add(nxt[p][1]); p += 1
            if db == 0 and i + NH0 <= 10: hh1(i + NH0, ks)
    if G == 17:
        e("s_lshl_b32 s15, s13, 9"); e(f"s_add_u32 s15, s15, {R2_OFF:#x}")
        e(f"buffer_load_dword v240, v62, {SWS}, s15 offen sc1"); vm.add("res")
e("s_lshl_b32 s15, s11, 12"); e("s_add_u32 s15, s15, 16384"); e("s_xor_b32 s16, s15, 4096")
e("v_add_u32 v56, s15, v11"); e("v_add_u32 v57, s16, v11")
FULL = "nofull" not in X
if FULL:
    e("s_lshl_b32 s15, s21, 2"); e("v_add_u32 v58, s15, v7"); e("v_and_b32 v59, 7, v2"); e("v_xor_b32 v58, v58, v59"); e("v_xor_b32 v60, 2, v58")
    e("s_lshl_b32 s15, s20, 12"); e("s_add_u32 s15, s15, 32768"); e("v_lshlrev_b32 v63, 7, v9"); e("v_add_u32 v63, s15, v63")
    e("v_lshl_add_u32 v58, v58, 4, v63"); e("v_lshl_add_u32 v60, v60, 4, v63")
    e("v_lshrrev_b32 v63, 3, v2"); e("v_xor_b32 v242, v59, v63"); e("v_lshlrev_b32 v242, 4, v242"); e("v_lshl_add_u32 v242, v63, 7, v242")
    e("s_lshl_b32 s15, s11, 11"); e("s_add_u32 s15, s15, 32768"); e("v_add_u32 v242, s15, v242")
    e("v_lshlrev_b32 v243, 10, v63"); e("v_lshl_add_u32 v243, v59, 4, v243")
    e("s_lshl_b32 s27, s77, 16"); e("s_lshl_b32 s15, s11, 14"); e("s_add_u32 s27, s27, s15"); e("s_lshl_b32 s15, s28, 7"); e("s_add_u32 s27, s27, s15")
    e("s_add_u32 s26, s27, 8192")
for db in (1, 0):
    for G in (20, 21):
        for q in range(2):
            ks = 2*(G & 1) + q
            vm.wait(("HH", 10, ks)); lg.wait(("W", G, q, db))
            b = FR[G % 3] + 8*q + 4*db
            e(f"v_mfma_f32_32x32x16_bf16 {vr(ACC+16*db,16)}, {vr(b,4)}, {vr(HB+16*(10 % NHR)+4*ks,4)}, {vr(ACC+16*db,16)}")
            if db == 0 and G == 20: e("s_nop 5")
            if db == 0 and G == 21:
                for u in (2*q, 2*q+1): e(f"ds_write_b128 v56, {vr(ACC+16+4*u,4)} offset:{1024*u}")
mark(8, "p4")
e("s_waitcnt vmcnt(0) lgkmcnt(0)")
e("s_barrier")
mark(9, "p4")
for u in range(4): e(f"ds_read_b128 {vr(64+4*u,4)}, v57 offset:{1024*u}")
e("v_mov_b32 v241, v240")
e("s_nop 5")
for u in range(4):
    e(f"s_waitcnt lgkmcnt({3-u})")
    for p in range(2): e(f"v_pk_add_f32 {vr(ACC+4*u+2*p,2)}, {vr(ACC+4*u+2*p,2)}, {vr(64+4*u+2*p,2)}")
    for p in range(2): e(f"v_pk_fma_f32 {vr(ACC+4*u+2*p,2)}, {vr(ACC+4*u+2*p,2)}, v[240:241], {vr(RES+4*u+2*p,2)}")
    for p in range(2): e(f"v_cvt_pk_bf16_f32 v{32+2*u+p}, v{ACC+4*u+2*p}, v{ACC+4*u+2*p+1}")
    if u & 1:
        b = 32 + 2*(u-1)
        e("s_nop 1")
        e(f"v_permlane32_swap_b32 v{b}, v{b+2}"); e(f"v_permlane32_swap_b32 v{b+1}, v{b+3}")
        if FULL: e(f"ds_write_b128 v{58 if u == 1 else 60}, {vr(b,4)}")
        else: e(f"buffer_store_dwordx4 {vr(b,4)}, v245, {SOUT}, s27 offen offset:{16*(u-1)}{os.environ.get('OUTF', '')}")
if FULL:
    e("s_waitcnt lgkmcnt(0)"); e("s_barrier")
    e("ds_read_b128 v[40:43], v242"); e("ds_read_b128 v[44:47], v242 offset:1024")
    e("s_waitcnt lgkmcnt(1)")
    e(f"buffer_store_dwordx4 v[40:43], v243, {SOUT}, s27 offen{os.environ.get('OUTF', ' sc1')}")
    e("s_waitcnt lgkmcnt(0)")
    e(f"buffer_store_dwordx4 v[44:47], v243, {SOUT}, s26 offen{os.environ.get('OUTF', ' sc1')}")
hold("E")
endpgm()

lab("L_H")
vm = Trk("vmcnt", 63)
e(f"v_lshlrev_b32 v4, 2, v2"); e(f"v_add_u32 v4, {FLG_L}, v4"); e("v_mov_b32 v5, 0")
e("s_mov_b64 exec, 0xffff")
e("ds_write_b32 v4, v5")
e("s_mov_b64 exec, -1")
e("v_lshlrev_b32 v11, 4, v2")
if "rowb" in X: e("s_mov_b32 s26, s2")
else: e("s_lshl_b32 s26, s31, 3"); e("s_add_u32 s26, s26, s30")
e("s_lshl_b32 s24, s26, 13"); e("s_lshl_b32 s16, s11, 11"); e("s_add_u32 s24, s24, s16")
QR = " nt" if "qrnt" in X else ""
e(f"buffer_load_dwordx4 {vr(56,4)}, v11, {SQ}, s24 offen{QR}"); e(f"buffer_load_dwordx4 {vr(60,4)}, v11, {SQ}, s24 offen offset:1024{QR}")
if "tlb" in X:
    e("s_cmp_lg_u32 s3, 7"); e("s_cbranch_scc1 L_notlb")
    e("v_lshlrev_b32 v46, 20, v2"); e("s_lshl_b32 s15, s2, 7"); e("v_add_u32 v46, s15, v46")
    e("s_mov_b64 exec, 0x3fff")
    e(f"buffer_load_dword v47, v46, {SWS}, 0 offen")
    e("s_mov_b64 exec, 3")
    for n, sr in enumerate((SOUT, SWD, SWG, SWU, SSK)): e(f"buffer_load_dword v{48+n}, v46, {sr}, 0 offen")
    e("s_mov_b64 exec, -1")
    lab("L_notlb")
e("v_lshlrev_b32 v17, 7, v2")
pass
for j in range(3):
    e(f"v_add_u32 v20, {j*64}, v2")
    e("v_mul_u32_u24 v21, 0x5556, v20"); e("v_lshrrev_b32 v21, 18, v21")
    e("v_mul_u32_u24 v22, 12, v21"); e("v_sub_u32 v22, v20, v22")
    e("v_mul_u32_u24 v21, 2752, v21"); e(f"v_lshl_add_u32 v{14+j}, v22, 4, v21")
    if j: e(f"v_subrev_u32 v{14+j}, {1024*j}, v{14+j}")
e(f"s_mul_i32 s22, s11, {16*2752}"); e("s_mul_i32 s15, s7, 192"); e("s_add_u32 s22, s22, s15")
e(f"s_mul_i32 s23, s11, {16*192}")
e("s_mov_b32 s16, 0x05040100"); e("s_mov_b32 s17, 0x07060302")
e("s_waitcnt vmcnt(3)")
mark(1)
for c in range(4):
    sel = "s17" if c & 1 else "s16"
    e(f"v_perm_b32 v{92+2*c}, v{40+(c>>1)}, v{38+(c>>1)}, {sel}")
    e(f"v_perm_b32 v{93+2*c}, v{44+(c>>1)}, v{42+(c>>1)}, {sel}")
    e(f"ds_write_b64 v13, {vr(92+2*c,2)} offset:{128*c}")
mark(7, "p1")
e("s_waitcnt lgkmcnt(0)"); e("s_barrier")
mark(8, "p1")
e("ds_read_b128 v[28:31], v124"); e("ds_read_b128 v[32:35], v125 offset:1024")
e("s_waitcnt lgkmcnt(1)")
e(f"buffer_store_dwordx4 v[28:31], v126, {SWS}, s18 offen sc1")
e("s_waitcnt lgkmcnt(0)")
e(f"buffer_store_dwordx4 v[32:35], v126, {SWS}, s19 offen sc1")
mark(9, "p1")
e("s_waitcnt vmcnt(2)")
e("v_add_u32 v254, 1, v254")
e("s_nop 0")
e("v_readfirstlane_b32 s9, v254")
for rr in range(2):
    for c in range(8): unpack(64+8*rr+c, 56+4*rr+2*(c>>2), c & 3)
def tree(dst, base):
    e(f"v_add_f32 v{dst}, v{base}, v{base+1}")
    for c in range(2, 8): e(f"v_add_f32 v{dst}, v{dst}, v{base+c}")
def reduce2(a, b):
    for m in ("row_shr:1", "row_shr:2", "row_shr:4", "row_shr:8"):
        e("s_nop 0")
        e(f"v_add_f32_dpp v{a}, v{a}, v{a} {m} row_mask:0xf bank_mask:0xf bound_ctrl:0")
        e(f"v_add_f32_dpp v{b}, v{b}, v{b} {m} row_mask:0xf bank_mask:0xf bound_ctrl:0")
    for m, rm in (("row_bcast:15", "0xa"), ("row_bcast:31", "0xc")):
        e("s_nop 0")
        e(f"v_add_f32_dpp v{a}, v{a}, v{a} {m} row_mask:{rm} bank_mask:0xf")
        e(f"v_add_f32_dpp v{b}, v{b}, v{b} {m} row_mask:{rm} bank_mask:0xf")
tree(100, 64); tree(101, 72)
e("s_nop 0")
reduce2(100, 101)
e("s_mov_b32 s18, 0x3b000000")
e("v_mul_f32 v100, s18, v100"); e("v_mul_f32 v101, s18, v101")
e("s_nop 0")
e("v_readlane_b32 s16, v100, 63"); e("v_readlane_b32 s17, v101, 63")
e("s_nop 1")
for c in range(8):
    e(f"v_subrev_f32 v{64+c}, s16, v{64+c}"); e(f"v_subrev_f32 v{72+c}, s17, v{72+c}")
e("v_mul_f32 v102, v64, v64"); e("v_mul_f32 v103, v72, v72")
for c in range(1, 8):
    e(f"v_fmac_f32 v102, v{64+c}, v{64+c}"); e(f"v_fmac_f32 v103, v{72+c}, v{72+c}")
e("s_nop 0")
reduce2(102, 103)
e("v_mov_b32 v104, 0x3727c5ac")
e("v_fma_f32 v102, v102, s18, v104"); e("v_fma_f32 v103, v103, s18, v104")
e("v_rsq_f32 v108, v102"); e("v_rsq_f32 v112, v103")
e("v_mov_b32 v110, v254"); e("v_mov_b32 v114, v254"); e("v_mov_b32 v111, v254"); e("v_mov_b32 v115, v254")
e("v_mul_f32 v109, v100, v108"); e("v_mul_f32 v113, v101, v112")
e("v_sub_f32 v109, 0, v109"); e("v_sub_f32 v113, 0, v113")
e("s_lshr_b32 s15, s26, 5"); e("s_lshl_b32 s15, s15, 12"); e("s_lshl_b32 s16, s21, 11"); e("s_add_u32 s15, s15, s16")
e("s_bfe_u32 s16, s26, 0x40001"); e("s_lshl_b32 s16, s16, 5"); e("s_add_u32 s15, s15, s16")
e("s_and_b32 s16, s26, 1"); e("s_lshl_b32 s16, s16, 1"); e("s_add_u32 s16, s16, s20"); e("s_lshl_b32 s16, s16, 9"); e("s_add_u32 s15, s15, s16")
e(f"s_add_u32 s15, s15, {STG_OFF:#x}")
e("s_mov_b32 exec_lo, 0"); e("s_mov_b32 exec_hi, 0x80000000")
e(f"buffer_store_dwordx4 v[108:111], v5, {SWS}, s15 offen sc1")
e(f"buffer_store_dwordx4 v[112:115], v5, {SWS}, s15 offen offset:16 sc1")
e("s_mov_b64 exec, -1")
mark(3)
e("s_waitcnt vmcnt(2)")
mark(10, "p1")
e("s_barrier")
mark(2)
post_flag(FL1_OFF, 4)
e("s_cmp_lg_u32 s3, 4"); e("s_cbranch_scc1 L_h_np1")
e("s_lshl_b32 s16, s4, 12"); e(f"s_add_u32 s16, s16, {FL1_OFF:#x}"); e("v_add_u32 v7, s16, v17")
e("s_mov_b32 exec_hi, 0")
poll("v7", "v8", "s9", "ap1" in X)
hold("1")
lab("L_h_np1")
e("s_barrier")
e("v_lshlrev_b32 v9, 4, v3")
e("v_lshlrev_b32 v10, 3, v3"); e(f"v_add_u32 v10, {ST_L}, v10")
for j in range(8):
    e(f"s_add_u32 s16, s5, {j}"); e("s_and_b32 s16, s16, 7"); e("s_lshl_b32 s16, s16, 11"); e(f"v_add_u32 v{100+j}, s16, v10")
def issueW(i, emit=True):
    l = []
    l.append([f"s_add_u32 s15, s8, {i}", "s_and_b32 s15, s15, 7", f"s_mul_i32 s15, s15, {64*2752}", "s_add_u32 s15, s15, s22",
              f"s_add_u32 m0, s23, {(i % 4)*WSLOT}", "s_nop 0", f"buffer_load_dwordx4 v14, {SWG}, s15 offen lds"])
    for j in (1, 2): l.append([f"buffer_load_dwordx4 v{14+j}, {SWG}, s15 offen offset:{1024*j} lds"])
    l.append([f"s_add_u32 s15, s8, {i}", "s_and_b32 s15, s15, 7", f"s_mul_i32 s15, s15, {64*2752}", "s_add_u32 s15, s15, s22",
              f"s_add_u32 m0, s23, {(i % 4)*WSLOT + W_U}", "s_nop 0", f"buffer_load_dwordx4 v14, {SWU}, s15 offen lds"])
    for j in (1, 2): l.append([f"buffer_load_dwordx4 v{14+j}, {SWU}, s15 offen offset:{1024*j} lds"])
    return [(x, ("W", i)) for x in l]
def emit_all(items):
    for x, t in items:
        for s in x: e(s)
        vm.add(t)
def stg_loads():
    for j in range(8):
        e(f"s_add_u32 s16, s5, {j}"); e("s_and_b32 s16, s16, 7"); e("s_lshl_b32 s16, s16, 12"); e(f"s_add_u32 s16, s16, {STG_OFF:#x}")
        e(f"buffer_load_dwordx4 {vr(64+4*j,4)}, v9, {SWS}, s16 offen sc1")
stg_loads()
e("s_barrier")
mark(4)
NWPRE = int(os.environ.get("NWPRE", "3"))
e("s_cmp_eq_u32 s7, 15"); e("s_cbranch_scc1 L_h_now0")
emit_all(issueW(0))
e("s_waitcnt vmcnt(6)")
e("s_branch L_stg0")
lab("L_h_now0")
e("s_waitcnt vmcnt(0)")
lab("L_stg0")
if "noprio" not in X: e("s_setprio 3")
mark(9, "p2")
e("s_mov_b32 s30, 0x100000")
lab("L_stg")
e("v_xor_b32 v50, s9, v66")
for j in range(1, 8):
    e(f"v_xor_b32 v51, s9, v{66+4*j}"); e("v_or_b32 v50, v50, v51")
e("v_cmp_ne_u32 vcc, 0, v50")
e("s_cbranch_vccz L_stgx")
e("s_sub_u32 s30, s30, 1"); e("s_cbranch_scc1 L_stgx")
stg_loads()
e("s_waitcnt vmcnt(0)")
e("s_branch L_stg")
lab("L_stgx")
mark(10, "p2")
for j in range(8): e(f"ds_write_b64 v{100+j}, {vr(64+4*j,2)}")
e("s_lshl_b32 s15, s11, 2"); e(f"s_add_u32 s15, s15, {FLG_L+16}"); e("v_mov_b32 v50, s15"); e("v_mov_b32 v51, 1")
e("ds_write_b32 v50, v51")
if "noprio" not in X: e("s_setprio 0")
mark(5)
if "nowdt" not in X:
    e("s_mul_i32 s15, s2, 5504"); e("s_mul_i32 s16, s11, 1408"); e("s_add_u32 s15, s15, s16")
    e("s_mov_b64 exec, 0x7ff")
    e(f"buffer_load_dword v250, v17, {SWD}, s15 offen"); vm.add("t")
    e("s_mov_b64 exec, -1")
e("s_cmp_eq_u32 s7, 15"); e("s_cbranch_scc1 L_h_now")
for i in range(1, NWPRE): emit_all(issueW(i))
lab("L_h_now")
mark(7, "p2")
e("v_and_b32 v20, 15, v2"); e("v_lshrrev_b32 v21, 4, v2"); e("v_lshrrev_b32 v22, 2, v20"); e("v_and_b32 v23, 3, v20")
e("v_lshrrev_b32 v24, 5, v2"); e("v_and_b32 v25, 1, v21"); e("v_lshl_add_u32 v26, v24, 3, v22")
e("v_lshlrev_b32 v27, 8, v26"); e("v_lshl_add_u32 v27, v25, 5, v27"); e("v_lshl_add_u32 v27, v23, 3, v27")
e("v_xor_b32 v17, s11, v22"); e("v_lshl_add_u32 v17, v17, 6, v27"); e(f"v_add_u32 v17, {A_L}, v17")
e("v_add_u32 v18, 16384, v17"); e("v_add_u32 v19, 32768, v17")
e("v_lshrrev_b32 v7, 3, v2"); e("v_lshlrev_b32 v7, 5, v7"); e("v_and_b32 v8, 7, v2"); e("v_add_u32 v7, v7, v8")
e("s_lshl_b32 s16, s11, 3"); e("v_add_u32 v7, s16, v7"); e("v_lshlrev_b32 v7, 7, v7"); e("s_lshl_b32 s16, s4, 15"); e(f"s_add_u32 s16, s16, {FL2_OFF:#x}"); e("v_add_u32 v7, s16, v7")
e("s_lshl_b32 s26, s6, 17"); e("s_lshl_b32 s19, s11, 12"); e("s_add_u32 s26, s26, s19"); e(f"s_add_u32 s26, s26, {HT_OFF:#x}")
for r in range(4): e(f"v_mov_b32 v{20+r}, 0")
e("s_mov_b32 s27, 0x3f803f80")
e("v_lshrrev_b32 v12, 3, v2"); e("v_and_b32 v13, 7, v2"); e("v_bfe_u32 v28, v2, 4, 1"); e("v_lshlrev_b32 v28, 2, v28"); e("v_xor_b32 v13, v13, v28")
e("v_lshlrev_b32 v12, 10, v12"); e("v_lshl_add_u32 v12, v13, 4, v12")
e("s_lshl_b32 s24, s11, 15"); e("s_lshl_b32 s16, s28, 7"); e("s_add_u32 s24, s24, s16")
def issueWd(i):
    l = [[f"s_add_u32 s15, s29, {i if 'wdsame' not in X else i % 3}", "s_cmp_ge_u32 s15, 11", "s_cselect_b32 s16, 11, 0", "s_sub_u32 s15, s15, s16",
          "s_lshl_b32 s15, s15, 17", "s_add_u32 s15, s15, s24", f"s_add_u32 m0, s19, {(i % 10)*16384}", "s_nop 0",
          f"buffer_load_dwordx4 v12, {SWD}, s15 offen lds"]]
    for j in (1, 2, 3): l.append([f"s_add_u32 s16, s15, {j*7168}", f"buffer_load_dwordx4 v12, {SWD}, s16 offen offset:{1024*j} lds"])
    return [(x, ("Wd", i)) for x in l]
WR = 122
def issueWdR(i):
    r = WR + 16*(i-3)
    l = [[f"s_add_u32 s15, s29, {i}", "s_cmp_ge_u32 s15, 11", "s_cselect_b32 s16, 11, 0", "s_sub_u32 s15, s15, s16",
          "s_lshl_b32 s15, s15, 17", "s_add_u32 s15, s15, s24", f"buffer_load_dwordx4 {vr(r,4)}, v12, {SWD}, s15 offen"]]
    for j in (1, 2, 3): l.append([f"s_add_u32 s16, s15, {j*8192}", f"buffer_load_dwordx4 {vr(r+4*j,4)}, v12, {SWD}, s16 offen"])
    return [(x, ("Wd", i)) for x in l]
def writeWdR(i):
    r = WR + 16*(i-3); off = (i % 10)*16384
    for j in range(4): e(f"ds_write_b128 v{30 + (off >> 16)}, {vr(r+4*j,4)} offset:{(off & 0xffff) + 1024*j}")
RSCH = eval(os.environ.get("RSCH", "{0: [10,9,8]}"))
e("v_mov_b32 v118, 1"); e("v_lshlrev_b32 v119, 10, v2"); e("s_lshl_b32 s16, s4, 7"); e(f"s_add_u32 s16, s16, {FL2_OFF:#x}"); e("v_add_u32 v119, s16, v119")
e("v_lshlrev_b32 v120, 7, v2"); e(f"s_and_b32 s16, s2, {NREP-1}"); e("s_lshl_b32 s16, s16, 10"); e(f"s_add_u32 s16, s16, {FL2_OFF:#x}"); e("v_add_u32 v120, s16, v120")
e("s_lshl_b32 s25, s9, 6"); e("s_add_u32 s25, s25, 32")
if RSCH.get('p'):
    e("s_cmp_eq_u32 s7, 15"); e("s_cbranch_scc1 L_now3")
    for k in RSCH['p']: emit_all(issueWdR(k))
    lab("L_now3")
vm.wait(("W", 0))
mark(8, "p2")
e("s_barrier")
mark(6)
if "f256" in X:
    post_flag(FL2_OFF, 4, 8)
    poll("v7", "v8"); vm.clear()
else:
    e("s_cmp_lg_u32 s3, 4"); e("s_cbranch_scc1 L_noadd")
    e(f"s_mov_b32 exec_lo, {(1 << NREP) - 1:#x}"); e("s_mov_b32 exec_hi, 0")
    e(f"buffer_atomic_add v118, v119, {SWS}, 0 offen sc1")
    e("s_mov_b64 exec, -1")
    lab("L_noadd")
    e("s_cmp_eq_u32 s7, 15"); e("s_cbranch_scc1 L_now2")
    for k in range(NWPRE, 4 if "w3it0" not in X else 3): emit_all(issueW(k))
    for k in RSCH.get('w', []): emit_all(issueWdR(k))
    lab("L_now2")
    e("s_cmp_lg_u32 s3, 4"); e("s_cbranch_scc1 L_nopoll2")
    e("s_mov_b64 exec, 0xff")
    poll("v120", "v8", "s25", "ap2" in X)
    hold("2")
    lab("L_nopoll2")
e("s_barrier")
e("s_cmp_eq_u32 s7, 15"); e("s_cbranch_scc1 L_h_idle")
def issueA(i, dst=None):
    if dst is None: dst = A_L + (i % 3)*16384
    l = [[f"s_add_u32 s15, s8, {i}", "s_and_b32 s15, s15, 7", "s_lshl_b32 s15, s15, 14", "s_add_u32 s15, s15, s26",
          f"s_add_u32 m0, s19, {dst}", "s_nop 0", f"buffer_load_dwordx4 v11, {SWS}, s15 offen sc1 lds"]]
    for j in (1, 2, 3): l.append([f"buffer_load_dwordx4 v11, {SWS}, s15 offen offset:{1024*j} sc1 lds"])
    return [(x, ("A", i)) for x in l]
for i in range(3): emit_all(issueA(i))
mark(7)
vm.wait(("A", 0))
e("s_barrier")
mark(1, "it2"); mark(1, "it3")
corr_items = [(["s_mul_i32 s15, s7, 3072", "s_lshl_b32 s16, s11, 10", "s_add_u32 s15, s15, s16", f"s_add_u32 s15, s15, {CSF_OFF:#x}",
                "s_lshl_b32 s17, s6, 11", f"s_add_u32 s17, s17, {ST2_OFF:#x}", "s_cmp_eq_u32 s11, 3", "s_cselect_b32 s15, s17, s15",
                f"s_add_u32 m0, s16, {CORR_L}", "s_nop 0", f"buffer_load_dwordx4 v11, {SWS}, s15 offen sc1 lds"], "corr"),
              ([f"s_mov_b32 m0, {CORR_L+3072}", "s_nop 0", f"buffer_load_dwordx4 v11, {SWS}, s17 offen offset:1024 sc1 lds"], "corr")]
Wh = lambda k, h: issueW(k)[3*h:3*h+3]
SCHED = {1: Wh(4,0)+Wh(4,1), 2: Wh(5,0), 3: Wh(5,1)+Wh(6,0), 4: Wh(6,1)+Wh(7,0), 5: Wh(7,1)+issueWd(0), 6: corr_items+issueWd(1)+issueWd(2)}
if "nosmooth" in X:
    SCHED = {1: issueW(4), 2: issueW(5), 3: issueW(6), 4: issueW(7), 5: issueWd(0)+corr_items, 6: issueWd(1)+issueWd(2), 7: issueWd(3)}
for i in range(8):
    items = []
    if 1 <= i <= 5: items += issueA(i+2)
    if i == 0 and "w3it0" in X: items += issueW(3)
    items += SCHED.get(i, [])
    for k in RSCH.get(i, []): items += issueWdR(k)
    emit_all(items)
    if i < 7:
        vm.wait(("A", i+1), ("W", i+1))
        mark(2+i, "it3")
        e("s_barrier")
        mark(2+i, "it2")
vm.wait("corr"); mark(9, "it3"); e("s_barrier")
mark(9, "it2")
mark(8)
NPRE = int(os.environ.get("NPRE", "10"))
e("v_add_u32 v30, s19, v11"); e("v_add_u32 v31, 0x10000, v30"); e("v_add_u32 v32, 0x20000, v30")
RSET = sorted(sum(RSCH.values(), []))
assert 9 in RSET and 10 in RSET
for i in range(3, 9):
    if i not in RSET: emit_all(issueWd(i))
for i in range(3, 9):
    if i in RSET: vm.wait(("Wd", i)); writeWdR(i)
vm.wait(("Wd", 0), ("Wd", 9), ("Wd", 10))
e("s_barrier")
mark(9)
writeWdR(9)
e("s_barrier")
writeWdR(10)
e("s_waitcnt vmcnt(0) lgkmcnt(0)")
e("s_branch L_h_p40")
lab("L_h_idle")
mark(1, "it2")
for i in range(8): emit_all(issueA(i, i*16384))
mark(2, "it2")
e(f"v_subrev_u32 v17, {A_L}, v17")
for r in range(4): e(f"v_mov_b32 v{28+r}, s27")
FS = 100
for half in range(2):
    e(f"s_waitcnt vmcnt({16 - 16*half})"); e("s_barrier")
    mark(3+half, "it2")
    lg.clear()
    rds = [(f"ds_read_b64_tr_b16 {vr(FS+64*half+4*q+2*hh,2)}, v17 offset:{4096*q+1024*hh}", q) for q in range(16) for hh in range(2)]
    for s_, t in rds[:12]: e(s_); lg.add(t)
    rds = rds[12:]
    for q in range(16):
        lg.wait(q)
        e(f"v_mfma_f32_32x32x16_bf16 v[64:79], v[28:31], {vr(FS+64*half+4*q,4)}, {'v[64:79]' if (half or q) else '0'}")
        for s_, t in rds[:2]: e(s_); lg.add(t)
        rds = rds[2:]
    e("v_add_u32 v17, 0x10000, v17")
for q in range(4): e(f"v_mfma_f32_32x32x16_bf16 v[80:95], {vr(FS+4*q,4)}, {vr(FS+4*q,4)}, {'v[80:95]' if q else '0'}")
e("s_nop 7")
e("v_mul_f32 v27, s18, v64")
e("v_sub_f32 v24, 0, v27")
e("v_cvt_pk_bf16_f32 v20, v24, v24")
e("v_and_b32 v25, s14, v20"); e("v_sub_f32 v25, v24, v25"); e("v_mov_b32 v22, 0")
e("v_cvt_pk_bf16_f32 v21, v25, v22")
e("v_mov_b32 v23, v254")
e("s_lshl_b32 s15, s6, 11"); e("s_lshl_b32 s16, s11, 9"); e("s_add_u32 s15, s15, s16"); e(f"s_add_u32 s15, s15, {ST2_OFF:#x}")
e("s_mov_b32 exec_hi, 0")
e(f"buffer_store_dwordx4 v[20:23], v11, {SWS}, s15 offen sc1")
e("s_mov_b64 exec, -1")
mark(7, "it2")
e("s_barrier")
spw = sum([issueWd(i) for i in range(10)], [])
for q in range(4, 32):
    e(f"v_mfma_f32_32x32x16_bf16 v[80:95], {vr(FS+4*q,4)}, {vr(FS+4*q,4)}, v[80:95]")
    emit_all(spw[:1]); spw = spw[1:]
emit_all(spw)
e("v_bfe_u32 v22, v2, 3, 2"); e("v_lshlrev_b32 v22, 2, v22"); e("v_and_b32 v23, 3, v2"); e("v_add_u32 v22, v22, v23")
e("v_bfe_u32 v23, v2, 2, 1"); e("v_lshrrev_b32 v24, 5, v2"); e("v_xor_b32 v23, v23, v24"); e("v_lshl_add_u32 v22, v23, 4, v22")
e("v_mov_b32 v21, 0")
e("s_nop 7")
for r in range(16):
    e(f"v_cmp_eq_u32 s[{100 if False else 76}:{77}], {r}, v22" if r & 1 else f"v_cmp_eq_u32 vcc, {r}, v22")
    e("s_nop 1")
    e(f"v_cndmask_b32 v21, v21, v{80+r}, s[76:77]" if r & 1 else f"v_cndmask_b32 v21, v21, v{80+r}, vcc")
e("v_mov_b32 v23, v21")
e("s_nop 1")
e("v_permlane32_swap_b32 v23, v21")
e("s_nop 1")
e("v_add_f32 v21, v21, v23")
e("v_mul_f32 v21, s18, v21")
e("v_fma_f32 v21, -v27, v27, v21"); e("v_max_f32 v21, 0, v21"); e("v_add_f32 v21, 0x3727c5ac, v21")
e("v_rcp_f32 v22, v21")
e("v_lshlrev_b32 v23, 2, v2")
e("s_lshl_b32 s15, s6, 9"); e("s_lshl_b32 s16, s11, 7"); e("s_add_u32 s15, s15, s16"); e(f"s_add_u32 s15, s15, {R2_OFF:#x}")
e("s_mov_b32 exec_hi, 0")
e(f"buffer_store_dword v22, v23, {SWS}, s15 offen sc1")
e("s_mov_b64 exec, -1")
e("s_waitcnt vmcnt(0)")
mark(8); mark(8, "it2")
vm.clear()
assert NPRE == 10
e("s_barrier")
mark(9)
e("s_barrier")
for i in range(NPRE, 11): emit_all(issueWd(i))
e("s_waitcnt vmcnt(0)")
lab("L_h_p40")
mark(10)
e("s_barrier")
e("s_cmp_lg_u32 s2, 0"); e("s_cbranch_scc1 L_hend")
e("s_cmp_lg_u32 s3, 4"); e("s_cbranch_scc1 L_hend")
e("s_mov_b64 exec, 1")
e(f"buffer_store_dword v254, v255, {SWS}, 0 offen sc1")
lab("L_hend")
if STAMP: e("s_barrier"); e("s_barrier"); e("s_barrier")
endpgm()
lab("L_end")

hdr = open("sequential_preLN__ssm_conv_h3__glu_gated_reglu__prompt.s.ref").read().split("; Override")[0]
s = hdr + f"; @launch grid=(256,1,1) block=(512,1,1) lds={LDS_BYTES}\n"
s += '.amdgcn_target "amdgcn-amd-amdhsa--gfx950"\n.text\n'
s += f".globl {NAME}\n.p2align 8\n.type {NAME},@function\n{NAME}:\n" + "\n".join(L) + "\n    s_endpgm\n"
s += f""".section .rodata,"a"
.p2align 6
.amdhsa_kernel {NAME}
  .amdhsa_next_free_vgpr 256
  .amdhsa_next_free_sgpr 102
  .amdhsa_accum_offset 256
  .amdhsa_group_segment_fixed_size 0
  .amdhsa_kernarg_size 104
  .amdhsa_user_sgpr_count 2
  .amdhsa_user_sgpr_kernarg_segment_ptr 1
  .amdhsa_system_sgpr_workgroup_id_x 1
  .amdhsa_float_denorm_mode_32 3
.end_amdhsa_kernel
"""
open(OUT, "w").write(s)
```

```python
import sys, os
OUT = sys.argv[1] if len(sys.argv) > 1 else "v10.s"
STAMP = int(os.environ.get("STAMP", "0"))
X = os.environ.get("X", "").split(",") + ["ap2", "ap3", "m2", "qnt", "qrnt", "resq0", "c0b8", "s3", "wdt1", "nowdt"]
SLP = int(os.environ.get("SLP", "0"))
NREP = int(os.environ.get("NREP", "16"))
SPG = int(os.environ.get("SPG", "1"))
LSP = SPG.bit_length() - 1
assert NREP * SPG <= 64
NT = "" if "nont" in X else " nt"
NAME = "sequential_preLN__ssm_conv_h3__glu_gated_reglu__prompt_kernel"

RS      = 4224
KVT_OFF = 0
QT_OFF  = 0x210000
STG_OFF = 0x420000
EPO_OFF = 0x428000
FL1_OFF = 0x430000
FL3_OFF = 0x440000
ST2_OFF = 0x448000
CSF_OFF = 0x450000
R2_OFF  = 0x460000
CSP_OFF = 0x468000
FL2_OFF = 0x4D0000
HT_OFF  = 0x510000
HH_OFF  = 0x710000
HH_KS   = 96
FLX_OFF = HH_OFF + 64 * HH_KS * 1024
WS_END  = FLX_OFF + 0x40000
STAMP_OFF = 0x1000000
if STAMP and "dbg" not in X: WS_END = 0x2000000

WSLOT = 24640; W_U = 12320
RB = 4 * WSLOT
T_KV = RB
EX_L = 3 * WSLOT
Q_L = EX_L + 16384
T_Q = RB + 8192
CP = 4160; HREG = 4 * CP; XREG = 4608; CH_L = HREG + XREG
ST_L = RB + 2 * CH_L
FLG_L = 163840 - 64
assert ST_L + 16384 <= FLG_L
A_L = RB
MEAN_L = RB + 49152
CORR_L = RB + 49152
LDS_BYTES = 163840

L = []
def e(s): L.append("    " + s)
def lab(s): L.append(s + ":")
def vr(a, n): return f"v[{a}:{a+n-1}]"
def mark(i, grp=None):
    if "p1" in X and i in (7, 8, 9, 10) and grp != "p1": return
    if "it" in X and i in (1, 2, 3) and grp != "it": return
    if "p2" in X and i in (7, 8, 9, 10) and grp != "p2": return
    if ("it2" in X or "it3" in X) and 1 <= i <= 10 and grp not in ("it2", "it3"): return
    if "p4" in X and 1 <= i <= 10 and grp != "p4": return
    if grp and grp not in X: return
    if STAMP: e(f"{'s_memtime' if 'cyc' in X else 's_memrealtime'} s[{78+2*i}:{79+2*i}]")
def srd(d, base, nbytes):
    e(f"s_mov_b32 s{d}, s{base}"); e(f"s_mov_b32 s{d+1}, s{base+1}"); e(f"s_mov_b32 s{d+2}, {nbytes:#x}"); e(f"s_mov_b32 s{d+3}, 0x20000")
NST = 12
def endpgm():
    if STAMP:
        e("s_mov_b64 exec, -1")
        e("s_waitcnt vmcnt(0) lgkmcnt(0)")
        mark(NST-1)
        if "dbg" in X:
            n = nid()
            e("s_cmp_lg_u32 s3, 0"); e(f"s_cbranch_scc1 L_nd{n}"); e("s_cmp_ge_u32 s5, 28"); e(f"s_cbranch_scc1 L_nd{n}")
            e("s_load_dwordx2 s[4:5], s[0:1], 88"); e("s_waitcnt lgkmcnt(0)")
            e("s_mov_b32 s6, 256"); e("s_mov_b32 s7, 0x20000")
            e("s_mov_b64 exec, 1"); e("v_mov_b32 v251, 0")
            e("s_not_b32 s76, s78"); e("v_mov_b32 v252, s76")
            e("buffer_atomic_umax v252, v251, s[4:7], 0 offen offset:48")
            for i in range(NST):
                e(f"v_mov_b32 v{200+i}, s{78+2*i}")
                e(f"buffer_atomic_umax v{200+i}, v251, s[4:7], 0 offen offset:{4*i}")
            lab(f"L_nd{n}")
            e("s_endpgm")
            return
        e("s_lshl_b32 s76, s2, 9"); e("s_lshl_b32 s77, s3, 6"); e("s_add_u32 s76, s76, s77"); e(f"s_add_u32 s76, s76, {STAMP_OFF}")
        e("v_mov_b32 v251, 0")
        e("s_waitcnt lgkmcnt(0)")
        for i in range(NST):
            e(f"v_mov_b32 v252, s{78+2*i}")
            e(f"buffer_store_dword v252, v251, s[40:43], s76 offen offset:{4*i}")
    e("s_endpgm")

class Trk:
    def __init__(self, name, mx): self.q = []; self.name = name; self.mx = mx
    def add(self, tag, n=1): self.q += [tag] * n
    def wait(self, *tags):
        idx = -1
        for i, t in enumerate(self.q):
            if t in tags: idx = i
        if idx < 0: return
        n = len(self.q) - 1 - idx
        n = min(n, self.mx)
        e(f"s_waitcnt {self.name}({n})")
        self.q = self.q[len(self.q) - n:] if n else []
    def clear(self): self.q = []

SQ, SK, SWS, SV, SSH, SSK, SD, SWG, SWU, SWD, SOUT = [f"s[{x}:{x+3}]" for x in (32, 36, 40, 44, 48, 52, 56, 60, 64, 68, 72)]
uid = [0]
def nid():
    uid[0] += 1; return uid[0]
def poll(addr, tmp, want="s9", atom=False):
    n = nid()
    e("s_mov_b32 s30, 0x100000")
    lab(f"L_poll{n}")
    if atom:
        e(f"v_mov_b32 {tmp}, 0")
        e(f"buffer_atomic_add {tmp}, {addr}, {SWS}, 0 offen sc0 sc1")
    else:
        e(f"buffer_load_dword {tmp}, {addr}, {SWS}, 0 offen sc1")
    e("s_waitcnt vmcnt(0)")
    e(f"v_cmp_ne_u32 vcc, {want}, {tmp}")
    e("s_sub_u32 s30, s30, 1")
    e(f"s_cbranch_scc1 L_pollx{n}")
    e("s_and_b64 exec, exec, vcc")
    if SLP:
        e(f"s_cbranch_execz L_pollx{n}")
        e(f"s_sleep {SLP}")
        e(f"s_branch L_poll{n}")
    else:
        e(f"s_cbranch_execnz L_poll{n}")
    lab(f"L_pollx{n}")
    e("s_mov_b64 exec, -1")
def post_flag(off, wave, lanes=1):
    n = nid()
    e(f"s_cmp_lg_u32 s3, {wave}"); e(f"s_cbranch_scc1 L_nopost{n}")
    e(f"s_mov_b64 exec, {(1 << lanes) - 1}")
    e(f"s_mov_b32 s31, {off:#x}")
    e(f"buffer_store_dword v254, v253, {SWS}, s31 offen sc1")
    e("s_mov_b64 exec, -1")
    lab(f"L_nopost{n}")
def unpack(dst, src, c):
    s = src + (c >> 1)
    if c & 1: e(f"v_and_b32 v{dst}, s14, v{s}")
    else: e(f"v_lshlrev_b32 v{dst}, 16, v{s}")

mark(0)
e("s_cmp_ge_u32 s2, 256"); e("s_cbranch_scc1 L_end")
e("s_load_dwordx16 s[4:19], s[0:1], 0")
e("s_load_dwordx8 s[20:27], s[0:1], 64")
e("s_load_dwordx2 s[28:29], s[0:1], 96")
e("v_lshrrev_b32 v1, 6, v0"); e("v_and_b32 v2, 63, v0")
e("v_readfirstlane_b32 s3, v1")
if "nocode" not in X:
    e("s_getpc_b64 s[76:77]")
    lab("L_pc")
    e("s_and_b32 s30, s2, 0xf8"); e("s_add_u32 s30, s30, s3"); e("s_lshl_b32 s30, s30, 7"); e("s_min_u32 s30, s30, L_end - L_pc")
    e("v_mov_b32 v250, s30")
    e("s_mov_b64 exec, 1")
    e("global_load_dword v250, v250, s[76:77]")
    e("s_mov_b64 exec, -1")
e("v_and_b32 v3, 255, v0")
e("v_and_b32 v10, 15, v3"); e("v_lshrrev_b32 v11, 4, v3")
e("s_bfe_u32 s30, s2, 0x30003"); e("s_lshr_b32 s31, s2, 6"); e("s_lshl_b32 s31, s31, 3"); e("s_and_b32 s76, s2, 7"); e("s_add_u32 s31, s31, s76")
e("s_lshl_b32 s76, s31, 16"); e("s_lshl_b32 s77, s30, 7"); e("s_add_u32 s76, s76, s77")
e("v_lshlrev_b32 v12, 12, v11"); e("v_lshl_add_u32 v12, v10, 3, v12"); e("v_add_u32 v12, s76, v12")
e("v_subrev_u32 v14, 3072, v12")
e("s_lshl_b32 s77, s30, 9"); e("v_lshlrev_b32 v15, 5, v10"); e("v_add_u32 v15, s77, v15")
e("s_lshl_b32 s77, s30, 5"); e("s_add_u32 s77, s77, s31"); e("s_lshl_b32 s77, s77, 7"); e("v_mov_b32 v253, s77")
e(f"v_mov_b32 v255, {EPO_OFF:#x}")
e("s_cmp_ge_u32 s3, 4")
e("s_waitcnt lgkmcnt(0)")
srd(36, 6, 0x200000); srd(48, 10, 4096); srd(44, 8, 0x200000); srd(32, 4, 0x200000)
e("s_cbranch_scc1 L_skipkv")
e(f"buffer_load_dwordx4 {vr(48,4)}, v15, {SSH}, 0 offen")
e(f"buffer_load_dwordx4 {vr(52,4)}, v15, {SSH}, 0 offen offset:16")
for r in range(3): e(f"buffer_load_dwordx2 {vr(16+2*r,2)}, v14, {SK}, 0 offen offset:{1024*r}{NT}")
for r in range(4): e(f"buffer_load_dwordx2 {vr(22+2*r,2)}, v12, {SK}, 0 offen offset:{1024*r}{NT}")
for r in range(4): e(f"buffer_load_dwordx2 {vr(30+2*r,2)}, v12, {SV}, 0 offen offset:{1024*r}{NT}")
e("s_branch L_kvdone")
lab("L_skipkv")
for r in range(4): e(f"buffer_load_dwordx2 {vr(38+2*r,2)}, v12, {SQ}, 0 offen offset:{1024*r}{' nt' if 'qnt' in X else ''}")
lab("L_kvdone")
srd(40, 28, WS_END)
e(f"buffer_load_dword v254, v255, {SWS}, 0 offen sc1")
srd(52, 12, 0x200000); srd(56, 14, 1024); srd(60, 18, 512*2752); srd(64, 20, 512*2752); srd(68, 22, 1376*1024); srd(72, 24, 0x200000)
e("s_and_b32 s4, s2, 7"); e("s_lshr_b32 s5, s2, 3")
e("s_and_b32 s10, s4, 1"); e("s_lshr_b32 s17, s4, 1")
e("s_mul_i32 s7, s17, 3"); e("s_lshr_b32 s16, s5, 3"); e("s_add_u32 s7, s7, s16"); e("s_and_b32 s8, s5, 7")
e("s_lshr_b32 s15, s17, 1"); e("s_add_u32 s15, s15, 12"); e("s_and_b32 s16, s17, 1"); e("s_lshl_b32 s16, s16, 2"); e("s_and_b32 s6, s5, 3"); e("s_add_u32 s16, s16, s6")
e("s_cmp_ge_u32 s5, 24"); e("s_cselect_b32 s7, s15, s7"); e("s_cselect_b32 s8, s16, s8")
e("s_lshr_b32 s15, s5, 1"); e("s_lshl_b32 s16, s17, 1"); e("s_and_b32 s6, s5, 1"); e("s_add_u32 s16, s16, s6")
e("s_cmp_ge_u32 s5, 28"); e("s_cselect_b32 s7, s15, s7"); e("s_cselect_b32 s8, s16, s8")
e("s_lshl_b32 s6, s10, 3"); e("s_add_u32 s6, s6, s8")
e("s_and_b32 s11, s3, 3")
e("s_lshl_b32 s12, s4, 6"); e("s_lshl_b32 s13, s5, 1"); e("s_add_u32 s12, s12, s13")
if "m3" in X:
    e("s_and_b32 s77, s4, 1"); e("s_xor_b32 s77, s77, 1"); e("s_lshl_b32 s77, s77, 1"); e("s_lshr_b32 s16, s4, 2"); e("s_add_u32 s77, s77, s16")
    e("s_lshl_b32 s77, s77, 3"); e("s_lshr_b32 s16, s5, 2"); e("s_add_u32 s77, s77, s16")
elif "m2" in X:
    e("s_lshr_b32 s77, s4, 1"); e("s_lshl_b32 s77, s77, 3"); e("s_lshr_b32 s16, s5, 2"); e("s_add_u32 s77, s77, s16")
else:
    e("s_lshl_b32 s77, s4, 2"); e("s_lshr_b32 s16, s5, 3"); e("s_add_u32 s77, s77, s16")
e("s_lshr_b32 s13, s77, 1")
e("s_lshr_b32 s17, s3, 2"); e("s_lshl_b32 s17, s17, 13"); e(f"s_add_u32 s17, s17, {T_KV}")
e("v_lshrrev_b32 v13, 1, v11"); e("v_and_b32 v14, 7, v10"); e("v_xor_b32 v13, v13, v14"); e("v_lshlrev_b32 v13, 4, v13")
e("v_lshl_add_u32 v13, v10, 9, v13"); e("v_and_b32 v14, 1, v11"); e("v_lshl_add_u32 v13, v14, 3, v13"); e("v_add_u32 v13, s17, v13")
e("v_lshrrev_b32 v128, 3, v2"); e("s_lshl_b32 s15, s11, 4"); e("v_add_u32 v128, s15, v128")
e("v_and_b32 v129, 7, v2")
e("v_lshrrev_b32 v130, 2, v128"); e("v_and_b32 v130, 7, v130"); e("v_xor_b32 v124, v129, v130"); e("v_xor_b32 v125, 2, v124")
e("v_lshlrev_b32 v130, 7, v128"); e("v_lshl_add_u32 v124, v124, 4, v130"); e("v_lshl_add_u32 v125, v125, 4, v130")
e("v_add_u32 v124, s17, v124"); e("v_add_u32 v125, s17, v125")
e(f"v_mul_u32_u24 v126, {RS}, v128"); e("v_lshl_add_u32 v126, v129, 4, v126")
e(f"s_mul_i32 s18, s30, {64*RS}"); e("s_lshl_b32 s16, s31, 7"); e("s_add_u32 s18, s18, s16")
e("s_lshr_b32 s16, s3, 2"); e(f"s_mul_i32 s16, s16, {QT_OFF-KVT_OFF:#x}"); e("s_add_u32 s18, s18, s16")
e(f"s_add_u32 s19, s18, {8*RS}")
e("s_mov_b32 s14, 0xffff0000")
e("s_lshr_b32 s20, s11, 1"); e("s_and_b32 s21, s11, 1")
if "m3" in X:
    e("s_and_b32 s28, s4, 2"); e("s_lshl_b32 s28, s28, 1"); e("s_and_b32 s16, s5, 3"); e("s_add_u32 s28, s28, s16")
elif "m2" in X:
    e("s_and_b32 s28, s4, 1"); e("s_lshl_b32 s28, s28, 2"); e("s_and_b32 s16, s5, 3"); e("s_add_u32 s28, s28, s16")
else: e("s_and_b32 s28, s5, 7")
if "m2" in X:
    e("s_lshr_b32 s16, s5, 2"); e("s_mul_i32 s29, s16, 11"); e("s_lshr_b32 s29, s29, 3")
else:
    e("s_lshr_b32 s16, s5, 3"); e("s_mul_i32 s29, s16, 3")
if "rot4" in X:
    e("s_add_u32 s29, s29, s28"); e("s_cmp_ge_u32 s29, 11"); e("s_cselect_b32 s16, 11, 0"); e("s_sub_u32 s29, s29, s16")
e("s_cmp_ge_u32 s3, 4"); e("s_cbranch_scc1 L_H")
def rot11(i):
    e(f"s_add_u32 s15, s29, {i}"); e("s_cmp_ge_u32 s15, 11"); e("s_cselect_b32 s16, 11, 0"); e("s_sub_u32 s15, s15, s16")

e("v_lshlrev_b32 v6, 4, v3"); e("v_sub_u32 v7, 4080, v6"); e("v_subrev_u32 v8, 8, v7"); e("v_max_i32 v8, 0, v8")
e("s_add_u32 s22, s12, s20")
e("s_lshl_b32 s15, s22, 1"); e("v_mov_b32 v9, s15"); e("v_mov_b32 v240, 0")
e("s_lshl_b32 s15, s12, 12"); e("s_add_u32 s16, s15, 4096")
e("s_waitcnt vmcnt(12)")
for c in range(4):
    for j in range(4): unpack(92+4*j+c, 48+2*c, j)
e("s_waitcnt vmcnt(5)")
mark(1)
def ssm_loads():
    e("s_lshl_b32 s15, s12, 12"); e("s_add_u32 s16, s15, 4096")
    e(f"buffer_load_dwordx4 v[228:231], v7, {SSK}, s15 offen{NT}")
    e(f"buffer_load_dwordx2 v[226:227], v8, {SSK}, s15 offen{NT}")
    e(f"buffer_load_dwordx4 v[236:239], v7, {SSK}, s16 offen{NT}")
    e(f"buffer_load_dwordx2 v[234:235], v8, {SSK}, s16 offen{NT}")
    e(f"buffer_load_short_d16_hi v240, v9, {SD}, 0 offen")
LATE = "ssmearly" not in X
if not LATE: ssm_loads()
for r in range(7):
    for c in range(4): unpack(64+4*r+c, 16+2*r, c)
for r in range(4):
    for p in range(2): e(f"v_pk_mul_f32 {vr(108+4*r+2*p,2)}, {vr(64+4*r+2*p,2)}, {vr(92+12+2*p,2)}")
for j in (2, 1, 0):
    for r in range(4):
        for p in range(2): e(f"v_pk_fma_f32 {vr(108+4*r+2*p,2)}, {vr(64+4*(r+3-j)+2*p,2)}, {vr(92+4*j+2*p,2)}, {vr(108+4*r+2*p,2)}")
e(f"s_waitcnt vmcnt({1 if LATE else 6})")
for r in range(4):
    for c in range(4): unpack(64+4*r+c, 30+2*r, c)
for r in range(4):
    for p in range(2): e(f"v_pk_mul_f32 {vr(108+4*r+2*p,2)}, {vr(108+4*r+2*p,2)}, {vr(64+4*r+2*p,2)}")
for c in range(4):
    e(f"v_cvt_pk_bf16_f32 v{80+2*c}, v{108+c}, v{112+c}")
    e(f"v_cvt_pk_bf16_f32 v{81+2*c}, v{116+c}, v{120+c}")
    e(f"ds_write_b64 v13, {vr(80+2*c,2)} offset:{128*c}")
assert LATE
e("s_and_b32 s15, s2, 0xc7"); e("s_or_b32 s15, s15, s11"); e("s_cmp_lg_u32 s15, 0"); e("s_cbranch_scc1 L_noinit")
e("s_waitcnt vmcnt(0)")
e("v_add_u32 v132, 1, v254"); e("v_lshlrev_b32 v132, 6, v132"); e(f"v_lshrrev_b32 v133, {LSP}, v2"); e(f"v_lshlrev_b32 v133, {10+LSP}, v133")
e(f"v_and_b32 v134, {SPG-1}, v2"); e("v_lshl_add_u32 v133, v134, 7, v133")
e(f"s_lshl_b32 s15, s2, {4+LSP}"); e(f"s_add_u32 s15, s15, {FL2_OFF:#x}")
e(f"s_mov_b32 exec_lo, {((1 << (NREP*SPG)) - 1) & 0xffffffff:#x}"); e(f"s_mov_b32 exec_hi, {((1 << (NREP*SPG)) - 1) >> 32:#x}")
e(f"buffer_store_dword v132, v133, {SWS}, s15 offen sc1")
e("s_mov_b64 exec, -1")
lab("L_noinit")
e("s_cmp_ge_u32 s2, 32"); e("s_cbranch_scc1 L_noinit3"); e("s_cmp_lg_u32 s11, 1"); e("s_cbranch_scc1 L_noinit3")
e("s_waitcnt vmcnt(0)")
e("v_add_u32 v132, 1, v254"); e("v_lshlrev_b32 v132, 6, v132")
e("s_lshl_b32 s15, s2, 9"); e(f"s_add_u32 s15, s15, {FL3_OFF:#x}")
e("v_lshlrev_b32 v133, 7, v2"); e("s_mov_b64 exec, 7")
e(f"buffer_store_dword v132, v133, {SWS}, s15 offen sc1")
e("s_mov_b64 exec, -1")
lab("L_noinit3")
mark(7, "p1")
e("s_waitcnt lgkmcnt(0)"); e("s_barrier")
mark(8, "p1")
e("ds_read_b128 v[28:31], v124"); e("ds_read_b128 v[32:35], v125 offset:1024")
e("s_waitcnt lgkmcnt(1)")
e(f"buffer_store_dwordx4 v[28:31], v126, {SWS}, s18 offen sc1")
e("s_waitcnt lgkmcnt(0)")
e(f"buffer_store_dwordx4 v[32:35], v126, {SWS}, s19 offen sc1")
def toeplitz_regs(waitn):
    e("s_mov_b32 s15, 0xffff")
    e("v_cmp_ne_u32 vcc, 255, v3")
    e(f"v_add_u32 v16, {RB}, v6")
    e(f"s_waitcnt vmcnt({waitn})")
    mark(9, "p1")
    e("v_add_u32 v254, 1, v254")
    for ch in range(2):
        b = 226 + 8*ch
        e(f"v_cndmask_b32 v{b}, 0, v{b}, vcc"); e(f"v_cndmask_b32 v{b+1}, 0, v{b+1}, vcc")
        w = lambda i: f"v{b+2+i}"
        o = 40 + 16*ch
        for n, i in enumerate((2, 1, 0, -1)): e(f"v_bfi_b32 v{o+n}, s15, {w(i)}, {w(i-1)}")
        for n, i in enumerate((2, 1, 0, -1)): e(f"v_alignbit_b32 v{o+4+n}, {w(i)}, {w(i)}, 16")
        for n, i in enumerate((3, 2, 1, 0)): e(f"v_bfi_b32 v{o+8+n}, s15, {w(i)}, {w(i-1)}")
        for n, i in enumerate((3, 2, 1, 0)): e(f"v_alignbit_b32 v{o+12+n}, {w(i)}, {w(i)}, 16")
    e("v_readfirstlane_b32 s9, v254")
if not LATE: toeplitz_regs(2)
for r in range(4): e(f"v_mov_b32 v{72+r}, 0")
e("v_lshrrev_b32 v17, 5, v3"); e(f"v_mul_u32_u24 v17, {CH_L}, v17"); e("v_and_b32 v18, 31, v3"); e("v_lshl_add_u32 v17, v18, 4, v17")
e(f"v_add_u32 v17, {RB+HREG}, v17")
e("v_bfe_u32 v18, v3, 4, 1"); e(f"v_mul_u32_u24 v18, {CH_L}, v18"); e("v_bfe_u32 v19, v3, 2, 2"); e(f"v_mul_u32_u24 v19, {CP}, v19")
e("v_add_u32 v18, v18, v19"); e("v_and_b32 v19, 3, v3"); e("v_lshl_add_u32 v18, v19, 4, v18"); e(f"v_add_u32 v18, {RB+4096}, v18")
e("s_lshl_b32 s16, s4, 5"); e("s_lshl_b32 s17, s21, 4"); e("s_add_u32 s16, s16, s17")
e("v_and_b32 v20, 15, v2"); e("v_add_u32 v20, s16, v20"); e("v_lshlrev_b32 v20, 7, v20"); e(f"v_add_u32 v20, {FL1_OFF:#x}, v20")
e(f"s_mul_i32 s24, s22, {RS}"); e("s_lshl_b32 s25, s21, 11"); e("s_add_u32 s24, s24, s25")
e(f"s_mul_i32 s23, s20, {CH_L}"); e(f"s_add_u32 s23, s23, {RB}")
e(f"s_add_u32 s26, s23, {HREG+512}"); e("s_add_u32 s26, s26, s25")
e("v_lshlrev_b32 v5, 4, v2")
if LATE: ssm_loads()
e(f"s_waitcnt vmcnt({5 if LATE else 0})")
mark(10, "p1")
e("s_barrier")
mark(2)
if LATE: toeplitz_regs(0)
for ch in range(2):
    for kap in range(4): e(f"ds_write_b128 v16, {vr(40+16*ch+4*kap,4)} offset:{ch*CH_L + kap*CP}")
e("s_cmp_lg_u32 s11, 0"); e("s_cbranch_scc1 L_nopad")
e("ds_write_b128 v17, v[72:75]")
e("s_mov_b32 exec_hi, 0")
e("ds_write_b128 v18, v[72:75]")
lab("L_nopad")
e("s_mov_b64 exec, -1")
e("s_waitcnt lgkmcnt(0)")
e("s_barrier")
e("s_mov_b32 m0, s26")
e("s_nop 0")
e(f"buffer_load_dwordx4 v5, {SWS}, s24 offen sc1 lds")
e(f"buffer_load_dwordx4 v5, {SWS}, s24 offen offset:1024 sc1 lds")
e("s_sub_u32 s24, s24, s25"); e("s_xor_b32 s31, s21, 1"); e("s_lshl_b32 s15, s31, 11"); e("s_add_u32 s24, s24, s15")
e("s_lshl_b32 s15, s11, 11"); e(f"s_add_u32 m0, s15, {Q_L}"); e(f"s_add_u32 s24, s24, {QT_OFF-KVT_OFF:#x}")
e(f"buffer_load_dwordx4 v5, {SWS}, s24 offen sc1 lds")
e(f"buffer_load_dwordx4 v5, {SWS}, s24 offen offset:1024 sc1 lds")
mark(3)
e("v_and_b32 v6, 15, v2"); e("v_lshrrev_b32 v7, 4, v2")
e("v_lshlrev_b32 v8, 4, v6"); e("v_lshl_add_u32 v8, v7, 2, v8")
e("v_and_b32 v32, 3, v6"); e(f"v_mul_u32_u24 v32, {CP}, v32")
e("v_lshrrev_b32 v33, 2, v6"); e("v_lshlrev_b32 v33, 3, v33"); e("v_lshl_add_u32 v33, v7, 4, v33")
e("v_sub_u32 v32, v32, v33")
e("s_lshl_b32 s15, s21, 8"); e("s_sub_u32 s16, s23, s15")
e(f"s_add_u32 s17, s16, {2*2052 - 512*7 - 64*3}"); e("v_add_u32 v32, s17, v32")
e("v_lshlrev_b32 v33, 5, v6"); e("v_lshlrev_b32 v34, 4, v7"); e("v_sub_u32 v33, v33, v34")
e(f"s_add_u32 s17, s16, {HREG + 512 + 16 - 64*3}"); e("v_add_u32 v33, s17, v33")
e("v_lshlrev_b32 v9, 1, v8")
e("s_lshl_b32 s15, s11, 12"); e(f"s_add_u32 s15, s15, {EX_L}"); e("s_xor_b32 s16, s11, 1"); e("s_lshl_b32 s16, s16, 12"); e(f"s_add_u32 s16, s16, {EX_L}")
e("v_add_u32 v34, s15, v5"); e("v_add_u32 v35, s16, v5")
e("v_add_u32 v12, s26, v9")
e("s_lshl_b32 s17, s11, 11"); e(f"s_add_u32 s17, s17, {Q_L}"); e("v_add_u32 v10, s17, v9")
e("s_lshl_b32 s17, s31, 13"); e(f"s_add_u32 s17, s17, {ST_L}"); e("v_add_u32 v13, s17, v5")
e("v_and_b32 v14, 7, v6"); e("v_lshlrev_b32 v14, 1, v14"); e("v_lshrrev_b32 v15, 1, v7"); e("v_add_u32 v14, v14, v15")
e("s_and_b32 s15, s22, 3"); e("s_lshl_b32 s15, s15, 2"); e("v_xor_b32 v14, s15, v14")
e("v_lshlrev_b32 v14, 4, v14")
e("v_lshrrev_b32 v15, 3, v6"); e("v_lshl_add_u32 v14, v15, 17, v14")
e("v_and_b32 v15, 1, v7"); e("v_lshl_add_u32 v14, v15, 18, v14")
e("s_lshl_b32 s18, s22, 8"); e("s_lshl_b32 s17, s31, 20"); e("s_add_u32 s18, s18, s17"); e(f"s_add_u32 s18, s18, {HT_OFF:#x}")
e(f"s_add_u32 s19, s18, {4*131072}")
e("s_lshl_b32 s15, s11, 2"); e(f"s_add_u32 s15, s15, {FLG_L}"); e("v_mov_b32 v16, s15"); e("s_xor_b32 s15, s15, 4"); e("v_mov_b32 v17, s15")
e(f"v_mov_b32 v18, {FLG_L+16}"); e("v_mov_b32 v19, 1")
e("v_subrev_u32 v20, 8, v2"); e("v_and_b32 v21, 7, v2")
e("v_lshrrev_b32 v22, 16, v240"); e("v_and_b32 v23, 1, v21"); e("v_lshlrev_b32 v23, 4, v23"); e("v_lshlrev_b32 v22, v23, v22")
e("v_cmp_gt_u32 vcc, 16, v20"); e("v_lshrrev_b32 v21, 1, v21"); e("s_nop 0"); e("v_cndmask_b32 v22, 0, v22, vcc")
for dw in range(4):
    e(f"v_cmp_eq_u32 vcc, {dw}, v21"); e("s_nop 1"); e(f"v_cndmask_b32 v{232+dw}, 0, v22, vcc")
ACC = 36; FA = [72, 136]; FB = [104, 168]
lg = Trk("lgkmcnt", 14)
def creads(rr, buf):
    lst = []
    for i in range(8):
        off = 512*(7-i) + 64*(3-rr)
        lst.append((f"ds_read_b128 {vr(FB[buf]+4*i,4)}, v33 offset:{512*i + 64*(3-rr)}", ("B", rr, i)))
        lst.append((f"ds_read_b64 {vr(FA[buf]+4*i,2)}, v32 offset:{off}", ("A", rr, i)))
        lst.append((f"ds_read_b64 {vr(FA[buf]+4*i+2,2)}, v32 offset:{off+8}", ("A", rr, i)))
    return lst
first = creads(0, 0)
for s, t in first:
    if t[0] == "A": e(s)
if "cprio" in X: e("s_setprio 2")
e("s_waitcnt vmcnt(2) lgkmcnt(0)"); e("s_barrier")
mark(4)
for s, t in first:
    if t[0] == "B": e(s); lg.add(t)
pend = []
pairs = sorted([(i, j) for i in range(8) for j in range(8 - i)], key=lambda p: (max(p), p[0] + p[1]))
started = set()
def mf(rr, i, j):
    global pend
    buf = rr & 1; t = i + j
    while any(x[1] in (("A", rr, i), ("B", rr, j)) for x in pend):
        s_, tg = pend.pop(0); e(s_); lg.add(tg)
    lg.wait(("A", rr, i), ("B", rr, j))
    c = vr(ACC+4*t, 4) if t in started else "0"
    started.add(t)
    e(f"v_mfma_f32_16x16x32_bf16 {vr(ACC+4*t,4)}, {vr(FA[buf]+4*i,4)}, {vr(FB[buf]+4*j,4)}, {c}")
for rr in range(3):
    pend = pend + creads(rr+1, (rr & 1) ^ 1)
    npend = len(pend)
    for n, (i, j) in enumerate(pairs):
        mf(rr, i, j)
        want = npend - (npend * (n + 1)) // int(os.environ.get("SPR", "32"))
        while len(pend) > max(want, 0):
            s_, tg = pend.pop(0); e(s_); lg.add(tg)
        if rr == 2 and n == 26:
            e("ds_read_b128 v[20:23], v18"); lg.add("aux")
        if rr == 2 and n == 32:
            lg.wait("aux"); e("v_and_b32 v20, v20, v21")
        if rr == 2 and n == 33: e("v_and_b32 v22, v22, v23")
        if rr == 2 and n == 34: e("v_and_b32 v20, v20, v22")
        if rr == 2 and n == 35: e("v_cmp_ne_u32 vcc, 1, v20")
    if rr == 0:
        e("s_cmp_lg_u32 s21, 0"); e("s_cbranch_scc1 L_nodiag")
        for t in range(8): e(f"v_mfma_f32_16x16x32_bf16 {vr(ACC+4*t,4)}, v[232:235], {vr(FB[0]+4*t,4)}, {vr(ACC+4*t,4)}")
        lab("L_nodiag")
assert not pend
e("s_cbranch_vccz L_auxok")
lab("L_aux")
e("ds_read_b128 v[20:23], v18")
e("s_waitcnt lgkmcnt(0)")
e("v_and_b32 v20, v20, v21"); e("v_and_b32 v22, v22, v23"); e("v_and_b32 v20, v20, v22")
e("v_cmp_ne_u32 vcc, 1, v20")
e("s_cbranch_vccnz L_aux")
lab("L_auxok")
e("s_waitcnt vmcnt(0) lgkmcnt(0)")
mark(7, "p2")
e("s_cmp_eq_u32 s21, 0"); e("s_cbranch_scc1 L_conv_h0")
QN = 200; T0 = 216
for hf in (1, 0):
    if hf == 0: lab("L_conv_h0")
    keep = 4*(1-hf); send = 4*hf
    def rr_order(lo):
        qs = [[p for p in pairs if p[0]+p[1] == t] for t in range(lo+3, lo-1, -1)]
        out = []
        while any(qs):
            qs.sort(key=lambda q: -len(q))
            k = [q for q in qs if q and (not out or q[0][0]+q[0][1] != out[-1][0]+out[-1][1])] or [q for q in qs if q]
            out.append(k[0].pop(0))
        return out
    order = rr_order(send) + rr_order(keep)
    if "oldorder" in X: order = [p for p in pairs if send <= p[0]+p[1] < send+4] + [p for p in pairs if keep <= p[0]+p[1] < keep+4]
    nsend = len([p for p in pairs if send <= p[0]+p[1] < send+4])
    lg.clear()
    fill = []
    for u in range(4):
        fill.append(("ld", f"ds_read_b64 {vr(80+2*u,2)}, v10 offset:{512*u}", ("e", u)))
        fill.append(("ld", f"ds_read_b128 {vr(88+8*u,4)}, v13 offset:{2048*u}", ("e", u)))
        fill.append(("ld", f"ds_read_b128 {vr(92+8*u,4)}, v13 offset:{2048*u+1024}", ("e", u)))
    valu = []
    for u in range(4):
        for r in range(4):
            qs = 80 + 2*u + (r >> 1); tq = T0+4*u+r
            valu.append((u, f"v_and_b32 v{tq}, s14, v{qs}" if r & 1 else f"v_lshlrev_b32 v{tq}, 16, v{qs}"))
        for r in range(4):
            valu.append((u, f"v_fma_f32 v{QN+4*u+r}, v{T0+4*u+r}, v{88+8*u+2*r}, v{89+8*u+2*r}"))
    wr = [f"ds_write_b128 v34, {vr(ACC+4*send+4*u,4)} offset:{1024*u}" for u in range(4)] + ["ds_write_b32 v16, v19"]
    for n, (i, j) in enumerate(order):
        t = i + j
        e(f"v_mfma_f32_16x16x32_bf16 {vr(ACC+4*t,4)}, {vr(FA[1]+4*i,4)}, {vr(FB[1]+4*j,4)}, {vr(ACC+4*t,4)}")
        if n >= nsend + 4 and wr:
            e(wr.pop(0)); lg.add("w")
            if len(wr) == 1: e(wr.pop(0)); lg.add("w")
        elif fill and n < 6:
            for _ in range(2):
                k_, t_, g_ = fill.pop(0); e(t_); lg.add(g_)
        elif valu:
            u_, t_ = valu.pop(0); lg.wait(("e", u_)); e(t_)
        else: e("s_nop 0")
        if n == 34: e("ds_read_b32 v20, v17"); lg.add("pf")
    while valu:
        u_, t_ = valu.pop(0); lg.wait(("e", u_)); e(t_)
    mark(5)
    n_ = nid()
    lab(f"L_pw{n_}")
    e("s_waitcnt lgkmcnt(0)")
    e("v_cmp_ne_u32 vcc, 1, v20")
    e(f"s_cbranch_vccz L_pwx{n_}")
    e("ds_read_b32 v20, v17")
    e(f"s_branch L_pw{n_}")
    lab(f"L_pwx{n_}")
    mark(8, "p2")
    for u in range(4): e(f"ds_read_b128 {vr(72+4*u,4)}, v35 offset:{1024*u}")
    for u in range(4):
        y = ACC + 4*keep + 4*u
        e(f"s_waitcnt lgkmcnt({3-u})")
        for p in range(2): e(f"v_pk_add_f32 {vr(y+2*p,2)}, {vr(y+2*p,2)}, {vr(72+4*u+2*p,2)}")
        for p in range(2): e(f"v_pk_fma_f32 {vr(y+2*p,2)}, {vr(QN+4*u+2*p,2)}, {vr(y+2*p,2)}, {vr(T0+4*u+2*p,2)}")
        e(f"v_cvt_pk_bf16_f32 v{124+2*u}, v{y}, v{y+1}")
        e(f"v_cvt_pk_bf16_f32 v{125+2*u}, v{y+2}, v{y+3}")
        if u & 1:
            b = 124 + 2*(u-1)
            e("s_nop 1")
            e(f"v_permlane16_swap_b32 v{b}, v{b+2}"); e(f"v_permlane16_swap_b32 v{b+1}, v{b+3}")
            e(f"buffer_store_dwordx4 {vr(b,4)}, v14, {SWS}, s{18+(u>>1)} offen sc1")
    if hf == 1: e("s_branch L_conv_j")
lab("L_conv_j")
mark(9, "p2")
e("v_and_b32 v3, 15, v2"); e("v_lshrrev_b32 v4, 4, v2"); e("v_lshrrev_b32 v5, 2, v3"); e("v_and_b32 v6, 3, v3")
e("v_lshrrev_b32 v7, 5, v2"); e("v_and_b32 v8, 1, v4"); e("v_lshl_add_u32 v9, v7, 3, v5")
e("v_lshlrev_b32 v10, 8, v9"); e("v_lshl_add_u32 v10, v8, 5, v10"); e("v_lshl_add_u32 v10, v6, 3, v10"); e(f"v_add_u32 v10, {A_L}, v10")
e("v_mul_u32_u24 v12, 192, v9"); e(f"v_mul_u32_u24 v13, {W_U}, v8"); e("v_add_u32 v12, v12, v13"); e("v_lshl_add_u32 v12, v6, 3, v12")
e("s_min_u32 s26, s11, 2"); e("s_lshl_b32 s16, s26, 6"); e(f"s_mul_i32 s17, s10, {32*192}"); e("s_add_u32 s16, s16, s17"); e("v_add_u32 v28, s16, v12")
e("s_mul_i32 s15, s21, 96"); e("v_add_u32 v12, s15, v12")
e("s_lshl_b32 s15, s20, 1"); e("v_xor_b32 v13, s15, v5"); e("v_lshl_add_u32 v13, v13, 6, v10")
e("s_add_u32 s15, s15, 1"); e("v_xor_b32 v18, s15, v5"); e("v_lshl_add_u32 v18, v18, 6, v10")
e("v_mov_b32 v15, v12"); e("v_mov_b32 v16, v13"); e("v_mov_b32 v17, v18")
e("s_waitcnt vmcnt(0)")
mark(10, "p2")
e("s_barrier")
mark(6)
ACC = 64
FR = [20, 40]
def g1reads(ks, buf):
    l = []; b = FR[buf]
    for hh in range(2): l.append(f"ds_read_b64_tr_b16 {vr(b+2*hh,2)}, v15 offset:{(16*ks+4*hh)*192}")
    for hh in range(2): l.append(f"ds_read_b64_tr_b16 {vr(b+12+2*hh,2)}, v16 offset:{4096*ks+1024*hh}")
    for hh in range(2): l.append(f"ds_read_b64_tr_b16 {vr(b+16+2*hh,2)}, v17 offset:{4096*ks+1024*hh}")
    for mb in (1, 2):
        for hh in range(2): l.append(f"ds_read_b64_tr_b16 {vr(b+4*mb+2*hh,2)}, v15 offset:{(16*ks+4*hh)*192+32*mb}")
    return l
e("v_and_b32 v9, 31, v2")
for r in range(20): e(f"v_mov_b32 v{200+r}, 0")
e("s_and_b32 s27, s77, 1"); e("s_lshl_b32 s27, s27, 6"); e("s_lshl_b32 s15, s20, 5"); e("s_add_u32 s27, s27, s15")
e("v_add_u32 v61, s27, v9")
e("v_lshlrev_b32 v62, 2, v61")
e("v_lshrrev_b32 v24, 3, v61"); e("v_and_b32 v25, 7, v61"); e("v_lshlrev_b32 v25, 1, v25"); e("v_lshl_add_u32 v25, v7, 10, v25")
for j in range(4):
    e(f"v_xor_b32 v26, {j<<2}, v24"); e(f"v_lshl_add_u32 v{241+j}, v26, 4, v25")
e("s_lshl_b32 s15, s13, 7"); e("v_add_u32 v245, s15, v61"); e("v_lshlrev_b32 v245, 10, v245"); e("v_lshl_add_u32 v245, v7, 4, v245")
e("v_lshl_add_u32 v24, v7, 2, v5"); e("v_lshlrev_b32 v24, 7, v24"); e("v_lshl_add_u32 v24, v8, 5, v24"); e("v_lshl_add_u32 v24, v6, 3, v24")
e("s_lshl_b32 s15, s21, 13"); e("v_add_u32 v24, s15, v24")
e("v_lshrrev_b32 v25, 3, v3"); e("v_xor_b32 v25, s21, v25"); e("v_lshl_add_u32 v246, v25, 6, v24"); e("v_xor_b32 v25, 1, v25"); e("v_lshl_add_u32 v247, v25, 6, v24")
e("v_lshlrev_b32 v11, 4, v2")
e("s_lshl_b32 s17, s6, 2"); e("s_lshl_b32 s18, s20, 1"); e("s_add_u32 s17, s17, s18"); e(f"s_mul_i32 s17, s17, {HH_KS}")
e("s_lshl_b32 s19, s7, 1"); e("s_add_u32 s19, s19, s21")
e("s_add_u32 s17, s17, s19")
e("s_lshl_b32 s17, s17, 10"); e(f"s_add_u32 s17, s17, {HH_OFF:#x}"); e(f"s_add_u32 s18, s17, {HH_KS*1024}")
e("s_lshl_b32 s15, s6, 1"); e("s_add_u32 s15, s15, s20"); e("s_lshl_b32 s15, s15, 9"); e(f"s_add_u32 s15, s15, {FL3_OFF:#x}"); e("v_mov_b32 v253, s15")
e("v_mov_b32 v248, 1")
RES = 224
for r in range(16): e(f"v_mov_b32 v{RES+r}, 0")
def res_loads():
    e("s_lshl_b32 s30, s13, 17"); e("s_lshl_b32 s16, s28, 14"); e("s_add_u32 s30, s30, s16"); e("s_lshl_b32 s16, s21, 13"); e("s_add_u32 s30, s30, s16")
    e(f"s_add_u32 s30, s30, {HT_OFF:#x}"); e("s_add_u32 s31, s30, 4096")
    for ii in range(4):
        for j in range(4):
            e(f"buffer_load_short_d16_hi v{RES+4*ii+j}, v{241+j}, {SWS}, s{30+(ii>>1)} offen offset:{2048*(ii&1)+256*j} sc1")
def signal(c):
    e("s_mov_b64 exec, 1")
    e(f"buffer_atomic_add v248, v253, {SWS}, 0 offen offset:{128*c} sc1")
    e("s_mov_b64 exec, -1")
e("s_cmp_eq_u32 s7, 15"); e("s_cbranch_scc0 L_c_p3")
def sp_loads():
    e("s_mul_i32 s16, s6, 24576"); e(f"s_add_u32 s16, s16, {CSP_OFF:#x}")
    for m in range(16):
        if m and m % 2 == 0: e("s_add_u32 s16, s16, 3072")
        e(f"buffer_load_dwordx2 {vr(64+2*m,2)}, v28, {SWS}, s16 offen offset:{1536*(m%2)} sc1")
e("s_lshl_b32 s15, s11, 6"); e("v_add_u32 v20, s15, v2"); e("v_lshlrev_b32 v28, 3, v20")
e("v_mov_b32 v248, 0")
e("s_barrier")
e("s_barrier")
sp_loads()
e("s_barrier")
e("s_cmp_eq_u32 s6, 15"); e("s_cbranch_scc1 L_c_sp2"); e("s_cmp_eq_u32 s11, 3"); e("s_cbranch_scc1 L_c_sp2")
e("s_mov_b32 s30, 0x100000")
mark(1, "it2")
lab("L_c_sp1")
e("s_waitcnt vmcnt(0)")
e("v_xor_b32 v50, s9, v65")
for m in range(1, 16):
    e(f"v_xor_b32 v51, s9, v{65+2*m}"); e("v_or_b32 v50, v50, v51")
e("v_cmp_ne_u32 vcc, 0, v50")
e("s_cbranch_vccz L_c_sp1x")
e("s_sub_u32 s30, s30, 1"); e("s_cbranch_scc1 L_c_sp1x")
sp_loads()
e("s_branch L_c_sp1")
lab("L_c_sp1x")
for m in range(1, 16): e(f"v_add_f32 v64, v64, v{64+2*m}")
e("v_mov_b32 v54, 0")
e("v_cvt_pk_bf16_f32 v53, v64, v54")
e("v_lshlrev_b32 v51, 16, v53"); e("v_sub_f32 v51, v64, v51")
e("v_cvt_pk_bf16_f32 v52, v64, v51")
e("v_mov_b32 v55, v254")
e("v_lshlrev_b32 v28, 4, v20"); e("s_mul_i32 s16, s6, 3072"); e(f"s_add_u32 s16, s16, {CSF_OFF:#x}")
e(f"buffer_store_dwordx4 v[52:55], v28, {SWS}, s16 offen sc1")
mark(2, "it2")
lab("L_c_sp2")
if "researly" in X: res_loads()
e("s_barrier"); e("s_barrier")
e("s_branch L_c_p4")
lab("L_c_p3")
for blk in range(2):
    for ks in range(2):
        for hh in range(2): e(f"ds_read_b64_tr_b16 {vr(32+8*blk+4*ks+2*hh,2)}, v28 offset:{(16*ks+4*hh)*192+32*blk}")
e("v_mov_b32 v30, 0"); e("v_mov_b32 v31, 0"); e("s_mov_b32 s27, 0x3f803f80")
e("s_lshl_b32 s16, s7, 4"); e("s_add_u32 s16, s16, s6"); e("s_mul_i32 s16, s16, 1536"); e("s_lshl_b32 s15, s26, 9"); e("s_add_u32 s16, s16, s15"); e(f"s_add_u32 s16, s16, {CSP_OFF:#x}")
e("v_lshlrev_b32 v29, 3, v2")
e("s_waitcnt lgkmcnt(0)")
for r in range(8):
    e(f"v_dot2_f32_bf16 v30, v{32+r}, s27, v30"); e(f"v_dot2_f32_bf16 v31, v{40+r}, s27, v31")
e("s_nop 3")
e("v_permlane32_swap_b32 v30, v31")
e("s_nop 1")
e("v_add_f32 v30, v30, v31")
e("v_mov_b32 v250, v30"); e("v_mov_b32 v251, v254"); e("v_mov_b32 v249, v29")
e("s_cmp_eq_u32 s11, 3"); e("s_cselect_b32 s16, 0x7f000000, s16")
e(f"buffer_store_dwordx2 v[250:251], v249, {SWS}, s16 offen sc1")
for r in range(96): e(f"v_mov_b32 v{ACC+r}, 0")
e("s_mul_i32 s22, s7, 3072"); e("s_mul_i32 s15, s21, 1536"); e("s_add_u32 s22, s22, s15"); e(f"s_add_u32 s22, s22, {CSF_OFF:#x}")
e("s_lshl_b32 s23, s6, 11"); e("s_lshl_b32 s15, s20, 10"); e("s_add_u32 s23, s23, s15"); e(f"s_add_u32 s23, s23, {ST2_OFF:#x}")
e("s_mul_i32 s15, s21, 1536"); e(f"s_add_u32 s15, s15, {CORR_L}"); e("v_add_u32 v19, s15, v11")
e("s_lshl_b32 s15, s20, 10"); e(f"s_add_u32 s15, s15, {CORR_L+3072}"); e("v_add_u32 v14, s15, v11")
e("s_mov_b32 s24, 0"); e("s_mov_b32 s25, 0"); e("s_mov_b32 s26, 0")
e(f"v_add_u32 v220, {WSLOT}, v12"); e(f"v_add_u32 v221, {3*WSLOT}, v12")
e("s_barrier")
if "researly" in X: res_loads()
e("s_barrier")
mark(7)
e("s_cmp_lg_u32 s19, 29"); e("s_cbranch_scc1 L_c_full")
for nb in range(2):
    e(f"s_add_u32 s15, s{17+nb}, {58*1024}")
    e(f"buffer_store_dwordx4 v[64:67], v11, {SWS}, s15 offen sc1")
e("s_waitcnt vmcnt(0)")
for c in range(3): signal(c)
e("s_nop 0"); e("v_mov_b32 v248, 0")
for _ in range(7): e("s_barrier")
e("s_branch L_c_p4")
lab("L_c_full")
for s in g1reads(0, 0): e(s)
def corr_loads():
    e("s_mov_b32 exec_hi, 0")
    for mb in range(3): e(f"buffer_load_dwordx4 {vr(200+4*mb,4)}, v11, {SWS}, s22 offen offset:{512*mb} sc1")
    for nb in range(2): e(f"buffer_load_dwordx4 {vr(212+4*nb,4)}, v11, {SWS}, s23 offen offset:{512*nb} sc1")
    e("s_mov_b64 exec, -1")
lab("L_g1_loop")
for ks in range(4):
    buf = ks & 1
    e("s_waitcnt lgkmcnt(0)")
    if ks == 3:
        e("s_barrier")
    nxt = g1reads((ks+1) & 3, buf ^ 1)
    sched = [3, 3, 2, 2, 0, 0]; p = 0
    for n, (mb, nb) in enumerate([(0,0),(0,1),(1,0),(1,1),(2,0),(2,1)] if "snake" not in X else [(0,0),(0,1),(1,1),(1,0),(2,0),(2,1)]):
        a = ACC + 16*(2*mb+nb)
        if "mf16" in X:
            o = 8*(ks & 1)
            e(f"v_mfma_f32_16x16x32_bf16 {vr(a+o,4)}, {vr(FR[buf]+4*mb,4)}, {vr(FR[buf]+12+4*nb,4)}, {vr(a+o,4)}")
            for _ in range((sched[n]+1)//2): e(nxt[p]); p += 1
            e(f"v_mfma_f32_16x16x32_bf16 {vr(a+o+4,4)}, {vr(FR[buf]+12+4*nb,4)}, {vr(FR[buf]+4*mb,4)}, {vr(a+o+4,4)}")
            for _ in range(sched[n]//2): e(nxt[p]); p += 1
        else:
            e(f"v_mfma_f32_32x32x16_bf16 {vr(a,16)}, {vr(FR[buf]+4*mb,4)}, {vr(FR[buf]+12+4*nb,4)}, {vr(a,16)}")
            for _ in range(sched[n]): e(nxt[p]); p += 1
        if ks == 2 and n == 4:
            e(f"s_add_u32 s25, s25, {WSLOT}"); e(f"s_cmp_eq_u32 s25, {4*WSLOT}"); e("s_cselect_b32 s25, 0, s25")
            e(f"s_add_u32 s26, s26, 16384"); e(f"s_cmp_eq_u32 s26, {3*16384}"); e("s_cselect_b32 s26, 0, s26")
        if ks == 2 and n == 5:
            e("v_add_u32 v15, s25, v12"); e("v_add_u32 v16, s26, v13"); e("v_add_u32 v17, s26, v18")
TC = int(os.environ.get("TC", "2"))
e("s_add_u32 s24, s24, 1"); e(f"s_cmp_lt_u32 s24, {8-TC}"); e("s_cbranch_scc1 L_g1_loop")
vmc = Trk("vmcnt", 63)
SL = [40, 160, 176, 20]
steps = [(5, ks, (0, 1)) for ks in (1, 2, 3)] + [(6, ks, (0,)) for ks in range(4)] + [(7, ks, (0,)) for ks in range(4)] + ["chk", ("c", 0), ("c", 1), ("c", 2)]
steps += [(c, ks, (1,)) for c in (6, 7) for ks in range(4)]
steps += [(5, ks, (2,)) for ks in (1, 2, 3)] + [(c, ks, (2,)) for c in (6, 7) for ks in range(4)]
if TC == 2:
    steps = [(6, ks, (0, 1)) for ks in (1, 2, 3)] + [(7, ks, (0,)) for ks in range(4)] + ["chk", ("c", 0), ("c", 1), ("c", 2)]
    steps += [(7, ks, (1,)) for ks in range(4)] + [(6, ks, (2,)) for ks in (1, 2, 3)] + [(7, ks, (2,)) for ks in range(4)]
real = [x for x in steps if isinstance(x, tuple) and len(x) == 3]
rd = []
seen_chunk = {8-TC}
L1N = real.index((7, 3, (1,)))
C0S = 16 if TC == 3 else 99
for n, (c, ks, mbs) in enumerate(real):
    sl = SL[n % 4]
    wb, wo = {5: ("v220", 0), 6: ("v220", WSLOT), 7: ("v221", 0)}[c]
    ao = (c % 3) * 16384
    if c not in seen_chunk:
        seen_chunk.add(c); rd.append(("BAR", c, n))
    for k_, mb in enumerate(mbs):
        for hh in range(2): rd.append((f"ds_read_b64_tr_b16 {vr(sl+4*k_+2*hh,2)}, {wb} offset:{wo+(16*ks+4*hh)*192+32*mb}", ("A", n, k_), n))
        if k_ == 0:
            for nb in range(2):
                for hh in range(2): rd.append((f"ds_read_b64_tr_b16 {vr(sl+8+4*nb+2*hh,2)}, {('v13','v18')[nb]} offset:{ao+4096*ks+1024*hh}", ("B", n, nb), n))
def c0reads():
    l = []
    for G in range(2):
        for q in range(2):
            for db in range(2):
                b = (64, 80)[G] + 8*q + 4*db; off = (2*G + q)*2048
                for hh in range(2): l.append(f"ds_read_b64_tr_b16 {vr(b+2*hh,2)}, {('v246','v247')[db]} offset:{off+1024*hh}")
    return l
c0l = c0reads(); rd2 = []
for idx_, x_ in enumerate(rd):
    rd2.append(x_)
    if x_[2] >= C0S and (idx_ + 1 == len(rd) or rd[idx_+1][2] != x_[2]):
        for _ in range(4):
            if c0l: rd2.append((c0l.pop(0), "c0", x_[2]))
C0LATE = bool(c0l)
rd = rd2
def pop_read():
    x = rd.pop(0)
    if x[0] == "BAR":
        e("s_barrier")
        if x[1] == 7:
            e("s_mov_b32 exec_hi, 0")
            for mb in range(3): e(f"ds_read_b128 {vr(200+4*mb,4)}, v19 offset:{512*mb}"); lg.add("corr")
            for nb in range(2): e(f"ds_read_b128 {vr(212+4*nb,4)}, v14 offset:{512*nb}"); lg.add("corr")
            e("s_mov_b64 exec, -1")
    else:
        if x[1] == "c0": assert not epq and vmc.q.count(("st", 0)) in (0, 2)
        e(x[0]); lg.add(x[1])
epq = []; sigq = []; nm = [0]; bar8 = [False]
SIGD = int(os.environ.get("SIGD", "16"))
def epi1(mb, nb):
    a = ACC + 16*(2*mb+nb); l = []
    for r in range(8): l.append(f"v_max_f32 v{a+r}, 0, v{a+r}")
    for r in range(8): l.append(f"v_mul_f32 v{a+r}, v{a+r}, v{a+8+r}")
    for p in range(4): l.append(f"v_cvt_pk_bf16_f32 v{a+8+p}, v{a+2*p}, v{a+2*p+1}")
    l.append(("ST", mb, nb))
    return l
def emit_ep(x):
    if isinstance(x, tuple):
        _, mb, nb = x; a = ACC + 16*(2*mb+nb)
        e(f"s_add_u32 s15, s{17+nb}, {29*1024*mb}")
        e(f"buffer_store_dwordx4 {vr(a+8,4)}, v11, {SWS}, s15 offen sc1"); vmc.add(("st", mb))
        if nb == 1: sigq.append((nm[0] + SIGD, mb))
    else: e(x)
def gap(cur):
    nm[0] += 1
    k = 0
    while rd and k < (5 if 14 <= cur <= 17 else 3) and rd[0][2] <= cur + int(os.environ.get("LA", "2")):
        pop_read(); k += 1
    if not rd and not bar8[0] and k == 0:
        e("s_waitcnt lgkmcnt(0)"); lg.clear()
        if C0LATE and "c0b8" in X:
            for t_ in c0reads(): e(t_)
        e("s_barrier"); bar8[0] = True
        if "cp3" in X: e("s_setprio 3")
    GV = int(os.environ.get("GV", "7"))
    while epq and k < GV:
        short = epq[0][0] - len(L)
        if short > 0:
            p_ = min(short, GV - k)
            e(f"s_nop {p_-1}"); L.extend(["    ; pad"] * (p_ - 1)); k += p_
            continue
        emit_ep(epq.pop(0)[1]); k += 1
    if sigq and sigq[0][0] <= nm[0]:
        c = sigq.pop(0)[1]; vmc.wait(("st", c)); signal(c); vmc.add("sg")
lg.clear()
e("s_waitcnt lgkmcnt(0)")
for mb in range(3):
    for nb in range(2):
        a = ACC + 16*(2*mb+nb)
        e(f"v_mfma_f32_32x32x16_bf16 {vr(a,16)}, {vr(20+4*mb,4)}, {vr(32+4*nb,4)}, {vr(a,16)}")
        gap(-1)
n = -1
lastn = {0: "c", 1: L1N, 2: len(real) - 1}
for x in steps:
    if x == "chk":
        lg.wait("corr")
        e("s_mov_b32 s30, 0x100000")
        mark(1, "it2")
        lab("L_corr")
        e("v_xor_b32 v60, s9, v203")
        for r in (207, 211, 215, 219):
            e(f"v_xor_b32 v63, s9, v{r}"); e("v_or_b32 v60, v60, v63")
        e("v_cmp_ne_u32 vcc, 0, v60")
        e("s_cmp_eq_u32 vcc_lo, 0"); e("s_cbranch_scc1 L_corrx")
        e("s_sub_u32 s30, s30, 1"); e("s_cbranch_scc1 L_corrx")
        corr_loads()
        e("s_waitcnt vmcnt(0)")
        e("s_branch L_corr")
        lab("L_corrx")
        mark(2, "it2")
        for r in (203, 207, 211, 215, 219): e(f"v_mov_b32 v{r}, 0")
        e("s_nop 1")
        continue
    if x[0] == "c":
        mb = x[1]
        for nb in range(2):
            a = ACC + 16*(2*mb+nb)
            e(f"v_mfma_f32_32x32x16_bf16 {vr(a,16)}, {vr(200+4*mb,4)}, {vr(212+4*nb,4)}, {vr(a,16)}")
            if lastn[mb] == "c": epq += [(len(L) + 12, t) for t in epi1(mb, nb)]
            gap(n)
        continue
    n += 1
    c, ks, mbs = x; sl = SL[n % 4]
    for k_, mb in enumerate(mbs):
        for nb in range(2):
            need = [("A", n, k_), ("B", n, nb)]
            while any(y[1] in need for y in rd): pop_read()
            lg.wait(*need)
            a = ACC + 16*(2*mb+nb)
            e(f"v_mfma_f32_32x32x16_bf16 {vr(a,16)}, {vr(sl+4*k_,4)}, {vr(sl+8+4*nb,4)}, {vr(a,16)}")
            if lastn[mb] == n: epq += [(len(L) + 12, t) for t in epi1(mb, nb)]
            gap(n if (k_ == len(mbs) - 1 and nb == 1) else n - 1 + 1 - 0 if False else (n if (k_ == len(mbs)-1 and nb == 1) else n) )
assert bar8[0] and not rd
mark(8); mark(3, "it2")
while epq:
    short = epq[0][0] - len(L)
    if short > 0:
        e(f"s_nop {short-1}"); L.extend(["    ; pad"] * (short - 1))
    emit_ep(epq.pop(0)[1])
while sigq and sigq[0][1] < 2:
    c = sigq.pop(0)[1]; vmc.wait(("st", c)); signal(c); vmc.add("sg")
mark(4, "it2")
if C0LATE:
    if "c0b8" not in X:
        for t_ in c0reads(): e(t_)
    e("s_waitcnt lgkmcnt(0)")
e("s_branch L_c_p4b")
lab("L_c_p4")
for t_ in c0reads(): e(t_)
e("s_waitcnt lgkmcnt(0)"); e("s_barrier")
lab("L_c_p4b")
e("s_lshl_b32 s25, s77, 1"); e("s_add_u32 s25, s25, s20")
e(f"s_mul_i32 s25, s25, {HH_KS*1024}"); e("s_lshl_b32 s16, s21, 12"); e("s_add_u32 s25, s25, s16"); e(f"s_add_u32 s25, s25, {HH_OFF:#x}")
e("s_lshl_b32 s27, s28, 7"); e("s_lshl_b32 s15, s21, 6"); e("s_add_u32 s27, s27, s15")
ACC = 160
FR = [64, 80, 192]
PD = int(os.environ.get("PD", "2"))
e("v_add_u32 v52, 0x10000, v246"); e("v_add_u32 v53, 0x10000, v247"); e("v_add_u32 v54, 0x20000, v246"); e("v_add_u32 v55, 0x20000, v247")
def g2reads(G):
    i = G >> 1; slot = i % 10; l = []
    base = [("v246", "v247"), ("v52", "v53"), ("v54", "v55")][slot >> 2]
    for q in range(2):
        ks = 2*(G & 1) + q
        for db in range(2):
            b = FR[G % 3] + 8*q + 4*db
            off = (slot & 3)*16384 + ks*2048
            l.append((f"ds_read_b64_tr_b16 {vr(b,2)}, {base[db]} offset:{off}", ("W", G, q, db)))
            l.append((f"ds_read_b64_tr_b16 {vr(b+2,2)}, {base[db]} offset:{off+1024}", ("W", G, q, db)))
    return l
lg.clear()
if "resq0" in X: res_loads()
if "sig2late" not in X:
    e(f"s_waitcnt vmcnt({16 if 'resq0' in X else 0})"); signal(2)
mark(9); mark(7, "it2")
e("s_barrier")
mark(8, "it2"); mark(1, "p4")
vm = Trk("vmcnt", 63)
NHR = 4; HB = 96
NH0 = int(os.environ.get("NH0", "3"))
def hh1(i, q):
    if q == 0: e(f"s_add_u32 s17, s25, {i*8192}")
    e(f"buffer_load_dwordx4 {vr(HB+16*(i % NHR)+4*q,4)}, v11, {SWS}, s17 offen offset:{1024*q} sc1"); vm.add(("HH", i, q))
hq = [(i, q) for i in range(11) for q in range(4)]
for _ in range(4*NH0): hh1(*hq.pop(0))
if "sig2late" in X:
    e(f"s_waitcnt vmcnt({4*NH0 + (16 if 'resq0' in X else 0)})")
    signal(2); vm.add("sg")
mark(10)
assert PD == 2
Q1G = int(os.environ.get("Q1G", "1")); Q2G = int(os.environ.get("Q2G", "8"))
for G in range(20):
    i = G >> 1
    if G in (1, 6, 12, 16, 18, 20): mark(2 + (1, 6, 12, 16, 18, 20).index(G), "p4")
    if G == Q1G: e("s_barrier")
    if G == Q2G: e("s_barrier")
    allowed = 2 if G < Q1G else 6 if G < Q2G else 10
    if G == 2: mark(9, "it2")
    if G == 12: mark(10, "it2")
    nxt = g2reads(G+PD) if G + PD < 22 else []
    p = 0
    for q in range(2):
        ks = 2*(G & 1) + q
        vm.wait(("HH", i, ks))
        for db in range(2):
            lg.wait(("W", G, q, db))
            b = FR[G % 3] + 8*q + 4*db
            c = vr(ACC+16*db, 16) if (G or q) else "0"
            e(f"v_mfma_f32_32x32x16_bf16 {vr(ACC+16*db,16)}, {vr(b,4)}, {vr(HB+16*(i % NHR)+4*ks,4)}, {c}")
            for _ in range(2):
                if p < len(nxt): e(nxt[p][0]); lg.add(nxt[p][1]); p += 1
            if hq and hq[0][0] <= allowed and 4*hq[0][0] + hq[0][1] <= 4*(i + NH0) + ks: hh1(*hq.pop(0))
    if G == 17:
        if "researly" not in X and "resq0" not in X:
            res_loads(); vm.add("res", 16)
        e("s_lshl_b32 s15, s13, 9"); e(f"s_add_u32 s15, s15, {R2_OFF:#x}")
        e(f"buffer_load_dword v240, v62, {SWS}, s15 offen sc1"); vm.add("res")
e("s_lshl_b32 s15, s11, 12"); e("s_add_u32 s15, s15, 16384"); e("s_xor_b32 s16, s15, 4096")
e("v_add_u32 v56, s15, v11"); e("v_add_u32 v57, s16, v11")
FULL = "nofull" not in X
if FULL:
    e("s_lshl_b32 s15, s21, 2"); e("v_add_u32 v58, s15, v7"); e("v_and_b32 v59, 7, v2"); e("v_xor_b32 v58, v58, v59"); e("v_xor_b32 v60, 2, v58")
    e("s_lshl_b32 s15, s20, 12"); e("s_add_u32 s15, s15, 32768"); e("v_lshlrev_b32 v63, 7, v9"); e("v_add_u32 v63, s15, v63")
    e("v_lshl_add_u32 v58, v58, 4, v63"); e("v_lshl_add_u32 v60, v60, 4, v63")
    e("v_lshrrev_b32 v63, 3, v2"); e("v_xor_b32 v242, v59, v63"); e("v_lshlrev_b32 v242, 4, v242"); e("v_lshl_add_u32 v242, v63, 7, v242")
    e("s_lshl_b32 s15, s11, 11"); e("s_add_u32 s15, s15, 32768"); e("v_add_u32 v242, s15, v242")
    e("v_lshlrev_b32 v243, 10, v63"); e("v_lshl_add_u32 v243, v59, 4, v243")
    e("s_lshl_b32 s27, s77, 16"); e("s_lshl_b32 s15, s11, 14"); e("s_add_u32 s27, s27, s15"); e("s_lshl_b32 s15, s28, 7"); e("s_add_u32 s27, s27, s15")
    e("s_add_u32 s26, s27, 8192")
for db in (1, 0):
    for G in (20, 21):
        for q in range(2):
            ks = 2*(G & 1) + q
            vm.wait(("HH", 10, ks)); lg.wait(("W", G, q, db))
            b = FR[G % 3] + 8*q + 4*db
            e(f"v_mfma_f32_32x32x16_bf16 {vr(ACC+16*db,16)}, {vr(b,4)}, {vr(HB+16*(10 % NHR)+4*ks,4)}, {vr(ACC+16*db,16)}")
            if db == 0 and G == 20: e("s_nop 5")
            if db == 0 and G == 21:
                for u in (2*q, 2*q+1): e(f"ds_write_b128 v56, {vr(ACC+16+4*u,4)} offset:{1024*u}")
mark(8, "p4")
e("s_waitcnt vmcnt(0) lgkmcnt(0)")
e("s_barrier")
mark(9, "p4")
for u in range(4): e(f"ds_read_b128 {vr(64+4*u,4)}, v57 offset:{1024*u}")
e("v_mov_b32 v241, v240")
e("s_nop 5")
for u in range(4):
    e(f"s_waitcnt lgkmcnt({3-u})")
    for p in range(2): e(f"v_pk_add_f32 {vr(ACC+4*u+2*p,2)}, {vr(ACC+4*u+2*p,2)}, {vr(64+4*u+2*p,2)}")
    for p in range(2): e(f"v_pk_fma_f32 {vr(ACC+4*u+2*p,2)}, {vr(ACC+4*u+2*p,2)}, v[240:241], {vr(RES+4*u+2*p,2)}")
    for p in range(2): e(f"v_cvt_pk_bf16_f32 v{32+2*u+p}, v{ACC+4*u+2*p}, v{ACC+4*u+2*p+1}")
    if u & 1:
        b = 32 + 2*(u-1)
        e("s_nop 1")
        e(f"v_permlane32_swap_b32 v{b}, v{b+2}"); e(f"v_permlane32_swap_b32 v{b+1}, v{b+3}")
        if FULL: e(f"ds_write_b128 v{58 if u == 1 else 60}, {vr(b,4)}")
        else: e(f"buffer_store_dwordx4 {vr(b,4)}, v245, {SOUT}, s27 offen offset:{16*(u-1)}{os.environ.get('OUTF', '')}")
if FULL:
    e("s_waitcnt lgkmcnt(0)"); e("s_barrier")
    e("ds_read_b128 v[40:43], v242"); e("ds_read_b128 v[44:47], v242 offset:1024")
    e("s_waitcnt lgkmcnt(1)")
    e(f"buffer_store_dwordx4 v[40:43], v243, {SOUT}, s27 offen{os.environ.get('OUTF', ' sc1')}")
    e("s_waitcnt lgkmcnt(0)")
    e(f"buffer_store_dwordx4 v[44:47], v243, {SOUT}, s26 offen{os.environ.get('OUTF', ' sc1')}")
mark(10, "p4")
endpgm()

lab("L_H")
vm = Trk("vmcnt", 63)
e(f"v_lshlrev_b32 v4, 2, v2"); e(f"v_add_u32 v4, {FLG_L}, v4"); e("v_mov_b32 v5, 0")
e("s_mov_b64 exec, 0xffff")
e("ds_write_b32 v4, v5")
e("s_mov_b64 exec, -1")
e("v_lshlrev_b32 v11, 4, v2")
if "rowb" in X: e("s_mov_b32 s26, s2")
else: e("s_lshl_b32 s26, s31, 3"); e("s_add_u32 s26, s26, s30")
e("s_lshl_b32 s24, s26, 13"); e("s_lshl_b32 s16, s11, 11"); e("s_add_u32 s24, s24, s16")
QR = " nt" if "qrnt" in X else ""
e(f"buffer_load_dwordx4 {vr(56,4)}, v11, {SQ}, s24 offen{QR}"); e(f"buffer_load_dwordx4 {vr(60,4)}, v11, {SQ}, s24 offen offset:1024{QR}")
if "tlb" in X:
    e("s_cmp_lg_u32 s3, 7"); e("s_cbranch_scc1 L_notlb")
    e("v_lshlrev_b32 v46, 20, v2"); e("s_lshl_b32 s15, s2, 7"); e("v_add_u32 v46, s15, v46")
    e("s_mov_b64 exec, 0x3fff")
    e(f"buffer_load_dword v47, v46, {SWS}, 0 offen")
    e("s_mov_b64 exec, 3")
    for n, sr in enumerate((SOUT, SWD, SWG, SWU, SSK)): e(f"buffer_load_dword v{48+n}, v46, {sr}, 0 offen")
    e("s_mov_b64 exec, -1")
    lab("L_notlb")
def emit_all(items):
    for x, t in items:
        for s in x: e(s)
        vm.add(t)
e("v_lshrrev_b32 v12, 3, v2"); e("v_and_b32 v20, 7, v2"); e("v_bfe_u32 v21, v2, 4, 1"); e("v_lshlrev_b32 v21, 2, v21"); e("v_xor_b32 v20, v20, v21")
e("v_lshlrev_b32 v12, 10, v12"); e("v_lshl_add_u32 v12, v20, 4, v12")
e("s_mul_i32 s24, s11, 98304"); e("s_lshl_b32 s16, s28, 7"); e("s_add_u32 s24, s24, s16")
def wd_off(i, jj):
    p0 = 8*i + jj; cl = lambda p: p // 29
    lo, hi = cl(p0), cl(p0 + 6)
    k = lambda c: (p0*49152 - c*1409024) & 0xffffffff
    if lo == hi: return [f"s_add_u32 s15, s24, {k(lo):#x}"]
    thr = -(-(29*hi - p0) // 2)
    return [f"s_cmp_ge_u32 s11, {thr}", f"s_mov_b32 s16, {k(lo):#x}", f"s_cselect_b32 s15, {k(hi):#x}, s16", "s_add_u32 s15, s15, s24"]
def issueWd(i):
    l = []
    for j in range(4):
        pre = wd_off(i, j >> 1) if j % 2 == 0 else []
        if j == 0: pre = [f"s_add_u32 m0, s19, {(i % 10)*16384}"] + pre
        l.append(pre + [f"s_add_u32 s16, s15, {((j & 1)*8192 - 1024*j) & 0xffffffff:#x}", f"buffer_load_dwordx4 v12, {SWD}, s16 offen offset:{1024*j} lds"])
    return [(x, ("Wd", i)) for x in l]
WR = 90
def issueWdR(i):
    r = WR + 16*(i-1); l = []
    for j in range(4):
        pre = wd_off(i, j >> 1) if j % 2 == 0 else ["s_add_u32 s15, s15, 8192"]
        l.append(pre + [f"buffer_load_dwordx4 {vr(r+4*j,4)}, v12, {SWD}, s15 offen"])
    return [(x, ("Wd", i)) for x in l]
def writeWdR(i):
    r = WR + 16*(i-1); off = (i % 10)*16384
    for j in range(4): e(f"ds_write_b128 v{30 + (off >> 16)}, {vr(r+4*j,4)} offset:{(off & 0xffff) + 1024*j}")
RSCH = eval(os.environ.get("RSCH", "{'w':[10], 0:[3,4,5], 2:[9], 7:[6,7,8]}"))
if "wdt0" in X:
    e("s_lshr_b32 s15, s5, 2"); e("s_lshl_b32 s15, s15, 2"); e("s_add_u32 s15, s15, s11"); e(f"s_mul_i32 s15, s15, {43*1024}"); e("s_lshl_b32 s16, s28, 7"); e("s_add_u32 s15, s15, s16")
    e("v_lshlrev_b32 v21, 10, v2")
    e("s_mov_b32 exec_hi, 0x7ff")
    e(f"buffer_load_dword v250, v21, {SWD}, s15 offen")
    e("s_mov_b64 exec, -1")
XT = 1 if "wdt0" in X else 0
e("v_lshlrev_b32 v17, 7, v2")
pass
for j in range(3):
    e(f"v_add_u32 v20, {j*64}, v2")
    e("v_mul_u32_u24 v21, 0x5556, v20"); e("v_lshrrev_b32 v21, 18, v21")
    e("v_mul_u32_u24 v22, 12, v21"); e("v_sub_u32 v22, v20, v22")
    e("v_mul_u32_u24 v21, 2752, v21"); e(f"v_lshl_add_u32 v{14+j}, v22, 4, v21")
    if j: e(f"v_subrev_u32 v{14+j}, {1024*j}, v{14+j}")
e(f"s_mul_i32 s22, s11, {16*2752}"); e("s_mul_i32 s15, s7, 192"); e("s_add_u32 s22, s22, s15")
e(f"s_mul_i32 s23, s11, {16*192}")
e("s_mov_b32 s16, 0x05040100"); e("s_mov_b32 s17, 0x07060302")
e(f"s_waitcnt vmcnt({3+XT})")
mark(1)
for c in range(4):
    sel = "s17" if c & 1 else "s16"
    e(f"v_perm_b32 v{92+2*c}, v{40+(c>>1)}, v{38+(c>>1)}, {sel}")
    e(f"v_perm_b32 v{93+2*c}, v{44+(c>>1)}, v{42+(c>>1)}, {sel}")
    e(f"ds_write_b64 v13, {vr(92+2*c,2)} offset:{128*c}")
mark(7, "p1")
e("s_waitcnt lgkmcnt(0)"); e("s_barrier")
mark(8, "p1")
e("ds_read_b128 v[28:31], v124"); e("ds_read_b128 v[32:35], v125 offset:1024")
e("s_waitcnt lgkmcnt(1)")
e(f"buffer_store_dwordx4 v[28:31], v126, {SWS}, s18 offen sc1")
e("s_waitcnt lgkmcnt(0)")
e(f"buffer_store_dwordx4 v[32:35], v126, {SWS}, s19 offen sc1")
mark(9, "p1")
e(f"s_waitcnt vmcnt({2+XT})")
e("v_add_u32 v254, 1, v254")
e("s_nop 0")
e("v_readfirstlane_b32 s9, v254")
for rr in range(2):
    for c in range(8): unpack(64+8*rr+c, 56+4*rr+2*(c>>2), c & 3)
def tree(dst, base):
    e(f"v_add_f32 v{dst}, v{base}, v{base+1}")
    for c in range(2, 8): e(f"v_add_f32 v{dst}, v{dst}, v{base+c}")
def reduce2(a, b):
    for m in ("row_shr:1", "row_shr:2", "row_shr:4", "row_shr:8"):
        e("s_nop 0")
        e(f"v_add_f32_dpp v{a}, v{a}, v{a} {m} row_mask:0xf bank_mask:0xf bound_ctrl:0")
        e(f"v_add_f32_dpp v{b}, v{b}, v{b} {m} row_mask:0xf bank_mask:0xf bound_ctrl:0")
    for m, rm in (("row_bcast:15", "0xa"), ("row_bcast:31", "0xc")):
        e("s_nop 0")
        e(f"v_add_f32_dpp v{a}, v{a}, v{a} {m} row_mask:{rm} bank_mask:0xf")
        e(f"v_add_f32_dpp v{b}, v{b}, v{b} {m} row_mask:{rm} bank_mask:0xf")
tree(100, 64); tree(101, 72)
e("s_nop 0")
reduce2(100, 101)
e("s_mov_b32 s18, 0x3b000000")
e("v_mul_f32 v100, s18, v100"); e("v_mul_f32 v101, s18, v101")
e("s_nop 0")
e("v_readlane_b32 s16, v100, 63"); e("v_readlane_b32 s17, v101, 63")
e("s_nop 1")
for c in range(8):
    e(f"v_subrev_f32 v{64+c}, s16, v{64+c}"); e(f"v_subrev_f32 v{72+c}, s17, v{72+c}")
e("v_mul_f32 v102, v64, v64"); e("v_mul_f32 v103, v72, v72")
for c in range(1, 8):
    e(f"v_fmac_f32 v102, v{64+c}, v{64+c}"); e(f"v_fmac_f32 v103, v{72+c}, v{72+c}")
e("s_nop 0")
reduce2(102, 103)
e("v_mov_b32 v104, 0x3727c5ac")
e("v_fma_f32 v102, v102, s18, v104"); e("v_fma_f32 v103, v103, s18, v104")
e("v_rsq_f32 v108, v102"); e("v_rsq_f32 v112, v103")
e("v_mov_b32 v110, v254"); e("v_mov_b32 v114, v254"); e("v_mov_b32 v111, v254"); e("v_mov_b32 v115, v254")
e("v_mul_f32 v109, v100, v108"); e("v_mul_f32 v113, v101, v112")
e("v_sub_f32 v109, 0, v109"); e("v_sub_f32 v113, 0, v113")
e("s_lshr_b32 s15, s26, 5"); e("s_lshl_b32 s15, s15, 12"); e("s_lshl_b32 s16, s21, 11"); e("s_add_u32 s15, s15, s16")
e("s_bfe_u32 s16, s26, 0x40001"); e("s_lshl_b32 s16, s16, 5"); e("s_add_u32 s15, s15, s16")
e("s_and_b32 s16, s26, 1"); e("s_lshl_b32 s16, s16, 1"); e("s_add_u32 s16, s16, s20"); e("s_lshl_b32 s16, s16, 9"); e("s_add_u32 s15, s15, s16")
e(f"s_add_u32 s15, s15, {STG_OFF:#x}")
e("s_mov_b32 exec_lo, 0"); e("s_mov_b32 exec_hi, 0x80000000")
e(f"buffer_store_dwordx4 v[108:111], v5, {SWS}, s15 offen sc1")
e(f"buffer_store_dwordx4 v[112:115], v5, {SWS}, s15 offen offset:16 sc1")
e("s_mov_b64 exec, -1")
mark(3)
e("s_waitcnt vmcnt(2)")
mark(10, "p1")
e("s_barrier")
mark(2)
post_flag(FL1_OFF, 4)
if RSCH.get('a'):
    e("s_cmp_eq_u32 s7, 15"); e("s_cbranch_scc1 L_now4")
    for k in RSCH['a']: emit_all(issueWdR(k))
    lab("L_now4")
    vm.clear()
e("s_cmp_lg_u32 s3, 4"); e("s_cbranch_scc1 L_h_np1")
e("s_lshl_b32 s16, s4, 12"); e(f"s_add_u32 s16, s16, {FL1_OFF:#x}"); e("v_add_u32 v7, s16, v17")
e("s_mov_b32 exec_hi, 0")
poll("v7", "v8", "s9", "ap1" in X)
lab("L_h_np1")
e("s_barrier")
e("v_lshlrev_b32 v9, 4, v3")
e("v_lshlrev_b32 v10, 3, v3"); e(f"v_add_u32 v10, {ST_L}, v10")
for j in range(8):
    e(f"s_add_u32 s16, s5, {j}"); e("s_and_b32 s16, s16, 7"); e("s_lshl_b32 s16, s16, 11"); e(f"v_add_u32 v{100+j}, s16, v10")
def issueW(i, emit=True):
    l = []
    l.append([f"s_add_u32 s15, s8, {i}", "s_and_b32 s15, s15, 7", f"s_mul_i32 s15, s15, {64*2752}", "s_add_u32 s15, s15, s22",
              f"s_add_u32 m0, s23, {(i % 4)*WSLOT}", "s_nop 0", f"buffer_load_dwordx4 v14, {SWG}, s15 offen lds"])
    for j in (1, 2): l.append([f"buffer_load_dwordx4 v{14+j}, {SWG}, s15 offen offset:{1024*j} lds"])
    l.append([f"s_add_u32 s15, s8, {i}", "s_and_b32 s15, s15, 7", f"s_mul_i32 s15, s15, {64*2752}", "s_add_u32 s15, s15, s22",
              f"s_add_u32 m0, s23, {(i % 4)*WSLOT + W_U}", "s_nop 0", f"buffer_load_dwordx4 v14, {SWU}, s15 offen lds"])
    for j in (1, 2): l.append([f"buffer_load_dwordx4 v{14+j}, {SWU}, s15 offen offset:{1024*j} lds"])
    return [(x, ("W", i)) for x in l]
def stg_loads():
    for j in range(8):
        e(f"s_add_u32 s16, s5, {j}"); e("s_and_b32 s16, s16, 7"); e("s_lshl_b32 s16, s16, 12"); e(f"s_add_u32 s16, s16, {STG_OFF:#x}")
        e(f"buffer_load_dwordx4 {vr(64+4*j,4)}, v9, {SWS}, s16 offen sc1")
stg_loads()
e("s_barrier")
mark(4)
NWPRE = int(os.environ.get("NWPRE", "3"))
e("s_cmp_eq_u32 s7, 15"); e("s_cbranch_scc1 L_h_now0")
emit_all(issueW(0))
e("s_waitcnt vmcnt(6)")
e("s_branch L_stg0")
lab("L_h_now0")
e("s_waitcnt vmcnt(0)")
lab("L_stg0")
if "noprio" not in X: e("s_setprio 3")
mark(9, "p2")
e("s_mov_b32 s30, 0x100000")
lab("L_stg")
e("v_xor_b32 v50, s9, v66")
for j in range(1, 8):
    e(f"v_xor_b32 v51, s9, v{66+4*j}"); e("v_or_b32 v50, v50, v51")
e("v_cmp_ne_u32 vcc, 0, v50")
e("s_cbranch_vccz L_stgx")
e("s_sub_u32 s30, s30, 1"); e("s_cbranch_scc1 L_stgx")
stg_loads()
e("s_waitcnt vmcnt(0)")
e("s_branch L_stg")
lab("L_stgx")
mark(10, "p2")
for j in range(8): e(f"ds_write_b64 v{100+j}, {vr(64+4*j,2)}")
e("s_lshl_b32 s15, s11, 2"); e(f"s_add_u32 s15, s15, {FLG_L+16}"); e("v_mov_b32 v50, s15"); e("v_mov_b32 v51, 1")
e("ds_write_b32 v50, v51")
if "noprio" not in X: e("s_setprio 0")
mark(5)
def wd_share_touch():
    e("s_lshr_b32 s15, s5, 2"); e("s_lshl_b32 s15, s15, 2"); e("s_add_u32 s15, s15, s11"); e(f"s_mul_i32 s15, s15, {43*1024}"); e("s_lshl_b32 s16, s28, 7"); e("s_add_u32 s15, s15, s16")
    e("v_lshlrev_b32 v21, 10, v2")
    e("s_mov_b32 exec_hi, 0x7ff")
    e(f"buffer_load_dword v250, v21, {SWD}, s15 offen"); vm.add("t")
    e("s_mov_b64 exec, -1")
if "wdt1" in X: wd_share_touch()
if "nowdt" not in X:
    e("s_mul_i32 s15, s2, 5504"); e("s_mul_i32 s16, s11, 1408"); e("s_add_u32 s15, s15, s16")
    e("s_mov_b64 exec, 0x7ff")
    e(f"buffer_load_dword v250, v17, {SWD}, s15 offen"); vm.add("t")
    e("s_mov_b64 exec, -1")
e("s_cmp_eq_u32 s7, 15"); e("s_cbranch_scc1 L_h_now")
for i in range(1, NWPRE): emit_all(issueW(i))
lab("L_h_now")
mark(7, "p2")
e("v_and_b32 v20, 15, v2"); e("v_lshrrev_b32 v21, 4, v2"); e("v_lshrrev_b32 v22, 2, v20"); e("v_and_b32 v23, 3, v20")
e("v_lshrrev_b32 v24, 5, v2"); e("v_and_b32 v25, 1, v21"); e("v_lshl_add_u32 v26, v24, 3, v22")
e("v_lshlrev_b32 v27, 8, v26"); e("v_lshl_add_u32 v27, v25, 5, v27"); e("v_lshl_add_u32 v27, v23, 3, v27")
e("v_xor_b32 v17, s11, v22"); e("v_lshl_add_u32 v17, v17, 6, v27"); e(f"v_add_u32 v17, {A_L}, v17")
e("v_add_u32 v18, 16384, v17"); e("v_add_u32 v19, 32768, v17")
e("v_lshrrev_b32 v7, 3, v2"); e("v_lshlrev_b32 v7, 5, v7"); e("v_and_b32 v8, 7, v2"); e("v_add_u32 v7, v7, v8")
e("s_lshl_b32 s16, s11, 3"); e("v_add_u32 v7, s16, v7"); e("v_lshlrev_b32 v7, 7, v7"); e("s_lshl_b32 s16, s4, 15"); e(f"s_add_u32 s16, s16, {FL2_OFF:#x}"); e("v_add_u32 v7, s16, v7")
e("s_lshl_b32 s26, s6, 17"); e("s_lshl_b32 s19, s11, 12"); e("s_add_u32 s26, s26, s19"); e(f"s_add_u32 s26, s26, {HT_OFF:#x}")
for r in range(4): e(f"v_mov_b32 v{20+r}, 0")
e("s_mov_b32 s27, 0x3f803f80")
e("s_lshl_b32 s16, s77, 9"); e(f"s_add_u32 s16, s16, {FL3_OFF:#x}"); e("v_lshlrev_b32 v34, 7, v2"); e("v_add_u32 v34, s16, v34")
e("s_lshl_b32 s16, s9, 6"); e("s_add_u32 s16, s16, 30"); e("v_and_b32 v35, 2, v2"); e("v_add_u32 v35, s16, v35")
e("s_mov_b32 s29, 0")
def poll3_issue():
    n = nid()
    e("s_cmp_lg_u32 s3, 4"); e(f"s_cbranch_scc1 L_pi{n}")
    e("s_mov_b64 exec, 7"); e("v_mov_b32 v36, 0")
    e(f"buffer_atomic_add v36, v34, {SWS}, 0 offen sc0 sc1")
    e("s_mov_b64 exec, -1")
    lab(f"L_pi{n}")
def poll3_take():
    n = nid()
    e("s_cmp_lg_u32 s3, 4"); e(f"s_cbranch_scc1 L_pt{n}")
    e("s_mov_b64 exec, 7"); e("s_waitcnt vmcnt(0)")
    e("v_cmp_eq_u32 vcc, v35, v36")
    e("s_mov_b64 exec, -1"); e("s_mov_b32 s29, vcc_lo")
    lab(f"L_pt{n}")
def poll3(c):
    n = nid()
    e("s_cmp_lg_u32 s3, 4"); e(f"s_cbranch_scc1 L_p3x{n}")
    e("s_mov_b32 s30, 0x100000")
    e("s_mov_b64 exec, 7")
    lab(f"L_p3{n}")
    e(f"s_bitcmp1_b32 s29, {c}"); e(f"s_cbranch_scc1 L_p3y{n}")
    e("v_mov_b32 v36, 0")
    e(f"buffer_atomic_add v36, v34, {SWS}, 0 offen sc0 sc1")
    e("s_waitcnt vmcnt(0)")
    e("v_cmp_eq_u32 vcc, v35, v36")
    e("s_sub_u32 s30, s30, 1"); e(f"s_cbranch_scc1 L_p3y{n}")
    e("s_mov_b32 s29, vcc_lo")
    e(f"s_branch L_p3{n}")
    lab(f"L_p3y{n}")
    e("s_mov_b64 exec, -1")
    lab(f"L_p3x{n}")
e("v_mov_b32 v118, 1"); e(f"v_lshlrev_b32 v119, {10+LSP}, v2"); e(f"s_lshl_b32 s16, s4, {LSP}"); e(f"s_and_b32 s15, s5, {SPG-1}"); e("s_add_u32 s16, s16, s15"); e("s_lshl_b32 s16, s16, 7"); e(f"s_add_u32 s16, s16, {FL2_OFF:#x}"); e("v_add_u32 v119, s16, v119")
e("v_lshlrev_b32 v120, 7, v2"); e(f"s_and_b32 s16, s2, {NREP-1}"); e(f"s_lshl_b32 s16, s16, {10+LSP}"); e(f"s_add_u32 s16, s16, {FL2_OFF:#x}"); e("v_add_u32 v120, s16, v120")
e("s_lshl_b32 s25, s9, 6"); e(f"s_add_u32 s25, s25, {32//SPG}")
if "g256" in X:
    e("v_lshlrev_b32 v119, 15, v2"); e("s_lshl_b32 s16, s2, 7"); e(f"s_add_u32 s16, s16, {FLX_OFF:#x}"); e("v_add_u32 v119, s16, v119")
    e("v_lshlrev_b32 v120, 7, v2"); e("s_lshl_b32 s16, s4, 15"); e(f"s_add_u32 s16, s16, {FLX_OFF:#x}"); e("v_add_u32 v120, s16, v120")
if RSCH.get('p'):
    e("s_cmp_eq_u32 s7, 15"); e("s_cbranch_scc1 L_now3")
    for k in RSCH['p']: emit_all(issueWdR(k))
    lab("L_now3")
vm.wait(("W", 0))
mark(8, "p2")
e("s_barrier")
mark(6)
if "f256" in X:
    post_flag(FL2_OFF, 4, 8)
    poll("v7", "v8"); vm.clear()
else:
    e("s_cmp_lg_u32 s3, 4"); e("s_cbranch_scc1 L_noadd")
    if "g256" in X:
        e("s_mov_b64 exec, 0xff")
        e(f"buffer_store_dword v254, v119, {SWS}, 0 offen sc1")
    else:
        e(f"s_mov_b32 exec_lo, {(1 << NREP) - 1:#x}"); e("s_mov_b32 exec_hi, 0")
        e(f"buffer_atomic_add v118, v119, {SWS}, 0 offen sc1")
    e("s_mov_b64 exec, -1")
    lab("L_noadd")
    e("s_cmp_eq_u32 s7, 15"); e("s_cbranch_scc1 L_now2")
    for k in range(NWPRE, 4 if "w3it0" not in X else 3): emit_all(issueW(k))
    if "wdt2" in X: wd_share_touch()
    for k in RSCH.get('w', []): emit_all(issueWdR(k))
    lab("L_now2")
    e("s_cmp_lg_u32 s3, 4"); e("s_cbranch_scc1 L_nopoll2")
    if "g256" in X:
        e("s_mov_b32 s30, 0x100000")
        for j in range(4): e(f"s_mov_b64 s[{84+2*j}:{85+2*j}], -1")
        lab("L_g256")
        for j in range(4):
            e(f"s_mov_b64 exec, s[{84+2*j}:{85+2*j}]"); e(f"s_cbranch_execz L_g256s{j}")
            e(f"s_mov_b32 s15, {8192*j}")
            e(f"buffer_load_dword v{40+j}, v120, {SWS}, s15 offen sc1")
            lab(f"L_g256s{j}")
        e("s_waitcnt vmcnt(0)")
        for j in range(4):
            e(f"s_mov_b64 exec, s[{84+2*j}:{85+2*j}]")
            e(f"v_cmp_ne_u32 s[{84+2*j}:{85+2*j}], s9, v{40+j}")
        e("s_mov_b64 exec, -1")
        e("s_sub_u32 s30, s30, 1"); e("s_cbranch_scc1 L_g256x")
        e("s_or_b64 s[92:93], s[84:85], s[86:87]"); e("s_or_b64 s[92:93], s[92:93], s[88:89]"); e("s_or_b64 s[92:93], s[92:93], s[90:91]")
        e("s_cbranch_scc0 L_g256x")
        if int(os.environ.get("GS", "2")): e(f"s_sleep {os.environ.get('GS', '2')}")
        e("s_branch L_g256")
        lab("L_g256x")
    else:
        e(f"s_mov_b32 exec_lo, {(1 << (8*SPG)) - 1:#x}"); e("s_mov_b32 exec_hi, 0")
        poll("v120", "v8", "s25", "ap2" in X)
    lab("L_nopoll2")
e("s_barrier")
e("s_cmp_eq_u32 s7, 15"); e("s_cbranch_scc1 L_h_idle")
def issueA(i, dst=None):
    if dst is None: dst = A_L + (i % 3)*16384
    l = [[f"s_add_u32 s15, s8, {i}", "s_and_b32 s15, s15, 7", "s_lshl_b32 s15, s15, 14", "s_add_u32 s15, s15, s26",
          f"s_add_u32 m0, s19, {dst}", "s_nop 0", f"buffer_load_dwordx4 v11, {SWS}, s15 offen sc1 lds"]]
    for j in (1, 2, 3): l.append([f"buffer_load_dwordx4 v11, {SWS}, s15 offen offset:{1024*j} sc1 lds"])
    return [(x, ("A", i)) for x in l]
for i in range(3): emit_all(issueA(i))
mark(7)
vm.wait(("A", 0))
e("s_barrier")
mark(1, "it2"); mark(1, "it3")
corr_items = [(["s_mul_i32 s15, s7, 3072", "s_lshl_b32 s16, s11, 10", "s_add_u32 s15, s15, s16", f"s_add_u32 s15, s15, {CSF_OFF:#x}",
                "s_lshl_b32 s17, s6, 11", f"s_add_u32 s17, s17, {ST2_OFF:#x}", "s_cmp_eq_u32 s11, 3", "s_cselect_b32 s15, s17, s15",
                f"s_add_u32 m0, s16, {CORR_L}", "s_nop 0", f"buffer_load_dwordx4 v11, {SWS}, s15 offen sc1 lds"], "corr"),
              ([f"s_mov_b32 m0, {CORR_L+3072}", "s_nop 0", f"buffer_load_dwordx4 v11, {SWS}, s17 offen offset:1024 sc1 lds"], "corr")]
Wh = lambda k, h: issueW(k)[3*h:3*h+3]
SCHED = {1: issueW(4), 2: issueW(5), 3: issueW(6), 4: issueW(7), 5: corr_items+issueWd(0)}
if TC == 2:
    SCHED = {1: Wh(4,0)+Wh(4,1), 2: Wh(5,0), 3: Wh(5,1)+Wh(6,0), 4: Wh(6,1)+Wh(7,0), 5: Wh(7,1)+issueWd(0), 6: corr_items+issueWd(1)+issueWd(2)}
    if "s2" in X: SCHED.update({5: Wh(7,1)+issueWd(0)+corr_items, 6: [], 7: issueWd(1)+issueWd(2)})
    if "s3" in X: SCHED.update({5: Wh(7,1)+issueWd(0)+corr_items, 6: issueWd(1), 7: issueWd(2)})
DMAD = [0] if TC == 3 else [0, 1, 2]
for i in range(8):
    items = []
    if 1 <= i <= 5: items += issueA(i+2)
    items += SCHED.get(i, [])
    for k in RSCH.get(i, []): items += issueWdR(k)
    emit_all(items)
    if i < 7:
        vm.wait(("A", i+1), ("W", i+1), *(["corr", ("Wd", 0)] if i == 6 else []))
        mark(2+i, "it3")
        e("s_barrier")
        mark(2+i, "it2")
e("v_add_u32 v30, s19, v11"); e("v_add_u32 v31, 0x10000, v30"); e("v_add_u32 v32, 0x20000, v30")
vm.wait(("Wd", 0)); mark(9, "it3"); e("s_barrier")
mark(9, "it2")
mark(8)
RSET = sorted(sum(RSCH.values(), []))
assert 10 in RSET
LATE_DMA = [i for i in range(1, 10) if i not in RSET and i not in DMAD]
NQ0 = int(os.environ.get("NQ0", "6"))
e("s_setprio 3")
e("s_waitcnt vmcnt(0)"); vm.clear()
assert all(i > NQ0 for i in LATE_DMA) and NQ0 < 10
poll3_issue()
for i in LATE_DMA: emit_all(issueWd(i))
for i in range(1, NQ0+1):
    if i in RSET: writeWdR(i)
poll3_take()
poll3(0)
e("s_waitcnt lgkmcnt(0)")
mark(9)
e("s_barrier")
NQ1 = int(os.environ.get("NQ1", "10"))
for i in range(NQ0+1, NQ1+1):
    if i in RSET: vm.wait(("Wd", i)); writeWdR(i)
poll3(1)
e("s_waitcnt vmcnt(0) lgkmcnt(0)")
e("s_barrier")
for i in range(NQ1+1, 11):
    if i in RSET: vm.wait(("Wd", i)); writeWdR(i)
e("s_branch L_h_q2")
lab("L_h_idle")
mark(1, "it2")
for i in range(8): emit_all(issueA(i, i*16384))
mark(2, "it2")
e(f"v_subrev_u32 v17, {A_L}, v17")
for r in range(4): e(f"v_mov_b32 v{28+r}, s27")
FS = 100
for half in range(2):
    e(f"s_waitcnt vmcnt({16 - 16*half})"); e("s_barrier")
    mark(3+half, "it2")
    lg.clear()
    rds = [(f"ds_read_b64_tr_b16 {vr(FS+64*half+4*q+2*hh,2)}, v17 offset:{4096*q+1024*hh}", q) for q in range(16) for hh in range(2)]
    for s_, t in rds[:12]: e(s_); lg.add(t)
    rds = rds[12:]
    for q in range(16):
        lg.wait(q)
        e(f"v_mfma_f32_32x32x16_bf16 v[64:79], v[28:31], {vr(FS+64*half+4*q,4)}, {'v[64:79]' if (half or q) else '0'}")
        for s_, t in rds[:2]: e(s_); lg.add(t)
        rds = rds[2:]
    e("v_add_u32 v17, 0x10000, v17")
for q in range(4): e(f"v_mfma_f32_32x32x16_bf16 v[80:95], {vr(FS+4*q,4)}, {vr(FS+4*q,4)}, {'v[80:95]' if q else '0'}")
e("s_nop 7")
e("v_mul_f32 v27, s18, v64")
e("v_sub_f32 v24, 0, v27")
e("v_cvt_pk_bf16_f32 v20, v24, v24")
e("v_and_b32 v25, s14, v20"); e("v_sub_f32 v25, v24, v25"); e("v_mov_b32 v22, 0")
e("v_cvt_pk_bf16_f32 v21, v25, v22")
e("v_mov_b32 v23, v254")
e("s_lshl_b32 s15, s6, 11"); e("s_lshl_b32 s16, s11, 9"); e("s_add_u32 s15, s15, s16"); e(f"s_add_u32 s15, s15, {ST2_OFF:#x}")
e("s_mov_b32 exec_hi, 0")
e(f"buffer_store_dwordx4 v[20:23], v11, {SWS}, s15 offen sc1")
e("s_mov_b64 exec, -1")
mark(7, "it2")
e("s_barrier")
spw = sum([issueWd(i) for i in range(10)], [])
for q in range(4, 32):
    e(f"v_mfma_f32_32x32x16_bf16 v[80:95], {vr(FS+4*q,4)}, {vr(FS+4*q,4)}, v[80:95]")
    emit_all(spw[:1]); spw = spw[1:]
emit_all(spw)
e("v_bfe_u32 v22, v2, 3, 2"); e("v_lshlrev_b32 v22, 2, v22"); e("v_and_b32 v23, 3, v2"); e("v_add_u32 v22, v22, v23")
e("v_bfe_u32 v23, v2, 2, 1"); e("v_lshrrev_b32 v24, 5, v2"); e("v_xor_b32 v23, v23, v24"); e("v_lshl_add_u32 v22, v23, 4, v22")
e("v_mov_b32 v21, 0")
e("s_nop 7")
for r in range(16):
    e(f"v_cmp_eq_u32 s[{100 if False else 76}:{77}], {r}, v22" if r & 1 else f"v_cmp_eq_u32 vcc, {r}, v22")
    e("s_nop 1")
    e(f"v_cndmask_b32 v21, v21, v{80+r}, s[76:77]" if r & 1 else f"v_cndmask_b32 v21, v21, v{80+r}, vcc")
e("v_mov_b32 v23, v21")
e("s_nop 1")
e("v_permlane32_swap_b32 v23, v21")
e("s_nop 1")
e("v_add_f32 v21, v21, v23")
e("v_mul_f32 v21, s18, v21")
e("v_fma_f32 v21, -v27, v27, v21"); e("v_max_f32 v21, 0, v21"); e("v_add_f32 v21, 0x3727c5ac, v21")
e("v_rcp_f32 v22, v21")
e("v_lshlrev_b32 v23, 2, v2")
e("s_lshl_b32 s15, s6, 9"); e("s_lshl_b32 s16, s11, 7"); e("s_add_u32 s15, s15, s16"); e(f"s_add_u32 s15, s15, {R2_OFF:#x}")
e("s_mov_b32 exec_hi, 0")
e(f"buffer_store_dword v22, v23, {SWS}, s15 offen sc1")
e("s_mov_b64 exec, -1")
e("s_waitcnt vmcnt(0)")
e("s_lshl_b32 s15, s6, 1"); e("s_add_u32 s15, s15, s20"); e("s_lshl_b32 s15, s15, 9"); e(f"s_add_u32 s15, s15, {FL3_OFF+256:#x}")
e("v_mov_b32 v22, 1"); e("v_mov_b32 v23, s15")
e("s_mov_b64 exec, 1")
e(f"buffer_atomic_add v22, v23, {SWS}, 0 offen sc1")
e("s_mov_b64 exec, -1")
mark(8); mark(8, "it2")
vm.clear()
e("s_barrier")
e("s_barrier")
emit_all(issueWd(10))
poll3(0)
e("s_barrier")
poll3(1)
e("s_barrier")
lab("L_h_q2")
poll3(2)
e("s_waitcnt vmcnt(0) lgkmcnt(0)")
mark(10)
e("s_barrier")
e("s_cmp_lg_u32 s2, 0"); e("s_cbranch_scc1 L_hend")
e("s_cmp_lg_u32 s3, 4"); e("s_cbranch_scc1 L_hend")
e("s_mov_b64 exec, 1")
e(f"buffer_store_dword v254, v255, {SWS}, 0 offen sc1")
lab("L_hend")
if STAMP: e("s_barrier"); e("s_barrier")
endpgm()
lab("L_end")

hdr = open("sequential_preLN__ssm_conv_h3__glu_gated_reglu__prompt.s.ref").read().split("; Override")[0]
s = hdr + f"; @launch grid=(256,1,1) block=(512,1,1) lds={LDS_BYTES}\n"
s += '.amdgcn_target "amdgcn-amd-amdhsa--gfx950"\n.text\n'
s += f".globl {NAME}\n.p2align 8\n.type {NAME},@function\n{NAME}:\n" + "\n".join(L) + "\n    s_endpgm\n"
s += f""".section .rodata,"a"
.p2align 6
.amdhsa_kernel {NAME}
  .amdhsa_next_free_vgpr 256
  .amdhsa_next_free_sgpr 102
  .amdhsa_accum_offset 256
  .amdhsa_group_segment_fixed_size 0
  .amdhsa_kernarg_size 104
  .amdhsa_user_sgpr_count 2
  .amdhsa_user_sgpr_kernarg_segment_ptr 1
  .amdhsa_system_sgpr_workgroup_id_x 1
  .amdhsa_float_denorm_mode_32 3
.end_amdhsa_kernel
"""
open(OUT, "w").write(s)
```

```python
import sys, os
OUT = sys.argv[1] if len(sys.argv) > 1 else "v9.s"
STAMP = int(os.environ.get("STAMP", "0"))
X = os.environ.get("X", "").split(",") + ["ap2", "ap3", "m2", "qnt", "qrnt"]
SLP = int(os.environ.get("SLP", "1"))
NREP = int(os.environ.get("NREP", "32"))
NT = "" if "nont" in X else " nt"
NAME = "sequential_preLN__ssm_conv_h3__glu_gated_reglu__prompt_kernel"

RS      = 4224
KVT_OFF = 0
QT_OFF  = 0x210000
STG_OFF = 0x420000
EPO_OFF = 0x428000
FL1_OFF = 0x430000
FL3_OFF = 0x440000
ST2_OFF = 0x448000
CSF_OFF = 0x450000
R2_OFF  = 0x460000
CSP_OFF = 0x468000
FL2_OFF = 0x4D0000
HT_OFF  = 0x510000
HH_OFF  = 0x710000
HH_KS   = 96
WS_END  = HH_OFF + 64 * HH_KS * 1024
STAMP_OFF = 0x1000000
if STAMP and "dbg" not in X: WS_END = 0x2000000

WSLOT = 24640; W_U = 12320
RB = 4 * WSLOT
T_KV = RB
EX_L = 3 * WSLOT
Q_L = EX_L + 16384
T_Q = RB + 8192
CP = 4160; HREG = 4 * CP; XREG = 4608; CH_L = HREG + XREG
ST_L = RB + 2 * CH_L
FLG_L = 163840 - 64
assert ST_L + 16384 <= FLG_L
A_L = RB
MEAN_L = RB + 49152
CORR_L = RB + 49152
LDS_BYTES = 163840

L = []
def e(s): L.append("    " + s)
def lab(s): L.append(s + ":")
def vr(a, n): return f"v[{a}:{a+n-1}]"
def mark(i, grp=None):
    if "p1" in X and i in (7, 8, 9, 10) and grp != "p1": return
    if "it" in X and i in (1, 2, 3) and grp != "it": return
    if "p2" in X and i in (7, 8, 9, 10) and grp != "p2": return
    if ("it2" in X or "it3" in X) and 1 <= i <= 10 and grp not in ("it2", "it3"): return
    if "p4" in X and 1 <= i <= 10 and grp != "p4": return
    if grp and grp not in X: return
    if STAMP: e(f"{'s_memtime' if 'cyc' in X else 's_memrealtime'} s[{78+2*i}:{79+2*i}]")
def srd(d, base, nbytes):
    e(f"s_mov_b32 s{d}, s{base}"); e(f"s_mov_b32 s{d+1}, s{base+1}"); e(f"s_mov_b32 s{d+2}, {nbytes:#x}"); e(f"s_mov_b32 s{d+3}, 0x20000")
NST = 12
def endpgm():
    if STAMP:
        e("s_mov_b64 exec, -1")
        e("s_waitcnt vmcnt(0) lgkmcnt(0)")
        mark(NST-1)
        if "dbg" in X:
            n = nid()
            e("s_cmp_lg_u32 s3, 0"); e(f"s_cbranch_scc1 L_nd{n}"); e("s_cmp_ge_u32 s5, 28"); e(f"s_cbranch_scc1 L_nd{n}")
            e("s_load_dwordx2 s[4:5], s[0:1], 88"); e("s_waitcnt lgkmcnt(0)")
            e("s_mov_b32 s6, 256"); e("s_mov_b32 s7, 0x20000")
            e("s_mov_b64 exec, 1"); e("v_mov_b32 v251, 0")
            e("s_not_b32 s76, s78"); e("v_mov_b32 v252, s76")
            e("buffer_atomic_umax v252, v251, s[4:7], 0 offen offset:48")
            for i in range(NST):
                e(f"v_mov_b32 v{200+i}, s{78+2*i}")
                e(f"buffer_atomic_umax v{200+i}, v251, s[4:7], 0 offen offset:{4*i}")
            lab(f"L_nd{n}")
            e("s_endpgm")
            return
        e("s_lshl_b32 s76, s2, 9"); e("s_lshl_b32 s77, s3, 6"); e("s_add_u32 s76, s76, s77"); e(f"s_add_u32 s76, s76, {STAMP_OFF}")
        e("v_mov_b32 v251, 0")
        e("s_waitcnt lgkmcnt(0)")
        for i in range(NST):
            e(f"v_mov_b32 v252, s{78+2*i}")
            e(f"buffer_store_dword v252, v251, s[40:43], s76 offen offset:{4*i}")
    e("s_endpgm")

class Trk:
    def __init__(self, name, mx): self.q = []; self.name = name; self.mx = mx
    def add(self, tag, n=1): self.q += [tag] * n
    def wait(self, *tags):
        idx = -1
        for i, t in enumerate(self.q):
            if t in tags: idx = i
        if idx < 0: return
        n = len(self.q) - 1 - idx
        n = min(n, self.mx)
        e(f"s_waitcnt {self.name}({n})")
        self.q = self.q[len(self.q) - n:] if n else []
    def clear(self): self.q = []

SQ, SK, SWS, SV, SSH, SSK, SD, SWG, SWU, SWD, SOUT = [f"s[{x}:{x+3}]" for x in (32, 36, 40, 44, 48, 52, 56, 60, 64, 68, 72)]
uid = [0]
def nid():
    uid[0] += 1; return uid[0]
def poll(addr, tmp, want="s9", atom=False):
    n = nid()
    e("s_mov_b32 s30, 0x100000")
    lab(f"L_poll{n}")
    if atom:
        e(f"v_mov_b32 {tmp}, 0")
        e(f"buffer_atomic_add {tmp}, {addr}, {SWS}, 0 offen sc0 sc1")
    else:
        e(f"buffer_load_dword {tmp}, {addr}, {SWS}, 0 offen sc1")
    e("s_waitcnt vmcnt(0)")
    e(f"v_cmp_ne_u32 vcc, {want}, {tmp}")
    e("s_sub_u32 s30, s30, 1")
    e(f"s_cbranch_scc1 L_pollx{n}")
    e("s_and_b64 exec, exec, vcc")
    if SLP:
        e(f"s_cbranch_execz L_pollx{n}")
        e(f"s_sleep {SLP}")
        e(f"s_branch L_poll{n}")
    else:
        e(f"s_cbranch_execnz L_poll{n}")
    lab(f"L_pollx{n}")
    e("s_mov_b64 exec, -1")
def post_flag(off, wave, lanes=1):
    n = nid()
    e(f"s_cmp_lg_u32 s3, {wave}"); e(f"s_cbranch_scc1 L_nopost{n}")
    e(f"s_mov_b64 exec, {(1 << lanes) - 1}")
    e(f"s_mov_b32 s31, {off:#x}")
    e(f"buffer_store_dword v254, v253, {SWS}, s31 offen sc1")
    e("s_mov_b64 exec, -1")
    lab(f"L_nopost{n}")
def hold(tag):
    T = int(os.environ.get("HOLD_" + tag, "0"))
    if not T: return
    n = nid()
    lab(f"L_dd{n}")
    e("s_memrealtime s[80:81]"); e("s_waitcnt lgkmcnt(0)"); e("s_sub_u32 s82, s80, s78"); e(f"s_cmp_lt_u32 s82, {T}"); e(f"s_cbranch_scc1 L_dd{n}")
def unpack(dst, src, c):
    s = src + (c >> 1)
    if c & 1: e(f"v_and_b32 v{dst}, s14, v{s}")
    else: e(f"v_lshlrev_b32 v{dst}, 16, v{s}")

e("s_memrealtime s[78:79]")
e("s_cmp_ge_u32 s2, 256"); e("s_cbranch_scc1 L_end")
e("s_load_dwordx16 s[4:19], s[0:1], 0")
e("s_load_dwordx8 s[20:27], s[0:1], 64")
e("s_load_dwordx2 s[28:29], s[0:1], 96")
e("v_lshrrev_b32 v1, 6, v0"); e("v_and_b32 v2, 63, v0")
e("v_readfirstlane_b32 s3, v1")
if "nocode" not in X:
    e("s_getpc_b64 s[76:77]")
    lab("L_pc")
    e("s_and_b32 s30, s2, 0xf8"); e("s_add_u32 s30, s30, s3"); e("s_lshl_b32 s30, s30, 7"); e("s_min_u32 s30, s30, L_end - L_pc")
    e("v_mov_b32 v250, s30")
    e("s_mov_b64 exec, 1")
    e("global_load_dword v250, v250, s[76:77]")
    e("s_mov_b64 exec, -1")
e("v_and_b32 v3, 255, v0")
e("v_and_b32 v10, 15, v3"); e("v_lshrrev_b32 v11, 4, v3")
e("s_bfe_u32 s30, s2, 0x30003"); e("s_lshr_b32 s31, s2, 6"); e("s_lshl_b32 s31, s31, 3"); e("s_and_b32 s76, s2, 7"); e("s_add_u32 s31, s31, s76")
e("s_lshl_b32 s76, s31, 16"); e("s_lshl_b32 s77, s30, 7"); e("s_add_u32 s76, s76, s77")
e("v_lshlrev_b32 v12, 12, v11"); e("v_lshl_add_u32 v12, v10, 3, v12"); e("v_add_u32 v12, s76, v12")
e("v_subrev_u32 v14, 3072, v12")
e("s_lshl_b32 s77, s30, 9"); e("v_lshlrev_b32 v15, 5, v10"); e("v_add_u32 v15, s77, v15")
e("s_lshl_b32 s77, s30, 5"); e("s_add_u32 s77, s77, s31"); e("s_lshl_b32 s77, s77, 7"); e("v_mov_b32 v253, s77")
e(f"v_mov_b32 v255, {EPO_OFF:#x}")
e("s_cmp_ge_u32 s3, 4")
e("s_waitcnt lgkmcnt(0)")
srd(36, 6, 0x200000); srd(48, 10, 4096); srd(44, 8, 0x200000); srd(32, 4, 0x200000)
e("s_cbranch_scc1 L_skipkv")
e(f"buffer_load_dwordx4 {vr(48,4)}, v15, {SSH}, 0 offen")
e(f"buffer_load_dwordx4 {vr(52,4)}, v15, {SSH}, 0 offen offset:16")
for r in range(3): e(f"buffer_load_dwordx2 {vr(16+2*r,2)}, v14, {SK}, 0 offen offset:{1024*r}{NT}")
for r in range(4): e(f"buffer_load_dwordx2 {vr(22+2*r,2)}, v12, {SK}, 0 offen offset:{1024*r}{NT}")
for r in range(4): e(f"buffer_load_dwordx2 {vr(30+2*r,2)}, v12, {SV}, 0 offen offset:{1024*r}{NT}")
e("s_branch L_kvdone")
lab("L_skipkv")
for r in range(4): e(f"buffer_load_dwordx2 {vr(38+2*r,2)}, v12, {SQ}, 0 offen offset:{1024*r}{' nt' if 'qnt' in X else ''}")
lab("L_kvdone")
srd(40, 28, WS_END)
e(f"buffer_load_dword v254, v255, {SWS}, 0 offen sc1")
srd(52, 12, 0x200000); srd(56, 14, 1024); srd(60, 18, 512*2752); srd(64, 20, 512*2752); srd(68, 22, 1376*1024); srd(72, 24, 0x200000)
e("s_and_b32 s4, s2, 7"); e("s_lshr_b32 s5, s2, 3")
e("s_and_b32 s10, s4, 1"); e("s_lshr_b32 s17, s4, 1")
e("s_mul_i32 s7, s17, 3"); e("s_lshr_b32 s16, s5, 3"); e("s_add_u32 s7, s7, s16"); e("s_and_b32 s8, s5, 7")
e("s_lshr_b32 s15, s17, 1"); e("s_add_u32 s15, s15, 12"); e("s_and_b32 s16, s17, 1"); e("s_lshl_b32 s16, s16, 2"); e("s_and_b32 s6, s5, 3"); e("s_add_u32 s16, s16, s6")
e("s_cmp_ge_u32 s5, 24"); e("s_cselect_b32 s7, s15, s7"); e("s_cselect_b32 s8, s16, s8")
e("s_lshr_b32 s15, s5, 1"); e("s_lshl_b32 s16, s17, 1"); e("s_and_b32 s6, s5, 1"); e("s_add_u32 s16, s16, s6")
e("s_cmp_ge_u32 s5, 28"); e("s_cselect_b32 s7, s15, s7"); e("s_cselect_b32 s8, s16, s8")
e("s_lshl_b32 s6, s10, 3"); e("s_add_u32 s6, s6, s8")
e("s_and_b32 s11, s3, 3")
e("s_lshl_b32 s12, s4, 6"); e("s_lshl_b32 s13, s5, 1"); e("s_add_u32 s12, s12, s13")
if "m2" in X:
    e("s_lshr_b32 s77, s4, 1"); e("s_lshl_b32 s77, s77, 3"); e("s_lshr_b32 s16, s5, 2"); e("s_add_u32 s77, s77, s16")
else:
    e("s_lshl_b32 s77, s4, 2"); e("s_lshr_b32 s16, s5, 3"); e("s_add_u32 s77, s77, s16")
e("s_lshr_b32 s13, s77, 1")
e("s_lshr_b32 s17, s3, 2"); e("s_lshl_b32 s17, s17, 13"); e(f"s_add_u32 s17, s17, {T_KV}")
e("v_lshrrev_b32 v13, 1, v11"); e("v_and_b32 v14, 7, v10"); e("v_xor_b32 v13, v13, v14"); e("v_lshlrev_b32 v13, 4, v13")
e("v_lshl_add_u32 v13, v10, 9, v13"); e("v_and_b32 v14, 1, v11"); e("v_lshl_add_u32 v13, v14, 3, v13"); e("v_add_u32 v13, s17, v13")
e("v_lshrrev_b32 v128, 3, v2"); e("s_lshl_b32 s15, s11, 4"); e("v_add_u32 v128, s15, v128")
e("v_and_b32 v129, 7, v2")
e("v_lshrrev_b32 v130, 2, v128"); e("v_and_b32 v130, 7, v130"); e("v_xor_b32 v124, v129, v130"); e("v_xor_b32 v125, 2, v124")
e("v_lshlrev_b32 v130, 7, v128"); e("v_lshl_add_u32 v124, v124, 4, v130"); e("v_lshl_add_u32 v125, v125, 4, v130")
e("v_add_u32 v124, s17, v124"); e("v_add_u32 v125, s17, v125")
e(f"v_mul_u32_u24 v126, {RS}, v128"); e("v_lshl_add_u32 v126, v129, 4, v126")
e(f"s_mul_i32 s18, s30, {64*RS}"); e("s_lshl_b32 s16, s31, 7"); e("s_add_u32 s18, s18, s16")
e("s_lshr_b32 s16, s3, 2"); e(f"s_mul_i32 s16, s16, {QT_OFF-KVT_OFF:#x}"); e("s_add_u32 s18, s18, s16")
e(f"s_add_u32 s19, s18, {8*RS}")
e("s_mov_b32 s14, 0xffff0000")
e("s_lshr_b32 s20, s11, 1"); e("s_and_b32 s21, s11, 1")
if "m2" in X:
    e("s_and_b32 s28, s4, 1"); e("s_lshl_b32 s28, s28, 2"); e("s_and_b32 s16, s5, 3"); e("s_add_u32 s28, s28, s16")
else: e("s_and_b32 s28, s5, 7")
if "m2" in X:
    e("s_lshr_b32 s16, s5, 2"); e("s_mul_i32 s29, s16, 11"); e("s_lshr_b32 s29, s29, 3")
else:
    e("s_lshr_b32 s16, s5, 3"); e("s_mul_i32 s29, s16, 3")
if "rot4" in X:
    e("s_add_u32 s29, s29, s28"); e("s_cmp_ge_u32 s29, 11"); e("s_cselect_b32 s16, 11, 0"); e("s_sub_u32 s29, s29, s16")
e("s_cmp_ge_u32 s3, 4"); e("s_cbranch_scc1 L_H")
def rot11(i):
    e(f"s_add_u32 s15, s29, {i}"); e("s_cmp_ge_u32 s15, 11"); e("s_cselect_b32 s16, 11, 0"); e("s_sub_u32 s15, s15, s16")

e("v_lshlrev_b32 v6, 4, v3"); e("v_sub_u32 v7, 4080, v6"); e("v_subrev_u32 v8, 8, v7"); e("v_max_i32 v8, 0, v8")
e("s_add_u32 s22, s12, s20")
e("s_lshl_b32 s15, s22, 1"); e("v_mov_b32 v9, s15"); e("v_mov_b32 v240, 0")
e("s_lshl_b32 s15, s12, 12"); e("s_add_u32 s16, s15, 4096")
e("s_waitcnt vmcnt(12)")
for c in range(4):
    for j in range(4): unpack(92+4*j+c, 48+2*c, j)
e("s_waitcnt vmcnt(5)")
mark(1)
def ssm_loads():
    e("s_lshl_b32 s15, s12, 12"); e("s_add_u32 s16, s15, 4096")
    e(f"buffer_load_dwordx4 v[228:231], v7, {SSK}, s15 offen{NT}")
    e(f"buffer_load_dwordx2 v[226:227], v8, {SSK}, s15 offen{NT}")
    e(f"buffer_load_dwordx4 v[236:239], v7, {SSK}, s16 offen{NT}")
    e(f"buffer_load_dwordx2 v[234:235], v8, {SSK}, s16 offen{NT}")
    e(f"buffer_load_short_d16_hi v240, v9, {SD}, 0 offen")
LATE = "ssmearly" not in X
if not LATE: ssm_loads()
for r in range(7):
    for c in range(4): unpack(64+4*r+c, 16+2*r, c)
for r in range(4):
    for p in range(2): e(f"v_pk_mul_f32 {vr(108+4*r+2*p,2)}, {vr(64+4*r+2*p,2)}, {vr(92+12+2*p,2)}")
for j in (2, 1, 0):
    for r in range(4):
        for p in range(2): e(f"v_pk_fma_f32 {vr(108+4*r+2*p,2)}, {vr(64+4*(r+3-j)+2*p,2)}, {vr(92+4*j+2*p,2)}, {vr(108+4*r+2*p,2)}")
e(f"s_waitcnt vmcnt({1 if LATE else 6})")
for r in range(4):
    for c in range(4): unpack(64+4*r+c, 30+2*r, c)
for r in range(4):
    for p in range(2): e(f"v_pk_mul_f32 {vr(108+4*r+2*p,2)}, {vr(108+4*r+2*p,2)}, {vr(64+4*r+2*p,2)}")
for c in range(4):
    e(f"v_cvt_pk_bf16_f32 v{80+2*c}, v{108+c}, v{112+c}")
    e(f"v_cvt_pk_bf16_f32 v{81+2*c}, v{116+c}, v{120+c}")
    e(f"ds_write_b64 v13, {vr(80+2*c,2)} offset:{128*c}")
assert LATE
e("s_and_b32 s15, s2, 0xc7"); e("s_or_b32 s15, s15, s11"); e("s_cmp_lg_u32 s15, 0"); e("s_cbranch_scc1 L_noinit")
e("s_waitcnt vmcnt(0)")
e("v_add_u32 v132, 1, v254"); e("v_lshlrev_b32 v132, 6, v132"); e("v_lshlrev_b32 v133, 10, v2")
e("s_lshl_b32 s15, s2, 4"); e(f"s_add_u32 s15, s15, {FL2_OFF:#x}")
e(f"s_mov_b32 exec_lo, {(1 << NREP) - 1:#x}"); e("s_mov_b32 exec_hi, 0")
e(f"buffer_store_dword v132, v133, {SWS}, s15 offen sc1")
e("s_mov_b64 exec, -1")
lab("L_noinit")
mark(7, "p1")
e("s_waitcnt lgkmcnt(0)"); e("s_barrier")
mark(8, "p1")
e("ds_read_b128 v[28:31], v124"); e("ds_read_b128 v[32:35], v125 offset:1024")
e("s_waitcnt lgkmcnt(1)")
e(f"buffer_store_dwordx4 v[28:31], v126, {SWS}, s18 offen sc1")
e("s_waitcnt lgkmcnt(0)")
e(f"buffer_store_dwordx4 v[32:35], v126, {SWS}, s19 offen sc1")
def toeplitz_regs(waitn):
    e("s_mov_b32 s15, 0xffff")
    e("v_cmp_ne_u32 vcc, 255, v3")
    e(f"v_add_u32 v16, {RB}, v6")
    e(f"s_waitcnt vmcnt({waitn})")
    mark(9, "p1")
    e("v_add_u32 v254, 1, v254")
    for ch in range(2):
        b = 226 + 8*ch
        e(f"v_cndmask_b32 v{b}, 0, v{b}, vcc"); e(f"v_cndmask_b32 v{b+1}, 0, v{b+1}, vcc")
        w = lambda i: f"v{b+2+i}"
        o = 40 + 16*ch
        for n, i in enumerate((2, 1, 0, -1)): e(f"v_bfi_b32 v{o+n}, s15, {w(i)}, {w(i-1)}")
        for n, i in enumerate((2, 1, 0, -1)): e(f"v_alignbit_b32 v{o+4+n}, {w(i)}, {w(i)}, 16")
        for n, i in enumerate((3, 2, 1, 0)): e(f"v_bfi_b32 v{o+8+n}, s15, {w(i)}, {w(i-1)}")
        for n, i in enumerate((3, 2, 1, 0)): e(f"v_alignbit_b32 v{o+12+n}, {w(i)}, {w(i)}, 16")
    e("v_readfirstlane_b32 s9, v254")
if not LATE: toeplitz_regs(2)
for r in range(4): e(f"v_mov_b32 v{72+r}, 0")
e("v_lshrrev_b32 v17, 5, v3"); e(f"v_mul_u32_u24 v17, {CH_L}, v17"); e("v_and_b32 v18, 31, v3"); e("v_lshl_add_u32 v17, v18, 4, v17")
e(f"v_add_u32 v17, {RB+HREG}, v17")
e("v_bfe_u32 v18, v3, 4, 1"); e(f"v_mul_u32_u24 v18, {CH_L}, v18"); e("v_bfe_u32 v19, v3, 2, 2"); e(f"v_mul_u32_u24 v19, {CP}, v19")
e("v_add_u32 v18, v18, v19"); e("v_and_b32 v19, 3, v3"); e("v_lshl_add_u32 v18, v19, 4, v18"); e(f"v_add_u32 v18, {RB+4096}, v18")
e("s_lshl_b32 s16, s4, 5"); e("s_lshl_b32 s17, s21, 4"); e("s_add_u32 s16, s16, s17")
e("v_and_b32 v20, 15, v2"); e("v_add_u32 v20, s16, v20"); e("v_lshlrev_b32 v20, 7, v20"); e(f"v_add_u32 v20, {FL1_OFF:#x}, v20")
e(f"s_mul_i32 s24, s22, {RS}"); e("s_lshl_b32 s25, s21, 11"); e("s_add_u32 s24, s24, s25")
e(f"s_mul_i32 s23, s20, {CH_L}"); e(f"s_add_u32 s23, s23, {RB}")
e(f"s_add_u32 s26, s23, {HREG+512}"); e("s_add_u32 s26, s26, s25")
e("v_lshlrev_b32 v5, 4, v2")
if LATE: ssm_loads()
e(f"s_waitcnt vmcnt({5 if LATE else 0})")
mark(10, "p1")
e("s_barrier")
mark(2)
if LATE: toeplitz_regs(0)
for ch in range(2):
    for kap in range(4): e(f"ds_write_b128 v16, {vr(40+16*ch+4*kap,4)} offset:{ch*CH_L + kap*CP}")
e("s_cmp_lg_u32 s11, 0"); e("s_cbranch_scc1 L_nopad")
e("ds_write_b128 v17, v[72:75]")
e("s_mov_b32 exec_hi, 0")
e("ds_write_b128 v18, v[72:75]")
lab("L_nopad")
e("s_mov_b64 exec, -1")
e("s_waitcnt lgkmcnt(0)")
e("s_barrier")
e("s_mov_b32 m0, s26")
e("s_nop 0")
e(f"buffer_load_dwordx4 v5, {SWS}, s24 offen sc1 lds")
e(f"buffer_load_dwordx4 v5, {SWS}, s24 offen offset:1024 sc1 lds")
e("s_sub_u32 s24, s24, s25"); e("s_xor_b32 s31, s21, 1"); e("s_lshl_b32 s15, s31, 11"); e("s_add_u32 s24, s24, s15")
e("s_lshl_b32 s15, s11, 11"); e(f"s_add_u32 m0, s15, {Q_L}"); e(f"s_add_u32 s24, s24, {QT_OFF-KVT_OFF:#x}")
e(f"buffer_load_dwordx4 v5, {SWS}, s24 offen sc1 lds")
e(f"buffer_load_dwordx4 v5, {SWS}, s24 offen offset:1024 sc1 lds")
mark(3)
e("v_and_b32 v6, 15, v2"); e("v_lshrrev_b32 v7, 4, v2")
e("v_lshlrev_b32 v8, 4, v6"); e("v_lshl_add_u32 v8, v7, 2, v8")
e("v_and_b32 v32, 3, v6"); e(f"v_mul_u32_u24 v32, {CP}, v32")
e("v_lshrrev_b32 v33, 2, v6"); e("v_lshlrev_b32 v33, 3, v33"); e("v_lshl_add_u32 v33, v7, 4, v33")
e("v_sub_u32 v32, v32, v33")
e("s_lshl_b32 s15, s21, 8"); e("s_sub_u32 s16, s23, s15")
e(f"s_add_u32 s17, s16, {2*2052 - 512*7 - 64*3}"); e("v_add_u32 v32, s17, v32")
e("v_lshlrev_b32 v33, 5, v6"); e("v_lshlrev_b32 v34, 4, v7"); e("v_sub_u32 v33, v33, v34")
e(f"s_add_u32 s17, s16, {HREG + 512 + 16 - 64*3}"); e("v_add_u32 v33, s17, v33")
e("v_lshlrev_b32 v9, 1, v8")
e("s_lshl_b32 s15, s11, 12"); e(f"s_add_u32 s15, s15, {EX_L}"); e("s_xor_b32 s16, s11, 1"); e("s_lshl_b32 s16, s16, 12"); e(f"s_add_u32 s16, s16, {EX_L}")
e("v_add_u32 v34, s15, v5"); e("v_add_u32 v35, s16, v5")
e("v_add_u32 v12, s26, v9")
e("s_lshl_b32 s17, s11, 11"); e(f"s_add_u32 s17, s17, {Q_L}"); e("v_add_u32 v10, s17, v9")
e("s_lshl_b32 s17, s31, 13"); e(f"s_add_u32 s17, s17, {ST_L}"); e("v_add_u32 v13, s17, v5")
e("v_and_b32 v14, 7, v6"); e("v_lshlrev_b32 v14, 1, v14"); e("v_lshrrev_b32 v15, 1, v7"); e("v_add_u32 v14, v14, v15")
e("s_and_b32 s15, s22, 3"); e("s_lshl_b32 s15, s15, 2"); e("v_xor_b32 v14, s15, v14")
e("v_lshlrev_b32 v14, 4, v14")
e("v_lshrrev_b32 v15, 3, v6"); e("v_lshl_add_u32 v14, v15, 17, v14")
e("v_and_b32 v15, 1, v7"); e("v_lshl_add_u32 v14, v15, 18, v14")
e("s_lshl_b32 s18, s22, 8"); e("s_lshl_b32 s17, s31, 20"); e("s_add_u32 s18, s18, s17"); e(f"s_add_u32 s18, s18, {HT_OFF:#x}")
e(f"s_add_u32 s19, s18, {4*131072}")
e("s_lshl_b32 s15, s11, 2"); e(f"s_add_u32 s15, s15, {FLG_L}"); e("v_mov_b32 v16, s15"); e("s_xor_b32 s15, s15, 4"); e("v_mov_b32 v17, s15")
e(f"v_mov_b32 v18, {FLG_L+16}"); e("v_mov_b32 v19, 1")
e("v_subrev_u32 v20, 8, v2"); e("v_and_b32 v21, 7, v2")
e("v_lshrrev_b32 v22, 16, v240"); e("v_and_b32 v23, 1, v21"); e("v_lshlrev_b32 v23, 4, v23"); e("v_lshlrev_b32 v22, v23, v22")
e("v_cmp_gt_u32 vcc, 16, v20"); e("v_lshrrev_b32 v21, 1, v21"); e("s_nop 0"); e("v_cndmask_b32 v22, 0, v22, vcc")
for dw in range(4):
    e(f"v_cmp_eq_u32 vcc, {dw}, v21"); e("s_nop 1"); e(f"v_cndmask_b32 v{232+dw}, 0, v22, vcc")
ACC = 36; FA = [72, 136]; FB = [104, 168]
lg = Trk("lgkmcnt", 15)
def creads(rr, buf):
    lst = []
    for i in range(8):
        off = 512*(7-i) + 64*(3-rr)
        lst.append((f"ds_read_b128 {vr(FB[buf]+4*i,4)}, v33 offset:{512*i + 64*(3-rr)}", ("B", rr, i)))
        lst.append((f"ds_read_b64 {vr(FA[buf]+4*i,2)}, v32 offset:{off}", ("A", rr, i)))
        lst.append((f"ds_read_b64 {vr(FA[buf]+4*i+2,2)}, v32 offset:{off+8}", ("A", rr, i)))
    return lst
first = creads(0, 0)
for s, t in first:
    if t[0] == "A": e(s)
if "cprio" in X: e("s_setprio 2")
e("s_waitcnt vmcnt(2) lgkmcnt(0)"); e("s_barrier")
mark(4)
for s, t in first:
    if t[0] == "B": e(s); lg.add(t)
pend = []
pairs = sorted([(i, j) for i in range(8) for j in range(8 - i)], key=lambda p: (max(p), p[0] + p[1]))
started = set()
def mf(rr, i, j):
    global pend
    buf = rr & 1; t = i + j
    while any(x[1] in (("A", rr, i), ("B", rr, j)) for x in pend):
        s_, tg = pend.pop(0); e(s_); lg.add(tg)
    lg.wait(("A", rr, i), ("B", rr, j))
    c = vr(ACC+4*t, 4) if t in started else "0"
    started.add(t)
    e(f"v_mfma_f32_16x16x32_bf16 {vr(ACC+4*t,4)}, {vr(FA[buf]+4*i,4)}, {vr(FB[buf]+4*j,4)}, {c}")
for rr in range(3):
    pend = pend + creads(rr+1, (rr & 1) ^ 1)
    npend = len(pend)
    for n, (i, j) in enumerate(pairs):
        mf(rr, i, j)
        want = npend - (npend * (n + 1)) // int(os.environ.get("SPR", "32"))
        while len(pend) > max(want, 0):
            s_, tg = pend.pop(0); e(s_); lg.add(tg)
        if rr == 2 and n == 26:
            e("ds_read_b128 v[20:23], v18"); lg.add("aux")
        if rr == 2 and n == 32:
            lg.wait("aux"); e("v_and_b32 v20, v20, v21")
        if rr == 2 and n == 33: e("v_and_b32 v22, v22, v23")
        if rr == 2 and n == 34: e("v_and_b32 v20, v20, v22")
        if rr == 2 and n == 35: e("v_cmp_ne_u32 vcc, 1, v20")
    if rr == 0:
        e("s_cmp_lg_u32 s21, 0"); e("s_cbranch_scc1 L_nodiag")
        for t in range(8): e(f"v_mfma_f32_16x16x32_bf16 {vr(ACC+4*t,4)}, v[232:235], {vr(FB[0]+4*t,4)}, {vr(ACC+4*t,4)}")
        lab("L_nodiag")
assert not pend
e("s_cbranch_vccz L_auxok")
lab("L_aux")
e("ds_read_b128 v[20:23], v18")
e("s_waitcnt lgkmcnt(0)")
e("v_and_b32 v20, v20, v21"); e("v_and_b32 v22, v22, v23"); e("v_and_b32 v20, v20, v22")
e("v_cmp_ne_u32 vcc, 1, v20")
e("s_cbranch_vccnz L_aux")
lab("L_auxok")
e("s_waitcnt vmcnt(0) lgkmcnt(0)")
mark(7, "p2")
e("s_cmp_eq_u32 s21, 0"); e("s_cbranch_scc1 L_conv_h0")
QN = 200; T0 = 216
for hf in (1, 0):
    if hf == 0: lab("L_conv_h0")
    keep = 4*(1-hf); send = 4*hf
    def rr_order(lo):
        qs = [[p for p in pairs if p[0]+p[1] == t] for t in range(lo+3, lo-1, -1)]
        out = []
        while any(qs):
            qs.sort(key=lambda q: -len(q))
            k = [q for q in qs if q and (not out or q[0][0]+q[0][1] != out[-1][0]+out[-1][1])] or [q for q in qs if q]
            out.append(k[0].pop(0))
        return out
    order = rr_order(send) + rr_order(keep)
    if "oldorder" in X: order = [p for p in pairs if send <= p[0]+p[1] < send+4] + [p for p in pairs if keep <= p[0]+p[1] < keep+4]
    nsend = len([p for p in pairs if send <= p[0]+p[1] < send+4])
    lg.clear()
    fill = []
    for u in range(4):
        fill.append(("ld", f"ds_read_b64 {vr(80+2*u,2)}, v10 offset:{512*u}", ("e", u)))
        fill.append(("ld", f"ds_read_b128 {vr(88+8*u,4)}, v13 offset:{2048*u}", ("e", u)))
        fill.append(("ld", f"ds_read_b128 {vr(92+8*u,4)}, v13 offset:{2048*u+1024}", ("e", u)))
    valu = []
    for u in range(4):
        for r in range(4):
            qs = 80 + 2*u + (r >> 1); tq = T0+4*u+r
            valu.append((u, f"v_and_b32 v{tq}, s14, v{qs}" if r & 1 else f"v_lshlrev_b32 v{tq}, 16, v{qs}"))
        for r in range(4):
            valu.append((u, f"v_fma_f32 v{QN+4*u+r}, v{T0+4*u+r}, v{88+8*u+2*r}, v{89+8*u+2*r}"))
    wr = [f"ds_write_b128 v34, {vr(ACC+4*send+4*u,4)} offset:{1024*u}" for u in range(4)] + ["ds_write_b32 v16, v19"]
    for n, (i, j) in enumerate(order):
        t = i + j
        e(f"v_mfma_f32_16x16x32_bf16 {vr(ACC+4*t,4)}, {vr(FA[1]+4*i,4)}, {vr(FB[1]+4*j,4)}, {vr(ACC+4*t,4)}")
        if n >= nsend + 4 and wr:
            e(wr.pop(0)); lg.add("w")
            if len(wr) == 1: e(wr.pop(0)); lg.add("w")
        elif fill and n < 6:
            for _ in range(2):
                k_, t_, g_ = fill.pop(0); e(t_); lg.add(g_)
        elif valu:
            u_, t_ = valu.pop(0); lg.wait(("e", u_)); e(t_)
        else: e("s_nop 0")
        if n == 34: e("ds_read_b32 v20, v17"); lg.add("pf")
    while valu:
        u_, t_ = valu.pop(0); lg.wait(("e", u_)); e(t_)
    mark(5)
    n_ = nid()
    lab(f"L_pw{n_}")
    e("s_waitcnt lgkmcnt(0)")
    e("v_cmp_ne_u32 vcc, 1, v20")
    e(f"s_cbranch_vccz L_pwx{n_}")
    e("ds_read_b32 v20, v17")
    e(f"s_branch L_pw{n_}")
    lab(f"L_pwx{n_}")
    mark(8, "p2")
    for u in range(4): e(f"ds_read_b128 {vr(72+4*u,4)}, v35 offset:{1024*u}")
    for u in range(4):
        y = ACC + 4*keep + 4*u
        e(f"s_waitcnt lgkmcnt({3-u})")
        for p in range(2): e(f"v_pk_add_f32 {vr(y+2*p,2)}, {vr(y+2*p,2)}, {vr(72+4*u+2*p,2)}")
        for p in range(2): e(f"v_pk_fma_f32 {vr(y+2*p,2)}, {vr(QN+4*u+2*p,2)}, {vr(y+2*p,2)}, {vr(T0+4*u+2*p,2)}")
        e(f"v_cvt_pk_bf16_f32 v{124+2*u}, v{y}, v{y+1}")
        e(f"v_cvt_pk_bf16_f32 v{125+2*u}, v{y+2}, v{y+3}")
        if u & 1:
            b = 124 + 2*(u-1)
            e("s_nop 1")
            e(f"v_permlane16_swap_b32 v{b}, v{b+2}"); e(f"v_permlane16_swap_b32 v{b+1}, v{b+3}")
            e(f"buffer_store_dwordx4 {vr(b,4)}, v14, {SWS}, s{18+(u>>1)} offen sc1")
    if hf == 1: e("s_branch L_conv_j")
lab("L_conv_j")
mark(9, "p2")
e("v_and_b32 v3, 15, v2"); e("v_lshrrev_b32 v4, 4, v2"); e("v_lshrrev_b32 v5, 2, v3"); e("v_and_b32 v6, 3, v3")
e("v_lshrrev_b32 v7, 5, v2"); e("v_and_b32 v8, 1, v4"); e("v_lshl_add_u32 v9, v7, 3, v5")
e("v_lshlrev_b32 v10, 8, v9"); e("v_lshl_add_u32 v10, v8, 5, v10"); e("v_lshl_add_u32 v10, v6, 3, v10"); e(f"v_add_u32 v10, {A_L}, v10")
e("v_mul_u32_u24 v12, 192, v9"); e(f"v_mul_u32_u24 v13, {W_U}, v8"); e("v_add_u32 v12, v12, v13"); e("v_lshl_add_u32 v12, v6, 3, v12")
e("s_min_u32 s26, s11, 2"); e("s_lshl_b32 s16, s26, 6"); e(f"s_mul_i32 s17, s10, {32*192}"); e("s_add_u32 s16, s16, s17"); e("v_add_u32 v28, s16, v12")
e("s_mul_i32 s15, s21, 96"); e("v_add_u32 v12, s15, v12")
e("s_lshl_b32 s15, s20, 1"); e("v_xor_b32 v13, s15, v5"); e("v_lshl_add_u32 v13, v13, 6, v10")
e("s_add_u32 s15, s15, 1"); e("v_xor_b32 v18, s15, v5"); e("v_lshl_add_u32 v18, v18, 6, v10")
e("v_mov_b32 v15, v12"); e("v_mov_b32 v16, v13"); e("v_mov_b32 v17, v18")
e("s_waitcnt vmcnt(0)")
mark(10, "p2")
e("s_barrier")
mark(6)
ACC = 64
FR = [20, 40]
def g1reads(ks, buf):
    l = []; b = FR[buf]
    for hh in range(2): l.append(f"ds_read_b64_tr_b16 {vr(b+2*hh,2)}, v15 offset:{(16*ks+4*hh)*192}")
    for hh in range(2): l.append(f"ds_read_b64_tr_b16 {vr(b+12+2*hh,2)}, v16 offset:{4096*ks+1024*hh}")
    for hh in range(2): l.append(f"ds_read_b64_tr_b16 {vr(b+16+2*hh,2)}, v17 offset:{4096*ks+1024*hh}")
    for mb in (1, 2):
        for hh in range(2): l.append(f"ds_read_b64_tr_b16 {vr(b+4*mb+2*hh,2)}, v15 offset:{(16*ks+4*hh)*192+32*mb}")
    return l
e("v_and_b32 v9, 31, v2")
for r in range(20): e(f"v_mov_b32 v{200+r}, 0")
e("s_and_b32 s27, s77, 1"); e("s_lshl_b32 s27, s27, 6"); e("s_lshl_b32 s15, s20, 5"); e("s_add_u32 s27, s27, s15")
e("v_add_u32 v61, s27, v9")
e("v_lshlrev_b32 v62, 2, v61")
e("v_lshrrev_b32 v24, 3, v61"); e("v_and_b32 v25, 7, v61"); e("v_lshlrev_b32 v25, 1, v25"); e("v_lshl_add_u32 v25, v7, 10, v25")
for j in range(4):
    e(f"v_xor_b32 v26, {j<<2}, v24"); e(f"v_lshl_add_u32 v{241+j}, v26, 4, v25")
e("s_lshl_b32 s15, s13, 7"); e("v_add_u32 v245, s15, v61"); e("v_lshlrev_b32 v245, 10, v245"); e("v_lshl_add_u32 v245, v7, 4, v245")
e("v_lshl_add_u32 v24, v7, 2, v5"); e("v_lshlrev_b32 v24, 7, v24"); e("v_lshl_add_u32 v24, v8, 5, v24"); e("v_lshl_add_u32 v24, v6, 3, v24")
e("s_lshl_b32 s15, s21, 13"); e("v_add_u32 v24, s15, v24")
e("v_lshrrev_b32 v25, 3, v3"); e("v_xor_b32 v25, s21, v25"); e("v_lshl_add_u32 v246, v25, 6, v24"); e("v_xor_b32 v25, 1, v25"); e("v_lshl_add_u32 v247, v25, 6, v24")
e("s_lshl_b32 s16, s13, 4")
e("v_add_u32 v248, s16, v2"); e("v_lshlrev_b32 v248, 7, v248"); e(f"v_add_u32 v248, {FL3_OFF:#x}, v248")
e("v_lshlrev_b32 v11, 4, v2")
e("s_lshl_b32 s17, s6, 2"); e("s_lshl_b32 s18, s20, 1"); e("s_add_u32 s17, s17, s18"); e(f"s_mul_i32 s17, s17, {HH_KS}")
e("s_mul_i32 s18, s7, 6"); e("s_mul_i32 s19, s21, 3"); e("s_add_u32 s19, s19, s18")
e("s_add_u32 s17, s17, s19")
e("s_lshl_b32 s17, s17, 10"); e(f"s_add_u32 s17, s17, {HH_OFF:#x}"); e(f"s_add_u32 s18, s17, {HH_KS*1024}")
e("s_cmp_eq_u32 s7, 15"); e("s_cbranch_scc0 L_c_p3")
def sp_loads():
    e("s_mul_i32 s16, s6, 24576"); e(f"s_add_u32 s16, s16, {CSP_OFF:#x}")
    for m in range(16):
        if m and m % 2 == 0: e("s_add_u32 s16, s16, 3072")
        e(f"buffer_load_dwordx2 {vr(64+2*m,2)}, v28, {SWS}, s16 offen offset:{1536*(m%2)} sc1")
e("s_lshl_b32 s15, s11, 6"); e("v_add_u32 v20, s15, v2"); e("v_lshlrev_b32 v28, 3, v20")
e("s_lshl_b32 s15, s6, 4"); e("s_add_u32 s15, s15, s7"); e("s_lshl_b32 s15, s15, 7"); e("v_mov_b32 v253, s15")
e("s_barrier")
e("s_barrier")
sp_loads()
e("s_barrier")
e("s_cmp_eq_u32 s6, 15"); e("s_cbranch_scc1 L_c_sp2"); e("s_cmp_eq_u32 s11, 3"); e("s_cbranch_scc1 L_c_sp2")
e("s_mov_b32 s30, 0x100000")
mark(1, "it2")
lab("L_c_sp1")
e("s_waitcnt vmcnt(0)")
e("v_xor_b32 v50, s9, v65")
for m in range(1, 16):
    e(f"v_xor_b32 v51, s9, v{65+2*m}"); e("v_or_b32 v50, v50, v51")
e("v_cmp_ne_u32 vcc, 0, v50")
e("s_cbranch_vccz L_c_sp1x")
e("s_sub_u32 s30, s30, 1"); e("s_cbranch_scc1 L_c_sp1x")
sp_loads()
e("s_branch L_c_sp1")
lab("L_c_sp1x")
for m in range(1, 16): e(f"v_add_f32 v64, v64, v{64+2*m}")
e("v_mov_b32 v54, 0")
e("v_cvt_pk_bf16_f32 v53, v64, v54")
e("v_lshlrev_b32 v51, 16, v53"); e("v_sub_f32 v51, v64, v51")
e("v_cvt_pk_bf16_f32 v52, v64, v51")
e("v_mov_b32 v55, v254")
e("v_lshlrev_b32 v28, 4, v20"); e("s_mul_i32 s16, s6, 3072"); e(f"s_add_u32 s16, s16, {CSF_OFF:#x}")
e(f"buffer_store_dwordx4 v[52:55], v28, {SWS}, s16 offen sc1")
mark(2, "it2")
lab("L_c_sp2")
e("s_barrier")
e("s_branch L_c_p4")
lab("L_c_p3")
for blk in range(2):
    for ks in range(2):
        for hh in range(2): e(f"ds_read_b64_tr_b16 {vr(32+8*blk+4*ks+2*hh,2)}, v28 offset:{(16*ks+4*hh)*192+32*blk}")
e("v_mov_b32 v30, 0"); e("v_mov_b32 v31, 0"); e("s_mov_b32 s27, 0x3f803f80")
e("s_lshl_b32 s15, s6, 4"); e("s_add_u32 s15, s15, s7"); e("s_lshl_b32 s15, s15, 7"); e("v_mov_b32 v253, s15"); e("s_lshl_b32 s16, s7, 4"); e("s_add_u32 s16, s16, s6"); e("s_mul_i32 s16, s16, 1536"); e("s_lshl_b32 s15, s26, 9"); e("s_add_u32 s16, s16, s15"); e(f"s_add_u32 s16, s16, {CSP_OFF:#x}")
e("v_lshlrev_b32 v29, 3, v2")
e("s_waitcnt lgkmcnt(0)")
for r in range(8):
    e(f"v_dot2_f32_bf16 v30, v{32+r}, s27, v30"); e(f"v_dot2_f32_bf16 v31, v{40+r}, s27, v31")
e("s_nop 3")
e("v_permlane32_swap_b32 v30, v31")
e("s_nop 1")
e("v_add_f32 v30, v30, v31")
e("v_mov_b32 v250, v30"); e("v_mov_b32 v251, v254"); e("v_mov_b32 v249, v29")
e("s_cmp_eq_u32 s11, 3"); e("s_cselect_b32 s16, 0x7f000000, s16")
e(f"buffer_store_dwordx2 v[250:251], v249, {SWS}, s16 offen sc1")
for r in range(96): e(f"v_mov_b32 v{ACC+r}, 0")
e("s_mul_i32 s22, s7, 3072"); e("s_mul_i32 s15, s21, 1536"); e("s_add_u32 s22, s22, s15"); e(f"s_add_u32 s22, s22, {CSF_OFF:#x}")
e("s_lshl_b32 s23, s6, 11"); e("s_lshl_b32 s15, s20, 10"); e("s_add_u32 s23, s23, s15"); e(f"s_add_u32 s23, s23, {ST2_OFF:#x}")
e("s_mul_i32 s15, s21, 1536"); e(f"s_add_u32 s15, s15, {CORR_L}"); e("v_add_u32 v19, s15, v11")
e("s_lshl_b32 s15, s20, 10"); e(f"s_add_u32 s15, s15, {CORR_L+3072}"); e("v_add_u32 v14, s15, v11")
e("s_mov_b32 s24, 0"); e("s_mov_b32 s25, 0"); e("s_mov_b32 s26, 0")
e("s_barrier")
e("s_barrier")
mark(7)
e("s_lshl_b32 s15, s7, 1"); e("s_add_u32 s15, s15, s21"); e("s_cmp_lg_u32 s15, 29"); e("s_cbranch_scc1 L_c_full")
for nb in range(2): e(f"buffer_store_dwordx4 v[64:67], v11, {SWS}, s{17+nb} offen sc1")
for _ in range(8): e("s_barrier")
e("s_branch L_c_p4")
lab("L_c_full")
for s in g1reads(0, 0): e(s)
def corr_loads():
    e("s_mov_b32 exec_hi, 0")
    for mb in range(3): e(f"buffer_load_dwordx4 {vr(200+4*mb,4)}, v11, {SWS}, s22 offen offset:{512*mb} sc1")
    for nb in range(2): e(f"buffer_load_dwordx4 {vr(212+4*nb,4)}, v11, {SWS}, s23 offen offset:{512*nb} sc1")
    e("s_mov_b64 exec, -1")
lab("L_g1_loop")
for ks in range(4):
    buf = ks & 1
    e("s_waitcnt lgkmcnt(0)")
    if ks == 3:
        e("s_barrier")
    nxt = g1reads((ks+1) & 3, buf ^ 1)
    sched = [3, 3, 2, 2, 0, 0]; p = 0
    for n, (mb, nb) in enumerate([(0,0),(0,1),(1,0),(1,1),(2,0),(2,1)] if "snake" not in X else [(0,0),(0,1),(1,1),(1,0),(2,0),(2,1)]):
        a = ACC + 16*(2*mb+nb)
        if "mf16" in X:
            o = 8*(ks & 1)
            e(f"v_mfma_f32_16x16x32_bf16 {vr(a+o,4)}, {vr(FR[buf]+4*mb,4)}, {vr(FR[buf]+12+4*nb,4)}, {vr(a+o,4)}")
            for _ in range((sched[n]+1)//2): e(nxt[p]); p += 1
            e(f"v_mfma_f32_16x16x32_bf16 {vr(a+o+4,4)}, {vr(FR[buf]+12+4*nb,4)}, {vr(FR[buf]+4*mb,4)}, {vr(a+o+4,4)}")
            for _ in range(sched[n]//2): e(nxt[p]); p += 1
        else:
            e(f"v_mfma_f32_32x32x16_bf16 {vr(a,16)}, {vr(FR[buf]+4*mb,4)}, {vr(FR[buf]+12+4*nb,4)}, {vr(a,16)}")
            for _ in range(sched[n]): e(nxt[p]); p += 1
        if ks == 2 and n == 4:
            e(f"s_add_u32 s25, s25, {WSLOT}"); e(f"s_cmp_eq_u32 s25, {4*WSLOT}"); e("s_cselect_b32 s25, 0, s25")
            e(f"s_add_u32 s26, s26, 16384"); e(f"s_cmp_eq_u32 s26, {3*16384}"); e("s_cselect_b32 s26, 0, s26")
        if ks == 2 and n == 5:
            e("v_add_u32 v15, s25, v12"); e("v_add_u32 v16, s26, v13"); e("v_add_u32 v17, s26, v18")
e("s_add_u32 s24, s24, 1"); e("s_cmp_lt_u32 s24, 7"); e("s_cbranch_scc1 L_g1_loop")
FK = [20, 40, 160, 180]
lg.clear(); lg.add(("k0",), 10)
rd = []
def rdA(ks, mb): return [(f"ds_read_b64_tr_b16 {vr(FK[ks]+4*mb+2*hh,2)}, v15 offset:{(16*ks+4*hh)*192+32*mb}", ("A", ks, mb)) for hh in range(2)]
def rdB(ks, nb): return [(f"ds_read_b64_tr_b16 {vr(FK[ks]+12+4*nb+2*hh,2)}, v{16+nb} offset:{4096*ks+1024*hh}", ("B", ks, nb)) for hh in range(2)]
for ks in (1, 2, 3): rd += rdA(ks, 0) + rdB(ks, 0) + rdB(ks, 1)
for mb in (1, 2):
    for ks in (1, 2, 3): rd += rdA(ks, mb)
def epi(mb):
    l = []
    for nb in range(2):
        a = ACC + 16*(2*mb+nb)
        for r in range(8): l.append(f"v_max_f32 v{a+r}, 0, v{a+r}")
        for r in range(8): l.append(f"v_mul_f32 v{a+r}, v{a+r}, v{a+8+r}")
        for p in range(4): l.append(f"v_cvt_pk_bf16_f32 v{a+8+p}, v{a+2*p}, v{a+2*p+1}")
        l.append(f"buffer_store_dwordx4 {vr(a+8,4)}, v11, {SWS}, s{17+nb} offen offset:{1024*mb} sc1")
    return l
lg.wait(("k0",))
seq = [(0, mb, nb) for mb in range(3) for nb in range(2)] + [(ks, 0, nb) for ks in (1, 2, 3) for nb in range(2)] + ["bar"]
seq += [(1, 1, 0), (1, 1, 1), "chk", ("c", 0, 0), ("c", 0, 1)] + [(ks, 1, nb) for ks in (2, 3) for nb in range(2)] + [("c", 1, 0), ("c", 1, 1)]
seq += [("c", 2, 0), ("c", 2, 1)] + [(ks, 2, nb) for ks in (1, 2) for nb in range(2)] + [(3, 2, 0), (3, 2, 1)]
last = {}
for n, x in enumerate(seq):
    if isinstance(x, tuple): last[(x[1], x[2])] = n
epq = []
def epi1(mb, nb):
    a = ACC + 16*(2*mb+nb); l = []
    for r in range(8): l.append(f"v_max_f32 v{a+r}, 0, v{a+r}")
    for r in range(8): l.append(f"v_mul_f32 v{a+r}, v{a+r}, v{a+8+r}")
    for p in range(4): l.append(f"v_cvt_pk_bf16_f32 v{a+8+p}, v{a+2*p}, v{a+2*p+1}")
    l.append(f"buffer_store_dwordx4 {vr(a+8,4)}, v11, {SWS}, s{17+nb} offen offset:{1024*mb} sc1")
    return l
for n, x in enumerate(seq):
    if x == "bar":
        e("s_waitcnt lgkmcnt(0)"); lg.clear(); assert not rd
        e("s_barrier")
        e("s_mov_b32 exec_hi, 0")
        for mb in range(3): e(f"ds_read_b128 {vr(200+4*mb,4)}, v19 offset:{512*mb}")
        for nb in range(2): e(f"ds_read_b128 {vr(212+4*nb,4)}, v14 offset:{512*nb}")
        e("s_mov_b64 exec, -1")
        e("s_mov_b32 s30, 0x100000")
        continue
    if x == "chk":
        e("s_waitcnt lgkmcnt(0)")
        mark(1, "it2")
        lab("L_corr")
        e("v_xor_b32 v60, s9, v203")
        for r in (207, 211, 215, 219):
            e(f"v_xor_b32 v63, s9, v{r}"); e("v_or_b32 v60, v60, v63")
        e("v_cmp_ne_u32 vcc, 0, v60")
        e("s_cmp_eq_u32 vcc_lo, 0"); e("s_cbranch_scc1 L_corrx")
        e("s_sub_u32 s30, s30, 1"); e("s_cbranch_scc1 L_corrx")
        corr_loads()
        e("s_waitcnt vmcnt(0)")
        e("s_branch L_corr")
        lab("L_corrx")
        mark(2, "it2")
        for r in (203, 207, 211, 215, 219): e(f"v_mov_b32 v{r}, 0")
        e("s_nop 1")
        continue
    ks, mb, nb = x
    a = ACC + 16*(2*mb+nb)
    if ks == "c":
        e(f"v_mfma_f32_32x32x16_bf16 {vr(a,16)}, {vr(200+4*mb,4)}, {vr(212+4*nb,4)}, {vr(a,16)}")
    else:
        need = [("A", ks, mb), ("B", ks, nb)]
        while any(y[1] in need for y in rd):
            s_, tg = rd.pop(0); e(s_); lg.add(tg)
        lg.wait(*need)
        e(f"v_mfma_f32_32x32x16_bf16 {vr(a,16)}, {vr(FK[ks]+4*mb,4)}, {vr(FK[ks]+12+4*nb,4)}, {vr(a,16)}")
    if last[(mb, nb)] == n: epq += [(len(L) + 12, t) for t in epi1(mb, nb)]
    for _ in range(3):
        if rd: s_, tg = rd.pop(0); e(s_); lg.add(tg)
    k = 0
    while epq and k < 6:
        short = epq[0][0] - len(L)
        if short > 0:
            p_ = min(short, 6 - k)
            e(f"s_nop {p_-1}"); L.extend(["    ; pad"] * (p_ - 1)); k += p_
            continue
        e(epq.pop(0)[1]); k += 1
mark(8); mark(3, "it2")
while epq:
    short = epq[0][0] - len(L)
    if short > 0:
        e(f"s_nop {short-1}"); L.extend(["    ; pad"] * (short - 1))
    e(epq.pop(0)[1])
mark(4, "it2")
lab("L_c_p4")
RES = 224
for r in range(16): e(f"v_mov_b32 v{RES+r}, 0")
e("s_lshl_b32 s22, s13, 17"); e("s_lshl_b32 s16, s28, 14"); e("s_add_u32 s22, s22, s16"); e("s_lshl_b32 s16, s21, 13"); e("s_add_u32 s22, s22, s16")
e(f"s_add_u32 s22, s22, {HT_OFF:#x}"); e("s_add_u32 s23, s22, 4096")
e("s_lshl_b32 s25, s77, 1"); e("s_add_u32 s25, s25, s20")
e(f"s_mul_i32 s25, s25, {HH_KS*1024}"); e("s_lshl_b32 s16, s21, 12"); e("s_add_u32 s25, s25, s16"); e(f"s_add_u32 s25, s25, {HH_OFF:#x}")
e("s_lshl_b32 s27, s28, 7"); e("s_lshl_b32 s15, s21, 6"); e("s_add_u32 s27, s27, s15")
e("s_waitcnt vmcnt(0)"); mark(5, "it2"); e("s_barrier")
mark(9); mark(6, "it2")
ACC = 160
FR = [20, 36, 192]
PD = int(os.environ.get("PD", "2"))
e("v_add_u32 v52, 0x10000, v246"); e("v_add_u32 v53, 0x10000, v247"); e("v_add_u32 v54, 0x20000, v246"); e("v_add_u32 v55, 0x20000, v247")
def g2reads(G):
    i = G >> 1; slot = i % 10; l = []
    base = [("v246", "v247"), ("v52", "v53"), ("v54", "v55")][slot >> 2]
    for q in range(2):
        ks = 2*(G & 1) + q
        for db in range(2):
            b = FR[G % 3] + 8*q + 4*db
            off = (slot & 3)*16384 + ks*2048
            l.append((f"ds_read_b64_tr_b16 {vr(b,2)}, {base[db]} offset:{off}", ("W", G, q, db)))
            l.append((f"ds_read_b64_tr_b16 {vr(b+2,2)}, {base[db]} offset:{off+1024}", ("W", G, q, db)))
    return l
post_flag(FL3_OFF, 0)
lg.clear()
for G0 in range(2):
    for s, t in g2reads(G0): e(s)
e("s_waitcnt lgkmcnt(0)"); e("s_barrier")
for ii in range(4 if "nores" not in X else 0):
    for j in range(4):
        e(f"buffer_load_short_d16_hi v{RES+4*ii+j}, v{241+j}, {SWS}, s{22+(ii>>1)} offen offset:{2048*(ii&1)+256*j} sc1")
e("s_cmp_lg_u32 s3, 0"); e("s_cbranch_scc1 L_c_np3")
e("s_mov_b64 exec, 0xffff")
poll("v248", "v249", "s9", "ap3" in X)
hold("3")
lab("L_c_np3")
mark(7, "it2")
e("s_barrier")
mark(8, "it2"); mark(1, "p4")
vm = Trk("vmcnt", 63)
NHR = 6; HB = 64
def issueHH(i):
    rot11(i if "hhsame" not in X else i % 2)
    e("s_lshl_b32 s15, s15, 13"); e("s_add_u32 s15, s15, s25")
    for q in range(4):
        e(f"buffer_load_dwordx4 {vr(HB+16*(i % NHR)+4*q,4)}, v11, {SWS}, s15 offen offset:{1024*q} sc1"); vm.add(("HH", i, q))
NH0 = int(os.environ.get("NH0", "3"))
for i in range(NH0): issueHH(i)
def hh1(i, q):
    if q == 0:
        rot11(i)
        e("s_lshl_b32 s15, s15, 13"); e("s_add_u32 s17, s15, s25")
    e(f"buffer_load_dwordx4 {vr(HB+16*(i % NHR)+4*q,4)}, v11, {SWS}, s17 offen offset:{1024*q} sc1"); vm.add(("HH", i, q))
mark(10)
assert PD == 2
for G in range(20):
    i = G >> 1
    if G in (1, 6, 12, 16, 18, 20): mark(2 + (1, 6, 12, 16, 18, 20).index(G), "p4")
    if G == 8: e("s_barrier")
    if G == 2: mark(9, "it2")
    if G == 12: mark(10, "it2")
    nxt = g2reads(G+PD) if G + PD < 22 else []
    p = 0
    for q in range(2):
        ks = 2*(G & 1) + q
        vm.wait(("HH", i, ks))
        for db in range(2):
            lg.wait(("W", G, q, db))
            b = FR[G % 3] + 8*q + 4*db
            c = vr(ACC+16*db, 16) if (G or q) else "0"
            e(f"v_mfma_f32_32x32x16_bf16 {vr(ACC+16*db,16)}, {vr(b,4)}, {vr(HB+16*(i % NHR)+4*ks,4)}, {c}")
            for _ in range(2):
                if p < len(nxt): e(nxt[p][0]); lg.add(nxt[p][1]); p += 1
            if db == 0 and i + NH0 <= 10: hh1(i + NH0, ks)
    if G == 17:
        e("s_lshl_b32 s15, s13, 9"); e(f"s_add_u32 s15, s15, {R2_OFF:#x}")
        e(f"buffer_load_dword v240, v62, {SWS}, s15 offen sc1"); vm.add("res")
e("s_lshl_b32 s15, s11, 12"); e("s_add_u32 s15, s15, 16384"); e("s_xor_b32 s16, s15, 4096")
e("v_add_u32 v56, s15, v11"); e("v_add_u32 v57, s16, v11")
FULL = "nofull" not in X
if FULL:
    e("s_lshl_b32 s15, s21, 2"); e("v_add_u32 v58, s15, v7"); e("v_and_b32 v59, 7, v2"); e("v_xor_b32 v58, v58, v59"); e("v_xor_b32 v60, 2, v58")
    e("s_lshl_b32 s15, s20, 12"); e("s_add_u32 s15, s15, 32768"); e("v_lshlrev_b32 v63, 7, v9"); e("v_add_u32 v63, s15, v63")
    e("v_lshl_add_u32 v58, v58, 4, v63"); e("v_lshl_add_u32 v60, v60, 4, v63")
    e("v_lshrrev_b32 v63, 3, v2"); e("v_xor_b32 v242, v59, v63"); e("v_lshlrev_b32 v242, 4, v242"); e("v_lshl_add_u32 v242, v63, 7, v242")
    e("s_lshl_b32 s15, s11, 11"); e("s_add_u32 s15, s15, 32768"); e("v_add_u32 v242, s15, v242")
    e("v_lshlrev_b32 v243, 10, v63"); e("v_lshl_add_u32 v243, v59, 4, v243")
    e("s_lshl_b32 s27, s77, 16"); e("s_lshl_b32 s15, s11, 14"); e("s_add_u32 s27, s27, s15"); e("s_lshl_b32 s15, s28, 7"); e("s_add_u32 s27, s27, s15")
    e("s_add_u32 s26, s27, 8192")
for db in (1, 0):
    for G in (20, 21):
        for q in range(2):
            ks = 2*(G & 1) + q
            vm.wait(("HH", 10, ks)); lg.wait(("W", G, q, db))
            b = FR[G % 3] + 8*q + 4*db
            e(f"v_mfma_f32_32x32x16_bf16 {vr(ACC+16*db,16)}, {vr(b,4)}, {vr(HB+16*(10 % NHR)+4*ks,4)}, {vr(ACC+16*db,16)}")
            if db == 0 and G == 20: e("s_nop 5")
            if db == 0 and G == 21:
                for u in (2*q, 2*q+1): e(f"ds_write_b128 v56, {vr(ACC+16+4*u,4)} offset:{1024*u}")
mark(8, "p4")
e("s_waitcnt vmcnt(0) lgkmcnt(0)")
e("s_barrier")
mark(9, "p4")
for u in range(4): e(f"ds_read_b128 {vr(64+4*u,4)}, v57 offset:{1024*u}")
e("v_mov_b32 v241, v240")
e("s_nop 5")
for u in range(4):
    e(f"s_waitcnt lgkmcnt({3-u})")
    for p in range(2): e(f"v_pk_add_f32 {vr(ACC+4*u+2*p,2)}, {vr(ACC+4*u+2*p,2)}, {vr(64+4*u+2*p,2)}")
    for p in range(2): e(f"v_pk_fma_f32 {vr(ACC+4*u+2*p,2)}, {vr(ACC+4*u+2*p,2)}, v[240:241], {vr(RES+4*u+2*p,2)}")
    for p in range(2): e(f"v_cvt_pk_bf16_f32 v{32+2*u+p}, v{ACC+4*u+2*p}, v{ACC+4*u+2*p+1}")
    if u & 1:
        b = 32 + 2*(u-1)
        e("s_nop 1")
        e(f"v_permlane32_swap_b32 v{b}, v{b+2}"); e(f"v_permlane32_swap_b32 v{b+1}, v{b+3}")
        if FULL: e(f"ds_write_b128 v{58 if u == 1 else 60}, {vr(b,4)}")
        else: e(f"buffer_store_dwordx4 {vr(b,4)}, v245, {SOUT}, s27 offen offset:{16*(u-1)}{os.environ.get('OUTF', '')}")
if FULL:
    e("s_waitcnt lgkmcnt(0)"); e("s_barrier")
    e("ds_read_b128 v[40:43], v242"); e("ds_read_b128 v[44:47], v242 offset:1024")
    e("s_waitcnt lgkmcnt(1)")
    e(f"buffer_store_dwordx4 v[40:43], v243, {SOUT}, s27 offen{os.environ.get('OUTF', ' sc1')}")
    e("s_waitcnt lgkmcnt(0)")
    e(f"buffer_store_dwordx4 v[44:47], v243, {SOUT}, s26 offen{os.environ.get('OUTF', ' sc1')}")
hold("E")
if "gl" in X:
    e("s_load_dwordx2 s[84:85], s[0:1], 88"); e("s_waitcnt lgkmcnt(0)"); e("s_mov_b32 s86, 256"); e("s_mov_b32 s87, 0x20000")
    e("s_not_b32 s82, s78"); e("v_mov_b32 v1, s82"); e("v_mov_b32 v3, 0")
    e("s_mov_b64 exec, 1")
    e("s_cmp_lg_u32 s3, 0"); e("s_cbranch_scc1 L_gx")
    e("buffer_atomic_umax v1, v3, s[84:87], 0 offen sc1")
    lab("L_g0")
    e("s_memrealtime s[80:81]"); e("s_waitcnt lgkmcnt(0)"); e("s_sub_u32 s82, s80, s78"); e("s_cmp_lt_u32 s82, 2300"); e("s_cbranch_scc1 L_g0")
    e("buffer_load_dword v4, v3, s[84:87], 0 offen sc1"); e("s_waitcnt vmcnt(0)")
    e("v_readfirstlane_b32 s83, v4"); e("s_not_b32 s83, s83")
    lab("L_g1")
    e("s_memrealtime s[80:81]"); e("s_waitcnt lgkmcnt(0)"); e("s_sub_u32 s82, s80, s83"); e("s_cmp_lt_u32 s82, 3000"); e("s_cbranch_scc1 L_g1")
    lab("L_gx")
endpgm()

lab("L_H")
vm = Trk("vmcnt", 63)
e(f"v_lshlrev_b32 v4, 2, v2"); e(f"v_add_u32 v4, {FLG_L}, v4"); e("v_mov_b32 v5, 0")
e("s_mov_b64 exec, 0xffff")
e("ds_write_b32 v4, v5")
e("s_mov_b64 exec, -1")
e("v_lshlrev_b32 v11, 4, v2")
if "rowb" in X: e("s_mov_b32 s26, s2")
else: e("s_lshl_b32 s26, s31, 3"); e("s_add_u32 s26, s26, s30")
e("s_lshl_b32 s24, s26, 13"); e("s_lshl_b32 s16, s11, 11"); e("s_add_u32 s24, s24, s16")
QR = " nt" if "qrnt" in X else ""
e(f"buffer_load_dwordx4 {vr(56,4)}, v11, {SQ}, s24 offen{QR}"); e(f"buffer_load_dwordx4 {vr(60,4)}, v11, {SQ}, s24 offen offset:1024{QR}")
if "tlb" in X:
    e("s_cmp_lg_u32 s3, 7"); e("s_cbranch_scc1 L_notlb")
    e("v_lshlrev_b32 v46, 20, v2"); e("s_lshl_b32 s15, s2, 7"); e("v_add_u32 v46, s15, v46")
    e("s_mov_b64 exec, 0x3fff")
    e(f"buffer_load_dword v47, v46, {SWS}, 0 offen")
    e("s_mov_b64 exec, 3")
    for n, sr in enumerate((SOUT, SWD, SWG, SWU, SSK)): e(f"buffer_load_dword v{48+n}, v46, {sr}, 0 offen")
    e("s_mov_b64 exec, -1")
    lab("L_notlb")
e("v_lshlrev_b32 v17, 7, v2")
pass
for j in range(3):
    e(f"v_add_u32 v20, {j*64}, v2")
    e("v_mul_u32_u24 v21, 0x5556, v20"); e("v_lshrrev_b32 v21, 18, v21")
    e("v_mul_u32_u24 v22, 12, v21"); e("v_sub_u32 v22, v20, v22")
    e("v_mul_u32_u24 v21, 2752, v21"); e(f"v_lshl_add_u32 v{14+j}, v22, 4, v21")
    if j: e(f"v_subrev_u32 v{14+j}, {1024*j}, v{14+j}")
e(f"s_mul_i32 s22, s11, {16*2752}"); e("s_mul_i32 s15, s7, 192"); e("s_add_u32 s22, s22, s15")
e(f"s_mul_i32 s23, s11, {16*192}")
e("s_mov_b32 s16, 0x05040100"); e("s_mov_b32 s17, 0x07060302")
e("s_waitcnt vmcnt(3)")
mark(1)
for c in range(4):
    sel = "s17" if c & 1 else "s16"
    e(f"v_perm_b32 v{92+2*c}, v{40+(c>>1)}, v{38+(c>>1)}, {sel}")
    e(f"v_perm_b32 v{93+2*c}, v{44+(c>>1)}, v{42+(c>>1)}, {sel}")
    e(f"ds_write_b64 v13, {vr(92+2*c,2)} offset:{128*c}")
mark(7, "p1")
e("s_waitcnt lgkmcnt(0)"); e("s_barrier")
mark(8, "p1")
e("ds_read_b128 v[28:31], v124"); e("ds_read_b128 v[32:35], v125 offset:1024")
e("s_waitcnt lgkmcnt(1)")
e(f"buffer_store_dwordx4 v[28:31], v126, {SWS}, s18 offen sc1")
e("s_waitcnt lgkmcnt(0)")
e(f"buffer_store_dwordx4 v[32:35], v126, {SWS}, s19 offen sc1")
mark(9, "p1")
e("s_waitcnt vmcnt(2)")
e("v_add_u32 v254, 1, v254")
e("s_nop 0")
e("v_readfirstlane_b32 s9, v254")
for rr in range(2):
    for c in range(8): unpack(64+8*rr+c, 56+4*rr+2*(c>>2), c & 3)
def tree(dst, base):
    e(f"v_add_f32 v{dst}, v{base}, v{base+1}")
    for c in range(2, 8): e(f"v_add_f32 v{dst}, v{dst}, v{base+c}")
def reduce2(a, b):
    for m in ("row_shr:1", "row_shr:2", "row_shr:4", "row_shr:8"):
        e("s_nop 0")
        e(f"v_add_f32_dpp v{a}, v{a}, v{a} {m} row_mask:0xf bank_mask:0xf bound_ctrl:0")
        e(f"v_add_f32_dpp v{b}, v{b}, v{b} {m} row_mask:0xf bank_mask:0xf bound_ctrl:0")
    for m, rm in (("row_bcast:15", "0xa"), ("row_bcast:31", "0xc")):
        e("s_nop 0")
        e(f"v_add_f32_dpp v{a}, v{a}, v{a} {m} row_mask:{rm} bank_mask:0xf")
        e(f"v_add_f32_dpp v{b}, v{b}, v{b} {m} row_mask:{rm} bank_mask:0xf")
tree(100, 64); tree(101, 72)
e("s_nop 0")
reduce2(100, 101)
e("s_mov_b32 s18, 0x3b000000")
e("v_mul_f32 v100, s18, v100"); e("v_mul_f32 v101, s18, v101")
e("s_nop 0")
e("v_readlane_b32 s16, v100, 63"); e("v_readlane_b32 s17, v101, 63")
e("s_nop 1")
for c in range(8):
    e(f"v_subrev_f32 v{64+c}, s16, v{64+c}"); e(f"v_subrev_f32 v{72+c}, s17, v{72+c}")
e("v_mul_f32 v102, v64, v64"); e("v_mul_f32 v103, v72, v72")
for c in range(1, 8):
    e(f"v_fmac_f32 v102, v{64+c}, v{64+c}"); e(f"v_fmac_f32 v103, v{72+c}, v{72+c}")
e("s_nop 0")
reduce2(102, 103)
e("v_mov_b32 v104, 0x3727c5ac")
e("v_fma_f32 v102, v102, s18, v104"); e("v_fma_f32 v103, v103, s18, v104")
e("v_rsq_f32 v108, v102"); e("v_rsq_f32 v112, v103")
e("v_mov_b32 v110, v254"); e("v_mov_b32 v114, v254"); e("v_mov_b32 v111, v254"); e("v_mov_b32 v115, v254")
e("v_mul_f32 v109, v100, v108"); e("v_mul_f32 v113, v101, v112")
e("v_sub_f32 v109, 0, v109"); e("v_sub_f32 v113, 0, v113")
e("s_lshr_b32 s15, s26, 5"); e("s_lshl_b32 s15, s15, 12"); e("s_lshl_b32 s16, s21, 11"); e("s_add_u32 s15, s15, s16")
e("s_bfe_u32 s16, s26, 0x40001"); e("s_lshl_b32 s16, s16, 5"); e("s_add_u32 s15, s15, s16")
e("s_and_b32 s16, s26, 1"); e("s_lshl_b32 s16, s16, 1"); e("s_add_u32 s16, s16, s20"); e("s_lshl_b32 s16, s16, 9"); e("s_add_u32 s15, s15, s16")
e(f"s_add_u32 s15, s15, {STG_OFF:#x}")
e("s_mov_b32 exec_lo, 0"); e("s_mov_b32 exec_hi, 0x80000000")
e(f"buffer_store_dwordx4 v[108:111], v5, {SWS}, s15 offen sc1")
e(f"buffer_store_dwordx4 v[112:115], v5, {SWS}, s15 offen offset:16 sc1")
e("s_mov_b64 exec, -1")
mark(3)
e("s_waitcnt vmcnt(2)")
mark(10, "p1")
e("s_barrier")
mark(2)
post_flag(FL1_OFF, 4)
e("s_cmp_lg_u32 s3, 4"); e("s_cbranch_scc1 L_h_np1")
e("s_lshl_b32 s16, s4, 12"); e(f"s_add_u32 s16, s16, {FL1_OFF:#x}"); e("v_add_u32 v7, s16, v17")
e("s_mov_b32 exec_hi, 0")
poll("v7", "v8", "s9", "ap1" in X)
hold("1")
lab("L_h_np1")
e("s_barrier")
e("v_lshlrev_b32 v9, 4, v3")
e("v_lshlrev_b32 v10, 3, v3"); e(f"v_add_u32 v10, {ST_L}, v10")
for j in range(8):
    e(f"s_add_u32 s16, s5, {j}"); e("s_and_b32 s16, s16, 7"); e("s_lshl_b32 s16, s16, 11"); e(f"v_add_u32 v{100+j}, s16, v10")
def issueW(i, emit=True):
    l = []
    l.append([f"s_add_u32 s15, s8, {i}", "s_and_b32 s15, s15, 7", f"s_mul_i32 s15, s15, {64*2752}", "s_add_u32 s15, s15, s22",
              f"s_add_u32 m0, s23, {(i % 4)*WSLOT}", "s_nop 0", f"buffer_load_dwordx4 v14, {SWG}, s15 offen lds"])
    for j in (1, 2): l.append([f"buffer_load_dwordx4 v{14+j}, {SWG}, s15 offen offset:{1024*j} lds"])
    l.append([f"s_add_u32 s15, s8, {i}", "s_and_b32 s15, s15, 7", f"s_mul_i32 s15, s15, {64*2752}", "s_add_u32 s15, s15, s22",
              f"s_add_u32 m0, s23, {(i % 4)*WSLOT + W_U}", "s_nop 0", f"buffer_load_dwordx4 v14, {SWU}, s15 offen lds"])
    for j in (1, 2): l.append([f"buffer_load_dwordx4 v{14+j}, {SWU}, s15 offen offset:{1024*j} lds"])
    return [(x, ("W", i)) for x in l]
def emit_all(items):
    for x, t in items:
        for s in x: e(s)
        vm.add(t)
def stg_loads():
    for j in range(8):
        e(f"s_add_u32 s16, s5, {j}"); e("s_and_b32 s16, s16, 7"); e("s_lshl_b32 s16, s16, 12"); e(f"s_add_u32 s16, s16, {STG_OFF:#x}")
        e(f"buffer_load_dwordx4 {vr(64+4*j,4)}, v9, {SWS}, s16 offen sc1")
stg_loads()
e("s_barrier")
mark(4)
NWPRE = int(os.environ.get("NWPRE", "3"))
e("s_cmp_eq_u32 s7, 15"); e("s_cbranch_scc1 L_h_now0")
emit_all(issueW(0))
e("s_waitcnt vmcnt(6)")
e("s_branch L_stg0")
lab("L_h_now0")
e("s_waitcnt vmcnt(0)")
lab("L_stg0")
if "noprio" not in X: e("s_setprio 3")
mark(9, "p2")
e("s_mov_b32 s30, 0x100000")
lab("L_stg")
e("v_xor_b32 v50, s9, v66")
for j in range(1, 8):
    e(f"v_xor_b32 v51, s9, v{66+4*j}"); e("v_or_b32 v50, v50, v51")
e("v_cmp_ne_u32 vcc, 0, v50")
e("s_cbranch_vccz L_stgx")
e("s_sub_u32 s30, s30, 1"); e("s_cbranch_scc1 L_stgx")
stg_loads()
e("s_waitcnt vmcnt(0)")
e("s_branch L_stg")
lab("L_stgx")
mark(10, "p2")
for j in range(8): e(f"ds_write_b64 v{100+j}, {vr(64+4*j,2)}")
e("s_lshl_b32 s15, s11, 2"); e(f"s_add_u32 s15, s15, {FLG_L+16}"); e("v_mov_b32 v50, s15"); e("v_mov_b32 v51, 1")
e("ds_write_b32 v50, v51")
if "noprio" not in X: e("s_setprio 0")
mark(5)
if "nowdt" not in X:
    e("s_mul_i32 s15, s2, 5504"); e("s_mul_i32 s16, s11, 1408"); e("s_add_u32 s15, s15, s16")
    e("s_mov_b64 exec, 0x7ff")
    e(f"buffer_load_dword v250, v17, {SWD}, s15 offen"); vm.add("t")
    e("s_mov_b64 exec, -1")
e("s_cmp_eq_u32 s7, 15"); e("s_cbranch_scc1 L_h_now")
for i in range(1, NWPRE): emit_all(issueW(i))
lab("L_h_now")
mark(7, "p2")
e("v_and_b32 v20, 15, v2"); e("v_lshrrev_b32 v21, 4, v2"); e("v_lshrrev_b32 v22, 2, v20"); e("v_and_b32 v23, 3, v20")
e("v_lshrrev_b32 v24, 5, v2"); e("v_and_b32 v25, 1, v21"); e("v_lshl_add_u32 v26, v24, 3, v22")
e("v_lshlrev_b32 v27, 8, v26"); e("v_lshl_add_u32 v27, v25, 5, v27"); e("v_lshl_add_u32 v27, v23, 3, v27")
e("v_xor_b32 v17, s11, v22"); e("v_lshl_add_u32 v17, v17, 6, v27"); e(f"v_add_u32 v17, {A_L}, v17")
e("v_add_u32 v18, 16384, v17"); e("v_add_u32 v19, 32768, v17")
e("v_lshrrev_b32 v7, 3, v2"); e("v_lshlrev_b32 v7, 5, v7"); e("v_and_b32 v8, 7, v2"); e("v_add_u32 v7, v7, v8")
e("s_lshl_b32 s16, s11, 3"); e("v_add_u32 v7, s16, v7"); e("v_lshlrev_b32 v7, 7, v7"); e("s_lshl_b32 s16, s4, 15"); e(f"s_add_u32 s16, s16, {FL2_OFF:#x}"); e("v_add_u32 v7, s16, v7")
e("s_lshl_b32 s26, s6, 17"); e("s_lshl_b32 s19, s11, 12"); e("s_add_u32 s26, s26, s19"); e(f"s_add_u32 s26, s26, {HT_OFF:#x}")
for r in range(4): e(f"v_mov_b32 v{20+r}, 0")
e("s_mov_b32 s27, 0x3f803f80")
e("v_lshrrev_b32 v12, 3, v2"); e("v_and_b32 v13, 7, v2"); e("v_bfe_u32 v28, v2, 4, 1"); e("v_lshlrev_b32 v28, 2, v28"); e("v_xor_b32 v13, v13, v28")
e("v_lshlrev_b32 v12, 10, v12"); e("v_lshl_add_u32 v12, v13, 4, v12")
e("s_lshl_b32 s24, s11, 15"); e("s_lshl_b32 s16, s28, 7"); e("s_add_u32 s24, s24, s16")
def issueWd(i):
    l = [[f"s_add_u32 s15, s29, {i if 'wdsame' not in X else i % 3}", "s_cmp_ge_u32 s15, 11", "s_cselect_b32 s16, 11, 0", "s_sub_u32 s15, s15, s16",
          "s_lshl_b32 s15, s15, 17", "s_add_u32 s15, s15, s24", f"s_add_u32 m0, s19, {(i % 10)*16384}", "s_nop 0",
          f"buffer_load_dwordx4 v12, {SWD}, s15 offen lds"]]
    for j in (1, 2, 3): l.append([f"s_add_u32 s16, s15, {j*7168}", f"buffer_load_dwordx4 v12, {SWD}, s16 offen offset:{1024*j} lds"])
    return [(x, ("Wd", i)) for x in l]
WR = 122
def issueWdR(i):
    r = WR + 16*(i-3)
    l = [[f"s_add_u32 s15, s29, {i}", "s_cmp_ge_u32 s15, 11", "s_cselect_b32 s16, 11, 0", "s_sub_u32 s15, s15, s16",
          "s_lshl_b32 s15, s15, 17", "s_add_u32 s15, s15, s24", f"buffer_load_dwordx4 {vr(r,4)}, v12, {SWD}, s15 offen"]]
    for j in (1, 2, 3): l.append([f"s_add_u32 s16, s15, {j*8192}", f"buffer_load_dwordx4 {vr(r+4*j,4)}, v12, {SWD}, s16 offen"])
    return [(x, ("Wd", i)) for x in l]
def writeWdR(i):
    r = WR + 16*(i-3); off = (i % 10)*16384
    for j in range(4): e(f"ds_write_b128 v{30 + (off >> 16)}, {vr(r+4*j,4)} offset:{(off & 0xffff) + 1024*j}")
RSCH = eval(os.environ.get("RSCH", "{0: [10,9,8]}"))
e("v_mov_b32 v118, 1"); e("v_lshlrev_b32 v119, 10, v2"); e("s_lshl_b32 s16, s4, 7"); e(f"s_add_u32 s16, s16, {FL2_OFF:#x}"); e("v_add_u32 v119, s16, v119")
e("v_lshlrev_b32 v120, 7, v2"); e(f"s_and_b32 s16, s2, {NREP-1}"); e("s_lshl_b32 s16, s16, 10"); e(f"s_add_u32 s16, s16, {FL2_OFF:#x}"); e("v_add_u32 v120, s16, v120")
e("s_lshl_b32 s25, s9, 6"); e("s_add_u32 s25, s25, 32")
if RSCH.get('p'):
    e("s_cmp_eq_u32 s7, 15"); e("s_cbranch_scc1 L_now3")
    for k in RSCH['p']: emit_all(issueWdR(k))
    lab("L_now3")
vm.wait(("W", 0))
mark(8, "p2")
e("s_barrier")
mark(6)
if "f256" in X:
    post_flag(FL2_OFF, 4, 8)
    poll("v7", "v8"); vm.clear()
else:
    e("s_cmp_lg_u32 s3, 4"); e("s_cbranch_scc1 L_noadd")
    e(f"s_mov_b32 exec_lo, {(1 << NREP) - 1:#x}"); e("s_mov_b32 exec_hi, 0")
    e(f"buffer_atomic_add v118, v119, {SWS}, 0 offen sc1")
    e("s_mov_b64 exec, -1")
    lab("L_noadd")
    e("s_cmp_eq_u32 s7, 15"); e("s_cbranch_scc1 L_now2")
    for k in range(NWPRE, 4 if "w3it0" not in X else 3): emit_all(issueW(k))
    for k in RSCH.get('w', []): emit_all(issueWdR(k))
    lab("L_now2")
    e("s_cmp_lg_u32 s3, 4"); e("s_cbranch_scc1 L_nopoll2")
    e("s_mov_b64 exec, 0xff")
    poll("v120", "v8", "s25", "ap2" in X)
    hold("2")
    lab("L_nopoll2")
e("s_barrier")
e("s_cmp_eq_u32 s7, 15"); e("s_cbranch_scc1 L_h_idle")
def issueA(i, dst=None):
    if dst is None: dst = A_L + (i % 3)*16384
    l = [[f"s_add_u32 s15, s8, {i}", "s_and_b32 s15, s15, 7", "s_lshl_b32 s15, s15, 14", "s_add_u32 s15, s15, s26",
          f"s_add_u32 m0, s19, {dst}", "s_nop 0", f"buffer_load_dwordx4 v11, {SWS}, s15 offen sc1 lds"]]
    for j in (1, 2, 3): l.append([f"buffer_load_dwordx4 v11, {SWS}, s15 offen offset:{1024*j} sc1 lds"])
    return [(x, ("A", i)) for x in l]
for i in range(3): emit_all(issueA(i))
mark(7)
vm.wait(("A", 0))
e("s_barrier")
mark(1, "it2"); mark(1, "it3")
corr_items = [(["s_mul_i32 s15, s7, 3072", "s_lshl_b32 s16, s11, 10", "s_add_u32 s15, s15, s16", f"s_add_u32 s15, s15, {CSF_OFF:#x}",
                "s_lshl_b32 s17, s6, 11", f"s_add_u32 s17, s17, {ST2_OFF:#x}", "s_cmp_eq_u32 s11, 3", "s_cselect_b32 s15, s17, s15",
                f"s_add_u32 m0, s16, {CORR_L}", "s_nop 0", f"buffer_load_dwordx4 v11, {SWS}, s15 offen sc1 lds"], "corr"),
              ([f"s_mov_b32 m0, {CORR_L+3072}", "s_nop 0", f"buffer_load_dwordx4 v11, {SWS}, s17 offen offset:1024 sc1 lds"], "corr")]
Wh = lambda k, h: issueW(k)[3*h:3*h+3]
SCHED = {1: Wh(4,0)+Wh(4,1), 2: Wh(5,0), 3: Wh(5,1)+Wh(6,0), 4: Wh(6,1)+Wh(7,0), 5: Wh(7,1)+issueWd(0), 6: corr_items+issueWd(1)+issueWd(2)}
if "nosmooth" in X:
    SCHED = {1: issueW(4), 2: issueW(5), 3: issueW(6), 4: issueW(7), 5: issueWd(0)+corr_items, 6: issueWd(1)+issueWd(2), 7: issueWd(3)}
for i in range(8):
    items = []
    if 1 <= i <= 5: items += issueA(i+2)
    if i == 0 and "w3it0" in X: items += issueW(3)
    items += SCHED.get(i, [])
    for k in RSCH.get(i, []): items += issueWdR(k)
    emit_all(items)
    if i < 7:
        vm.wait(("A", i+1), ("W", i+1))
        mark(2+i, "it3")
        e("s_barrier")
        mark(2+i, "it2")
vm.wait("corr"); mark(9, "it3"); e("s_barrier")
mark(9, "it2")
mark(8)
NPRE = int(os.environ.get("NPRE", "10"))
e("v_add_u32 v30, s19, v11"); e("v_add_u32 v31, 0x10000, v30"); e("v_add_u32 v32, 0x20000, v30")
RSET = sorted(sum(RSCH.values(), []))
assert 9 in RSET and 10 in RSET
for i in range(3, 9):
    if i not in RSET: emit_all(issueWd(i))
for i in range(3, 9):
    if i in RSET: vm.wait(("Wd", i)); writeWdR(i)
vm.wait(("Wd", 0), ("Wd", 9), ("Wd", 10))
e("s_barrier")
mark(9)
writeWdR(9)
e("s_barrier")
writeWdR(10)
e("s_waitcnt vmcnt(0) lgkmcnt(0)")
e("s_branch L_h_p40")
lab("L_h_idle")
mark(1, "it2")
for i in range(8): emit_all(issueA(i, i*16384))
mark(2, "it2")
e(f"v_subrev_u32 v17, {A_L}, v17")
for r in range(4): e(f"v_mov_b32 v{28+r}, s27")
FS = 100
for half in range(2):
    e(f"s_waitcnt vmcnt({16 - 16*half})"); e("s_barrier")
    mark(3+half, "it2")
    lg.clear()
    rds = [(f"ds_read_b64_tr_b16 {vr(FS+64*half+4*q+2*hh,2)}, v17 offset:{4096*q+1024*hh}", q) for q in range(16) for hh in range(2)]
    for s_, t in rds[:12]: e(s_); lg.add(t)
    rds = rds[12:]
    for q in range(16):
        lg.wait(q)
        e(f"v_mfma_f32_32x32x16_bf16 v[64:79], v[28:31], {vr(FS+64*half+4*q,4)}, {'v[64:79]' if (half or q) else '0'}")
        for s_, t in rds[:2]: e(s_); lg.add(t)
        rds = rds[2:]
    e("v_add_u32 v17, 0x10000, v17")
for q in range(4): e(f"v_mfma_f32_32x32x16_bf16 v[80:95], {vr(FS+4*q,4)}, {vr(FS+4*q,4)}, {'v[80:95]' if q else '0'}")
e("s_nop 7")
e("v_mul_f32 v27, s18, v64")
e("v_sub_f32 v24, 0, v27")
e("v_cvt_pk_bf16_f32 v20, v24, v24")
e("v_and_b32 v25, s14, v20"); e("v_sub_f32 v25, v24, v25"); e("v_mov_b32 v22, 0")
e("v_cvt_pk_bf16_f32 v21, v25, v22")
e("v_mov_b32 v23, v254")
e("s_lshl_b32 s15, s6, 11"); e("s_lshl_b32 s16, s11, 9"); e("s_add_u32 s15, s15, s16"); e(f"s_add_u32 s15, s15, {ST2_OFF:#x}")
e("s_mov_b32 exec_hi, 0")
e(f"buffer_store_dwordx4 v[20:23], v11, {SWS}, s15 offen sc1")
e("s_mov_b64 exec, -1")
mark(7, "it2")
e("s_barrier")
spw = sum([issueWd(i) for i in range(10)], [])
for q in range(4, 32):
    e(f"v_mfma_f32_32x32x16_bf16 v[80:95], {vr(FS+4*q,4)}, {vr(FS+4*q,4)}, v[80:95]")
    emit_all(spw[:1]); spw = spw[1:]
emit_all(spw)
e("v_bfe_u32 v22, v2, 3, 2"); e("v_lshlrev_b32 v22, 2, v22"); e("v_and_b32 v23, 3, v2"); e("v_add_u32 v22, v22, v23")
e("v_bfe_u32 v23, v2, 2, 1"); e("v_lshrrev_b32 v24, 5, v2"); e("v_xor_b32 v23, v23, v24"); e("v_lshl_add_u32 v22, v23, 4, v22")
e("v_mov_b32 v21, 0")
e("s_nop 7")
for r in range(16):
    e(f"v_cmp_eq_u32 s[{100 if False else 76}:{77}], {r}, v22" if r & 1 else f"v_cmp_eq_u32 vcc, {r}, v22")
    e("s_nop 1")
    e(f"v_cndmask_b32 v21, v21, v{80+r}, s[76:77]" if r & 1 else f"v_cndmask_b32 v21, v21, v{80+r}, vcc")
e("v_mov_b32 v23, v21")
e("s_nop 1")
e("v_permlane32_swap_b32 v23, v21")
e("s_nop 1")
e("v_add_f32 v21, v21, v23")
e("v_mul_f32 v21, s18, v21")
e("v_fma_f32 v21, -v27, v27, v21"); e("v_max_f32 v21, 0, v21"); e("v_add_f32 v21, 0x3727c5ac, v21")
e("v_rcp_f32 v22, v21")
e("v_lshlrev_b32 v23, 2, v2")
e("s_lshl_b32 s15, s6, 9"); e("s_lshl_b32 s16, s11, 7"); e("s_add_u32 s15, s15, s16"); e(f"s_add_u32 s15, s15, {R2_OFF:#x}")
e("s_mov_b32 exec_hi, 0")
e(f"buffer_store_dword v22, v23, {SWS}, s15 offen sc1")
e("s_mov_b64 exec, -1")
e("s_waitcnt vmcnt(0)")
mark(8); mark(8, "it2")
vm.clear()
assert NPRE == 10
e("s_barrier")
mark(9)
e("s_barrier")
for i in range(NPRE, 11): emit_all(issueWd(i))
e("s_waitcnt vmcnt(0)")
lab("L_h_p40")
mark(10)
e("s_barrier")
e("s_cmp_lg_u32 s2, 0"); e("s_cbranch_scc1 L_hend")
e("s_cmp_lg_u32 s3, 4"); e("s_cbranch_scc1 L_hend")
e("s_mov_b64 exec, 1")
e(f"buffer_store_dword v254, v255, {SWS}, 0 offen sc1")
lab("L_hend")
if STAMP: e("s_barrier"); e("s_barrier"); e("s_barrier")
endpgm()
lab("L_end")

hdr = open("sequential_preLN__ssm_conv_h3__glu_gated_reglu__prompt.s.ref").read().split("; Override")[0]
s = hdr + f"; @launch grid=(256,1,1) block=(512,1,1) lds={LDS_BYTES}\n"
s += '.amdgcn_target "amdgcn-amd-amdhsa--gfx950"\n.text\n'
s += f".globl {NAME}\n.p2align 8\n.type {NAME},@function\n{NAME}:\n" + "\n".join(L) + "\n    s_endpgm\n"
s += f""".section .rodata,"a"
.p2align 6
.amdhsa_kernel {NAME}
  .amdhsa_next_free_vgpr 256
  .amdhsa_next_free_sgpr 102
  .amdhsa_accum_offset 256
  .amdhsa_group_segment_fixed_size 0
  .amdhsa_kernarg_size 104
  .amdhsa_user_sgpr_count 2
  .amdhsa_user_sgpr_kernarg_segment_ptr 1
  .amdhsa_system_sgpr_workgroup_id_x 1
  .amdhsa_float_denorm_mode_32 3
.end_amdhsa_kernel
"""
open(OUT, "w").write(s)
```
